```python
import torch

def _softmax(x, axis=-1):
    return torch.softmax(x, dim=axis)
def _gelu(x):
    return torch.nn.functional.gelu(x, approximate="tanh")
def _silu(x):
    return torch.nn.functional.silu(x)
def _sigmoid(x):
    return torch.sigmoid(x)
def _layernorm(x, axis=-1, eps=1e-5):
    m = x.mean(dim=axis, keepdim=True)
    v = x.var(dim=axis, keepdim=True, unbiased=False)
    return (x - m) / torch.sqrt(v + eps)
def _scatter_add(tgt, idx, src, axis=0):
    return tgt.clone().index_add_(axis, idx, src)
def _segment_sum(src, seg, n):
    out = torch.zeros((n,) + src.shape[1:], dtype=src.dtype)
    return out.index_add_(0, seg, src)
def _pad(x, pw):
    flat = tuple(v for pair in reversed(pw) for v in pair)
    return torch.nn.functional.pad(x, flat)

kernel_name = 'concat_heads__gqa_block_cached__mha_block_cached__near_ridge'

def setup_inputs():

    _w = (lambda a: (lambda t: t.to(torch.bfloat16) if t.is_floating_point() else t)(torch.as_tensor(a)))
    def _A_setup():
        B, Sq, D = 32, 64, 512
        Hq, Hkv, Sk, Dh = 32, 8, 512, 128
        assert Hq % Hkv == 0, (Hq, Hkv)
        return {
            "x": _w((lambda *s: torch.randn(*s, dtype=torch.bfloat16) * 0.8)(B, Sq, D)),
            "k_cache": _w((lambda *s: torch.randn(*s, dtype=torch.bfloat16) * 0.8)(B, Hkv, Sk, Dh)),
            "v_cache": _w((lambda *s: torch.randn(*s, dtype=torch.bfloat16) * 0.05)(B, Hkv, Sk, Dh)),
            "wq": _w((lambda *s: torch.randn(*s, dtype=torch.bfloat16) * 0.8)(D, Hq * Dh) * (D ** -0.5)),
            "wo": _w((lambda *s: torch.randn(*s, dtype=torch.bfloat16) * 0.05)(Hq * Dh, D) * ((Hq * Dh) ** -0.5)),
        }
    _A_in = _A_setup()

    def _B_setup():
        B, Sq, D = 32, 64, 512
        H, Sk, Dh = 32, 512, 128
        return {
            "x": _w((lambda *s: torch.randn(*s, dtype=torch.bfloat16) * 0.8)(B, Sq, D)),
            "k_cache": _w((lambda *s: torch.randn(*s, dtype=torch.bfloat16) * 0.8)(B, H, Sk, Dh)),
            "v_cache": _w((lambda *s: torch.randn(*s, dtype=torch.bfloat16) * 0.05)(B, H, Sk, Dh)),
            "wq": _w((lambda *s: torch.randn(*s, dtype=torch.bfloat16) * 0.8)(D, H * Dh) * (D ** -0.5)),
            "wo": _w((lambda *s: torch.randn(*s, dtype=torch.bfloat16) * 0.05)(H * Dh, D) * ((H * Dh) ** -0.5)),
        }
    _B_in = _B_setup()

    return {
        "A_x": _A_in["x"],
        "A_k_cache": _A_in["k_cache"],
        "A_v_cache": _A_in["v_cache"],
        "A_wq": _A_in["wq"],
        "A_wo": _A_in["wo"],
        "B_x": _B_in["x"],
        "B_k_cache": _B_in["k_cache"],
        "B_v_cache": _B_in["v_cache"],
        "B_wq": _B_in["wq"],
        "B_wo": _B_in["wo"],
    }

def reference(A_x, A_k_cache, A_v_cache, A_wq, A_wo, B_x, B_k_cache, B_v_cache, B_wq, B_wo):
    def _A_ref(x, k_cache, v_cache, wq, wo):
        B, Sq, D = x.shape
        Hq, Dh = 32, 128
        Hkv = k_cache.shape[1]
        rep = Hq // Hkv
        q = (lambda x, *d: x.permute(*d))((x @ wq).reshape(B, Sq, Hq, Dh), 0, 2, 1, 3)
        k = (lambda x, n, axis: torch.repeat_interleave(x, n, dim=axis))(k_cache, rep, axis=1)
        v = (lambda x, n, axis: torch.repeat_interleave(x, n, dim=axis))(v_cache, rep, axis=1)
        scores = torch.einsum("bhqd,bhkd->bhqk", q, k) * (Dh ** -0.5)
        p = _softmax(scores, axis=-1)
        o = torch.einsum("bhqk,bhkd->bhqd", p, v)
        return (lambda x, *d: x.permute(*d))(o, 0, 2, 1, 3).reshape(B, Sq, Hq * Dh) @ wo

    def _B_ref(x, k_cache, v_cache, wq, wo):
        B, Sq, D = x.shape
        H, Dh = 32, 128
        q = (lambda x, *d: x.permute(*d))((x @ wq).reshape(B, Sq, H, Dh), 0, 2, 1, 3)
        scores = torch.einsum("bhqd,bhkd->bhqk", q, k_cache) * (Dh ** -0.5)
        p = _softmax(scores, axis=-1)
        o = torch.einsum("bhqk,bhkd->bhqd", p, v_cache)
        return (lambda x, *d: x.permute(*d))(o, 0, 2, 1, 3).reshape(B, Sq, H * Dh) @ wo

    a = _A_ref(A_x, A_k_cache, A_v_cache, A_wq, A_wo)
    b = _B_ref(B_x, B_k_cache, B_v_cache, B_wq, B_wo)
    return torch.concatenate([a, b], axis=-1)
```

```python
import re

def _regs(tok):
    tok = tok.strip()
    tok = tok.lstrip('-')
    m = re.fullmatch(r'abs\((.*)\)', tok)
    if m: tok = m.group(1)
    m = re.fullmatch(r'([vsa])(\d+)', tok)
    if m: return [(m.group(1), int(m.group(2)))]
    m = re.fullmatch(r'([vsa])\[(\d+):(\d+)\]', tok)
    if m: return [(m.group(1), i) for i in range(int(m.group(2)), int(m.group(3)) + 1)]
    if tok in ('vcc', 'vcc_lo', 'vcc_hi'): return [('x', 'vcc')]
    if tok in ('exec', 'exec_lo', 'exec_hi'): return [('x', 'exec')]
    if tok == 'm0': return [('x', 'm0')]
    return []

TRANS = ('v_exp_f32', 'v_log_f32', 'v_rcp_f32', 'v_rsq_f32', 'v_sqrt_f32', 'v_sin_f32', 'v_cos_f32')

class Ins:
    def __init__(self, text):
        self.text = text
        body = text.split(';')[0].strip()
        self.label = None; self.op = None
        self.w = set(); self.r = set()
        self.A = self.B = self.C = self.D = None
        self.kind = 'other'; self.target = None; self.states = 1
        if body == '' or body.startswith('.'):
            self.kind = 'dir'; self.states = 0; return
        if body.endswith(':'):
            self.label = body[:-1]; self.kind = 'label'; self.states = 0; return
        parts = body.split(None, 1)
        op = self.op = parts[0]
        rest = parts[1] if len(parts) > 1 else ''
        ops = [o.strip() for o in rest.split(',')] if rest else []
        mods = ''
        if ops:
            lp = ops[-1].split(None, 1)
            ops[-1] = lp[0]
            mods = lp[1] if len(lp) > 1 else ''
        self.mods = mods
        R = [_regs(o) for o in ops]
        if op.startswith('v_mfma'):
            self.kind = 'mfma'
            self.D, self.A, self.B, self.C = map(set, R[:4])
            self.passes = 8 if '32x32x16' in op else 4
            self.w = set(self.D); self.r = self.A | self.B | self.C
        elif op.startswith('v_'):
            self.kind = 'valu'
            if op.startswith('v_permlane'):
                self.w = set(R[0]) | set(R[1]); self.r = set(self.w)
            else:
                self.w = set(R[0]) if R else set()
                for x in R[1:]: self.r |= set(x)
                if op.startswith('v_fmac') or op.startswith('v_dot2c') or op.startswith('v_writelane'): self.r |= set(R[0])
                if op.startswith('v_cmpx'): self.w.add(('x', 'exec'))
                if op.startswith(('v_add_co', 'v_addc_co', 'v_sub_co')):
                    self.w |= set(R[1]); self.r -= set(R[1])
                    if op.startswith('v_addc_co'): self.r |= set(R[4])
        elif op.startswith('ds_'):
            self.kind = 'ds'
            if op.startswith(('ds_read', 'ds_bpermute', 'ds_permute', 'ds_swizzle')) or '_rtn' in op:
                self.w = set(R[0])
                for x in R[1:]: self.r |= set(x)
            else:
                for x in R: self.r |= set(x)
        elif op.startswith(('buffer_', 'global_')):
            self.kind = 'vmem'
            self.lds = bool(re.search(r'\blds\b', mods)) or '_lds_' in op
            self.store = 'store' in op or 'atomic' in op
            if self.lds:
                for x in R: self.r |= set(x)
                self.r.add(('x', 'm0'))
            elif self.store:
                for x in R: self.r |= set(x)
                self.data = set(R[0]) if op.startswith('buffer_') else set(R[1])
                self.wide = op.endswith(('x3', 'x4'))
                if 'atomic' in op and re.search(r'\bsc0\b', mods): self.w = set(R[0])
            elif R:
                self.w = set(R[0])
                for x in R[1:]: self.r |= set(x)
        elif op.startswith('s_'):
            self.kind = 'salu'
            if op == 's_nop': self.states = int(ops[0], 0) + 1
            elif op.startswith('s_cbranch') or op == 's_branch':
                self.kind = 'branch'; self.target = ops[0]
            elif op == 's_endpgm': self.kind = 'end'
            elif op.startswith(('s_cmp', 's_bitcmp')):
                for x in R: self.r |= set(x)
            elif op.startswith(('s_waitcnt', 's_barrier', 's_setprio', 's_sleep')): pass
            else:
                self.w = set(R[0]) if R else set()
                for x in R[1:]: self.r |= set(x)
                if 'saveexec' in op: self.w.add(('x', 'exec'))

def need(p, c):
    n = 0
    vw = {x for x in p.w if x[0] in 'va'}
    sw = {x for x in p.w if x[0] in 'sx'}
    if p.kind == 'valu':
        if c.kind == 'mfma' and vw & c.r: n = max(n, 2)
        if c.kind == 'mfma' and ('x', 'exec') in p.w: n = max(n, 4)
        if c.kind == 'valu':
            if c.op.startswith('v_permlane') and vw & c.r: n = max(n, 2)
            if 'dpp' in c.text or 'row_' in c.text:
                if vw & c.r: n = max(n, 2)
            if c.op.startswith(('v_readfirstlane', 'v_readlane')) and vw & c.r: n = max(n, 1)
            if p.op in TRANS and c.op not in TRANS and vw & c.r: n = max(n, 1)
            if sw & c.r: n = max(n, 4 if c.op.startswith(('v_readlane', 'v_writelane')) else 2)
            if ('x', 'vcc') in p.w and c.op.startswith('v_cndmask'): n = max(n, 2)
        if c.kind == 'vmem' and sw & c.r: n = max(n, 5)
        if p.op in TRANS and c.kind in ('vmem', 'ds') and vw & c.r: n = max(n, 1)
    if p.kind == 'salu':
        if ('x', 'm0') in p.w and c.kind == 'vmem' and getattr(c, 'lds', False): n = max(n, 1)
    if p.kind == 'vmem' and getattr(p, 'store', False) and getattr(p, 'wide', False):
        if c.w & p.data: n = max(n, 2 if c.kind == 'valu' else 1)
    if p.kind == 'mfma':
        big = {4: 8, 8: 12}[p.passes]
        if c.kind == 'mfma':
            if p.D & (c.A | c.B): n = max(n, big)
            if p.D & c.C:
                if not (p.D == c.C and p.passes == c.passes): n = max(n, {4: 6, 8: 10}[p.passes])
            elif p.D & c.D:
                n = max(n, {4: 6, 8: 10}[p.passes])
        elif c.kind in ('valu', 'ds', 'vmem'):
            if p.D & (c.r | c.w): n = max(n, big)
            if c.kind == 'valu' and p.C & c.w: n = max(n, {4: 3, 8: 7}[p.passes])
    return n

class Asm:
    def __init__(self):
        self.ins = []
    def __call__(self, text):
        for l in text.split('\n'):
            self.ins.append(Ins(l))
    def pad(self):
        total = 0
        changed = True
        while changed:
            changed = False
            ins = self.ins
            labels = {x.label: i for i, x in enumerate(ins) if x.label}
            jumps = {}
            for i, x in enumerate(ins):
                if x.kind == 'branch': jumps.setdefault(labels[x.target], []).append(i)
            def preds(i):
                out = []
                if i > 0:
                    p = ins[i-1]
                    if not (p.kind == 'end' or p.op == 's_branch'): out.append(i-1)
                out += jumps.get(i, [])
                return out
            for i, c in enumerate(ins):
                if c.kind not in ('mfma', 'valu', 'ds', 'vmem'): continue
                short = 0
                stack = [(j, 0) for j in preds(i)]
                seen = {}
                while stack:
                    j, dist = stack.pop()
                    if dist >= 12 or seen.get(j, 99) <= dist: continue
                    seen[j] = dist
                    p = ins[j]
                    if p.states:
                        nd = need(p, c)
                        if nd > dist: short = max(short, nd - dist)
                    for k in preds(j): stack.append((k, dist + p.states))
                if short:
                    self.ins.insert(i, Ins(f"s_nop {short-1}"))
                    total += short
                    changed = True
                    break
        return total
    def text(self):
        out = []
        for x in self.ins:
            t = x.text
            out.append(t if (x.label or x.kind == 'dir') else "    " + t)
        return "\n".join(out) + "\n"
```

```python
import sys, math, struct
from asmlib import Asm

NAME = "concat_heads__gqa_block_cached__mha_block_cached__near_ridge"
BLK = 1088; HALF = 4*BLK; SLOT = 8*BLK
KS0 = 0
VS0 = 4*SLOT
XB = VS0
XROW = 1040
AS0 = 8*SLOT
WR0 = 12*SLOT
WRING = 3*HALF
LDS = WR0 + 4*WRING
assert XB + 64*XROW <= WR0 and LDS <= 163840

sK, sV, sWQ, sWO, sX, sP, sIT, sPF = 32, 36, 40, 44, 48, 52, 56, 60
sROLE, sW, sG, sB, sD, sI, sROT, sOFF, sWRB, sKB, sVB, sC, sT, sTMP, sTMP2, sD4, sWOFF = range(64, 81)
sDK, sDV = 81, 82
sST = 84
def srd(n): return f"s[{n}:{n+3}]"
ACC = 0; Q = 128; S = 192; F = 224; L = 236; ONES = 244; M = 248
vKE, vKO, vVA, vDK, vDV, vT = 250, 251, 252, 253, 254, 255
AF = 128; BF = 160; vWO = 176; vXA = 180; vWA = 181; vXW = 182; vLN = 183
def vr(b, n): return f"v[{b}:{b+n-1}]"
def acc(dt, qt): return ACC + (dt*2 + qt)*16
def f2u(x): return struct.unpack("<I", struct.pack("<f", x))[0]

def gen(kv="nt", wq_pf="nt", w_pf="", wflag="", xflag="nt", stamps=False, dmin=1, dmax=11, prioA=0, prioB=0, T=10.0, pstore="", rot_mul=1):
    a = Asm(); e = a
    nst = [0]
    def stamp(i):
        if stamps: e(f"s_memrealtime s[{sST+2*i}:{sST+2*i+1}]")
    def lane(v):
        e(f"v_mbcnt_lo_u32_b32 v{v}, -1, 0"); e(f"v_mbcnt_hi_u32_b32 v{v}, -1, v{v}")

    def tr_lane(dst, ln, t0, t1):
        e(f"v_bfe_u32 v{t0}, v{ln}, 2, 2"); e(f"v_mul_u32_u24 v{dst}, {BLK}, v{t0}")
        e(f"v_lshrrev_b32 v{t0}, 5, v{ln}"); e(f"v_lshl_add_u32 v{dst}, v{t0}, 8, v{dst}")
        e(f"v_bfe_u32 v{t0}, v{ln}, 4, 1"); e(f"v_lshl_add_u32 v{dst}, v{t0}, 5, v{dst}")
        e(f"v_and_b32 v{t0}, 1, v{ln}"); e(f"v_lshl_add_u32 v{dst}, v{t0}, 4, v{dst}")
        e(f"v_bfe_u32 v{t0}, v{ln}, 1, 1"); e(f"v_lshl_add_u32 v{dst}, v{t0}, 3, v{dst}")

    def proj_setup(sh):
        t0, t1 = 184, 185
        lane(vLN)
        e(f"v_bfe_u32 v{t0}, v{vLN}, 4, 1"); e(f"v_lshlrev_b32 v{vWO}, {sh+3}, v{t0}")
        e(f"v_lshrrev_b32 v{t0}, 5, v{vLN}"); e(f"v_lshl_add_u32 v{vWO}, v{t0}, {sh+2}, v{vWO}")
        e(f"v_and_b32 v{t0}, 15, v{vLN}"); e(f"v_lshl_add_u32 v{vWO}, v{t0}, 4, v{vWO}")
        for r in (3, 2, 1, 0):
            e(f"v_add_u32 v{vWO+r}, {r*((1 << sh) - BLK) + 192}, v{vWO}")
        tr_lane(vWA, vLN, t0, t1)
        e(f"v_add_u32 v{vWA}, s{sWRB}, v{vWA}")
        e(f"v_and_b32 v{t0}, 31, v{vLN}"); e(f"v_mul_u32_u24 v{vXA}, {XROW}, v{t0}")
        e(f"v_lshrrev_b32 v{t0}, 5, v{vLN}"); e(f"v_lshl_add_u32 v{vXA}, v{t0}, 4, v{vXA}")
        e(f"v_add_u32 v{vXA}, {XB}, v{vXA}")
        e(f"s_mov_b32 s{sWOFF}, 0")

    def wslot(n): return (n + 1) % 3
    def w_issue_list(n, sr, sh):
        out = [f"s_add_u32 m0, s{sWRB}, {wslot(n)*HALF}"]
        for r in range(4):
            out.append(f"buffer_load_dwordx4 v{vWO+r}, {srd(sr)}, s{sWOFF} offen offset:{r*BLK} {wflag} lds")
        out.append(f"s_add_u32 s{sWOFF}, s{sWOFF}, {16 << sh}")
        return out
    def tile_issue_list(sr, voff, sbase, imm, blocks=range(8), soff=sOFF):
        out = []
        for j in blocks:
            if j == 4: out.append(f"s_add_u32 s{soff}, s{soff}, 4096")
            out.append(f"s_add_u32 m0, s{sbase}, {imm + j*BLK - (j % 4)*1024}")
            out.append(f"buffer_load_dwordx4 v{voff}, {srd(sr)}, s{soff} offen offset:{(j % 4)*1024} {kv} lds")
        return out
    def emit(lst):
        for x in lst: e(x)

    def proj(kind):
        sr, sh = (sWQ, 13) if kind == "q" else (sWO, 10)
        def reads(n):
            p = n % 2; out = []
            def rb(qt): return f"ds_read_b128 {vr(BF + p*8 + qt*4, 4)}, v{vXA} offset:{qt*32*XROW + n*32}"
            def ra(dt, ee): return f"ds_read_b64_tr_b16 {vr(AF + p*16 + dt*4 + ee*2, 2)}, v{vWA} offset:{wslot(n)*HALF + ee*512 + dt*64}"
            out = [rb(0), ra(0, 0), ra(0, 1), rb(1)]
            for dt in (1, 2, 3): out += [ra(dt, 0), ra(dt, 1)]
            return out
        e("s_waitcnt vmcnt(8)")
        emit(reads(0))
        e("s_waitcnt lgkmcnt(0)")
        for n in range(32):
            p = n % 2
            rd = reads(n + 1) if n < 31 else []
            dm = w_issue_list(n + 3, sr, sh) if n + 3 < 32 else []
            if kind == "q" and n == 29:
                dm = [f"s_mov_b32 s{sOFF}, s{sROT}"] + tile_issue_list(sIT, vDV, sWRB, 0, range(0, 4))
            if kind == "q" and n == 30:
                dm = tile_issue_list(sIT, vDV, sWRB, 0, range(4, 8))
            if n < 31:
                if n <= 29: e("s_waitcnt vmcnt(4)")
                else: e("s_waitcnt vmcnt(4)" if kind == "q" else "s_waitcnt vmcnt(0)")
            gaps = [[] for _ in range(8)]
            for i, x in enumerate(rd): gaps[i // 2].append(x)
            if dm:
                per = math.ceil(len(dm) / 5)
                for i, x in enumerate(dm): gaps[min(7, 2 + i // per)].append(x)
            k = 0
            for dt in range(4):
                for qt in range(2):
                    c = vr(acc(dt, qt), 16) if n else "0"
                    e(f"v_mfma_f32_32x32x16_bf16 {vr(acc(dt, qt), 16)}, {vr(AF + p*16 + dt*4, 4)}, {vr(BF + p*8 + qt*4, 4)}, {c}")
                    emit(gaps[k]); k += 1
            if n < 31: e("s_waitcnt lgkmcnt(0)")

    uid = [0]
    rare = []
    def tile(after_qk, before_v, after_pv):
        uid[0] += 1; u = uid[0]
        def kr(t): return f"ds_read_b128 {vr(F + (t % 3)*4, 4)}, v{vKE if t % 2 == 0 else vKO} offset:{(t >> 1)*64}"
        for t in range(3): e(kr(t))
        for t in range(8):
            e(f"s_waitcnt lgkmcnt({min(2, 7 - t)})")
            for qt in range(2):
                c = vr(S + qt*16, 16) if t else "0"
                e(f"v_mfma_f32_32x32x16_bf16 {vr(S + qt*16, 16)}, {vr(F + (t % 3)*4, 4)}, {vr(Q + (qt*8 + t)*4, 4)}, {c}")
            if t + 3 < 8: e(kr(t + 3))
        after_qk()
        tm = [F + 8, F + 9]
        for qt in range(2): e(f"v_max3_f32 v{tm[qt]}, v{S+qt*16}, v{S+qt*16+1}, v{S+qt*16+2}")
        for i in range(6):
            for qt in range(2): e(f"v_max3_f32 v{tm[qt]}, v{tm[qt]}, v{S+qt*16+3+2*i}, v{S+qt*16+4+2*i}")
        for qt in range(2): e(f"v_max_f32 v{tm[qt]}, v{tm[qt]}, v{S+qt*16+15}")
        e(f"v_fma_f32 v{F+10}, v{tm[0]}, s{sC}, -v{M}")
        e(f"v_fma_f32 v{F+11}, v{tm[1]}, s{sC}, -v{M+1}")
        e(f"v_max_f32 v{F+10}, v{F+10}, v{F+11}")
        e(f"v_cmp_lt_f32 vcc, s{sT}, v{F+10}")
        e(f"s_cbranch_vccnz L_rare{u}")
        e(f"L_back{u}:")
        rare.append(u)
        before_v()
        bufs = [F, F + 4, F + 8, S + 4, S + 16 + 4, F, F + 4, F + 8]
        def vrd(f):
            t, dt = f // 4, f % 4
            return [f"ds_read_b64_tr_b16 {vr(bufs[f] + 2*ee, 2)}, v{vVA} offset:{t*HALF + ee*512 + dt*64}" for ee in range(2)]
        for f in range(3): emit(vrd(f))
        def soft(t):
            out = []
            for qt in range(2):
                b = S + qt*16 + 8*t
                for i in range(8): out.append(f"v_fma_f32 v{b+i}, v{b+i}, s{sC}, -v{M+qt}")
            for qt in range(2):
                b = S + qt*16 + 8*t
                for i in range(8): out.append(f"v_exp_f32 v{b+i}, v{b+i}")
            for qt in range(2):
                b = S + qt*16 + 8*t
                for i in range(4): out.append(f"v_cvt_pk_bf16_f32 v{b+i}, v{b+2*i}, v{b+2*i+1}")
            return out
        emit(soft(0))
        emit(vrd(3)); emit(vrd(4))
        s1 = soft(1)
        cost = [2 if x.startswith("v_exp") else 1 for x in s1]
        tot = sum(cost); gaps = [[] for _ in range(8)]; cum = 0
        for x, c in zip(s1, cost):
            gaps[min(7, int(cum * 8 / tot))].append(x); cum += c
        issued = 5
        for f in range(8):
            t, dt = f // 4, f % 4
            e(f"s_waitcnt lgkmcnt({2*(issued - f - 1)})")
            for qt in range(2):
                e(f"v_mfma_f32_32x32x16_bf16 {vr(acc(dt, qt), 16)}, {vr(bufs[f], 4)}, {vr(S + qt*16 + 8*t, 4)}, {vr(acc(dt, qt), 16)}")
                if t == 0: emit(gaps[dt*2 + qt])
            if f < 3:
                emit(vrd(f + 5)); issued += 1
            if dt == 3:
                for qt in range(2):
                    e(f"v_mfma_f32_16x16x32_bf16 {vr(L + qt*4, 4)}, {vr(ONES, 4)}, {vr(S + qt*16 + 8*t, 4)}, {vr(L + qt*4, 4)}")
        after_pv()

    def rare_blocks():
        for u in rare:
            e(f"L_rare{u}:")
            for qt in range(2):
                tm = F + 8 + qt
                e(f"v_mov_b32 v{F+10}, v{tm}")
                e(f"v_permlane32_swap_b32 v{tm}, v{F+10}")
                e(f"v_max_f32 v{tm}, v{tm}, v{F+10}")
                e(f"v_mul_f32 v{tm}, s{sC}, v{tm}")
                e(f"v_max_f32 v{tm}, v{tm}, v{M+qt}")
                e(f"v_sub_f32 v{F+10}, v{M+qt}, v{tm}")
                e(f"v_mov_b32 v{M+qt}, v{tm}")
                e(f"v_exp_f32 v{F+10}, v{F+10}")
                e(f"v_mov_b32 v{F+11}, v{F+10}")
                for i in range(0, 4, 2): e(f"v_pk_mul_f32 {vr(L+qt*4+i, 2)}, {vr(L+qt*4+i, 2)}, {vr(F+10, 2)}")
                for dt in range(4):
                    for i in range(0, 16, 2): e(f"v_pk_mul_f32 {vr(acc(dt, qt)+i, 2)}, {vr(acc(dt, qt)+i, 2)}, {vr(F+10, 2)}")
            e(f"s_branch L_back{u}")

    def coop_prefetch(lo, hi, sh, goff_sh, flag):
        e(f"s_lshl_b32 s{sTMP}, s{sG}, {goff_sh}")
        e(f"s_add_u32 s{sPF}, s{lo}, s{sTMP}"); e(f"s_addc_u32 s{sPF+1}, s{hi}, 0")
        e(f"s_sub_u32 s{sPF+2}, 0x400000, s{sTMP}"); e(f"s_mov_b32 s{sPF+3}, 0x20000")
        e(f"s_lshl_b32 s{sTMP}, s{sB}, 2"); e(f"s_add_u32 s{sTMP}, s{sTMP}, s{sW}"); e(f"s_lshl_b32 s{sTMP}, s{sTMP}, {sh+2}")
        for r in range(4):
            e(f"buffer_load_dwordx4 {vr(192 + 4*r, 4)}, v{vT}, {srd(sPF)}, s{sTMP} offen {flag}")
            if r < 3: e(f"s_add_u32 s{sTMP}, s{sTMP}, {1 << sh}")

    e(f"; @launch kernel={NAME}_kernel grid=(256,1,1) block=(512,1,1) lds={LDS}")
    e(f"; @launch kernel=reduce_kernel grid=(1024,1,1) block=(256,1,1) lds=0")
    e('.amdgcn_target "amdgcn-amd-amdhsa--gfx950"')
    e(".text"); e(f".globl {NAME}_kernel"); e(".p2align 8"); e(f".type {NAME}_kernel,@function")
    e(f"{NAME}_kernel:")
    e("s_cmp_ge_u32 s2, 256"); e("s_cbranch_scc1 L_end")
    e("s_load_dwordx16 s[4:19], s[0:1], 0"); e("s_load_dwordx8 s[20:27], s[0:1], 64"); e("s_load_dwordx2 s[28:29], s[0:1], 96")
    stamp(0)
    e("v_lshrrev_b32 v1, 6, v0"); e(f"v_readfirstlane_b32 s{sTMP}, v1")
    e(f"s_and_b32 s{sG}, s2, 7"); e(f"s_lshr_b32 s{sB}, s2, 3")
    e(f"s_and_b32 s{sW}, s{sTMP}, 3"); e(f"s_lshr_b32 s{sROLE}, s{sTMP}, 2")
    e(f"s_mul_i32 s{sD}, s{sB}, {dmax - dmin + 1}"); e(f"s_lshr_b32 s{sD}, s{sD}, 5"); e(f"s_add_u32 s{sD}, s{sD}, {dmin}")
    e(f"s_add_u32 s{sD4}, s{sD}, 4")
    e(f"s_mul_i32 s{sWRB}, s{sW}, {WRING}"); e(f"s_add_u32 s{sWRB}, s{sWRB}, {WR0}")
    e(f"s_mul_i32 s{sKB}, s{sW}, {SLOT}"); e(f"s_add_u32 s{sVB}, s{sKB}, {VS0}")
    e(f"s_mov_b32 s{sC}, {f2u(math.log2(math.e) / math.sqrt(128.0)):#x}"); e(f"s_mov_b32 s{sT}, {f2u(T):#x}")
    proj_setup(13)
    t0, t1, t2 = 186, 187, 188
    e(f"v_lshlrev_b32 v{vT}, 4, v{vLN}")
    e(f"v_lshrrev_b32 v{t0}, 4, v{vLN}"); e(f"v_lshlrev_b32 v{t0}, 4, v{t0}")
    e(f"v_xor_b32 v{vDK}, v{vT}, v{t0}")
    e(f"v_mov_b32 v{vDV}, v{vT}")
    e(f"v_bfe_u32 v{t0}, v{vLN}, 4, 1"); e(f"v_and_b32 v{t1}, 3, v{vLN}"); e(f"v_lshl_add_u32 v{t0}, v{t0}, 2, v{t1}")
    e(f"v_mul_u32_u24 v{vKE}, {BLK}, v{t0}")
    e(f"v_bfe_u32 v{t0}, v{vLN}, 2, 2"); e(f"v_lshl_add_u32 v{vKE}, v{t0}, 8, v{vKE}")
    e(f"v_lshrrev_b32 v{t1}, 5, v{vLN}"); e(f"v_xor_b32 v{t0}, v{t0}, v{t1}"); e(f"v_lshl_add_u32 v{vKE}, v{t0}, 4, v{vKE}")
    tr_lane(vVA, vLN, t0, t1)
    e(f"v_bfe_u32 v{t0}, v{vLN}, 2, 1"); e(f"v_bfe_u32 v{t1}, v{vLN}, 4, 1"); e(f"v_xor_b32 v{t0}, v{t0}, v{t1}")
    e(f"v_sub_u32 v{t0}, v{t0}, 1".replace(f"v_sub_u32 v{t0}, v{t0}, 1", f"v_add_u32 v{t0}, -1, v{t0}"))
    e(f"v_and_b32 v{ONES}, 0x3f803f80, v{t0}")
    for i in range(1, 4): e(f"v_mov_b32 v{ONES+i}, v{ONES}")
    for i in range(8): e(f"v_mov_b32 v{L+i}, 0")
    for i in range(2): e(f"v_mov_b32 v{M+i}, {f2u(-3.0e38):#x}")
    e("s_waitcnt lgkmcnt(0)")
    e(f"s_cmp_eq_u32 s{sROLE}, 0")
    for dst, pb, pa in ((sK, 16, 6), (sV, 18, 8), (sWQ, 20, 10), (sWO, 22, 12), (sX, 14, 4)):
        e(f"s_cselect_b32 s{dst}, s{pb}, s{pa}"); e(f"s_cselect_b32 s{dst+1}, s{pb+1}, s{pa+1}")
    e(f"s_lshl_b32 s{sTMP}, s2, 2"); e(f"s_add_u32 s{sTMP}, s{sTMP}, s{sW}")
    e(f"s_cmp_eq_u32 s{sROLE}, 0"); e(f"s_cselect_b32 s{sTMP}, s{sTMP}, s2")
    e(f"s_mul_i32 s{sROT}, s{sTMP}, {rot_mul}"); e(f"s_and_b32 s{sROT}, s{sROT}, 15"); e(f"s_lshl_b32 s{sROT}, s{sROT}, 13")
    e(f"s_lshl_b32 s{sTMP}, s{sTMP}, 17")
    for r in (sK, sV):
        e(f"s_add_u32 s{r}, s{r}, s{sTMP}"); e(f"s_addc_u32 s{r+1}, s{r+1}, 0"); e(f"s_mov_b32 s{r+2}, 0x20000"); e(f"s_mov_b32 s{r+3}, 0x20000")
    e(f"s_lshl_b32 s{sTMP}, s{sG}, 2"); e(f"s_add_u32 s{sTMP}, s{sTMP}, s{sW}"); e(f"s_lshl_b32 s{sTMP}, s{sTMP}, 8")
    e(f"s_add_u32 s{sWQ}, s{sWQ}, s{sTMP}"); e(f"s_addc_u32 s{sWQ+1}, s{sWQ+1}, 0")
    e(f"s_sub_u32 s{sWQ}, s{sWQ}, 192"); e(f"s_subb_u32 s{sWQ+1}, s{sWQ+1}, 0")
    e(f"s_sub_u32 s{sWQ+2}, {0x400000 + 192}, s{sTMP}"); e(f"s_mov_b32 s{sWQ+3}, 0x20000")
    e(f"s_lshl_b32 s{sTMP}, s{sG}, 19"); e(f"s_lshl_b32 s{sTMP2}, s{sW}, 8"); e(f"s_add_u32 s{sTMP}, s{sTMP}, s{sTMP2}")
    e(f"s_add_u32 s{sWO}, s{sWO}, s{sTMP}"); e(f"s_addc_u32 s{sWO+1}, s{sWO+1}, 0")
    e(f"s_sub_u32 s{sWO}, s{sWO}, 192"); e(f"s_subb_u32 s{sWO+1}, s{sWO+1}, 0")
    e(f"s_sub_u32 s{sWO+2}, {0x400000 + 192}, s{sTMP}"); e(f"s_mov_b32 s{sWO+3}, 0x20000")
    e(f"s_lshl_b32 s{sTMP}, s{sB}, 16")
    e(f"s_add_u32 s{sX}, s{sX}, s{sTMP}"); e(f"s_addc_u32 s{sX+1}, s{sX+1}, 0"); e(f"s_mov_b32 s{sX+2}, 0x10000"); e(f"s_mov_b32 s{sX+3}, 0x20000")
    e(f"s_xor_b32 s{sTMP}, s{sROLE}, 1"); e(f"s_lshl_b32 s{sTMP}, s{sTMP}, 8"); e(f"s_add_u32 s{sTMP}, s{sTMP}, s2")
    e(f"s_lshl_b32 s{sTMP}, s{sTMP}, 2"); e(f"s_add_u32 s{sTMP}, s{sTMP}, s{sW}"); e(f"s_lshl_b32 s{sTMP}, s{sTMP}, 14")
    e(f"s_add_u32 s{sP}, s28, s{sTMP}"); e(f"s_addc_u32 s{sP+1}, s29, 0"); e(f"s_mov_b32 s{sP+2}, 0x4000"); e(f"s_mov_b32 s{sP+3}, 0x20000")
    e(f"s_andn2_b32 s{sTMP}, s{sROLE}, s{sW}"); e(f"s_cmp_eq_u32 s{sTMP}, 1")
    e(f"s_cselect_b32 s{sIT}, s{sK}, s{sV}"); e(f"s_cselect_b32 s{sIT+1}, s{sK+1}, s{sV+1}")
    e(f"s_mov_b32 s{sIT+2}, 0x20000"); e(f"s_mov_b32 s{sIT+3}, 0x20000")
    e(f"s_cmp_eq_u32 s{sROLE}, 0"); e("s_cbranch_scc1 L_Binit")
    if prioA: e(f"s_setprio {prioA}")
    coop_prefetch(20, 21, 13, 10, wq_pf)
    e(f"s_bitcmp0_b32 s{sW}, 0"); e("s_cbranch_scc0 L_A_odd")
    e(f"v_mov_b32 v{vDV}, v{vDK}")
    e("L_A_odd:")
    e(f"s_lshr_b32 s{sTMP}, s{sW}, 1"); e(f"s_lshl_b32 s{sTMP}, s{sTMP}, 13"); e(f"s_add_u32 s{sROT}, s{sROT}, s{sTMP}"); e(f"s_and_b32 s{sROT}, s{sROT}, 0x1ffff")
    e(f"v_add_u32 v{vKE}, {WR0}, v{vKE}"); e(f"v_xor_b32 v{vKO}, 32, v{vKE}")
    e(f"v_add_u32 v{vVA}, {WR0 + WRING}, v{vVA}")
    e("s_barrier"); e("s_barrier")
    coop_prefetch(10, 11, 13, 10, w_pf)
    e("s_waitcnt vmcnt(0)")
    coop_prefetch(12, 13, 10, 19, w_pf)
    e("s_waitcnt vmcnt(0)")
    e("s_barrier")
    e("s_branch L_Qstart")
    e("L_Binit:")
    if prioB: e(f"s_setprio {prioB}")
    e(f"v_add_u32 v{vKE}, s{sKB}, v{vKE}"); e(f"v_xor_b32 v{vKO}, 32, v{vKE}")
    e(f"v_add_u32 v{vVA}, s{sWRB}, v{vVA}")
    e("L_Qstart:")
    stamp(1)
    e(f"s_mul_i32 s{sTMP}, s{sW}, {16*XROW}"); e(f"s_add_u32 s{sTMP}, s{sTMP}, {XB}")
    e(f"s_lshl_b32 s{sOFF}, s{sW}, 14")
    for r in range(16):
        if r and r % 4 == 0: e(f"s_add_u32 s{sOFF}, s{sOFF}, 4096")
        e(f"s_add_u32 m0, s{sTMP}, {r*XROW - (r % 4)*1024}")
        e(f"buffer_load_dwordx4 v{vT}, {srd(sX)}, s{sOFF} offen offset:{(r % 4)*1024} {xflag} lds")
    for n in range(3): emit(w_issue_list(n, sWQ, 13))
    e("s_waitcnt vmcnt(12)")
    e("s_barrier")
    stamp(2)
    proj("q")
    e(f"s_cmp_eq_u32 s{sROLE}, 0"); e("s_cbranch_scc0 L_noK0")
    e(f"s_mov_b32 s{sOFF}, s{sROT}")
    emit(tile_issue_list(sK, vDK, sKB, 0))
    e("L_noK0:")
    e("s_barrier")
    for dt in range(4):
        for qt in range(2):
            for i in range(8):
                e(f"v_cvt_pk_bf16_f32 v{Q + (qt*8 + 2*dt)*4 + i}, v{acc(dt, qt) + 2*i}, v{acc(dt, qt) + 2*i + 1}")
    stamp(3)
    e("s_waitcnt vmcnt(0)")
    e(f"s_mov_b32 s{sI}, 0")
    e(f"s_cmp_eq_u32 s{sROLE}, 0"); e("s_cbranch_scc0 L_Aattn")

    def last_qk_hook():
        proj_setup(10)
        for n in range(3): emit(w_issue_list(n, sWO, 10))

    e(f"s_sub_u32 s{sDV}, s{sVB}, s{sWRB}")
    e("L_Bloop:")
    e(f"s_cmp_eq_u32 s{sI}, s{sD}"); e("s_cbranch_scc1 L_Bpause1")
    e(f"s_cmp_eq_u32 s{sI}, s{sD4}"); e("s_cbranch_scc1 L_Bpause2")
    e("L_Bgo:")
    e("s_waitcnt vmcnt(8)")
    def lockbar(tag):
        e(f"s_sub_u32 s{sTMP}, s{sI}, s{sD}"); e(f"s_cmp_lt_u32 s{sTMP}, 4"); e(f"s_cbranch_scc0 L_nb{tag}")
        e("s_barrier"); e(f"L_nb{tag}:")
    def b_after_qk():
        lockbar("q")
        e(f"s_add_u32 s{sROT}, s{sROT}, 8192"); e(f"s_and_b32 s{sROT}, s{sROT}, 0x1ffff")
        e(f"s_cmp_eq_u32 s{sI}, 15"); e("s_cbranch_scc1 L_Blast")
        e(f"s_mov_b32 s{sOFF}, s{sROT}")
        emit(tile_issue_list(sK, vDK, sKB, 0))
        e("L_Blast_back:")
    def b_before_v(): e("s_waitcnt vmcnt(8)")
    def b_after_pv():
        lockbar("v")
        e(f"v_add_u32 v{vVA}, s{sDV}, v{vVA}"); e(f"s_mov_b32 s{sDV}, 0")
        e(f"s_add_u32 s{sI}, s{sI}, 1")
        e(f"s_cmp_eq_u32 s{sI}, 16"); e("s_cbranch_scc1 L_Oepi")
        e(f"s_cmp_eq_u32 s{sI}, s{sD}"); e("s_cbranch_scc1 L_Bloop")
        e(f"s_cmp_eq_u32 s{sI}, s{sD4}"); e("s_cbranch_scc1 L_Bloop")
        e(f"s_mov_b32 s{sOFF}, s{sROT}")
        emit(tile_issue_list(sV, vDV, sVB, 0))
        e("s_branch L_Bgo")
    tile(b_after_qk, b_before_v, b_after_pv)
    e("L_Blast:")
    last_qk_hook()
    e("s_branch L_Blast_back")
    e("L_Bpause1:")
    e("s_barrier"); e("s_barrier"); e("s_barrier")
    e(f"s_mov_b32 s{sOFF}, s{sROT}")
    emit(tile_issue_list(sV, vDV, sVB, 0))
    e("s_barrier")
    e("s_branch L_Bgo")
    e("L_Bpause2:")
    e("s_barrier"); e("s_barrier")
    e(f"s_mov_b32 s{sOFF}, s{sROT}")
    emit(tile_issue_list(sV, vDV, sVB, 0))
    e("s_branch L_Bgo")

    e("L_Aattn:")
    e(f"s_add_u32 s{sKB}, s{sKB}, {AS0}")
    e("L_Aloop:")
    e(f"s_bitcmp0_b32 s{sI}, 0"); e("s_cbranch_scc0 L_Ago")
    e("s_waitcnt vmcnt(0)")
    e("s_barrier")
    e(f"s_cmp_eq_u32 s{sI}, 14"); e("s_cbranch_scc1 L_Ago")
    e(f"s_add_u32 s{sROT}, s{sROT}, 16384"); e(f"s_and_b32 s{sROT}, s{sROT}, 0x1ffff")
    e(f"s_mov_b32 s{sOFF}, s{sROT}")
    e(f"s_bitcmp0_b32 s{sI}, 1"); e(f"s_cselect_b32 s{sVB}, s{sKB}, s{sWRB}")
    emit(tile_issue_list(sIT, vDV, sVB, 0))
    e("L_Ago:")
    def a_after_qk():
        e(f"s_cmp_eq_u32 s{sI}, 15"); e("s_cbranch_scc1 L_Alast")
        e("L_Alast_back:")
    def a_after_pv():
        kad = [WR0, WR0 + 2*WRING, AS0, AS0 + 2*SLOT]
        vad = [WR0 + WRING, WR0 + 3*WRING, AS0 + SLOT, AS0 + 3*SLOT]
        for dst, ad in ((sDK, kad), (sDV, vad)):
            dl = [(ad[(i + 1) % 4] - ad[i]) & 0xffffffff for i in range(4)]
            e(f"s_bitcmp0_b32 s{sI}, 1")
            e(f"s_mov_b32 s{sTMP}, {dl[2]:#x}"); e(f"s_cselect_b32 s{sTMP}, {dl[0]:#x}, s{sTMP}")
            e(f"s_mov_b32 s{sTMP2}, {dl[3]:#x}"); e(f"s_cselect_b32 s{sTMP2}, {dl[1]:#x}, s{sTMP2}")
            e(f"s_bitcmp0_b32 s{sI}, 0"); e(f"s_cselect_b32 s{dst}, s{sTMP}, s{sTMP2}")
        e(f"v_add_u32 v{vKE}, s{sDK}, v{vKE}"); e(f"v_add_u32 v{vKO}, s{sDK}, v{vKO}"); e(f"v_add_u32 v{vVA}, s{sDV}, v{vVA}")
        e(f"s_add_u32 s{sI}, s{sI}, 1")
        e(f"s_cmp_eq_u32 s{sI}, 16"); e("s_cbranch_scc0 L_Aloop")
    tile(a_after_qk, lambda: None, a_after_pv)

    e("L_Oepi:")
    stamp(4)
    for qt in range(2):
        e(f"v_rcp_f32 v{L+qt*4}, v{L+qt*4}"); e(f"v_rcp_f32 v{L+qt*4+1}, v{L+qt*4+1}")
    e(f"s_lshl_b32 s{sTMP}, s{sW}, 8"); e(f"v_add_u32 v{vXW}, s{sTMP}, v{vXA}")
    for dt in range(4):
        for qt in range(2):
            b = acc(dt, qt)
            for i in range(0, 16, 2): e(f"v_pk_mul_f32 {vr(b+i, 2)}, {vr(b+i, 2)}, {vr(L+qt*4, 2)}")
            for tp in range(2):
                for i in range(4): e(f"v_cvt_pk_bf16_f32 v{b+8*tp+i}, v{b+8*tp+2*i}, v{b+8*tp+2*i+1}")
    e("s_barrier")
    for dt in range(4):
        for qt in range(2):
            for tp in range(2):
                e(f"ds_write_b128 v{vXW}, {vr(acc(dt, qt)+8*tp, 4)} offset:{qt*32*XROW + dt*64 + tp*32}")
    e("s_waitcnt lgkmcnt(0)")
    e("s_barrier")
    stamp(5)
    proj("o")
    e("s_barrier")
    stamp(6)
    e(f"v_lshlrev_b32 v{vT}, 4, v{vLN}")
    e(f"s_mov_b32 s{sOFF}, 0")
    f = 0
    for dt in range(4):
        for qt in range(2):
            b = acc(dt, qt)
            for tp in range(2):
                for i in range(4): e(f"v_cvt_pk_bf16_f32 v{b+8*tp+i}, v{b+8*tp+2*i}, v{b+8*tp+2*i+1}")
                if f and f % 4 == 0: e(f"s_add_u32 s{sOFF}, s{sOFF}, 4096")
                e(f"buffer_store_dwordx4 {vr(b+8*tp, 4)}, v{vT}, {srd(sP)}, s{sOFF} offen offset:{(f % 4)*1024} {pstore}")
                f += 1
    e(f"s_cmp_eq_u32 s{sROLE}, 0"); e("s_cbranch_scc1 L_fin")
    coop_prefetch(22, 23, 10, 19, w_pf)
    e("L_fin:")
    if stamps:
        e("s_waitcnt vmcnt(0)")
        stamp(7)
        e("s_waitcnt lgkmcnt(0)")
        e(f"s_lshl_b32 s{sTMP}, s2, 1"); e(f"s_add_u32 s{sTMP}, s{sTMP}, s{sROLE}"); e(f"s_lshl_b32 s{sTMP}, s{sTMP}, 2"); e(f"s_add_u32 s{sTMP}, s{sTMP}, s{sW}")
        e(f"s_lshl_b32 s{sTMP}, s{sTMP}, 6")
        e(f"s_add_u32 s{sPF}, s28, 0x4000000"); e(f"s_addc_u32 s{sPF+1}, s29, 0"); e(f"s_mov_b32 s{sPF+2}, 0x100000"); e(f"s_mov_b32 s{sPF+3}, 0x20000")
        for i in range(16): e(f"v_mov_b32 v{i}, s{sST+i}")
        e(f"v_mov_b32 v16, s{sTMP}")
        e(f"v_cmp_eq_u32 vcc, 0, v{vLN}"); e("s_and_saveexec_b64 s[30:31], vcc")
        for i in range(4): e(f"buffer_store_dwordx4 {vr(4*i, 4)}, v16, {srd(sPF)}, 0 offen offset:{16*i}")
    e("L_end:")
    e("s_endpgm")
    e("L_Alast:")
    last_qk_hook()
    e("s_branch L_Alast_back")
    rare_blocks()

    e(".globl reduce_kernel"); e(".p2align 8"); e(".type reduce_kernel,@function"); e("reduce_kernel:")
    e("s_cmp_ge_u32 s2, 1024"); e("s_cbranch_scc1 L_rend")
    e("s_load_dwordx2 s[4:5], s[0:1], 80"); e("s_load_dwordx2 s[6:7], s[0:1], 96")
    e("s_lshr_b32 s8, s2, 4"); e("s_and_b32 s9, s2, 15")
    e("v_lshlrev_b32 v1, 4, v0")
    e("s_lshl_b32 s10, s8, 19"); e("s_lshl_b32 s11, s9, 12"); e("s_add_u32 s10, s10, s11")
    e("s_waitcnt lgkmcnt(0)")
    e("s_add_u32 s12, s6, s10"); e("s_addc_u32 s13, s7, 0"); e("s_sub_u32 s14, 0x80000, s11"); e("s_mov_b32 s15, 0x20000")
    for g in range(8):
        e(f"s_mov_b32 s16, {g*65536}")
        e(f"buffer_load_dwordx4 {vr(8 + 4*g, 4)}, v1, s[12:15], s16 offen")
    e("s_and_b32 s17, s8, 31"); e("s_lshl_b32 s17, s17, 17"); e("s_lshr_b32 s18, s8, 5"); e("s_lshl_b32 s18, s18, 10"); e("s_add_u32 s17, s17, s18")
    e("s_lshl_b32 s18, s9, 6"); e("s_add_u32 s17, s17, s18")
    e("v_and_b32 v2, 31, v0"); e("v_lshlrev_b32 v2, 11, v2")
    e("v_bfe_u32 v3, v0, 7, 1"); e("v_lshl_add_u32 v2, v3, 16, v2")
    e("v_bfe_u32 v3, v0, 5, 2"); e("v_lshl_add_u32 v2, v3, 4, v2")
    e("s_mov_b32 s20, s4"); e("s_mov_b32 s21, s5"); e("s_mov_b32 s22, 0x400000"); e("s_mov_b32 s23, 0x20000")
    for g in range(8):
        e(f"s_waitcnt vmcnt({7-g})")
        for i in range(4):
            if g == 0:
                e(f"v_lshlrev_b32 v{40+2*i}, 16, v{8+i}"); e(f"v_and_b32 v{41+2*i}, 0xffff0000, v{8+i}")
            else:
                e(f"v_lshlrev_b32 v4, 16, v{8+4*g+i}"); e(f"v_and_b32 v5, 0xffff0000, v{8+4*g+i}")
                e(f"v_add_f32 v{40+2*i}, v{40+2*i}, v4"); e(f"v_add_f32 v{41+2*i}, v{41+2*i}, v5")
    for i in range(4): e(f"v_cvt_pk_bf16_f32 v{4+i}, v{40+2*i}, v{41+2*i}")
    e("buffer_store_dwordx4 v[4:7], v2, s[20:23], s17 offen")
    e("L_rend:"); e("s_endpgm")

    e('.section .rodata,"a"')
    for nm, nv in ((f"{NAME}_kernel", 256), ("reduce_kernel", 48)):
        e(".p2align 6"); e(f".amdhsa_kernel {nm}")
        for l in [f".amdhsa_next_free_vgpr {nv}", ".amdhsa_next_free_sgpr 102", f".amdhsa_accum_offset {nv}", ".amdhsa_group_segment_fixed_size 0",
                  ".amdhsa_kernarg_size 104", ".amdhsa_user_sgpr_count 2", ".amdhsa_user_sgpr_kernarg_segment_ptr 1", ".amdhsa_system_sgpr_workgroup_id_x 1",
                  ".amdhsa_float_denorm_mode_32 3"]:
            e("  " + l)
        e(".end_amdhsa_kernel")
    n = a.pad()
    return a.text(), n

if __name__ == "__main__":
    kw = eval("dict(" + (sys.argv[2] if len(sys.argv) > 2 else "") + ")")
    txt, n = gen(**kw)
    out = sys.argv[1] if len(sys.argv) > 1 else f"cdna_kernels/{NAME}.s"
    open(out, "w").write(txt)
    print("pad states:", n, "lines:", txt.count("\n"), "LDS", LDS)
```

```python
import re

def _regs(tok):
    tok = tok.strip()
    tok = tok.lstrip('-')
    m = re.fullmatch(r'abs\((.*)\)', tok)
    if m: tok = m.group(1)
    m = re.fullmatch(r'([vsa])(\d+)', tok)
    if m: return [(m.group(1), int(m.group(2)))]
    m = re.fullmatch(r'([vsa])\[(\d+):(\d+)\]', tok)
    if m: return [(m.group(1), i) for i in range(int(m.group(2)), int(m.group(3)) + 1)]
    if tok in ('vcc', 'vcc_lo', 'vcc_hi'): return [('x', 'vcc')]
    if tok in ('exec', 'exec_lo', 'exec_hi'): return [('x', 'exec')]
    if tok == 'm0': return [('x', 'm0')]
    return []

TRANS = ('v_exp_f32', 'v_log_f32', 'v_rcp_f32', 'v_rsq_f32', 'v_sqrt_f32', 'v_sin_f32', 'v_cos_f32')

class Ins:
    def __init__(self, text):
        self.text = text
        body = text.split(';')[0].strip()
        self.label = None; self.op = None
        self.w = set(); self.r = set()
        self.A = self.B = self.C = self.D = None
        self.kind = 'other'; self.target = None; self.states = 1
        if body == '' or body.startswith('.'):
            self.kind = 'dir'; self.states = 0; return
        if body.endswith(':'):
            self.label = body[:-1]; self.kind = 'label'; self.states = 0; return
        parts = body.split(None, 1)
        op = self.op = parts[0]
        rest = parts[1] if len(parts) > 1 else ''
        ops = [o.strip() for o in rest.split(',')] if rest else []
        mods = ''
        if ops:
            lp = ops[-1].split(None, 1)
            ops[-1] = lp[0]
            mods = lp[1] if len(lp) > 1 else ''
        self.mods = mods
        R = [_regs(o) for o in ops]
        if op.startswith('v_mfma'):
            self.kind = 'mfma'
            self.D, self.A, self.B, self.C = map(set, R[:4])
            self.passes = 8 if '32x32x16' in op else (2 if '4x4x4' in op else 4)
            self.w = set(self.D); self.r = self.A | self.B | self.C
        elif op.startswith('v_'):
            self.kind = 'valu'
            if op.startswith('v_permlane'):
                self.w = set(R[0]) | set(R[1]); self.r = set(self.w)
            else:
                self.w = set(R[0]) if R else set()
                for x in R[1:]: self.r |= set(x)
                if op.startswith('v_fmac') or op.startswith('v_dot2c') or op.startswith('v_writelane'): self.r |= set(R[0])
                if op.startswith('v_cmpx'): self.w.add(('x', 'exec'))
                if op.startswith(('v_add_co', 'v_addc_co', 'v_sub_co')):
                    self.w |= set(R[1]); self.r -= set(R[1])
                    if op.startswith('v_addc_co'): self.r |= set(R[4])
        elif op.startswith('ds_'):
            self.kind = 'ds'
            if op.startswith(('ds_read', 'ds_bpermute', 'ds_permute', 'ds_swizzle')) or '_rtn' in op:
                self.w = set(R[0])
                for x in R[1:]: self.r |= set(x)
            else:
                for x in R: self.r |= set(x)
        elif op.startswith(('buffer_', 'global_')):
            self.kind = 'vmem'
            self.lds = bool(re.search(r'\blds\b', mods)) or '_lds_' in op
            self.store = 'store' in op or 'atomic' in op
            if self.lds:
                for x in R: self.r |= set(x)
                self.r.add(('x', 'm0'))
            elif self.store:
                for x in R: self.r |= set(x)
                self.data = set(R[0]) if op.startswith('buffer_') else set(R[1])
                self.wide = op.endswith(('x3', 'x4'))
                if 'atomic' in op and re.search(r'\bsc0\b', mods): self.w = set(R[0])
            elif R:
                self.w = set(R[0])
                for x in R[1:]: self.r |= set(x)
        elif op.startswith('s_'):
            self.kind = 'salu'
            if op == 's_nop': self.states = int(ops[0], 0) + 1
            elif op.startswith('s_cbranch') or op == 's_branch':
                self.kind = 'branch'; self.target = ops[0]
            elif op == 's_endpgm': self.kind = 'end'
            elif op.startswith(('s_cmp', 's_bitcmp')):
                for x in R: self.r |= set(x)
            elif op.startswith(('s_waitcnt', 's_barrier', 's_setprio', 's_sleep')): pass
            else:
                self.w = set(R[0]) if R else set()
                for x in R[1:]: self.r |= set(x)
                if 'saveexec' in op: self.w.add(('x', 'exec'))

def need(p, c):
    n = 0
    vw = {x for x in p.w if x[0] in 'va'}
    sw = {x for x in p.w if x[0] in 'sx'}
    if p.kind == 'valu':
        if c.kind == 'mfma' and vw & c.r: n = max(n, 2)
        if c.kind == 'mfma' and ('x', 'exec') in p.w: n = max(n, 4)
        if c.kind == 'valu':
            if c.op.startswith('v_permlane') and vw & c.r: n = max(n, 2)
            if 'dpp' in c.text or 'row_' in c.text:
                if vw & c.r: n = max(n, 2)
            if c.op.startswith(('v_readfirstlane', 'v_readlane')) and vw & c.r: n = max(n, 1)
            if p.op in TRANS and c.op not in TRANS and vw & c.r: n = max(n, 1)
            if sw & c.r: n = max(n, 4 if c.op.startswith(('v_readlane', 'v_writelane')) else 2)
            if ('x', 'vcc') in p.w and c.op.startswith('v_cndmask'): n = max(n, 2)
        if c.kind == 'vmem' and sw & c.r: n = max(n, 5)
        if p.op in TRANS and c.kind in ('vmem', 'ds') and vw & c.r: n = max(n, 1)
    if p.kind == 'salu':
        if ('x', 'm0') in p.w and c.kind == 'vmem' and getattr(c, 'lds', False): n = max(n, 1)
    if p.kind == 'vmem' and getattr(p, 'store', False) and getattr(p, 'wide', False):
        if c.w & p.data: n = max(n, 2 if c.kind == 'valu' else 1)
    if p.kind == 'mfma':
        big = {2: 5, 4: 8, 8: 12}[p.passes]
        if c.kind == 'mfma':
            if p.D & (c.A | c.B): n = max(n, big)
            if p.D & c.C:
                if not (p.D == c.C and p.passes == c.passes): n = max(n, {2: 4, 4: 6, 8: 10}[p.passes])
                elif p.passes == 2: n = max(n, 2)
            elif p.D & c.D:
                n = max(n, {2: 4, 4: 6, 8: 10}[p.passes])
        elif c.kind in ('valu', 'ds', 'vmem'):
            if p.D & (c.r | c.w): n = max(n, big)
            if c.kind == 'valu' and p.C & c.w: n = max(n, {2: 1, 4: 3, 8: 7}[p.passes])
    return n

class Asm:
    def __init__(self):
        self.ins = []
    def __call__(self, text):
        for l in text.split('\n'):
            self.ins.append(Ins(l))
    def pad(self):
        total = 0
        changed = True
        start = 0
        while changed:
            changed = False
            ins = self.ins
            labels = {x.label: i for i, x in enumerate(ins) if x.label}
            jumps = {}
            for i, x in enumerate(ins):
                if x.kind == 'branch': jumps.setdefault(labels[x.target], []).append(i)
            def preds(i):
                out = []
                if i > 0:
                    p = ins[i-1]
                    if not (p.kind == 'end' or p.op == 's_branch'): out.append(i-1)
                out += jumps.get(i, [])
                return out
            for i in range(start, len(ins)):
                c = ins[i]
                if c.kind not in ('mfma', 'valu', 'ds', 'vmem'): continue
                short = 0
                stack = [(j, 0) for j in preds(i)]
                seen = {}
                while stack:
                    j, dist = stack.pop()
                    if dist >= 12 or seen.get(j, 99) <= dist: continue
                    seen[j] = dist
                    p = ins[j]
                    if p.states:
                        nd = need(p, c)
                        if nd > dist: short = max(short, nd - dist)
                    for k in preds(j): stack.append((k, dist + p.states))
                if short:
                    self.ins.insert(i, Ins(f"s_nop {short-1}"))
                    total += short
                    changed = True
                    start = i
                    break
        return total
    def text(self):
        out = []
        for x in self.ins:
            t = x.text
            out.append(t if (x.label or x.kind == 'dir') else "    " + t)
        return "\n".join(out) + "\n"
```

```python
import sys, math, struct
from asmlib import Asm

NAME = "concat_heads__gqa_block_cached__mha_block_cached__near_ridge"
KBLK = 1088; VBLK = 1056; HALF = 4352; SLOT = 8704; CHUNK = 2*SLOT
XB = 2*CHUNK
WR0 = XB + 4*CHUNK
WRING = 3*HALF
CNT = WR0 + 4*WRING
LDS = CNT + 64
assert LDS <= 163840
WBIAS = 128

sK, sV, sWQ, sWO, sX, sP, sIT, sPF = 32, 36, 40, 44, 48, 52, 56, 60
(sROLE, sW, sG, sB, sD, sI, sROT, sOFF, sWRB, sKB, sTMP, sTMP2, sD4, sWOFF, sN, sM, sROTA, sIST, sPH, sDK) = range(64, 84)
sDV = 30; sHI = 31; sJ = 3
sST = 84
def srd(n): return f"s[{n}:{n+3}]"
ACC = 0; Q = 128; S = 192; F = 224; L = 236; ONES = 240
vKA, vVA, vDK, vDV = 242, 243, 244, 245
vWO = 246
vWA, vXA, vIT, vLN, vT0, vT1 = 250, 251, 252, 253, 254, 255
M = 246
AF = 128; BF = 160
def vr(b, n): return f"v[{b}:{b+n-1}]"
def acc(dt, qt): return ACC + ((dt >> 1)*4 + qt)*8 + (dt & 1)*4
def f2u(x): return struct.unpack("<I", struct.pack("<f", x))[0]
MF = "v_mfma_f32_16x16x32_bf16"

def gen(kv="nt", wq_pf="", w_pf="", wflag="", xflag="", stamps=False, groups=((1, 6), (4, 9), (7, 12), (10, 15)), mask=0x7f, early01=False, e0=True, prioT=0, prioA=1, prioB=0, T=10.0,
        rot_mul=1, cyc=False, lo_exp=-30, hi_exp=30, force_slow=False, codepf=True, slp=6, pstore="sc1", tl=False):
    a = Asm(); e = a
    if stamps is True: stamps = ["start", "P0", "Qdone", "attn_done", "Owritten", "Odone", "pub", "end"]
    def stamp(nm):
        if stamps and nm in stamps:
            i = stamps.index(nm); e(f"{'s_memtime' if cyc else 's_memrealtime'} s[{sST+2*i}:{sST+2*i+1}]")
    def emit(lst):
        for x in lst: e(x)
    uid = [0]
    def lab(p):
        uid[0] += 1; return f"L_{p}{uid[0]}"

    def w_setup(kind):
        sh = 13 if kind == "q" else 10
        if kind == "q":
            e(f"v_bfe_u32 v{vT0}, v{vLN}, 3, 2"); e(f"v_lshlrev_b32 v{vWO}, {sh+3}, v{vT0}")
            e(f"v_lshrrev_b32 v{vT0}, 5, v{vLN}"); e(f"v_lshl_add_u32 v{vWO}, v{vT0}, {sh+2}, v{vWO}")
        else:
            e(f"v_lshrrev_b32 v{vT0}, 3, v{vLN}"); e(f"v_lshlrev_b32 v{vWO}, {sh+2}, v{vT0}")
        e(f"v_and_b32 v{vT0}, 7, v{vLN}"); e(f"v_lshl_add_u32 v{vWO}, v{vT0}, 4, v{vWO}")
        for r in (3, 2, 1, 0):
            e(f"v_add_u32 v{vWO+r}, {r*((1 << sh) - VBLK) + WBIAS}, v{vWO}")
        e(f"s_mov_b32 s{sWOFF}, 0")
    def wslot(n): return (n + 1) % 3
    def w_issue(n, kind):
        sr, sh = (sWQ, 13) if kind == "q" else (sWO, 10)
        out = [f"s_add_u32 m0, s{sWRB}, {wslot(n)*HALF}"]
        for r in range(4):
            out.append(f"buffer_load_dwordx4 v{vWO+r}, {srd(sr)}, s{sWOFF} offen offset:{r*VBLK} {wflag} lds")
        out.append(f"s_add_u32 s{sWOFF}, s{sWOFF}, {128 if n % 2 == 0 else (32 << sh) - 128}")
        return out
    def kv_issue(sr, voff, sbase, imm, blk, rot=sROT):
        out = [f"s_mov_b32 s{sOFF}, s{rot}"]
        for j in range(8):
            if j == 4: out.append(f"s_add_u32 s{sOFF}, s{sOFF}, 4096")
            out.append(f"s_add_u32 m0, s{sbase}, {imm + j*blk - (j % 4)*1024}")
            out.append(f"buffer_load_dwordx4 v{voff}, {srd(sr)}, s{sOFF} offen offset:{(j % 4)*1024} {kv} lds")
        return out
    def k_issue(): return kv_issue(sK, vDK, sKB, 0, KBLK)
    def v_issue(): return kv_issue(sV, vDV, sKB, SLOT, VBLK)
    def item_issue(sbase, blocks=range(8)):
        out = []
        for j in blocks:
            if j == 0: out += [f"s_mov_b32 s{sOFF}, s{sROTA}", f"s_mov_b32 m0, s{sbase}"]
            elif j == 4:
                out += [f"s_add_u32 s{sOFF}, s{sROTA}, 4096", f"s_lshl_b32 s{sTMP}, s{sIST}, 2", f"s_add_u32 s{sTMP}, s{sTMP}, s{sbase}", f"s_add_u32 m0, s{sTMP}, 4096"]
            else: out.append(f"s_add_u32 m0, m0, s{sIST}")
            out.append(f"buffer_load_dwordx4 v{vIT}, {srd(sIT)}, s{sOFF} offen offset:{(j % 4)*1024} {kv} lds")
        return out
    def x_issue(c):
        e(f"s_lshl_b32 s{sOFF}, s{sW}, 14"); e(f"s_add_u32 s{sOFF}, s{sOFF}, {c*256}")
        e(f"s_mul_i32 s{sTMP}, s{sW}, {HALF}")
        for j in range(4):
            e(f"s_add_u32 m0, s{sTMP}, {XB + c*CHUNK + j*64}")
            e(f"buffer_load_dwordx4 v{vT1}, {srd(sX)}, s{sOFF} offen offset:{j*1024} {xflag} lds")
    def x_own(h):
        out = [f"s_lshl_b32 s{sOFF}, s{sW}, 8", f"s_add_u32 s{sOFF}, s{sOFF}, {h*32768}"]
        for j in range(8):
            if j == 4: out.append(f"s_add_u32 s{sOFF}, s{sOFF}, 16384")
            out.append(f"s_add_u32 m0, s{sKB}, {h*SLOT + (j >> 2)*HALF + (j & 3)*64}")
            out.append(f"buffer_load_dwordx4 v{vT1}, {srd(sX)}, s{sOFF} offen offset:{(j & 3)*1024} {xflag} lds")
        return out
    def x_voff():
        e(f"v_lshrrev_b32 v{vT0}, 4, v{vLN}"); e(f"v_sub_u32 v{vT1}, 0, v{vT0}"); e(f"v_and_b32 v{vT1}, 3, v{vT1}")
        e(f"v_xor_b32 v{vT1}, v{vT1}, v{vLN}"); e(f"v_and_b32 v{vT1}, 15, v{vT1}"); e(f"v_lshlrev_b32 v{vT1}, 4, v{vT1}")
        e(f"v_lshl_add_u32 v{vT1}, v{vT0}, 12, v{vT1}")
    def x_srd(lo):
        e(f"s_lshl_b32 s{sTMP}, s{sB}, 16")
        e(f"s_add_u32 s{sX}, s{lo}, s{sTMP}"); e(f"s_addc_u32 s{sX+1}, s{lo+1}, 0"); e(f"s_mov_b32 s{sX+2}, 0x10000"); e(f"s_mov_b32 s{sX+3}, 0x20000")
    def wo_srd(lo):
        e(f"s_lshl_b32 s{sTMP}, s{sG}, 19"); e(f"s_lshl_b32 s{sTMP2}, s{sW}, 8"); e(f"s_add_u32 s{sTMP}, s{sTMP}, s{sTMP2}")
        e(f"s_add_u32 s{sWO}, s{lo}, s{sTMP}"); e(f"s_addc_u32 s{sWO+1}, s{lo+1}, 0")
        e(f"s_sub_u32 s{sWO}, s{sWO}, {WBIAS}"); e(f"s_subb_u32 s{sWO+1}, s{sWO+1}, 0")
        e(f"s_sub_u32 s{sWO+2}, {0x400000 + WBIAS}, s{sTMP}"); e(f"s_mov_b32 s{sWO+3}, 0x20000")
    def coop_prefetch(lo, sh, goff_sh, flag):
        e(f"s_lshl_b32 s{sTMP}, s{sG}, {goff_sh}")
        e(f"s_add_u32 s{sPF}, s{lo}, s{sTMP}"); e(f"s_addc_u32 s{sPF+1}, s{lo+1}, 0")
        e(f"s_sub_u32 s{sPF+2}, 0x400000, s{sTMP}"); e(f"s_mov_b32 s{sPF+3}, 0x20000")
        e(f"s_lshl_b32 s{sTMP}, s{sB}, 2"); e(f"s_add_u32 s{sTMP}, s{sTMP}, s{sW}"); e(f"s_lshl_b32 s{sTMP}, s{sTMP}, {sh+2}")
        for r in range(4):
            e(f"buffer_load_dwordx4 {vr(S + 4*r, 4)}, v{vDV}, {srd(sPF)}, s{sTMP} offen {flag}")
            if r < 3: e(f"s_add_u32 s{sTMP}, s{sTMP}, {1 << sh}")

    def proj(kind):
        def ra(n):
            p = n % 2
            return [f"ds_read_b64_tr_b16 {vr(AF + p*16 + d*4 + ee*2, 2)}, v{vWA} offset:{wslot(n)*HALF + ee*512 + d*32}" for d in range(4) for ee in range(2)]
        def rb(ks, qts):
            return [f"ds_read_b128 {vr(BF + (ks % 2)*16 + qt*4, 4)}, v{vXA} offset:{(ks >> 2)*CHUNK + qt*HALF + (ks & 3)*64}" for qt in qts]
        e("s_waitcnt vmcnt(8)")
        emit(rb(0, range(4))); emit(ra(0))
        e("s_waitcnt lgkmcnt(0)")
        for n in range(32):
            stamp(f"{kind}{n}")
            ks, ch, p = n >> 1, n & 1, n % 2
            rd = ra(n + 1) if n < 31 else []
            if ks < 15: rd = rd + rb(ks + 1, (2*ch, 2*ch + 1))
            dm = w_issue(n + 3, kind) if n + 3 < 32 else []
            if n < 31:
                e("s_waitcnt vmcnt(4)" if (n <= 29) else "s_waitcnt vmcnt(0)")
            if kind == "q" and n in (6, 14, 22): e("s_barrier")
            if n == 30:
                if kind == "q": e("s_barrier")
                else:
                    l1 = lab("nb"); e(f"s_cmp_eq_u32 s{sROLE}, 0"); e(f"s_cbranch_scc1 {l1}"); e("s_barrier"); e(f"{l1}:")
            gaps = [[] for _ in range(16)]
            for i, x in enumerate(rd): gaps[i].append(x)
            if dm:
                gaps[3].append(dm[0])
                for i in range(4): gaps[4 + 2*i].append(dm[1 + i])
                gaps[11].append(dm[5])
            k = 0
            for d in range(4):
                for qt in range(4):
                    r = vr(acc(4*ch + d, qt), 4)
                    e(f"{MF} {r}, {vr(AF + p*16 + d*4, 4)}, {vr(BF + (ks % 2)*16 + qt*4, 4)}, {r if ks else '0'}")
                    emit(gaps[k]); k += 1
            if n < 31: e("s_waitcnt lgkmcnt(0)")

    def Sr(qt, u): return S + qt*8 + u*4
    def exps(qt, u): return [f"v_exp_f32 v{Sr(qt, u)+i}, v{Sr(qt, u)+i}" for i in range(4)]
    def cvts(qt, u): return [f"v_cvt_pk_bf16_f32 v{S+qt*8+2*u+i}, v{Sr(qt, u)+2*i}, v{Sr(qt, u)+2*i+1}" for i in range(2)]
    def kr(f): return f"ds_read_b128 {vr(F + (f % 3)*4, 4)}, v{vKA} offset:{(f >> 2)*512 + (f & 3)*64}"
    vbuf = [F, F + 4, F + 8, S + 4, S + 12, S + 20, S + 28, F]
    def vrd(dt): return [f"ds_read_b64_tr_b16 {vr(vbuf[dt] + 2*u, 2)}, v{vVA} offset:{u*512 + dt*32}" for u in range(2)]
    def sums(qt): return [f"v_mfma_f32_4x4x4_16b_bf16 {vr(L, 4)}, {vr(ONES, 2)}, {vr(S + qt*8 + 2*h, 2)}, {vr(L, 4)} cbsz:2 abid:{qt}" for h in range(2)]
    def pv(dt, qt): return f"{MF} {vr(acc(dt, qt), 4)}, {vr(vbuf[dt], 4)}, {vr(S + qt*8, 4)}, {vr(acc(dt, qt), 4)}"
    def qk(fill):
        for f in range(3): e(kr(f))
        m = 0
        for f in range(8):
            u, s = f >> 2, f & 3
            e(f"s_waitcnt lgkmcnt({min(2, 7 - f)})")
            for qt in range(4):
                r = vr(Sr(qt, u), 4)
                e(f"{MF} {r}, {vr(F + (f % 3)*4, 4)}, {vr(Q + (qt*4 + s)*4, 4)}, {r if s else '0'}")
                if u == 1:
                    if m >= 3 and fill: e(fill.pop(0))
                    m += 1
            if f + 3 < 8: e(kr(f + 3))
    def pv_phase(pre):
        emit(pre[0]); emit(vrd(3))
        for qt in range(4):
            nxt = (pre[qt + 1] + vrd(4 + qt)) if qt < 3 else []
            per = math.ceil(len(nxt) / 4)
            sm = sums(qt)
            for dt in range(3):
                if qt == 0: e(f"s_waitcnt lgkmcnt({6 - 2*dt})")
                e(pv(dt, qt)); emit(nxt[dt*per:(dt+1)*per])
                if dt == 0: e(sm[0])
            e(sm[1]); emit(nxt[3*per:])
        emit(vrd(7))
        for dt in range(3, 8):
            e(f"s_waitcnt lgkmcnt({2*(7 - dt)})")
            for qt in range(4): e(pv(dt, qt))
    def tile(after_qk, before_v, after_pv):
        fill = []
        for qt in range(4): fill += exps(qt, 0)
        for qt in range(4): fill += cvts(qt, 0)
        qk(fill)
        emit(fill)
        after_qk()
        before_v()
        for dt in range(3): emit(vrd(dt))
        pv_phase([exps(qt, 1) + cvts(qt, 1) for qt in range(4)])
        after_pv()
    def xlane(op, reg, tmp):
        for sw in ("32", "16"):
            e(f"v_mov_b32 v{tmp}, v{reg}"); e(f"v_permlane{sw}_swap_b32 v{reg}, v{tmp}"); e(f"{op} v{reg}, v{reg}, v{tmp}")
    def waitn(sreg, mx):
        end = lab("wn")
        for n in range(mx, 0, -1):
            e(f"s_waitcnt vmcnt({8*n})"); e(f"s_cmp_ge_u32 s{sreg}, {n}"); e(f"s_cbranch_scc1 {end}")
        e("s_waitcnt vmcnt(0)"); e(f"{end}:")
    def flag_srd(branch):
        e(f"s_add_u32 s{sPF}, s28, 0x2000000"); e(f"s_addc_u32 s{sPF+1}, s29, 0"); e(f"s_mov_b32 s{sPF+2}, 0x8000"); e(f"s_mov_b32 s{sPF+3}, 0x20000")
        e(f"s_mul_i32 s{sOFF}, s{sB}, 768"); e(f"s_add_u32 s{sOFF}, s{sOFF}, {branch*256}")
    def dbg_srd():
        e(f"s_mov_b32 s{sPF}, s26"); e(f"s_mov_b32 s{sPF+1}, s27"); e(f"s_mov_b32 s{sPF+2}, 256"); e(f"s_mov_b32 s{sPF+3}, 0x20000")
        e(f"s_lshl_b32 s{sOFF}, s{sB}, 3")
    def poll(branch_off, first=None):
        l0, l1 = lab("pl"), lab("pl")
        if branch_off is None: dbg_srd()
        else: flag_srd(branch_off)
        e("s_mov_b64 exec, 1")
        if first: first(l1)
        e(f"s_mov_b32 s{sTMP2}, 0x40000")
        e(f"{l0}:")
        e(f"buffer_load_dword v{vT0}, off, {srd(sPF)}, s{sOFF} sc1")
        e("s_waitcnt vmcnt(0)")
        e(f"v_readfirstlane_b32 s{sTMP}, v{vT0}")
        e(f"s_cmp_eq_u32 s{sTMP}, 8"); e(f"s_cbranch_scc1 {l1}")
        e(f"s_sleep {slp}")
        e(f"s_sub_u32 s{sTMP2}, s{sTMP2}, 1"); e(f"s_cmp_lg_u32 s{sTMP2}, 0"); e(f"s_cbranch_scc1 {l0}")
        e(f"{l1}:")
        e("s_mov_b64 exec, -1")
    def reduce(branch, nfr):
        e(f"s_add_u32 s{sTMP}, s{sB}, {branch*32}"); e(f"s_lshl_b32 s{sTMP}, s{sTMP}, 19")
        e(f"s_add_u32 s{sP}, s28, s{sTMP}"); e(f"s_addc_u32 s{sP+1}, s29, 0"); e(f"s_mov_b32 s{sP+2}, 0x80000"); e(f"s_mov_b32 s{sP+3}, 0x20000")
        e(f"s_lshl_b32 s{sTMP}, s{sG}, 3"); e(f"s_add_u32 s{sN}, s{sN}, s{sTMP}")
        e(f"s_lshl_b32 s{sOFF}, s{sN}, 10")
        for g in range(8):
            for f in range(nfr):
                e(f"buffer_load_dwordx4 {vr(64*f + 4*g, 4)}, v{vDV}, {srd(sP)}, s{sOFF} offen offset:{f*1024} sc1")
            if g < 7: e(f"s_add_u32 s{sOFF}, s{sOFF}, 0x10000")
        e(f"s_mov_b32 s{sPF}, s24"); e(f"s_mov_b32 s{sPF+1}, s25"); e(f"s_mov_b32 s{sPF+2}, 0x400000"); e(f"s_mov_b32 s{sPF+3}, 0x20000")
        e(f"s_lshl_b32 s{sOFF}, s{sB}, 17"); e(f"s_add_u32 s{sOFF}, s{sOFF}, {branch*1024}")
        e(f"s_bfe_u32 s{sTMP}, s{sN}, 0x20002"); e(f"s_lshl_b32 s{sTMP}, s{sTMP}, 15"); e(f"s_add_u32 s{sOFF}, s{sOFF}, s{sTMP}")
        e(f"s_lshr_b32 s{sTMP}, s{sN}, 4"); e(f"s_lshl_b32 s{sTMP}, s{sTMP}, 8"); e(f"s_add_u32 s{sOFF}, s{sOFF}, s{sTMP}")
        e(f"s_and_b32 s{sTMP}, s{sN}, 3"); e(f"s_lshl_b32 s{sTMP}, s{sTMP}, 6"); e(f"s_add_u32 s{sOFF}, s{sOFF}, s{sTMP}")
        e(f"v_and_b32 v{vT0}, 15, v{vLN}"); e(f"v_lshlrev_b32 v{vT1}, 11, v{vT0}")
        e(f"v_bfe_u32 v{vT0}, v{vLN}, 4, 1"); e(f"v_lshl_add_u32 v{vT1}, v{vT0}, 5, v{vT1}")
        e(f"v_lshrrev_b32 v{vT0}, 5, v{vLN}"); e(f"v_lshl_add_u32 v{vT1}, v{vT0}, 4, v{vT1}")
        for g in range(8):
            for f in range(nfr):
                e(f"s_waitcnt vmcnt({(7 - g)*nfr + (nfr - 1 - f)})")
                src, dst = 64*f + 4*g, 64*f + 32
                for i in range(4):
                    if g == 0:
                        e(f"v_lshlrev_b32 v{dst+2*i}, 16, v{src+i}"); e(f"v_and_b32 v{dst+2*i+1}, 0xffff0000, v{src+i}")
                    else:
                        e(f"v_lshlrev_b32 v{dst+8+2*i}, 16, v{src+i}"); e(f"v_and_b32 v{dst+9+2*i}, 0xffff0000, v{src+i}")
                if g:
                    for i in range(4): e(f"v_pk_add_f32 {vr(dst+2*i, 2)}, {vr(dst+2*i, 2)}, {vr(dst+8+2*i, 2)}")
        for f in range(nfr):
            dst = 64*f + 32
            for i in range(4): e(f"v_cvt_pk_bf16_f32 v{dst+i}, v{dst+2*i}, v{dst+2*i+1}")
            e(f"v_permlane16_swap_b32 v{dst}, v{dst+2}"); e(f"v_permlane16_swap_b32 v{dst+1}, v{dst+3}")
            e(f"buffer_store_dwordx4 {vr(dst, 4)}, v{vT1}, {srd(sPF)}, s{sOFF} offen offset:{f*64}")

    if stamps: e(f"; stamps: {stamps}")
    e(f"; @launch grid=(256,1,1) block=(512,1,1) lds={LDS}")
    e('.amdgcn_target "amdgcn-amd-amdhsa--gfx950"')
    e(".text"); e(f".globl {NAME}_kernel"); e(".p2align 8"); e(f".type {NAME}_kernel,@function")
    e(f"{NAME}_kernel:")
    e("s_cmp_ge_u32 s2, 256"); e("s_cbranch_scc1 L_end")
    e("s_load_dwordx16 s[4:19], s[0:1], 0"); e("s_load_dwordx8 s[20:27], s[0:1], 64"); e("s_load_dwordx2 s[28:29], s[0:1], 96")
    if stamps:
        for i in range(16): e(f"s_mov_b32 s{sST+i}, 0")
        e("s_memtime s[100:101]")
    stamp("start")
    e(f"v_lshrrev_b32 v1, 6, v0"); e(f"v_and_b32 v{vLN}, 63, v0"); e(f"v_readfirstlane_b32 s{sTMP}, v1")
    e(f"s_and_b32 s{sG}, s2, 7"); e(f"s_lshr_b32 s{sB}, s2, 3")
    e(f"s_and_b32 s{sW}, s{sTMP}, 3"); e(f"s_lshr_b32 s{sROLE}, s{sTMP}, 2"); e(f"s_lshr_b32 s{sHI}, s{sW}, 1")
    e(f"s_mul_i32 s{sWRB}, s{sW}, {WRING}"); e(f"s_add_u32 s{sWRB}, s{sWRB}, {WR0}")
    e(f"v_lshlrev_b32 v{vDV}, 4, v{vLN}")
    w_setup("q")
    x_voff()
    e("s_waitcnt lgkmcnt(0)")
    e(f"s_cmp_eq_u32 s{sROLE}, 0")
    e(f"s_cselect_b32 s{sWQ}, s20, s10"); e(f"s_cselect_b32 s{sWQ+1}, s21, s11")
    e(f"s_lshl_b32 s{sTMP}, s{sG}, 2"); e(f"s_add_u32 s{sTMP}, s{sTMP}, s{sW}"); e(f"s_lshl_b32 s{sTMP}, s{sTMP}, 8")
    e(f"s_add_u32 s{sWQ}, s{sWQ}, s{sTMP}"); e(f"s_addc_u32 s{sWQ+1}, s{sWQ+1}, 0")
    e(f"s_sub_u32 s{sWQ}, s{sWQ}, {WBIAS}"); e(f"s_subb_u32 s{sWQ+1}, s{sWQ+1}, 0")
    e(f"s_sub_u32 s{sWQ+2}, {0x400000 + WBIAS}, s{sTMP}"); e(f"s_mov_b32 s{sWQ+3}, 0x20000")
    e(f"s_cmp_eq_u32 s{sROLE}, 0"); e("s_cbranch_scc1 L_first_B")
    if prioA: e(f"s_setprio {prioA}")
    if codepf:
        e("s_getpc_b64 s[94:95]"); e("L_pc:")
        e(f"s_lshl_b32 s{sTMP}, s{sB}, 2"); e(f"s_add_u32 s{sTMP}, s{sTMP}, s{sW}"); e(f"s_lshl_b32 s{sTMP}, s{sTMP}, 7")
        e(f"v_lshl_add_u32 v2, v{vLN}, 14, s{sTMP}")
        e(f"v_min_u32 v2, L_last-L_pc-4, v2")
        e(f"v_mov_b32 v3, s95"); e("v_add_co_u32 v2, vcc, s94, v2"); e("v_addc_co_u32 v3, vcc, 0, v3, vcc")
        e("s_mov_b64 exec, 15")
        e("global_load_dword v4, v[2:3], off")
        e("s_mov_b64 exec, -1")
    x_srd(14); x_issue(0)
    coop_prefetch(20, 13, 10, wq_pf)
    e("s_branch L_common")
    e("L_first_B:")
    if prioB: e(f"s_setprio {prioB}")
    for n in range(3): emit(w_issue(n, "q"))
    x_srd(4)
    e("L_common:")
    assert bin(mask).count("1") == 7
    wt = mask.bit_length() // 2 + 1
    for reg, k in ((sD, 0), (sD4, 1)):
        tab = [groups[b * len(groups) // 32][k] for b in range(32)]
        assert all(1 <= g[0] and g[0] + wt <= g[1] <= 15 for g in groups)
        wd = [sum(tab[8*i + j] << (4*j) for j in range(8)) for i in range(4)]
        e(f"s_bitcmp0_b32 s{sB}, 3")
        e(f"s_mov_b32 s{sTMP}, {wd[1]:#x}"); e(f"s_cselect_b32 s{sTMP}, {wd[0]:#x}, s{sTMP}")
        e(f"s_mov_b32 s{sTMP2}, {wd[3]:#x}"); e(f"s_cselect_b32 s{sTMP2}, {wd[2]:#x}, s{sTMP2}")
        e(f"s_bitcmp0_b32 s{sB}, 4"); e(f"s_cselect_b32 s{sTMP}, s{sTMP}, s{sTMP2}")
        e(f"s_and_b32 s{sTMP2}, s{sB}, 7"); e(f"s_lshl_b32 s{sTMP2}, s{sTMP2}, 2")
        e(f"s_lshr_b32 s{sTMP}, s{sTMP}, s{sTMP2}"); e(f"s_and_b32 s{reg}, s{sTMP}, 15")
    e(f"s_lshl_b32 s{sTMP}, s{sHI}, 1"); e(f"s_add_u32 s{sTMP}, s{sTMP}, s{sW}"); e(f"s_mul_i32 s{sKB}, s{sTMP}, {CHUNK}")
    def dk_setup():
        e(f"v_bfe_u32 v{vT0}, v{vLN}, 4, 1"); e(f"v_lshlrev_b32 v{vT0}, 4, v{vT0}"); e(f"v_xor_b32 v{vDK}, v{vDV}, v{vT0}")
    dk_setup()
    t0, t1 = F, F + 1
    e(f"v_and_b32 v{t0}, 7, v{vLN}"); e(f"v_mul_u32_u24 v{vKA}, {KBLK}, v{t0}")
    e(f"v_bfe_u32 v{t0}, v{vLN}, 3, 1"); e(f"v_lshl_add_u32 v{vKA}, v{t0}, 8, v{vKA}")
    e(f"v_lshrrev_b32 v{t1}, 5, v{vLN}"); e(f"v_xor_b32 v{t0}, v{t0}, v{t1}"); e(f"v_lshl_add_u32 v{vKA}, v{t0}, 4, v{vKA}")
    e(f"v_bfe_u32 v{t0}, v{vLN}, 4, 1"); e(f"v_lshl_add_u32 v{vKA}, v{t0}, 5, v{vKA}")
    e(f"v_bfe_u32 v{t0}, v{vLN}, 2, 3"); e(f"v_mul_u32_u24 v{vVA}, {VBLK}, v{t0}")
    e(f"v_lshl_add_u32 v{vVA}, v{t1}, 8, v{vVA}")
    e(f"v_and_b32 v{t0}, 3, v{vLN}"); e(f"v_lshl_add_u32 v{vVA}, v{t0}, 3, v{vVA}")
    def wx_setup():
        e(f"v_and_b32 v{t0}, 3, v{vLN}")
        e(f"v_bfe_u32 v{t1}, v{vLN}, 2, 2"); e(f"v_mul_u32_u24 v{vWA}, {VBLK}, v{t1}")
        e(f"v_lshl_add_u32 v{vWA}, v{t0}, 3, v{vWA}")
        e(f"v_lshrrev_b32 v{t0+2}, 4, v{vLN}"); e(f"v_lshl_add_u32 v{vWA}, v{t0+2}, 7, v{vWA}"); e(f"v_add_u32 v{vWA}, s{sWRB}, v{vWA}")
        e(f"v_mul_u32_u24 v{vXA}, {KBLK}, v{t0}"); e(f"v_lshl_add_u32 v{vXA}, v{t1}, 8, v{vXA}")
        e(f"v_sub_u32 v{t0+3}, 0, v{t1}"); e(f"v_and_b32 v{t0+3}, 3, v{t0+3}"); e(f"v_xor_b32 v{t0+3}, v{t0+3}, v{t0+2}")
        e(f"v_lshl_add_u32 v{vXA}, v{t0+3}, 4, v{vXA}"); e(f"v_add_u32 v{vXA}, {XB}, v{vXA}")
    wx_setup()
    e(f"v_cmp_eq_u32 vcc, v{t0}, v{t1}"); e(f"v_mov_b32 v{t0+2}, 0x3f803f80")
    e(f"v_cndmask_b32 v{ONES}, 0, v{t0+2}, vcc"); e(f"v_mov_b32 v{ONES+1}, v{ONES}")
    for i in range(4): e(f"v_mov_b32 v{L+i}, 0")
    e(f"s_lshl_b32 s{sTMP}, s2, 2"); e(f"s_add_u32 s{sTMP}, s{sTMP}, s{sW}")
    e(f"s_mul_i32 s{sROT}, s{sTMP}, {rot_mul}"); e(f"s_and_b32 s{sROT}, s{sROT}, 15"); e(f"s_lshl_b32 s{sROT}, s{sROT}, 13")
    e(f"s_lshl_b32 s{sTMP}, s{sTMP}, 17")
    for r, p in ((sK, 16), (sV, 18)):
        e(f"s_add_u32 s{r}, s{p}, s{sTMP}"); e(f"s_addc_u32 s{r+1}, s{p+1}, 0"); e(f"s_mov_b32 s{r+2}, 0x20000"); e(f"s_mov_b32 s{r+3}, 0x20000")
    e(f"s_bitcmp0_b32 s{sW}, 0")
    e(f"s_cselect_b32 s{sIT}, s6, s8"); e(f"s_cselect_b32 s{sIT+1}, s7, s9"); e(f"s_cselect_b32 s{sIST}, {KBLK-1024}, {VBLK-1024}")
    e(f"s_cselect_b64 vcc, -1, 0")
    e(f"v_cndmask_b32 v{vIT}, v{vDV}, v{vDK}, vcc")
    e(f"s_lshl_b32 s{sTMP}, s2, 17")
    e(f"s_add_u32 s{sIT}, s{sIT}, s{sTMP}"); e(f"s_addc_u32 s{sIT+1}, s{sIT+1}, 0"); e(f"s_mov_b32 s{sIT+2}, 0x20000"); e(f"s_mov_b32 s{sIT+3}, 0x20000")
    e(f"s_mul_i32 s{sROTA}, s2, {rot_mul}"); e(f"s_add_u32 s{sROTA}, s{sROTA}, s{sHI}"); e(f"s_and_b32 s{sROTA}, s{sROTA}, 15"); e(f"s_lshl_b32 s{sROTA}, s{sROTA}, 13")
    wo_srd(12)
    e(f"s_cmp_eq_u32 s{sROLE}, 0"); e("s_cbranch_scc1 L_Binit")
    e(f"v_add_u32 v{vKA}, {WR0}, v{vKA}"); e(f"v_add_u32 v{vVA}, {WR0 + WRING}, v{vVA}")
    e(f"v_mov_b32 v{t0}, {CNT}"); e(f"ds_write_b32 v{t0}, v{L}")
    e("s_waitcnt vmcnt(4) lgkmcnt(0)"); e("s_barrier")
    x_issue(1)
    e("s_waitcnt vmcnt(0)"); e("s_barrier")
    x_issue(2); x_issue(3)
    e("s_waitcnt vmcnt(4)"); e("s_barrier")
    e("s_waitcnt vmcnt(0)"); e("s_barrier")
    if early01:
        e(f"s_cmp_eq_u32 s{sHI}, 0"); e("s_cbranch_scc0 L_h23")
        emit(k_issue()); emit(v_issue()); e("s_barrier"); e("s_branch L_h01")
        e("L_h23:")
    e("s_barrier"); emit(k_issue()); emit(v_issue())
    e("L_h01:")
    x_srd(4); x_issue(0)
    e("s_waitcnt vmcnt(4)"); e("s_barrier")
    coop_prefetch(10, 13, 10, w_pf)
    x_issue(1)
    coop_prefetch(12, 10, 19, w_pf)
    e(f"s_or_b32 s{sTMP}, s{sG}, s{sW}"); e(f"s_cmp_eq_u32 s{sTMP}, 0"); e("s_cbranch_scc0 L_noinit")
    flag_srd(0)
    e("s_mov_b64 exec, 1")
    e(f"buffer_store_dword v{L}, off, {srd(sPF)}, s{sOFF} sc1"); e(f"buffer_store_dword v{L}, off, {srd(sPF)}, s{sOFF} offset:256 sc1")
    e("s_waitcnt vmcnt(0)")
    dbg_srd()
    e(f"v_mov_b32 v{vT0}, 8"); e(f"buffer_store_dword v{vT0}, off, {srd(sPF)}, s{sOFF} sc1")
    e("s_mov_b64 exec, -1")
    e("L_noinit:")
    e(f"s_lshl_b32 s{sTMP}, s2, 17")
    for r, p in ((sK, 6), (sV, 8)):
        e(f"s_add_u32 s{r}, s{p}, s{sTMP}"); e(f"s_addc_u32 s{r+1}, s{p+1}, 0")
    for n in range(3): emit(w_issue(n, "q"))
    e("s_waitcnt vmcnt(12)")
    e("s_branch L_Qstart")
    e("L_Binit:")
    e(f"v_add_u32 v{vKA}, s{sKB}, v{vKA}"); e(f"v_add_u32 v{vVA}, s{sKB}, v{vVA}"); e(f"v_add_u32 v{vVA}, {SLOT}, v{vVA}")
    e("L_Qstart:")
    e("s_barrier")
    stamp("P0")
    proj("q")
    c = f2u(math.log2(math.e) / math.sqrt(128.0))
    e(f"v_mov_b32 v{vT0}, {c:#x}"); e(f"v_mov_b32 v{vT1}, {c:#x}")
    for s in range(4):
        for qt in range(4):
            b = acc(2*s, qt); q = Q + (qt*4 + s)*4
            for i in range(4): e(f"v_pk_mul_f32 {vr(b+2*i, 2)}, {vr(b+2*i, 2)}, {vr(vT0, 2)}")
            for i in range(4): e(f"v_cvt_pk_bf16_f32 v{q+i}, v{b+2*i}, v{b+2*i+1}")
            for i in range(0, 8, 2): e(f"v_mov_b64 {vr(b+i, 2)}, 0")
            e(f"v_permlane16_swap_b32 v{q}, v{q+2}"); e(f"v_permlane16_swap_b32 v{q+1}, v{q+3}")
    stamp("Qdone")
    e(f"s_mov_b32 s{sI}, 0")
    e(f"s_cmp_eq_u32 s{sROLE}, 0"); e("s_cbranch_scc0 L_Aattn")

    def b_wsetup():
        w_setup("o"); e(f"s_mov_b32 s{sWOFF}, {(32 << 10) + 128}")
    w_setup("o")
    x_voff()
    e(f"s_mov_b32 s{sN}, 1")
    e("s_barrier")
    e("L_Bloop:")
    e(f"s_cmp_eq_u32 s{sI}, s{sD}"); e("s_cbranch_scc1 L_Bpause1")
    e(f"s_cmp_eq_u32 s{sI}, s{sD4}"); e("s_cbranch_scc1 L_Bpause2")
    e("L_Bgo:")
    if e0:
        e(f"s_cmp_eq_u32 s{sI}, 15"); e("s_cbranch_scc0 L_noE0"); e("s_barrier"); e("L_noE0:")
    waitn(sN, 2)
    if tl:
        e("s_memrealtime s[98:99]"); e("s_waitcnt lgkmcnt(0)"); e(f"s_mov_b32 m0, s{sI}"); e("s_nop 0"); e(f"v_writelane_b32 v254, s98, m0")
    def next_item(sbase):
        e(f"s_add_u32 s{sROTA}, s{sROTA}, 16384"); e(f"s_and_b32 s{sROTA}, s{sROTA}, 0x1ffff")
        emit(item_issue(sbase))
    def refill(lst, h):
        go, xl, done, skip = lab("rf"), lab("rf"), lab("rf"), lab("rf")
        e(f"s_cmp_eq_u32 s{sTMP2}, 16"); e(f"s_cbranch_scc1 {skip}")
        e(f"s_cmp_eq_u32 s{sHI}, 0"); e(f"s_cbranch_scc1 {go}")
        e(f"s_cmp_eq_u32 s{sTMP2}, s{sD4}"); e(f"s_cbranch_scc1 {skip}")
        e(f"s_cmp_eq_u32 s{sTMP2}, s{sD}"); e(f"s_cbranch_scc1 {xl}")
        e(f"{go}:")
        emit(lst)
        e(f"{done}:")
        e(f"s_add_u32 s{sN}, s{sN}, 1"); e(f"s_add_u32 s{sM}, s{sM}, 1")
        e(f"{skip}:")
        late.append((xl, x_own(h), done))
    late = []
    def window(half):
        l = lab("nw")
        e(f"s_mov_b32 s{sN}, 0")
        e(f"s_sub_u32 s{sTMP2}, s{sI}, s{sD}"); e(f"s_cmp_lt_u32 s{sTMP2}, 8"); e(f"s_cbranch_scc0 {l}")
        m = sum(((mask >> (2*k + half)) & 1) << k for k in range(8))
        if m == 0:
            e(f"{l}:"); return
        e(f"s_bitcmp1_b32 {m}, s{sTMP2}"); e(f"s_cbranch_scc0 {l}")
        waitn(sM, 2)
        e("s_barrier")
        e(f"s_add_u32 s{sJ}, s{sJ}, 1")
        if (mask.bit_length() - 1) % 2 == half:
            lw = lab("wo")
            e(f"s_cmp_eq_u32 s{sJ}, 7"); e(f"s_cbranch_scc1 {lw}")
            late.append((lw, w_issue(0, "o") + w_issue(1, "o") + w_issue(2, "o") + [f"s_mov_b32 s{sN}, 1"], l))
        e(f"s_bitcmp1_b32 s{sJ}, 0"); e(f"s_cselect_b32 s{sM}, s{sWRB}, s{sDK}")
        next_item(sM)
        e(f"s_mov_b32 s{sN}, 1"); e(f"s_mov_b32 s{sM}, 0")
        e(f"{l}:")
    def b_after_qk():
        window(0)
        e(f"s_add_u32 s{sROT}, s{sROT}, 8192"); e(f"s_and_b32 s{sROT}, s{sROT}, 0x1ffff")
        e(f"s_add_u32 s{sTMP2}, s{sI}, 1")
        refill(k_issue(), 0)
    def b_after_pv():
        window(1)
        e(f"s_add_u32 s{sI}, s{sI}, 1"); e(f"s_mov_b32 s{sTMP2}, s{sI}")
        refill(v_issue(), 1)
        e(f"s_cmp_eq_u32 s{sI}, 16"); e("s_cbranch_scc0 L_Bloop")
        e("s_branch L_Oepi")
    tile(b_after_qk, lambda: waitn(sN, 2), b_after_pv)
    for xl, lst, done in late:
        e(f"{xl}:"); emit(lst); e(f"s_branch {done}")
    e("L_Bpause1:")
    e(f"s_mul_i32 s{sDK}, s{sW}, {SLOT}"); e(f"s_add_u32 s{sDK}, s{sDK}, {XB}")
    e("s_barrier"); e("s_barrier")
    e("s_waitcnt vmcnt(0)"); e("s_barrier")
    e("s_barrier"); e("s_barrier")
    emit(item_issue(sWRB))
    e(f"s_cmp_eq_u32 s{sHI}, 0"); e(f"s_cbranch_scc1 L_rs01")
    emit(k_issue())
    e("s_waitcnt vmcnt(8)"); e("s_barrier")
    emit(v_issue()); next_item(sDK)
    e(f"s_mov_b32 s{sN}, 2"); e(f"s_mov_b32 s{sM}, 0"); e(f"s_mov_b32 s{sJ}, 0")
    e("s_branch L_Bgo")
    e("L_rs01:")
    next_item(sDK)
    e("s_waitcnt vmcnt(8)"); e("s_barrier")
    e(f"s_mov_b32 s{sN}, 2"); e(f"s_mov_b32 s{sM}, 0"); e(f"s_mov_b32 s{sJ}, 0")
    e("s_branch L_Bgo")
    e("L_Bpause2:")
    wo_srd(22)
    e("s_barrier")
    e(f"s_xor_b32 s{sN}, s{sHI}, 1"); e(f"s_lshl_b32 s{sN}, s{sN}, 1")
    waitn(sN, 2)
    e("s_barrier"); e("s_barrier")
    e(f"s_mov_b32 s{sN}, 1")
    e(f"s_cmp_eq_u32 s{sHI}, 0"); e(f"s_cbranch_scc1 L_Bgo")
    emit(k_issue()); emit(v_issue())
    e("s_branch L_Bgo")

    FB = [F, F + 4, F + 8, 244, 248, 252]
    kb = [0, 1, 2, 3, 4, 5, 0, 1]
    vb = [FB[2], FB[3], FB[4], FB[5], FB[0], FB[1], S + 4, S + 12]
    def akr(f): return f"ds_read_b128 {vr(FB[kb[f]], 4)}, v{vKA} offset:{(f >> 2)*512 + (f & 3)*64}"
    def avr(dt): return [f"ds_read_b64_tr_b16 {vr(vb[dt] + 2*u, 2)}, v{vVA} offset:{u*512 + dt*32}" for u in range(2)]
    def apv(dt, qt): return f"{MF} {vr(acc(dt, qt), 4)}, {vr(vb[dt], 4)}, {vr(S + qt*8, 4)}, {vr(acc(dt, qt), 4)}"
    def weave(mf, fill):
        cost = [2 if (x.startswith("v_exp") or x.startswith("v_mfma")) else 1 for x in fill]
        tot = sum(cost); cum = 0; k = 0
        for i, m in enumerate(mf):
            e(m)
            while k < len(fill) and (cum + cost[k]) * len(mf) <= (i + 1) * tot + len(mf) // 2:
                e(fill[k]); cum += cost[k]; k += 1
        emit(fill[k:])
    def atile(odd):
        ex = exps(0, 0) + exps(1, 0) + exps(2, 0)
        for f in range(8):
            u, sx = f >> 2, f & 3
            if f == 0: e("s_waitcnt lgkmcnt(2)")
            if f in (2, 4): e("s_waitcnt lgkmcnt(4)")
            for qt in range(4):
                r = vr(Sr(qt, u), 4)
                e(f"{MF} {r}, {vr(FB[kb[f]], 4)}, {vr(Q + (qt*4 + sx)*4, 4)}, {r if sx else '0'}")
                if f == 0 and qt < 2: e(akr(4 + qt))
                if f == 2 and qt == 0: e(f"v_add_u32 v{vKA}, s{sDK if odd else sM}, v{vKA}")
                if u == 1 and (f, qt) != (4, 0) and (qt < 3 or f == 7): e(ex.pop(0))
            if f < 2: e(akr(6 + f))
            else: emit(avr(f - 2))
        assert not ex
        emit(exps(0, 1)); emit(cvts(0, 0)); emit(cvts(0, 1)); emit(avr(6))
        e("s_waitcnt lgkmcnt(6)")
        b0 = [apv(dt, 0) for dt in range(6)]
        b0[3] += "\ns_waitcnt lgkmcnt(2)"
        weave(b0, exps(1, 1) + cvts(1, 0) + cvts(1, 1))
        emit(avr(7))
        s0, s1, s2, s3 = (sums(qt) for qt in range(4))
        b1 = [apv(dt, 1) for dt in range(6)]
        b1[1] = s0[0] + "\n" + b1[1]; b1[3] = s0[1] + "\n" + b1[3]
        weave(b1, exps(2, 1) + cvts(2, 0) + cvts(2, 1))
        e(f"v_add_u32 v{vVA}, s{sDV if odd else sM}, v{vVA}")
        b2 = [apv(dt, 2) for dt in range(6)] + [apv(6, 0), apv(7, 0), apv(6, 1), apv(7, 1)]
        b2[0] = s1[0] + "\n" + b2[0]; b2[2] = s1[1] + "\n" + b2[2]; b2[4] = s2[0] + "\n" + b2[4]
        b2[6] = "s_waitcnt lgkmcnt(0)\n" + b2[6]
        weave(b2, exps(3, 0) + exps(3, 1) + cvts(3, 0) + cvts(3, 1))
        e(s2[1])
        if not odd: e(f"s_xor_b32 s{sM}, s{sM}, {(2*WRING) ^ (2*SLOT):#x}")
        if odd:
            e(f"s_add_u32 s{sI}, s{sI}, 1"); e(f"s_cmp_eq_u32 s{sI}, 8"); e("s_cbranch_scc1 L_Anb")
            e("s_barrier"); e("L_Anb:")
        for k, dt in enumerate((4, 5, 0, 1)):
            e(apv(dt, 3)); e(akr(k))
        e(s3[0]); e(apv(2, 3))
        if odd: e(f"s_xor_b32 s{sDK}, s{sDK}, {dKx:#x}"); e(f"s_xor_b32 s{sDV}, s{sDV}, {dVx:#x}")
        e(apv(3, 3)); e(s3[1])
        e(apv(6, 2)); e(apv(7, 2))
        if odd: e(f"s_cmp_eq_u32 s{sI}, 8")
        e(apv(6, 3)); e(apv(7, 3))
    kad = [WR0, WR0 + 2*WRING, XB, XB + 2*SLOT]
    vad = [WR0 + WRING, WR0 + 3*WRING, XB + SLOT, XB + 3*SLOT]
    dK = [(kad[2] - kad[1]) & 0xffffffff, (kad[0] - kad[3]) & 0xffffffff]; dKx = dK[0] ^ dK[1]
    dV = [(vad[2] - vad[1]) & 0xffffffff, (vad[0] - vad[3]) & 0xffffffff]; dVx = dV[0] ^ dV[1]
    e("L_Aattn:")
    e(f"s_mov_b32 s{sM}, {2*WRING}"); e(f"s_mov_b32 s{sDK}, {dK[0]:#x}"); e(f"s_mov_b32 s{sDV}, {dV[0]:#x}")
    e("s_barrier")
    stamp("L0")
    if stamps and "L0" in stamps: e("s_waitcnt lgkmcnt(0)")
    for f in range(4): e(akr(f))
    e("L_Aloop:")
    atile(0); atile(1)
    e("s_cbranch_scc0 L_Aloop")
    e("s_waitcnt lgkmcnt(0)")
    e(f"v_mbcnt_lo_u32_b32 v{vLN}, -1, 0"); e(f"v_mbcnt_hi_u32_b32 v{vLN}, -1, v{vLN}")
    e(f"v_lshlrev_b32 v{vDV}, 4, v{vLN}")
    dk_setup(); wx_setup(); b_wsetup()

    e("L_Oepi:")
    if tl:
        e(f"s_cmp_eq_u32 s{sROLE}, 0"); e("s_cbranch_scc0 L_tl0"); e("v_mov_b32 v252, v254   ; v_writelane_b32 v247"); e("L_tl0:")
    stamp("attn_done")
    e(f"s_mov_b32 s{sPH}, s{sROLE}")
    for qt in range(4): xlane("v_add_f32", L + qt, vT0)
    e(f"v_min3_f32 v{vT0}, v{L}, v{L+1}, v{L+2}"); e(f"v_min_f32 v{vT0}, v{vT0}, v{L+3}")
    e(f"v_add_f32 v{vT1}, v{L}, v{L+1}"); e(f"v_add_f32 v{vT1}, v{vT1}, v{L+2}"); e(f"v_add_f32 v{vT1}, v{vT1}, v{L+3}")
    e(f"v_cmp_nle_f32 vcc, {f2u(2.0**lo_exp):#x}, v{vT0}"); e("s_cbranch_vccnz L_slow")
    e(f"v_cmp_nge_f32 vcc, {f2u(2.0**hi_exp):#x}, v{vT1}"); e("s_cbranch_vccnz L_slow")
    if force_slow: e("s_branch L_slow")
    e("L_slow_back:")
    for qt in range(4): e(f"v_rcp_f32 v{L+qt}, v{L+qt}")
    e(f"s_mul_i32 s{sTMP}, s{sW}, {CHUNK}"); e(f"v_add_u32 v{vT0}, s{sTMP}, v{vXA}")
    def norm(s, qt):
        b = acc(2*s, qt)
        sel = "op_sel_hi:[1,0]" if qt % 2 == 0 else "op_sel:[0,1]"
        for i in range(4): e(f"v_pk_mul_f32 {vr(b+2*i, 2)}, {vr(b+2*i, 2)}, {vr(L + (qt & 2), 2)} {sel}")
        for i in range(4): e(f"v_cvt_pk_bf16_f32 v{b+i}, v{b+2*i}, v{b+2*i+1}")
    def owr(s, qt): e(f"ds_write_b128 v{vT0}, {vr(acc(2*s, qt), 4)} offset:{qt*HALF + s*64}")
    e(f"s_cmp_eq_u32 s{sPH}, 0"); e("s_cbranch_scc1 L_Bend")
    for s in range(4):
        for qt in range(4): norm(s, qt)
    e("s_barrier")
    for s in range(4):
        for qt in range(4): owr(s, qt)
    e("s_branch L_Oproj")
    e("L_Bend:")
    for s in range(4):
        for qt in range(4):
            norm(s, qt); owr(s, qt)
    e("L_Oproj:")
    e("s_waitcnt lgkmcnt(0)")
    e("s_barrier")
    stamp("Owritten")
    proj("o")
    stamp("Odone")
    e(f"s_xor_b32 s{sTMP}, s{sROLE}, 1"); e(f"s_lshl_b32 s{sTMP}, s{sTMP}, 8"); e(f"s_add_u32 s{sTMP}, s{sTMP}, s2")
    e(f"s_lshl_b32 s{sTMP}, s{sTMP}, 2"); e(f"s_add_u32 s{sTMP}, s{sTMP}, s{sW}"); e(f"s_lshl_b32 s{sTMP}, s{sTMP}, 14")
    e(f"s_add_u32 s{sP}, s28, s{sTMP}"); e(f"s_addc_u32 s{sP+1}, s29, 0"); e(f"s_mov_b32 s{sP+2}, 0x4000"); e(f"s_mov_b32 s{sP+3}, 0x20000")
    e(f"s_cmp_eq_u32 s{sROLE}, 0"); e("s_cbranch_scc1 L_store")
    e(f"s_setprio {prioT}")
    coop_prefetch(22, 10, 19, w_pf)
    wo_srd(22); e(f"s_mov_b32 s{sWOFF}, 0")
    for n in range(3): emit(w_issue(n, "o"))
    poll(None)
    e("s_barrier")
    e("L_store:")
    for s in range(4):
        for qt in range(4):
            b = acc(2*s, qt)
            e(f"s_mov_b32 s{sOFF}, {qt*4096}")
            for i in range(4): e(f"v_cvt_pk_bf16_f32 v{b+i}, v{b+2*i}, v{b+2*i+1}")
            e(f"buffer_store_dwordx4 {vr(b, 4)}, v{vDV}, {srd(sP)}, s{sOFF} offen offset:{s*1024} {pstore}")
    e(f"s_cmp_eq_u32 s{sROLE}, 0"); e("s_cbranch_scc0 L_Apub")
    e("s_waitcnt vmcnt(0)")
    stamp("pub")
    e("s_barrier"); e("s_barrier")
    e(f"s_mov_b32 s{sN}, s{sW}")
    e("s_branch L_final")
    e("L_Apub:")
    if e0: e("s_barrier")
    e("s_waitcnt vmcnt(0)")
    e(f"v_mov_b32 v{vT0}, {CNT}"); e(f"v_mov_b32 v{vT1}, 1")
    e("s_mov_b64 exec, 1")
    e(f"ds_add_rtn_u32 v{vT0}, v{vT0}, v{vT1}")
    e("s_waitcnt lgkmcnt(0)")
    e(f"v_readfirstlane_b32 s{sTMP}, v{vT0}")
    e(f"s_cmp_eq_u32 s{sTMP}, 3"); e("s_cbranch_scc0 L_nosig")
    flag_srd(0)
    e(f"buffer_atomic_add v{vT1}, off, {srd(sPF)}, s{sOFF}")
    e("L_nosig:")
    stamp("pubA")
    poll(0)
    stamp("flagA")
    e(f"s_lshl_b32 s{sN}, s{sW}, 1")
    reduce(0, 2)
    stamp("redA")
    e("s_barrier")
    stamp("pub")
    e(f"s_cmp_eq_u32 s{sW}, 0"); e("s_cbranch_scc0 L_nopoll")
    def first(done):
        e(f"v_mov_b32 v{vT0}, 1")
        e(f"buffer_atomic_add v{vT0}, off, {srd(sPF)}, s{sOFF} sc0")
        e("s_waitcnt vmcnt(0)")
        e(f"v_readfirstlane_b32 s{sTMP}, v{vT0}")
        e(f"s_cmp_ge_u32 s{sTMP}, 7"); e(f"s_cbranch_scc1 {done}")
    poll(1, first)
    e("L_nopoll:")
    e("s_barrier")
    e(f"s_add_u32 s{sN}, s{sW}, 4")
    e("L_final:")
    stamp("flag")
    reduce(1, 1)
    if stamps:
        e("s_waitcnt vmcnt(0)")
        stamp("end")
        e("s_memtime s[4:5]")
        e("s_waitcnt lgkmcnt(0)")
        e("s_sub_u32 s4, s4, s100")
        e(f"s_lshl_b32 s{sTMP}, s2, 1"); e(f"s_add_u32 s{sTMP}, s{sTMP}, s{sROLE}"); e(f"s_lshl_b32 s{sTMP}, s{sTMP}, 2"); e(f"s_add_u32 s{sTMP}, s{sTMP}, s{sW}")
        e(f"s_lshl_b32 s{sTMP}, s{sTMP}, 7")
        e(f"s_add_u32 s{sPF}, s28, 0x4000000"); e(f"s_addc_u32 s{sPF+1}, s29, 0"); e(f"s_mov_b32 s{sPF+2}, 0x100000"); e(f"s_mov_b32 s{sPF+3}, 0x20000")
        for i in range(16): e(f"v_mov_b32 v{i}, s{sST+i}")
        e(f"v_mov_b32 v16, s4"); e("v_mov_b32 v17, 0"); e("v_mov_b32 v18, 0"); e("v_mov_b32 v19, 0")
        e(f"v_mov_b32 v20, s{sTMP}")
        if tl:
            e(f"v_lshl_add_u32 v21, v{vLN}, 2, v20"); e("s_mov_b64 exec, 0xffff"); e(f"s_mov_b32 s{sOFF}, 0x80000")
            e(f"buffer_store_dword v252, v21, {srd(sPF)}, s{sOFF} offen")
        e("s_mov_b64 exec, 1")
        for i in range(5): e(f"buffer_store_dwordx4 {vr(4*i, 4)}, v20, {srd(sPF)}, 0 offen offset:{16*i}")
    e("L_end:")
    e("s_endpgm")

    e("L_slow:")
    e("s_waitcnt vmcnt(0)")
    e(f"s_cmp_eq_u32 s{sROLE}, 0"); e("s_cbranch_scc1 L_slowB")
    e("s_barrier")
    e(f"s_mov_b32 s{sPH}, 0")
    e(f"s_mul_i32 s{sKB}, s{sW}, {CHUNK}"); e(f"s_add_u32 s{sKB}, s{sKB}, {XB}")
    e(f"s_sub_u32 s{sTMP}, s{sKB}, {WR0}"); e(f"v_add_u32 v{vKA}, s{sTMP}, v{vKA}")
    e(f"s_sub_u32 s{sTMP}, s{sTMP}, {WRING}"); e(f"v_add_u32 v{vVA}, s{sTMP}, v{vVA}")
    e("s_branch L_slowC")
    e("L_slowB:")
    e(f"v_add_u32 v{vVA}, {(-SLOT) & 0xffffffff:#x}, v{vVA}")
    e("L_slowC:")
    for i in range(0, 128, 2): e(f"v_mov_b64 {vr(i, 2)}, 0")
    for i in range(4): e(f"v_mov_b32 v{L+i}, 0"); e(f"v_mov_b32 v{M+i}, {f2u(-3.0e38):#x}")
    e(f"s_mov_b32 s{sROT}, 0")
    e("L_slowloop:")
    emit(k_issue())
    e("s_waitcnt vmcnt(0)")
    qk(None)
    emit(kv_issue(sV, vDV, sKB, 0, VBLK))
    for qt in range(4):
        b = S + qt*8; t = F + 2*qt
        e(f"v_max3_f32 v{t}, v{b}, v{b+1}, v{b+2}"); e(f"v_max3_f32 v{t}, v{t}, v{b+3}, v{b+4}")
        e(f"v_max3_f32 v{t}, v{t}, v{b+5}, v{b+6}"); e(f"v_max3_f32 v{t}, v{t}, v{b+7}, v{M+qt}")
        xlane("v_max_f32", t, vT0)
        e(f"v_sub_f32 v{t+1}, v{M+qt}, v{t}"); e(f"v_mov_b32 v{M+qt}, v{t}")
        e(f"v_exp_f32 v{t+1}, v{t+1}")
        for i in range(8): e(f"v_sub_f32 v{b+i}, v{b+i}, v{M+qt}")
        e(f"v_mul_f32 v{L+qt}, v{L+qt}, v{t+1}")
        for dt in range(8):
            for i in range(0, 4, 2): e(f"v_pk_mul_f32 {vr(acc(dt, qt)+i, 2)}, {vr(acc(dt, qt)+i, 2)}, {vr(t, 2)} op_sel:[0,1]")
        emit(exps(qt, 0)); emit(cvts(qt, 0))
    e("s_waitcnt vmcnt(0)")
    for dt in range(3): emit(vrd(dt))
    pv_phase([exps(qt, 1) + cvts(qt, 1) for qt in range(4)])
    e(f"s_add_u32 s{sROT}, s{sROT}, 8192"); e(f"s_cmp_lt_u32 s{sROT}, 0x20000"); e("s_cbranch_scc1 L_slowloop")
    for qt in range(4): xlane("v_add_f32", L + qt, vT0)
    b_wsetup()
    e("s_branch L_slow_back")
    e("L_last:")

    e('.section .rodata,"a"')
    e(".p2align 6"); e(f".amdhsa_kernel {NAME}_kernel")
    for l in [".amdhsa_next_free_vgpr 256", ".amdhsa_next_free_sgpr 102", ".amdhsa_accum_offset 256", ".amdhsa_group_segment_fixed_size 0",
              ".amdhsa_kernarg_size 104", ".amdhsa_user_sgpr_count 2", ".amdhsa_user_sgpr_kernarg_segment_ptr 1", ".amdhsa_system_sgpr_workgroup_id_x 1",
              ".amdhsa_float_denorm_mode_32 3"]:
        e("  " + l)
    e(".end_amdhsa_kernel")
    n = a.pad()
    return a.text(), n

if __name__ == "__main__":
    kw = eval("dict(" + (sys.argv[2] if len(sys.argv) > 2 else "") + ")")
    txt, n = gen(**kw)
    out = sys.argv[1] if len(sys.argv) > 1 else f"cdna_kernels/{NAME}.s"
    open(out, "w").write(txt)
    print("pad states:", n, "lines:", txt.count("\n"), "LDS", LDS)
```

```python
import sys, math, struct
from asmlib import Asm

NAME = "concat_heads__gqa_block_cached__mha_block_cached__near_ridge"
KBLK = 1088; VBLK = 1056; HALF = 4352; SLOT = 8704; CHUNK = 2*SLOT
XB = 2*CHUNK
WR0 = XB + 4*CHUNK
WRING = 3*HALF
CNT = WR0 + 4*WRING
LDS = CNT + 64
assert LDS <= 163840
WBIAS = 128

sK, sV, sWQ, sWO, sX, sP, sIT, sPF = 32, 36, 40, 44, 48, 52, 56, 60
(sROLE, sW, sG, sB, sD, sI, sROT, sOFF, sWRB, sKB, sTMP, sTMP2, sD4, sWOFF, sN, sM, sROTA, sIST, sPH, sDK) = range(64, 84)
sDV = 30; sHI = 31; sJ = 3
sST = 84
def srd(n): return f"s[{n}:{n+3}]"
ACC = 0; Q = 128; S = 192; F = 224; L = 236; ONES = 240
vKA, vVA, vDK, vDV = 242, 243, 244, 245
vWO = 246
vWA, vXA, vIT, vLN, vT0, vT1 = 250, 251, 252, 253, 254, 255
M = 246
AF = 128; BF = 160
def vr(b, n): return f"v[{b}:{b+n-1}]"
def acc(dt, qt): return ACC + ((dt >> 1)*4 + qt)*8 + (dt & 1)*4
def f2u(x): return struct.unpack("<I", struct.pack("<f", x))[0]
MF = "v_mfma_f32_16x16x32_bf16"

def gen(kv="nt", wq_pf="", w_pf="", wflag="", xflag="", stamps=False, groups=((1, 6), (4, 9), (7, 12), (10, 15)), mask=0x7f, early01=False, e0=True, prioT=0, prioA=1, prioB=0, T=10.0,
        rot_mul=1, cyc=False, lo_exp=-30, hi_exp=30, force_slow=False, codepf=True, slp=6, pstore="sc1", tl=False):
    a = Asm(); e = a
    if stamps is True: stamps = ["start", "P0", "Qdone", "attn_done", "Owritten", "Odone", "pub", "end"]
    def stamp(nm):
        if stamps and nm in stamps:
            i = stamps.index(nm); e(f"{'s_memtime' if cyc else 's_memrealtime'} s[{sST+2*i}:{sST+2*i+1}]")
    def emit(lst):
        for x in lst: e(x)
    uid = [0]
    def lab(p):
        uid[0] += 1; return f"L_{p}{uid[0]}"

    def w_setup(kind):
        sh = 13 if kind == "q" else 10
        if kind == "q":
            e(f"v_bfe_u32 v{vT0}, v{vLN}, 3, 2"); e(f"v_lshlrev_b32 v{vWO}, {sh+3}, v{vT0}")
            e(f"v_lshrrev_b32 v{vT0}, 5, v{vLN}"); e(f"v_lshl_add_u32 v{vWO}, v{vT0}, {sh+2}, v{vWO}")
        else:
            e(f"v_lshrrev_b32 v{vT0}, 3, v{vLN}"); e(f"v_lshlrev_b32 v{vWO}, {sh+2}, v{vT0}")
        e(f"v_and_b32 v{vT0}, 7, v{vLN}"); e(f"v_lshl_add_u32 v{vWO}, v{vT0}, 4, v{vWO}")
        for r in (3, 2, 1, 0):
            e(f"v_add_u32 v{vWO+r}, {r*((1 << sh) - VBLK) + WBIAS}, v{vWO}")
        e(f"s_mov_b32 s{sWOFF}, 0")
    def wslot(n): return (n + 1) % 3
    def w_issue(n, kind):
        sr, sh = (sWQ, 13) if kind == "q" else (sWO, 10)
        out = [f"s_add_u32 m0, s{sWRB}, {wslot(n)*HALF}"]
        for r in range(4):
            out.append(f"buffer_load_dwordx4 v{vWO+r}, {srd(sr)}, s{sWOFF} offen offset:{r*VBLK} {wflag} lds")
        out.append(f"s_add_u32 s{sWOFF}, s{sWOFF}, {128 if n % 2 == 0 else (32 << sh) - 128}")
        return out
    def kv_issue(sr, voff, sbase, imm, blk, rot=sROT):
        out = [f"s_mov_b32 s{sOFF}, s{rot}"]
        for j in range(8):
            if j == 4: out.append(f"s_add_u32 s{sOFF}, s{sOFF}, 4096")
            out.append(f"s_add_u32 m0, s{sbase}, {imm + j*blk - (j % 4)*1024}")
            out.append(f"buffer_load_dwordx4 v{voff}, {srd(sr)}, s{sOFF} offen offset:{(j % 4)*1024} {kv} lds")
        return out
    def k_issue(): return kv_issue(sK, vDK, sKB, 0, KBLK)
    def v_issue(): return kv_issue(sV, vDV, sKB, SLOT, VBLK)
    def item_issue(sbase, blocks=range(8)):
        out = []
        for j in blocks:
            if j == 0: out += [f"s_mov_b32 s{sOFF}, s{sROTA}", f"s_mov_b32 m0, s{sbase}"]
            elif j == 4:
                out += [f"s_add_u32 s{sOFF}, s{sROTA}, 4096", f"s_lshl_b32 s{sTMP}, s{sIST}, 2", f"s_add_u32 s{sTMP}, s{sTMP}, s{sbase}", f"s_add_u32 m0, s{sTMP}, 4096"]
            else: out.append(f"s_add_u32 m0, m0, s{sIST}")
            out.append(f"buffer_load_dwordx4 v{vIT}, {srd(sIT)}, s{sOFF} offen offset:{(j % 4)*1024} {kv} lds")
        return out
    def x_issue(c):
        e(f"s_lshl_b32 s{sOFF}, s{sW}, 14"); e(f"s_add_u32 s{sOFF}, s{sOFF}, {c*256}")
        e(f"s_mul_i32 s{sTMP}, s{sW}, {HALF}")
        for j in range(4):
            e(f"s_add_u32 m0, s{sTMP}, {XB + c*CHUNK + j*64}")
            e(f"buffer_load_dwordx4 v{vT1}, {srd(sX)}, s{sOFF} offen offset:{j*1024} {xflag} lds")
    def x_own(h):
        out = [f"s_lshl_b32 s{sOFF}, s{sW}, 8", f"s_add_u32 s{sOFF}, s{sOFF}, {h*32768}"]
        for j in range(8):
            if j == 4: out.append(f"s_add_u32 s{sOFF}, s{sOFF}, 16384")
            out.append(f"s_add_u32 m0, s{sKB}, {h*SLOT + (j >> 2)*HALF + (j & 3)*64}")
            out.append(f"buffer_load_dwordx4 v{vT1}, {srd(sX)}, s{sOFF} offen offset:{(j & 3)*1024} {xflag} lds")
        return out
    def x_voff():
        e(f"v_lshrrev_b32 v{vT0}, 4, v{vLN}"); e(f"v_sub_u32 v{vT1}, 0, v{vT0}"); e(f"v_and_b32 v{vT1}, 3, v{vT1}")
        e(f"v_xor_b32 v{vT1}, v{vT1}, v{vLN}"); e(f"v_and_b32 v{vT1}, 15, v{vT1}"); e(f"v_lshlrev_b32 v{vT1}, 4, v{vT1}")
        e(f"v_lshl_add_u32 v{vT1}, v{vT0}, 12, v{vT1}")
    def x_srd(lo):
        e(f"s_lshl_b32 s{sTMP}, s{sB}, 16")
        e(f"s_add_u32 s{sX}, s{lo}, s{sTMP}"); e(f"s_addc_u32 s{sX+1}, s{lo+1}, 0"); e(f"s_mov_b32 s{sX+2}, 0x10000"); e(f"s_mov_b32 s{sX+3}, 0x20000")
    def wo_srd(lo):
        e(f"s_lshl_b32 s{sTMP}, s{sG}, 19"); e(f"s_lshl_b32 s{sTMP2}, s{sW}, 8"); e(f"s_add_u32 s{sTMP}, s{sTMP}, s{sTMP2}")
        e(f"s_add_u32 s{sWO}, s{lo}, s{sTMP}"); e(f"s_addc_u32 s{sWO+1}, s{lo+1}, 0")
        e(f"s_sub_u32 s{sWO}, s{sWO}, {WBIAS}"); e(f"s_subb_u32 s{sWO+1}, s{sWO+1}, 0")
        e(f"s_sub_u32 s{sWO+2}, {0x400000 + WBIAS}, s{sTMP}"); e(f"s_mov_b32 s{sWO+3}, 0x20000")
    def coop_prefetch(lo, sh, goff_sh, flag):
        e(f"s_lshl_b32 s{sTMP}, s{sG}, {goff_sh}")
        e(f"s_add_u32 s{sPF}, s{lo}, s{sTMP}"); e(f"s_addc_u32 s{sPF+1}, s{lo+1}, 0")
        e(f"s_sub_u32 s{sPF+2}, 0x400000, s{sTMP}"); e(f"s_mov_b32 s{sPF+3}, 0x20000")
        e(f"s_lshl_b32 s{sTMP}, s{sB}, 2"); e(f"s_add_u32 s{sTMP}, s{sTMP}, s{sW}"); e(f"s_lshl_b32 s{sTMP}, s{sTMP}, {sh+2}")
        for r in range(4):
            e(f"buffer_load_dwordx4 {vr(S + 4*r, 4)}, v{vDV}, {srd(sPF)}, s{sTMP} offen {flag}")
            if r < 3: e(f"s_add_u32 s{sTMP}, s{sTMP}, {1 << sh}")

    def proj(kind):
        def ra(n):
            p = n % 2
            return [f"ds_read_b64_tr_b16 {vr(AF + p*16 + d*4 + ee*2, 2)}, v{vWA} offset:{wslot(n)*HALF + ee*512 + d*32}" for d in range(4) for ee in range(2)]
        def rb(ks, qts):
            return [f"ds_read_b128 {vr(BF + (ks % 2)*16 + qt*4, 4)}, v{vXA} offset:{(ks >> 2)*CHUNK + qt*HALF + (ks & 3)*64}" for qt in qts]
        e("s_waitcnt vmcnt(8)")
        emit(rb(0, range(4))); emit(ra(0))
        e("s_waitcnt lgkmcnt(0)")
        for n in range(32):
            stamp(f"{kind}{n}")
            ks, ch, p = n >> 1, n & 1, n % 2
            rd = ra(n + 1) if n < 31 else []
            if ks < 15: rd = rd + rb(ks + 1, (2*ch, 2*ch + 1))
            dm = w_issue(n + 3, kind) if n + 3 < 32 else []
            if n < 31:
                e("s_waitcnt vmcnt(4)" if (n <= 29) else "s_waitcnt vmcnt(0)")
            if kind == "q" and n in (6, 14, 22): e("s_barrier")
            if n == 30:
                if kind == "q": e("s_barrier")
                else:
                    l1 = lab("nb"); e(f"s_cmp_eq_u32 s{sROLE}, 0"); e(f"s_cbranch_scc1 {l1}"); e("s_barrier"); e(f"{l1}:")
            gaps = [[] for _ in range(16)]
            for i, x in enumerate(rd): gaps[i].append(x)
            if dm:
                gaps[3].append(dm[0])
                for i in range(4): gaps[4 + 2*i].append(dm[1 + i])
                gaps[11].append(dm[5])
            k = 0
            for d in range(4):
                for qt in range(4):
                    r = vr(acc(4*ch + d, qt), 4)
                    e(f"{MF} {r}, {vr(AF + p*16 + d*4, 4)}, {vr(BF + (ks % 2)*16 + qt*4, 4)}, {r if ks else '0'}")
                    emit(gaps[k]); k += 1
            if n < 31: e("s_waitcnt lgkmcnt(0)")

    def Sr(qt, u): return S + qt*8 + u*4
    def exps(qt, u): return [f"v_exp_f32 v{Sr(qt, u)+i}, v{Sr(qt, u)+i}" for i in range(4)]
    def cvts(qt, u): return [f"v_cvt_pk_bf16_f32 v{S+qt*8+2*u+i}, v{Sr(qt, u)+2*i}, v{Sr(qt, u)+2*i+1}" for i in range(2)]
    def kr(f): return f"ds_read_b128 {vr(F + (f % 3)*4, 4)}, v{vKA} offset:{(f >> 2)*512 + (f & 3)*64}"
    vbuf = [F, F + 4, F + 8, S + 4, S + 12, S + 20, S + 28, F]
    def vrd(dt): return [f"ds_read_b64_tr_b16 {vr(vbuf[dt] + 2*u, 2)}, v{vVA} offset:{u*512 + dt*32}" for u in range(2)]
    def sums(qt): return [f"v_mfma_f32_4x4x4_16b_bf16 {vr(L, 4)}, {vr(ONES, 2)}, {vr(S + qt*8 + 2*h, 2)}, {vr(L, 4)} cbsz:2 abid:{qt}" for h in range(2)]
    def pv(dt, qt): return f"{MF} {vr(acc(dt, qt), 4)}, {vr(vbuf[dt], 4)}, {vr(S + qt*8, 4)}, {vr(acc(dt, qt), 4)}"
    def qk(fill):
        for f in range(3): e(kr(f))
        m = 0
        for f in range(8):
            u, s = f >> 2, f & 3
            e(f"s_waitcnt lgkmcnt({min(2, 7 - f)})")
            for qt in range(4):
                r = vr(Sr(qt, u), 4)
                e(f"{MF} {r}, {vr(F + (f % 3)*4, 4)}, {vr(Q + (qt*4 + s)*4, 4)}, {r if s else '0'}")
                if u == 1:
                    if m >= 3 and fill: e(fill.pop(0))
                    m += 1
            if f + 3 < 8: e(kr(f + 3))
    def pv_phase(pre):
        emit(pre[0]); emit(vrd(3))
        for qt in range(4):
            nxt = (pre[qt + 1] + vrd(4 + qt)) if qt < 3 else []
            per = math.ceil(len(nxt) / 4)
            sm = sums(qt)
            for dt in range(3):
                if qt == 0: e(f"s_waitcnt lgkmcnt({6 - 2*dt})")
                e(pv(dt, qt)); emit(nxt[dt*per:(dt+1)*per])
                if dt == 0: e(sm[0])
            e(sm[1]); emit(nxt[3*per:])
        emit(vrd(7))
        for dt in range(3, 8):
            e(f"s_waitcnt lgkmcnt({2*(7 - dt)})")
            for qt in range(4): e(pv(dt, qt))
    def tile(after_qk, before_v, after_pv):
        fill = []
        for qt in range(4): fill += exps(qt, 0)
        for qt in range(4): fill += cvts(qt, 0)
        qk(fill)
        emit(fill)
        after_qk()
        before_v()
        for dt in range(3): emit(vrd(dt))
        pv_phase([exps(qt, 1) + cvts(qt, 1) for qt in range(4)])
        after_pv()
    def xlane(op, reg, tmp):
        for sw in ("32", "16"):
            e(f"v_mov_b32 v{tmp}, v{reg}"); e(f"v_permlane{sw}_swap_b32 v{reg}, v{tmp}"); e(f"{op} v{reg}, v{reg}, v{tmp}")
    def waitn(sreg, mx):
        end = lab("wn")
        for n in range(mx, 0, -1):
            e(f"s_waitcnt vmcnt({8*n})"); e(f"s_cmp_ge_u32 s{sreg}, {n}"); e(f"s_cbranch_scc1 {end}")
        e("s_waitcnt vmcnt(0)"); e(f"{end}:")
    def flag_srd(branch):
        e(f"s_add_u32 s{sPF}, s28, 0x2000000"); e(f"s_addc_u32 s{sPF+1}, s29, 0"); e(f"s_mov_b32 s{sPF+2}, 0x8000"); e(f"s_mov_b32 s{sPF+3}, 0x20000")
        e(f"s_mul_i32 s{sOFF}, s{sB}, 768"); e(f"s_add_u32 s{sOFF}, s{sOFF}, {branch*256}")
    def dbg_srd():
        e(f"s_mov_b32 s{sPF}, s26"); e(f"s_mov_b32 s{sPF+1}, s27"); e(f"s_mov_b32 s{sPF+2}, 256"); e(f"s_mov_b32 s{sPF+3}, 0x20000")
        e(f"s_lshl_b32 s{sOFF}, s{sB}, 3")
    def poll(branch_off, first=None):
        l0, l1 = lab("pl"), lab("pl")
        if branch_off is None: dbg_srd()
        else: flag_srd(branch_off)
        e("s_mov_b64 exec, 1")
        if first: first(l1)
        e(f"s_mov_b32 s{sTMP2}, 0x40000")
        e(f"{l0}:")
        e(f"buffer_load_dword v{vT0}, off, {srd(sPF)}, s{sOFF} sc1")
        e("s_waitcnt vmcnt(0)")
        e(f"v_readfirstlane_b32 s{sTMP}, v{vT0}")
        e(f"s_cmp_eq_u32 s{sTMP}, 8"); e(f"s_cbranch_scc1 {l1}")
        e(f"s_sleep {slp}")
        e(f"s_sub_u32 s{sTMP2}, s{sTMP2}, 1"); e(f"s_cmp_lg_u32 s{sTMP2}, 0"); e(f"s_cbranch_scc1 {l0}")
        e(f"{l1}:")
        e("s_mov_b64 exec, -1")
    def reduce(branch, nfr):
        e(f"s_add_u32 s{sTMP}, s{sB}, {branch*32}"); e(f"s_lshl_b32 s{sTMP}, s{sTMP}, 19")
        e(f"s_add_u32 s{sP}, s28, s{sTMP}"); e(f"s_addc_u32 s{sP+1}, s29, 0"); e(f"s_mov_b32 s{sP+2}, 0x80000"); e(f"s_mov_b32 s{sP+3}, 0x20000")
        e(f"s_lshl_b32 s{sTMP}, s{sG}, 3"); e(f"s_add_u32 s{sN}, s{sN}, s{sTMP}")
        e(f"s_lshl_b32 s{sOFF}, s{sN}, 10")
        for g in range(8):
            for f in range(nfr):
                e(f"buffer_load_dwordx4 {vr(64*f + 4*g, 4)}, v{vDV}, {srd(sP)}, s{sOFF} offen offset:{f*1024} sc1")
            if g < 7: e(f"s_add_u32 s{sOFF}, s{sOFF}, 0x10000")
        e(f"s_mov_b32 s{sPF}, s24"); e(f"s_mov_b32 s{sPF+1}, s25"); e(f"s_mov_b32 s{sPF+2}, 0x400000"); e(f"s_mov_b32 s{sPF+3}, 0x20000")
        e(f"s_lshl_b32 s{sOFF}, s{sB}, 17"); e(f"s_add_u32 s{sOFF}, s{sOFF}, {branch*1024}")
        e(f"s_bfe_u32 s{sTMP}, s{sN}, 0x20002"); e(f"s_lshl_b32 s{sTMP}, s{sTMP}, 15"); e(f"s_add_u32 s{sOFF}, s{sOFF}, s{sTMP}")
        e(f"s_lshr_b32 s{sTMP}, s{sN}, 4"); e(f"s_lshl_b32 s{sTMP}, s{sTMP}, 8"); e(f"s_add_u32 s{sOFF}, s{sOFF}, s{sTMP}")
        e(f"s_and_b32 s{sTMP}, s{sN}, 3"); e(f"s_lshl_b32 s{sTMP}, s{sTMP}, 6"); e(f"s_add_u32 s{sOFF}, s{sOFF}, s{sTMP}")
        e(f"v_and_b32 v{vT0}, 15, v{vLN}"); e(f"v_lshlrev_b32 v{vT1}, 11, v{vT0}")
        e(f"v_bfe_u32 v{vT0}, v{vLN}, 4, 1"); e(f"v_lshl_add_u32 v{vT1}, v{vT0}, 5, v{vT1}")
        e(f"v_lshrrev_b32 v{vT0}, 5, v{vLN}"); e(f"v_lshl_add_u32 v{vT1}, v{vT0}, 4, v{vT1}")
        for g in range(8):
            for f in range(nfr):
                e(f"s_waitcnt vmcnt({(7 - g)*nfr + (nfr - 1 - f)})")
                src, dst = 64*f + 4*g, 64*f + 32
                for i in range(4):
                    if g == 0:
                        e(f"v_lshlrev_b32 v{dst+2*i}, 16, v{src+i}"); e(f"v_and_b32 v{dst+2*i+1}, 0xffff0000, v{src+i}")
                    else:
                        e(f"v_lshlrev_b32 v{dst+8+2*i}, 16, v{src+i}"); e(f"v_and_b32 v{dst+9+2*i}, 0xffff0000, v{src+i}")
                if g:
                    for i in range(4): e(f"v_pk_add_f32 {vr(dst+2*i, 2)}, {vr(dst+2*i, 2)}, {vr(dst+8+2*i, 2)}")
        for f in range(nfr):
            dst = 64*f + 32
            for i in range(4): e(f"v_cvt_pk_bf16_f32 v{dst+i}, v{dst+2*i}, v{dst+2*i+1}")
            e(f"v_permlane16_swap_b32 v{dst}, v{dst+2}"); e(f"v_permlane16_swap_b32 v{dst+1}, v{dst+3}")
            e(f"buffer_store_dwordx4 {vr(dst, 4)}, v{vT1}, {srd(sPF)}, s{sOFF} offen offset:{f*64}")

    if stamps: e(f"; stamps: {stamps}")
    e(f"; @launch grid=(256,1,1) block=(512,1,1) lds={LDS}")
    e('.amdgcn_target "amdgcn-amd-amdhsa--gfx950"')
    e(".text"); e(f".globl {NAME}_kernel"); e(".p2align 8"); e(f".type {NAME}_kernel,@function")
    e(f"{NAME}_kernel:")
    e("s_cmp_ge_u32 s2, 256"); e("s_cbranch_scc1 L_end")
    e("s_load_dwordx16 s[4:19], s[0:1], 0"); e("s_load_dwordx8 s[20:27], s[0:1], 64"); e("s_load_dwordx2 s[28:29], s[0:1], 96")
    if stamps:
        for i in range(16): e(f"s_mov_b32 s{sST+i}, 0")
        e("s_memtime s[100:101]")
    stamp("start")
    e(f"v_lshrrev_b32 v1, 6, v0"); e(f"v_and_b32 v{vLN}, 63, v0"); e(f"v_readfirstlane_b32 s{sTMP}, v1")
    e(f"s_and_b32 s{sG}, s2, 7"); e(f"s_lshr_b32 s{sB}, s2, 3")
    e(f"s_and_b32 s{sW}, s{sTMP}, 3"); e(f"s_lshr_b32 s{sROLE}, s{sTMP}, 2"); e(f"s_lshr_b32 s{sHI}, s{sW}, 1")
    e(f"s_mul_i32 s{sWRB}, s{sW}, {WRING}"); e(f"s_add_u32 s{sWRB}, s{sWRB}, {WR0}")
    e(f"v_lshlrev_b32 v{vDV}, 4, v{vLN}")
    w_setup("q")
    x_voff()
    e("s_waitcnt lgkmcnt(0)")
    e(f"s_cmp_eq_u32 s{sROLE}, 0")
    e(f"s_cselect_b32 s{sWQ}, s20, s10"); e(f"s_cselect_b32 s{sWQ+1}, s21, s11")
    e(f"s_lshl_b32 s{sTMP}, s{sG}, 2"); e(f"s_add_u32 s{sTMP}, s{sTMP}, s{sW}"); e(f"s_lshl_b32 s{sTMP}, s{sTMP}, 8")
    e(f"s_add_u32 s{sWQ}, s{sWQ}, s{sTMP}"); e(f"s_addc_u32 s{sWQ+1}, s{sWQ+1}, 0")
    e(f"s_sub_u32 s{sWQ}, s{sWQ}, {WBIAS}"); e(f"s_subb_u32 s{sWQ+1}, s{sWQ+1}, 0")
    e(f"s_sub_u32 s{sWQ+2}, {0x400000 + WBIAS}, s{sTMP}"); e(f"s_mov_b32 s{sWQ+3}, 0x20000")
    e(f"s_cmp_eq_u32 s{sROLE}, 0"); e("s_cbranch_scc1 L_first_B")
    if prioA: e(f"s_setprio {prioA}")
    if codepf:
        e("s_getpc_b64 s[94:95]"); e("L_pc:")
        e(f"s_lshl_b32 s{sTMP}, s{sB}, 2"); e(f"s_add_u32 s{sTMP}, s{sTMP}, s{sW}"); e(f"s_lshl_b32 s{sTMP}, s{sTMP}, 7")
        e(f"v_lshl_add_u32 v2, v{vLN}, 14, s{sTMP}")
        e(f"v_min_u32 v2, L_last-L_pc-4, v2")
        e(f"v_mov_b32 v3, s95"); e("v_add_co_u32 v2, vcc, s94, v2"); e("v_addc_co_u32 v3, vcc, 0, v3, vcc")
        e("s_mov_b64 exec, 15")
        e("global_load_dword v4, v[2:3], off")
        e("s_mov_b64 exec, -1")
    x_srd(14); x_issue(0)
    coop_prefetch(20, 13, 10, wq_pf)
    e("s_branch L_common")
    e("L_first_B:")
    if prioB: e(f"s_setprio {prioB}")
    for n in range(3): emit(w_issue(n, "q"))
    x_srd(4)
    e("L_common:")
    assert bin(mask).count("1") == 7
    wt = (mask.bit_length() + 1) // 2
    for reg, k in ((sD, 0), (sD4, 1)):
        tab = [groups[b * len(groups) // 32][k] for b in range(32)]
        assert all(1 <= g[0] and g[0] + wt <= g[1] <= 15 for g in groups)
        wd = [sum(tab[8*i + j] << (4*j) for j in range(8)) for i in range(4)]
        e(f"s_bitcmp0_b32 s{sB}, 3")
        e(f"s_mov_b32 s{sTMP}, {wd[1]:#x}"); e(f"s_cselect_b32 s{sTMP}, {wd[0]:#x}, s{sTMP}")
        e(f"s_mov_b32 s{sTMP2}, {wd[3]:#x}"); e(f"s_cselect_b32 s{sTMP2}, {wd[2]:#x}, s{sTMP2}")
        e(f"s_bitcmp0_b32 s{sB}, 4"); e(f"s_cselect_b32 s{sTMP}, s{sTMP}, s{sTMP2}")
        e(f"s_and_b32 s{sTMP2}, s{sB}, 7"); e(f"s_lshl_b32 s{sTMP2}, s{sTMP2}, 2")
        e(f"s_lshr_b32 s{sTMP}, s{sTMP}, s{sTMP2}"); e(f"s_and_b32 s{reg}, s{sTMP}, 15")
    e(f"s_lshl_b32 s{sTMP}, s{sHI}, 1"); e(f"s_add_u32 s{sTMP}, s{sTMP}, s{sW}"); e(f"s_mul_i32 s{sKB}, s{sTMP}, {CHUNK}")
    e(f"v_bfe_u32 v{vT0}, v{vLN}, 4, 1"); e(f"v_lshlrev_b32 v{vT0}, 4, v{vT0}"); e(f"v_xor_b32 v{vDK}, v{vDV}, v{vT0}")
    t0, t1 = F, F + 1
    e(f"v_and_b32 v{t0}, 7, v{vLN}"); e(f"v_mul_u32_u24 v{vKA}, {KBLK}, v{t0}")
    e(f"v_bfe_u32 v{t0}, v{vLN}, 3, 1"); e(f"v_lshl_add_u32 v{vKA}, v{t0}, 8, v{vKA}")
    e(f"v_lshrrev_b32 v{t1}, 5, v{vLN}"); e(f"v_xor_b32 v{t0}, v{t0}, v{t1}"); e(f"v_lshl_add_u32 v{vKA}, v{t0}, 4, v{vKA}")
    e(f"v_bfe_u32 v{t0}, v{vLN}, 4, 1"); e(f"v_lshl_add_u32 v{vKA}, v{t0}, 5, v{vKA}")
    e(f"v_bfe_u32 v{t0}, v{vLN}, 2, 3"); e(f"v_mul_u32_u24 v{vVA}, {VBLK}, v{t0}")
    e(f"v_lshl_add_u32 v{vVA}, v{t1}, 8, v{vVA}")
    e(f"v_and_b32 v{t0}, 3, v{vLN}"); e(f"v_lshl_add_u32 v{vVA}, v{t0}, 3, v{vVA}")
    e(f"v_bfe_u32 v{t1}, v{vLN}, 2, 2"); e(f"v_mul_u32_u24 v{vWA}, {VBLK}, v{t1}")
    e(f"v_lshl_add_u32 v{vWA}, v{t0}, 3, v{vWA}")
    e(f"v_lshrrev_b32 v{t0+2}, 4, v{vLN}"); e(f"v_lshl_add_u32 v{vWA}, v{t0+2}, 7, v{vWA}"); e(f"v_add_u32 v{vWA}, s{sWRB}, v{vWA}")
    e(f"v_mul_u32_u24 v{vXA}, {KBLK}, v{t0}"); e(f"v_lshl_add_u32 v{vXA}, v{t1}, 8, v{vXA}")
    e(f"v_sub_u32 v{t0+3}, 0, v{t1}"); e(f"v_and_b32 v{t0+3}, 3, v{t0+3}"); e(f"v_xor_b32 v{t0+3}, v{t0+3}, v{t0+2}")
    e(f"v_lshl_add_u32 v{vXA}, v{t0+3}, 4, v{vXA}"); e(f"v_add_u32 v{vXA}, {XB}, v{vXA}")
    e(f"v_cmp_eq_u32 vcc, v{t0}, v{t1}"); e(f"v_mov_b32 v{t0+2}, 0x3f803f80")
    e(f"v_cndmask_b32 v{ONES}, 0, v{t0+2}, vcc"); e(f"v_mov_b32 v{ONES+1}, v{ONES}")
    for i in range(4): e(f"v_mov_b32 v{L+i}, 0")
    e(f"s_lshl_b32 s{sTMP}, s2, 2"); e(f"s_add_u32 s{sTMP}, s{sTMP}, s{sW}")
    e(f"s_mul_i32 s{sROT}, s{sTMP}, {rot_mul}"); e(f"s_and_b32 s{sROT}, s{sROT}, 15"); e(f"s_lshl_b32 s{sROT}, s{sROT}, 13")
    e(f"s_lshl_b32 s{sTMP}, s{sTMP}, 17")
    for r, p in ((sK, 16), (sV, 18)):
        e(f"s_add_u32 s{r}, s{p}, s{sTMP}"); e(f"s_addc_u32 s{r+1}, s{p+1}, 0"); e(f"s_mov_b32 s{r+2}, 0x20000"); e(f"s_mov_b32 s{r+3}, 0x20000")
    e(f"s_bitcmp0_b32 s{sW}, 0")
    e(f"s_cselect_b32 s{sIT}, s6, s8"); e(f"s_cselect_b32 s{sIT+1}, s7, s9"); e(f"s_cselect_b32 s{sIST}, {KBLK-1024}, {VBLK-1024}")
    e(f"s_cselect_b64 vcc, -1, 0")
    e(f"v_cndmask_b32 v{vIT}, v{vDV}, v{vDK}, vcc")
    e(f"s_lshl_b32 s{sTMP}, s2, 17")
    e(f"s_add_u32 s{sIT}, s{sIT}, s{sTMP}"); e(f"s_addc_u32 s{sIT+1}, s{sIT+1}, 0"); e(f"s_mov_b32 s{sIT+2}, 0x20000"); e(f"s_mov_b32 s{sIT+3}, 0x20000")
    e(f"s_mul_i32 s{sROTA}, s2, {rot_mul}"); e(f"s_add_u32 s{sROTA}, s{sROTA}, s{sHI}"); e(f"s_and_b32 s{sROTA}, s{sROTA}, 15"); e(f"s_lshl_b32 s{sROTA}, s{sROTA}, 13")
    e(f"s_cmp_eq_u32 s{sROLE}, 0"); e("s_cbranch_scc1 L_Binit")
    wo_srd(12)
    e(f"v_add_u32 v{vKA}, {WR0}, v{vKA}"); e(f"v_add_u32 v{vVA}, {WR0 + WRING}, v{vVA}")
    e(f"v_mov_b32 v{t0}, {CNT}"); e(f"ds_write_b32 v{t0}, v{L}")
    e("s_waitcnt vmcnt(4) lgkmcnt(0)"); e("s_barrier")
    x_issue(1)
    e("s_waitcnt vmcnt(0)"); e("s_barrier")
    x_issue(2); x_issue(3)
    e("s_waitcnt vmcnt(4)"); e("s_barrier")
    e("s_waitcnt vmcnt(0)"); e("s_barrier")
    if early01:
        e(f"s_cmp_eq_u32 s{sHI}, 0"); e("s_cbranch_scc0 L_h23")
        emit(k_issue()); emit(v_issue()); e("s_barrier"); e("s_branch L_h01")
        e("L_h23:")
    e("s_barrier"); emit(k_issue()); emit(v_issue())
    e("L_h01:")
    x_srd(4); x_issue(0)
    e("s_waitcnt vmcnt(4)"); e("s_barrier")
    coop_prefetch(10, 13, 10, w_pf)
    x_issue(1)
    coop_prefetch(12, 10, 19, w_pf)
    e(f"s_or_b32 s{sTMP}, s{sG}, s{sW}"); e(f"s_cmp_eq_u32 s{sTMP}, 0"); e("s_cbranch_scc0 L_noinit")
    flag_srd(0)
    e("s_mov_b64 exec, 1")
    e(f"buffer_store_dword v{L}, off, {srd(sPF)}, s{sOFF} sc1"); e(f"buffer_store_dword v{L}, off, {srd(sPF)}, s{sOFF} offset:256 sc1")
    e("s_waitcnt vmcnt(0)")
    dbg_srd()
    e(f"v_mov_b32 v{vT0}, 8"); e(f"buffer_store_dword v{vT0}, off, {srd(sPF)}, s{sOFF} sc1")
    e("s_mov_b64 exec, -1")
    e("L_noinit:")
    e(f"s_lshl_b32 s{sTMP}, s2, 17")
    for r, p in ((sK, 6), (sV, 8)):
        e(f"s_add_u32 s{r}, s{p}, s{sTMP}"); e(f"s_addc_u32 s{r+1}, s{p+1}, 0")
    for n in range(3): emit(w_issue(n, "q"))
    e("s_waitcnt vmcnt(12)")
    e("s_branch L_Qstart")
    e("L_Binit:")
    wo_srd(22)
    e(f"v_add_u32 v{vKA}, s{sKB}, v{vKA}"); e(f"v_add_u32 v{vVA}, s{sKB}, v{vVA}"); e(f"v_add_u32 v{vVA}, {SLOT}, v{vVA}")
    e("L_Qstart:")
    e("s_barrier")
    stamp("P0")
    proj("q")
    c = f2u(math.log2(math.e) / math.sqrt(128.0))
    e(f"v_mov_b32 v{vT0}, {c:#x}"); e(f"v_mov_b32 v{vT1}, {c:#x}")
    for s in range(4):
        for qt in range(4):
            b = acc(2*s, qt); q = Q + (qt*4 + s)*4
            for i in range(4): e(f"v_pk_mul_f32 {vr(b+2*i, 2)}, {vr(b+2*i, 2)}, {vr(vT0, 2)}")
            for i in range(4): e(f"v_cvt_pk_bf16_f32 v{q+i}, v{b+2*i}, v{b+2*i+1}")
            for i in range(0, 8, 2): e(f"v_mov_b64 {vr(b+i, 2)}, 0")
            e(f"v_permlane16_swap_b32 v{q}, v{q+2}"); e(f"v_permlane16_swap_b32 v{q+1}, v{q+3}")
    stamp("Qdone")
    e(f"s_mov_b32 s{sI}, 0")
    e(f"s_cmp_eq_u32 s{sROLE}, 0"); e("s_cbranch_scc0 L_Aattn")

    def b_wsetup():
        w_setup("o"); e(f"s_mov_b32 s{sWOFF}, {(32 << 10) + 128}")
    b_wsetup()
    x_voff()
    e(f"s_mov_b32 s{sN}, 1")
    e("s_barrier")
    e("L_Bloop:")
    e(f"s_cmp_eq_u32 s{sI}, s{sD}"); e("s_cbranch_scc1 L_Bpause1")
    e(f"s_cmp_eq_u32 s{sI}, s{sD4}"); e("s_cbranch_scc1 L_Bpause2")
    e("L_Bgo:")
    if e0:
        e(f"s_cmp_eq_u32 s{sI}, 15"); e("s_cbranch_scc0 L_noE0"); e("s_barrier"); e("L_noE0:")
    waitn(sN, 2)
    if tl:
        e("s_memrealtime s[98:99]"); e("s_waitcnt lgkmcnt(0)"); e(f"s_mov_b32 m0, s{sI}"); e("s_nop 0"); e(f"v_writelane_b32 v254, s98, m0")
    def next_item(sbase):
        e(f"s_add_u32 s{sROTA}, s{sROTA}, 16384"); e(f"s_and_b32 s{sROTA}, s{sROTA}, 0x1ffff")
        emit(item_issue(sbase))
    def refill(lst, h):
        go, xl, done, skip = lab("rf"), lab("rf"), lab("rf"), lab("rf")
        e(f"s_cmp_eq_u32 s{sTMP2}, 16"); e(f"s_cbranch_scc1 {skip}")
        e(f"s_cmp_eq_u32 s{sHI}, 0"); e(f"s_cbranch_scc1 {go}")
        e(f"s_cmp_eq_u32 s{sTMP2}, s{sD4}"); e(f"s_cbranch_scc1 {skip}")
        e(f"s_cmp_eq_u32 s{sTMP2}, s{sD}"); e(f"s_cbranch_scc1 {xl}")
        e(f"{go}:")
        emit(lst)
        e(f"{done}:")
        e(f"s_add_u32 s{sN}, s{sN}, 1"); e(f"s_add_u32 s{sM}, s{sM}, 1")
        e(f"{skip}:")
        late.append((xl, x_own(h), done))
    late = []
    def window(half):
        l = lab("nw")
        e(f"s_mov_b32 s{sN}, 0")
        e(f"s_sub_u32 s{sTMP2}, s{sI}, s{sD}"); e(f"s_cmp_lt_u32 s{sTMP2}, 8"); e(f"s_cbranch_scc0 {l}")
        m = sum(((mask >> (2*k + half)) & 1) << k for k in range(8))
        if m == 0:
            e(f"{l}:"); return
        e(f"s_bitcmp1_b32 {m}, s{sTMP2}"); e(f"s_cbranch_scc0 {l}")
        waitn(sM, 2)
        e("s_barrier")
        e(f"s_add_u32 s{sJ}, s{sJ}, 1"); e(f"s_cmp_eq_u32 s{sJ}, 7"); e(f"s_cbranch_scc1 {l}")
        e(f"s_bitcmp1_b32 s{sJ}, 0"); e(f"s_cselect_b32 s{sM}, s{sWRB}, s{sDK}")
        next_item(sM)
        e(f"s_mov_b32 s{sN}, 1"); e(f"s_mov_b32 s{sM}, 0")
        e(f"{l}:")
    def b_after_qk():
        window(0)
        e(f"s_add_u32 s{sROT}, s{sROT}, 8192"); e(f"s_and_b32 s{sROT}, s{sROT}, 0x1ffff")
        e(f"s_add_u32 s{sTMP2}, s{sI}, 1")
        refill(k_issue(), 0)
    def b_after_pv():
        window(1)
        e(f"s_add_u32 s{sI}, s{sI}, 1"); e(f"s_mov_b32 s{sTMP2}, s{sI}")
        refill(v_issue(), 1)
        e(f"s_cmp_eq_u32 s{sI}, 16"); e("s_cbranch_scc0 L_Bloop")
        e("s_branch L_Oepi")
    tile(b_after_qk, lambda: waitn(sN, 2), b_after_pv)
    for xl, lst, done in late:
        e(f"{xl}:"); emit(lst); e(f"s_branch {done}")
    e("L_Bpause1:")
    e(f"s_mul_i32 s{sDK}, s{sW}, {SLOT}"); e(f"s_add_u32 s{sDK}, s{sDK}, {XB}")
    e("s_barrier"); e("s_barrier")
    e("s_waitcnt vmcnt(0)"); e("s_barrier")
    e("s_barrier"); e("s_barrier")
    emit(item_issue(sWRB))
    e(f"s_cmp_eq_u32 s{sHI}, 0"); e(f"s_cbranch_scc1 L_rs01")
    emit(k_issue())
    e("s_waitcnt vmcnt(8)"); e("s_barrier")
    emit(v_issue()); next_item(sDK)
    e(f"s_mov_b32 s{sN}, 2"); e(f"s_mov_b32 s{sM}, 0"); e(f"s_mov_b32 s{sJ}, 0")
    e("s_branch L_Bgo")
    e("L_rs01:")
    next_item(sDK)
    e("s_waitcnt vmcnt(8)"); e("s_barrier")
    e(f"s_mov_b32 s{sN}, 2"); e(f"s_mov_b32 s{sM}, 0"); e(f"s_mov_b32 s{sJ}, 0")
    e("s_branch L_Bgo")
    e("L_Bpause2:")
    e("s_barrier"); e("s_barrier"); e("s_barrier")
    e(f"s_mov_b32 s{sN}, 1")
    e(f"s_cmp_eq_u32 s{sHI}, 0"); e(f"s_cbranch_scc1 L_Bgo")
    emit(k_issue()); emit(v_issue())
    e("s_branch L_Bgo")

    e("L_Aattn:")
    e("L_Aloop:")
    e(f"s_bitcmp0_b32 s{sI}, 0"); e("s_cbranch_scc0 L_Ago")
    if tl:
        e("s_memtime s[98:99]"); e("s_waitcnt lgkmcnt(0)"); e(f"s_mov_b32 m0, s{sI}"); e("s_nop 0"); e(f"v_writelane_b32 v252, s98, m0")
    e("s_barrier")
    if tl:
        e("s_memtime s[98:99]"); e("s_waitcnt lgkmcnt(0)"); e(f"s_add_u32 m0, s{sI}, 1"); e("s_nop 0"); e(f"v_writelane_b32 v252, s98, m0")
    e("L_Ago:")
    def a_after_qk():
        e(f"s_cmp_eq_u32 s{sI}, 15"); e("s_cbranch_scc1 L_Alast")
        e("L_Alast_back:")
    def a_after_pv():
        kad = [WR0, WR0 + 2*WRING, XB, XB + 2*SLOT]
        vad = [WR0 + WRING, WR0 + 3*WRING, XB + SLOT, XB + 3*SLOT]
        for dst, ad in ((sDK, kad), (sDV, vad)):
            dl = [(ad[(i + 1) % 4] - ad[i]) & 0xffffffff for i in range(4)]
            e(f"s_bitcmp0_b32 s{sI}, 1")
            e(f"s_mov_b32 s{sTMP}, {dl[2]:#x}"); e(f"s_cselect_b32 s{sTMP}, {dl[0]:#x}, s{sTMP}")
            e(f"s_mov_b32 s{sTMP2}, {dl[3]:#x}"); e(f"s_cselect_b32 s{sTMP2}, {dl[1]:#x}, s{sTMP2}")
            e(f"s_bitcmp0_b32 s{sI}, 0"); e(f"s_cselect_b32 s{dst}, s{sTMP}, s{sTMP2}")
        e(f"v_add_u32 v{vKA}, s{sDK}, v{vKA}"); e(f"v_add_u32 v{vVA}, s{sDV}, v{vVA}")
        e(f"s_add_u32 s{sI}, s{sI}, 1")
        e(f"s_cmp_eq_u32 s{sI}, 16"); e("s_cbranch_scc0 L_Aloop")
    tile(a_after_qk, lambda: None, a_after_pv)

    e("L_Oepi:")
    if tl:
        e(f"s_cmp_eq_u32 s{sROLE}, 0"); e("s_cbranch_scc0 L_tl0"); e("v_mov_b32 v252, v254   ; v_writelane_b32 v247"); e("L_tl0:")
    stamp("attn_done")
    for qt in range(4): xlane("v_add_f32", L + qt, vT0)
    e(f"v_min3_f32 v{vT0}, v{L}, v{L+1}, v{L+2}"); e(f"v_min_f32 v{vT0}, v{vT0}, v{L+3}")
    e(f"v_add_f32 v{vT1}, v{L}, v{L+1}"); e(f"v_add_f32 v{vT1}, v{vT1}, v{L+2}"); e(f"v_add_f32 v{vT1}, v{vT1}, v{L+3}")
    e(f"v_cmp_nle_f32 vcc, {f2u(2.0**lo_exp):#x}, v{vT0}"); e("s_cbranch_vccnz L_slow")
    e(f"v_cmp_nge_f32 vcc, {f2u(2.0**hi_exp):#x}, v{vT1}"); e("s_cbranch_vccnz L_slow")
    if force_slow: e("s_branch L_slow")
    e("L_slow_back:")
    for qt in range(4): e(f"v_rcp_f32 v{L+qt}, v{L+qt}")
    e(f"s_mul_i32 s{sTMP}, s{sW}, {CHUNK}"); e(f"v_add_u32 v{vT0}, s{sTMP}, v{vXA}")
    def norm(s, qt):
        b = acc(2*s, qt)
        sel = "op_sel_hi:[1,0]" if qt % 2 == 0 else "op_sel:[0,1]"
        for i in range(4): e(f"v_pk_mul_f32 {vr(b+2*i, 2)}, {vr(b+2*i, 2)}, {vr(L + (qt & 2), 2)} {sel}")
        for i in range(4): e(f"v_cvt_pk_bf16_f32 v{b+i}, v{b+2*i}, v{b+2*i+1}")
    def owr(s, qt): e(f"ds_write_b128 v{vT0}, {vr(acc(2*s, qt), 4)} offset:{qt*HALF + s*64}")
    e(f"s_cmp_eq_u32 s{sROLE}, 0"); e("s_cbranch_scc1 L_Bend")
    for s in range(4):
        for qt in range(4): norm(s, qt)
    e("s_barrier")
    for s in range(4):
        for qt in range(4): owr(s, qt)
    e("s_branch L_Oproj")
    e("L_Bend:")
    for s in range(4):
        for qt in range(4):
            norm(s, qt); owr(s, qt)
    e("L_Oproj:")
    e("s_waitcnt lgkmcnt(0)")
    e("s_barrier")
    stamp("Owritten")
    proj("o")
    stamp("Odone")
    e(f"s_xor_b32 s{sTMP}, s{sROLE}, 1"); e(f"s_lshl_b32 s{sTMP}, s{sTMP}, 8"); e(f"s_add_u32 s{sTMP}, s{sTMP}, s2")
    e(f"s_lshl_b32 s{sTMP}, s{sTMP}, 2"); e(f"s_add_u32 s{sTMP}, s{sTMP}, s{sW}"); e(f"s_lshl_b32 s{sTMP}, s{sTMP}, 14")
    e(f"s_add_u32 s{sP}, s28, s{sTMP}"); e(f"s_addc_u32 s{sP+1}, s29, 0"); e(f"s_mov_b32 s{sP+2}, 0x4000"); e(f"s_mov_b32 s{sP+3}, 0x20000")
    e(f"s_cmp_eq_u32 s{sROLE}, 0"); e("s_cbranch_scc1 L_store")
    e(f"s_setprio {prioT}")
    coop_prefetch(22, 10, 19, w_pf)
    wo_srd(22); e(f"s_mov_b32 s{sWOFF}, 0")
    for n in range(3): emit(w_issue(n, "o"))
    poll(None)
    e("s_barrier")
    e("L_store:")
    for s in range(4):
        for qt in range(4):
            b = acc(2*s, qt)
            e(f"s_mov_b32 s{sOFF}, {qt*4096}")
            for i in range(4): e(f"v_cvt_pk_bf16_f32 v{b+i}, v{b+2*i}, v{b+2*i+1}")
            e(f"buffer_store_dwordx4 {vr(b, 4)}, v{vDV}, {srd(sP)}, s{sOFF} offen offset:{s*1024} {pstore}")
    e(f"s_cmp_eq_u32 s{sROLE}, 0"); e("s_cbranch_scc0 L_Apub")
    e("s_waitcnt vmcnt(0)")
    stamp("pub")
    e("s_barrier"); e("s_barrier")
    e(f"s_mov_b32 s{sN}, s{sW}")
    e("s_branch L_final")
    e("L_Apub:")
    if e0: e("s_barrier")
    e("s_waitcnt vmcnt(0)")
    e(f"v_mov_b32 v{vT0}, {CNT}"); e(f"v_mov_b32 v{vT1}, 1")
    e("s_mov_b64 exec, 1")
    e(f"ds_add_rtn_u32 v{vT0}, v{vT0}, v{vT1}")
    e("s_waitcnt lgkmcnt(0)")
    e(f"v_readfirstlane_b32 s{sTMP}, v{vT0}")
    e(f"s_cmp_eq_u32 s{sTMP}, 3"); e("s_cbranch_scc0 L_nosig")
    flag_srd(0)
    e(f"buffer_atomic_add v{vT1}, off, {srd(sPF)}, s{sOFF}")
    e("L_nosig:")
    stamp("pubA")
    poll(0)
    stamp("flagA")
    e(f"s_lshl_b32 s{sN}, s{sW}, 1")
    reduce(0, 2)
    stamp("redA")
    e("s_barrier")
    stamp("pub")
    e(f"s_cmp_eq_u32 s{sW}, 0"); e("s_cbranch_scc0 L_nopoll")
    def first(done):
        e(f"v_mov_b32 v{vT0}, 1")
        e(f"buffer_atomic_add v{vT0}, off, {srd(sPF)}, s{sOFF} sc0")
        e("s_waitcnt vmcnt(0)")
        e(f"v_readfirstlane_b32 s{sTMP}, v{vT0}")
        e(f"s_cmp_ge_u32 s{sTMP}, 7"); e(f"s_cbranch_scc1 {done}")
    poll(1, first)
    e("L_nopoll:")
    e("s_barrier")
    e(f"s_add_u32 s{sN}, s{sW}, 4")
    e("L_final:")
    stamp("flag")
    reduce(1, 1)
    if stamps:
        e("s_waitcnt vmcnt(0)")
        stamp("end")
        e("s_memtime s[4:5]")
        e("s_waitcnt lgkmcnt(0)")
        e("s_sub_u32 s4, s4, s100")
        e(f"s_lshl_b32 s{sTMP}, s2, 1"); e(f"s_add_u32 s{sTMP}, s{sTMP}, s{sROLE}"); e(f"s_lshl_b32 s{sTMP}, s{sTMP}, 2"); e(f"s_add_u32 s{sTMP}, s{sTMP}, s{sW}")
        e(f"s_lshl_b32 s{sTMP}, s{sTMP}, 7")
        e(f"s_add_u32 s{sPF}, s28, 0x4000000"); e(f"s_addc_u32 s{sPF+1}, s29, 0"); e(f"s_mov_b32 s{sPF+2}, 0x100000"); e(f"s_mov_b32 s{sPF+3}, 0x20000")
        for i in range(16): e(f"v_mov_b32 v{i}, s{sST+i}")
        e(f"v_mov_b32 v16, s4"); e("v_mov_b32 v17, 0"); e("v_mov_b32 v18, 0"); e("v_mov_b32 v19, 0")
        e(f"v_mov_b32 v20, s{sTMP}")
        if tl:
            e(f"v_lshl_add_u32 v21, v{vLN}, 2, v20"); e("s_mov_b64 exec, 0xffff"); e(f"s_mov_b32 s{sOFF}, 0x80000")
            e(f"buffer_store_dword v252, v21, {srd(sPF)}, s{sOFF} offen")
        e("s_mov_b64 exec, 1")
        for i in range(5): e(f"buffer_store_dwordx4 {vr(4*i, 4)}, v20, {srd(sPF)}, 0 offen offset:{16*i}")
    e("L_end:")
    e("s_endpgm")
    e("L_Alast:")
    w_setup("o")
    for n in range(3): emit(w_issue(n, "o"))
    e("s_branch L_Alast_back")

    e("L_slow:")
    e("s_waitcnt vmcnt(0)")
    e(f"s_cmp_eq_u32 s{sROLE}, 0"); e("s_cbranch_scc1 L_slowB")
    e(f"s_mov_b32 s{sKB}, s{sWRB}")
    e(f"s_sub_u32 s{sTMP}, s{sWRB}, {WR0}"); e(f"v_add_u32 v{vKA}, s{sTMP}, v{vKA}")
    e(f"s_sub_u32 s{sTMP}, s{sTMP}, {WRING}"); e(f"v_add_u32 v{vVA}, s{sTMP}, v{vVA}")
    e("s_branch L_slowC")
    e("L_slowB:")
    e(f"v_add_u32 v{vVA}, {(-SLOT) & 0xffffffff:#x}, v{vVA}")
    e("L_slowC:")
    for i in range(0, 128, 2): e(f"v_mov_b64 {vr(i, 2)}, 0")
    for i in range(4): e(f"v_mov_b32 v{L+i}, 0"); e(f"v_mov_b32 v{M+i}, {f2u(-3.0e38):#x}")
    e(f"s_mov_b32 s{sROT}, 0")
    e("L_slowloop:")
    emit(k_issue())
    e("s_waitcnt vmcnt(0)")
    qk(None)
    emit(kv_issue(sV, vDV, sKB, 0, VBLK))
    for qt in range(4):
        b = S + qt*8; t = F + 2*qt
        e(f"v_max3_f32 v{t}, v{b}, v{b+1}, v{b+2}"); e(f"v_max3_f32 v{t}, v{t}, v{b+3}, v{b+4}")
        e(f"v_max3_f32 v{t}, v{t}, v{b+5}, v{b+6}"); e(f"v_max3_f32 v{t}, v{t}, v{b+7}, v{M+qt}")
        xlane("v_max_f32", t, vT0)
        e(f"v_sub_f32 v{t+1}, v{M+qt}, v{t}"); e(f"v_mov_b32 v{M+qt}, v{t}")
        e(f"v_exp_f32 v{t+1}, v{t+1}")
        for i in range(8): e(f"v_sub_f32 v{b+i}, v{b+i}, v{M+qt}")
        e(f"v_mul_f32 v{L+qt}, v{L+qt}, v{t+1}")
        for dt in range(8):
            for i in range(0, 4, 2): e(f"v_pk_mul_f32 {vr(acc(dt, qt)+i, 2)}, {vr(acc(dt, qt)+i, 2)}, {vr(t, 2)} op_sel:[0,1]")
        emit(exps(qt, 0)); emit(cvts(qt, 0))
    e("s_waitcnt vmcnt(0)")
    for dt in range(3): emit(vrd(dt))
    pv_phase([exps(qt, 1) + cvts(qt, 1) for qt in range(4)])
    e(f"s_add_u32 s{sROT}, s{sROT}, 8192"); e(f"s_cmp_lt_u32 s{sROT}, 0x20000"); e("s_cbranch_scc1 L_slowloop")
    for qt in range(4): xlane("v_add_f32", L + qt, vT0)
    b_wsetup()
    e(f"s_cmp_eq_u32 s{sROLE}, 0"); e("s_cbranch_scc1 L_slow_back")
    e(f"s_mov_b32 s{sWOFF}, 0")
    for n in range(3): emit(w_issue(n, "o"))
    e("s_branch L_slow_back")
    e("L_last:")

    e('.section .rodata,"a"')
    e(".p2align 6"); e(f".amdhsa_kernel {NAME}_kernel")
    for l in [".amdhsa_next_free_vgpr 256", ".amdhsa_next_free_sgpr 102", ".amdhsa_accum_offset 256", ".amdhsa_group_segment_fixed_size 0",
              ".amdhsa_kernarg_size 104", ".amdhsa_user_sgpr_count 2", ".amdhsa_user_sgpr_kernarg_segment_ptr 1", ".amdhsa_system_sgpr_workgroup_id_x 1",
              ".amdhsa_float_denorm_mode_32 3"]:
        e("  " + l)
    e(".end_amdhsa_kernel")
    n = a.pad()
    return a.text(), n

if __name__ == "__main__":
    kw = eval("dict(" + (sys.argv[2] if len(sys.argv) > 2 else "") + ")")
    txt, n = gen(**kw)
    out = sys.argv[1] if len(sys.argv) > 1 else f"cdna_kernels/{NAME}.s"
    open(out, "w").write(txt)
    print("pad states:", n, "lines:", txt.count("\n"), "LDS", LDS)
```

```python
import sys, math, struct
from asmlib import Asm

NAME = "concat_heads__gqa_block_cached__mha_block_cached__near_ridge"
KBLK = 1088; VBLK = 1056; HALF = 4352; SLOT = 8704; CHUNK = 2*SLOT
XB = 2*CHUNK
WR0 = XB + 4*CHUNK
WRING = 3*HALF
CNT = WR0 + 4*WRING
LDS = CNT + 64
assert LDS <= 163840
WBIAS = 128

sK, sV, sWQ, sWO, sX, sP, sIT, sPF = 32, 36, 40, 44, 48, 52, 56, 60
(sROLE, sW, sG, sB, sD, sI, sROT, sOFF, sWRB, sKB, sTMP, sTMP2, sD4, sWOFF, sN, sM, sROTA, sIST, sPH, sDK) = range(64, 84)
sDV = 30; sHI = 31; sJ = 3
sST = 84
def srd(n): return f"s[{n}:{n+3}]"
ACC = 0; Q = 128; S = 192; F = 224; L = 236; ONES = 240
vKA, vVA, vDK, vDV = 242, 243, 244, 245
vWO = 246
vWA, vXA, vIT, vLN, vT0, vT1 = 250, 251, 252, 253, 254, 255
M = 246
AF = 128; BF = 160
def vr(b, n): return f"v[{b}:{b+n-1}]"
def acc(dt, qt): return ACC + ((dt >> 1)*4 + qt)*8 + (dt & 1)*4
def f2u(x): return struct.unpack("<I", struct.pack("<f", x))[0]
MF = "v_mfma_f32_16x16x32_bf16"

def gen(kv="nt", wq_pf="", w_pf="", wflag="", xflag="", stamps=False, groups=((1, 6), (4, 9), (7, 12), (10, 15)), mask=0x7f, early01=False, e0=True, prioT=0, hpf=1, xaflag='nt', late_pf=False, prioA=1, prioB=0, T=10.0,
        rot_mul=1, cyc=False, lo_exp=-30, hi_exp=30, force_slow=False, codepf=True, slp=6, pstore="sc1", tl=False):
    a = Asm(); e = a
    if stamps is True: stamps = ["start", "P0", "Qdone", "attn_done", "Owritten", "Odone", "pub", "end"]
    def stamp(nm):
        if stamps and nm in stamps:
            i = stamps.index(nm); e(f"{'s_memtime' if cyc else 's_memrealtime'} s[{sST+2*i}:{sST+2*i+1}]")
    def emit(lst):
        for x in lst: e(x)
    uid = [0]
    def lab(p):
        uid[0] += 1; return f"L_{p}{uid[0]}"

    def w_setup(kind):
        sh = 13 if kind == "q" else 10
        if kind == "q":
            e(f"v_bfe_u32 v{vT0}, v{vLN}, 3, 2"); e(f"v_lshlrev_b32 v{vWO}, {sh+3}, v{vT0}")
            e(f"v_lshrrev_b32 v{vT0}, 5, v{vLN}"); e(f"v_lshl_add_u32 v{vWO}, v{vT0}, {sh+2}, v{vWO}")
        else:
            e(f"v_lshrrev_b32 v{vT0}, 3, v{vLN}"); e(f"v_lshlrev_b32 v{vWO}, {sh+2}, v{vT0}")
        e(f"v_and_b32 v{vT0}, 7, v{vLN}"); e(f"v_lshl_add_u32 v{vWO}, v{vT0}, 4, v{vWO}")
        for r in (3, 2, 1, 0):
            e(f"v_add_u32 v{vWO+r}, {r*((1 << sh) - VBLK) + WBIAS}, v{vWO}")
        e(f"s_mov_b32 s{sWOFF}, 0")
    def wslot(n): return (n + 1) % 3
    def w_issue(n, kind):
        sr, sh = (sWQ, 13) if kind == "q" else (sWO, 10)
        out = [f"s_add_u32 m0, s{sWRB}, {wslot(n)*HALF}"]
        for r in range(4):
            out.append(f"buffer_load_dwordx4 v{vWO+r}, {srd(sr)}, s{sWOFF} offen offset:{r*VBLK} {wflag} lds")
        out.append(f"s_add_u32 s{sWOFF}, s{sWOFF}, {128 if n % 2 == 0 else (32 << sh) - 128}")
        return out
    def kv_issue(sr, voff, sbase, imm, blk, rot=sROT):
        out = [f"s_mov_b32 s{sOFF}, s{rot}"]
        for j in range(8):
            if j == 4: out.append(f"s_add_u32 s{sOFF}, s{sOFF}, 4096")
            out.append(f"s_add_u32 m0, s{sbase}, {imm + j*blk - (j % 4)*1024}")
            out.append(f"buffer_load_dwordx4 v{voff}, {srd(sr)}, s{sOFF} offen offset:{(j % 4)*1024} {kv} lds")
        return out
    def k_issue(): return kv_issue(sK, vDK, sKB, 0, KBLK)
    def v_issue(): return kv_issue(sV, vDV, sKB, SLOT, VBLK)
    def item_issue(sbase, blocks=range(8)):
        out = []
        for j in blocks:
            if j == 0: out += [f"s_mov_b32 s{sOFF}, s{sROTA}", f"s_mov_b32 m0, s{sbase}"]
            elif j == 4:
                out += [f"s_add_u32 s{sOFF}, s{sROTA}, 4096", f"s_lshl_b32 s{sTMP}, s{sIST}, 2", f"s_add_u32 s{sTMP}, s{sTMP}, s{sbase}", f"s_add_u32 m0, s{sTMP}, 4096"]
            else: out.append(f"s_add_u32 m0, m0, s{sIST}")
            out.append(f"buffer_load_dwordx4 v{vIT}, {srd(sIT)}, s{sOFF} offen offset:{(j % 4)*1024} {kv} lds")
        return out
    def x_issue(c, xflag=xflag):
        e(f"s_lshl_b32 s{sOFF}, s{sW}, 14"); e(f"s_add_u32 s{sOFF}, s{sOFF}, {c*256}")
        e(f"s_mul_i32 s{sTMP}, s{sW}, {HALF}")
        for j in range(4):
            e(f"s_add_u32 m0, s{sTMP}, {XB + c*CHUNK + j*64}")
            e(f"buffer_load_dwordx4 v{vT1}, {srd(sX)}, s{sOFF} offen offset:{j*1024} {xflag} lds")
    def x_own(h):
        out = [f"s_lshl_b32 s{sOFF}, s{sW}, 8", f"s_add_u32 s{sOFF}, s{sOFF}, {h*32768}"]
        for j in range(8):
            if j == 4: out.append(f"s_add_u32 s{sOFF}, s{sOFF}, 16384")
            out.append(f"s_add_u32 m0, s{sKB}, {h*SLOT + (j >> 2)*HALF + (j & 3)*64}")
            out.append(f"buffer_load_dwordx4 v{vT1}, {srd(sX)}, s{sOFF} offen offset:{(j & 3)*1024} {xaflag} lds")
        return out
    def xa_touch():
        e(f"s_mov_b32 s{sPF}, s4"); e(f"s_mov_b32 s{sPF+1}, s5"); e(f"s_mov_b32 s{sPF+2}, 0x200000"); e(f"s_mov_b32 s{sPF+3}, 0x20000")
        e(f"s_lshl_b32 s{sTMP}, s2, 2"); e(f"s_add_u32 s{sTMP}, s{sTMP}, s{sW}"); e(f"s_lshl_b32 s{sTMP}, s{sTMP}, 11")
        for r in range(2): e(f"buffer_load_dwordx4 {vr(S + 16 + 4*r, 4)}, v{vDV}, {srd(sPF)}, s{sTMP} offen offset:{r*1024}")
    def x_voff():
        e(f"v_lshrrev_b32 v{vT0}, 4, v{vLN}"); e(f"v_sub_u32 v{vT1}, 0, v{vT0}"); e(f"v_and_b32 v{vT1}, 3, v{vT1}")
        e(f"v_xor_b32 v{vT1}, v{vT1}, v{vLN}"); e(f"v_and_b32 v{vT1}, 15, v{vT1}"); e(f"v_lshlrev_b32 v{vT1}, 4, v{vT1}")
        e(f"v_lshl_add_u32 v{vT1}, v{vT0}, 12, v{vT1}")
    def x_srd(lo):
        e(f"s_lshl_b32 s{sTMP}, s{sB}, 16")
        e(f"s_add_u32 s{sX}, s{lo}, s{sTMP}"); e(f"s_addc_u32 s{sX+1}, s{lo+1}, 0"); e(f"s_mov_b32 s{sX+2}, 0x10000"); e(f"s_mov_b32 s{sX+3}, 0x20000")
    def wo_srd(lo):
        e(f"s_lshl_b32 s{sTMP}, s{sG}, 19"); e(f"s_lshl_b32 s{sTMP2}, s{sW}, 8"); e(f"s_add_u32 s{sTMP}, s{sTMP}, s{sTMP2}")
        e(f"s_add_u32 s{sWO}, s{lo}, s{sTMP}"); e(f"s_addc_u32 s{sWO+1}, s{lo+1}, 0")
        e(f"s_sub_u32 s{sWO}, s{sWO}, {WBIAS}"); e(f"s_subb_u32 s{sWO+1}, s{sWO+1}, 0")
        e(f"s_sub_u32 s{sWO+2}, {0x400000 + WBIAS}, s{sTMP}"); e(f"s_mov_b32 s{sWO+3}, 0x20000")
    def coop_prefetch(lo, sh, goff_sh, flag):
        if flag == "2x":
            coop_prefetch(lo, sh, goff_sh, "nt"); e("s_waitcnt vmcnt(0)"); coop_prefetch(lo, sh, goff_sh, ""); return
        e(f"s_lshl_b32 s{sTMP}, s{sG}, {goff_sh}")
        e(f"s_add_u32 s{sPF}, s{lo}, s{sTMP}"); e(f"s_addc_u32 s{sPF+1}, s{lo+1}, 0")
        e(f"s_sub_u32 s{sPF+2}, 0x400000, s{sTMP}"); e(f"s_mov_b32 s{sPF+3}, 0x20000")
        e(f"s_lshl_b32 s{sTMP}, s{sB}, 2"); e(f"s_add_u32 s{sTMP}, s{sTMP}, s{sW}"); e(f"s_lshl_b32 s{sTMP}, s{sTMP}, {sh+2}")
        for r in range(4):
            e(f"buffer_load_dwordx4 {vr(S + 4*r, 4)}, v{vDV}, {srd(sPF)}, s{sTMP} offen {flag}")
            if r < 3: e(f"s_add_u32 s{sTMP}, s{sTMP}, {1 << sh}")

    def proj(kind):
        def ra(n):
            p = n % 2
            return [f"ds_read_b64_tr_b16 {vr(AF + p*16 + d*4 + ee*2, 2)}, v{vWA} offset:{wslot(n)*HALF + ee*512 + d*32}" for d in range(4) for ee in range(2)]
        def rb(ks, qts):
            return [f"ds_read_b128 {vr(BF + (ks % 2)*16 + qt*4, 4)}, v{vXA} offset:{(ks >> 2)*CHUNK + qt*HALF + (ks & 3)*64}" for qt in qts]
        e("s_waitcnt vmcnt(8)")
        emit(rb(0, range(4))); emit(ra(0))
        e("s_waitcnt lgkmcnt(0)")
        for n in range(32):
            stamp(f"{kind}{n}")
            ks, ch, p = n >> 1, n & 1, n % 2
            rd = ra(n + 1) if n < 31 else []
            if ks < 15: rd = rd + rb(ks + 1, (2*ch, 2*ch + 1))
            dm = w_issue(n + 3, kind) if n + 3 < 32 else []
            if n < 31:
                e("s_waitcnt vmcnt(4)" if (n <= 29) else "s_waitcnt vmcnt(0)")
            if kind == "q" and n in (6, 14, 22): e("s_barrier")
            if n == 30:
                if kind == "q": e("s_barrier")
                else: e("s_barrier")
            gaps = [[] for _ in range(16)]
            for i, x in enumerate(rd): gaps[i].append(x)
            if dm:
                gaps[3].append(dm[0])
                for i in range(4): gaps[4 + 2*i].append(dm[1 + i])
                gaps[11].append(dm[5])
            k = 0
            for d in range(4):
                for qt in range(4):
                    r = vr(acc(4*ch + d, qt), 4)
                    e(f"{MF} {r}, {vr(AF + p*16 + d*4, 4)}, {vr(BF + (ks % 2)*16 + qt*4, 4)}, {r if ks else '0'}")
                    emit(gaps[k]); k += 1
            if n < 31: e("s_waitcnt lgkmcnt(0)")

    def Sr(qt, u): return S + qt*8 + u*4
    def exps(qt, u): return [f"v_exp_f32 v{Sr(qt, u)+i}, v{Sr(qt, u)+i}" for i in range(4)]
    def cvts(qt, u): return [f"v_cvt_pk_bf16_f32 v{S+qt*8+2*u+i}, v{Sr(qt, u)+2*i}, v{Sr(qt, u)+2*i+1}" for i in range(2)]
    def kr(f): return f"ds_read_b128 {vr(F + (f % 3)*4, 4)}, v{vKA} offset:{(f >> 2)*512 + (f & 3)*64}"
    vbuf = [F, F + 4, F + 8, S + 4, S + 12, S + 20, S + 28, F]
    def vrd(dt): return [f"ds_read_b64_tr_b16 {vr(vbuf[dt] + 2*u, 2)}, v{vVA} offset:{u*512 + dt*32}" for u in range(2)]
    def sums(qt): return [f"v_mfma_f32_4x4x4_16b_bf16 {vr(L, 4)}, {vr(ONES, 2)}, {vr(S + qt*8 + 2*h, 2)}, {vr(L, 4)} cbsz:2 abid:{qt}" for h in range(2)]
    def pv(dt, qt): return f"{MF} {vr(acc(dt, qt), 4)}, {vr(vbuf[dt], 4)}, {vr(S + qt*8, 4)}, {vr(acc(dt, qt), 4)}"
    def qk(fill):
        for f in range(3): e(kr(f))
        m = 0
        for f in range(8):
            u, s = f >> 2, f & 3
            e(f"s_waitcnt lgkmcnt({min(2, 7 - f)})")
            for qt in range(4):
                r = vr(Sr(qt, u), 4)
                e(f"{MF} {r}, {vr(F + (f % 3)*4, 4)}, {vr(Q + (qt*4 + s)*4, 4)}, {r if s else '0'}")
                if u == 1:
                    if m >= 3 and fill: e(fill.pop(0))
                    m += 1
            if f + 3 < 8: e(kr(f + 3))
    def pv_phase(pre):
        emit(pre[0]); emit(vrd(3))
        for qt in range(4):
            nxt = (pre[qt + 1] + vrd(4 + qt)) if qt < 3 else []
            per = math.ceil(len(nxt) / 4)
            sm = sums(qt)
            for dt in range(3):
                if qt == 0: e(f"s_waitcnt lgkmcnt({6 - 2*dt})")
                e(pv(dt, qt)); emit(nxt[dt*per:(dt+1)*per])
                if dt == 0: e(sm[0])
            e(sm[1]); emit(nxt[3*per:])
        emit(vrd(7))
        for dt in range(3, 8):
            e(f"s_waitcnt lgkmcnt({2*(7 - dt)})")
            for qt in range(4): e(pv(dt, qt))
    def tile(after_qk, before_v, after_pv):
        fill = []
        for qt in range(4): fill += exps(qt, 0)
        for qt in range(4): fill += cvts(qt, 0)
        qk(fill)
        emit(fill)
        after_qk()
        before_v()
        for dt in range(3): emit(vrd(dt))
        pv_phase([exps(qt, 1) + cvts(qt, 1) for qt in range(4)])
        after_pv()
    def xlane(op, reg, tmp):
        for sw in ("32", "16"):
            e(f"v_mov_b32 v{tmp}, v{reg}"); e(f"v_permlane{sw}_swap_b32 v{reg}, v{tmp}"); e(f"{op} v{reg}, v{reg}, v{tmp}")
    def waitn(sreg, mx):
        end = lab("wn")
        for n in range(mx, 0, -1):
            e(f"s_waitcnt vmcnt({8*n})"); e(f"s_cmp_ge_u32 s{sreg}, {n}"); e(f"s_cbranch_scc1 {end}")
        e("s_waitcnt vmcnt(0)"); e(f"{end}:")
    def flag_srd(branch):
        e(f"s_add_u32 s{sPF}, s28, 0x2000000"); e(f"s_addc_u32 s{sPF+1}, s29, 0"); e(f"s_mov_b32 s{sPF+2}, 0x8000"); e(f"s_mov_b32 s{sPF+3}, 0x20000")
        e(f"s_mul_i32 s{sOFF}, s{sB}, 768"); e(f"s_add_u32 s{sOFF}, s{sOFF}, {branch*256}")
    def dbg_srd():
        e(f"s_mov_b32 s{sPF}, s26"); e(f"s_mov_b32 s{sPF+1}, s27"); e(f"s_mov_b32 s{sPF+2}, 256"); e(f"s_mov_b32 s{sPF+3}, 0x20000")
        e(f"s_lshl_b32 s{sOFF}, s{sB}, 3")
    def poll(branch_off, first=None, tmp=vT0):
        l0, l1 = lab("pl"), lab("pl")
        if branch_off is None: dbg_srd()
        else: flag_srd(branch_off)
        e("s_mov_b64 exec, 1")
        if first: first(l1)
        e(f"s_mov_b32 s{sTMP2}, 0x40000")
        e(f"{l0}:")
        e(f"buffer_load_dword v{tmp}, off, {srd(sPF)}, s{sOFF} sc1")
        e("s_waitcnt vmcnt(0)")
        e(f"v_readfirstlane_b32 s{sTMP}, v{tmp}")
        e(f"s_cmp_eq_u32 s{sTMP}, 8"); e(f"s_cbranch_scc1 {l1}")
        e(f"s_sleep {slp}")
        e(f"s_sub_u32 s{sTMP2}, s{sTMP2}, 1"); e(f"s_cmp_lg_u32 s{sTMP2}, 0"); e(f"s_cbranch_scc1 {l0}")
        e(f"{l1}:")
        e("s_mov_b64 exec, -1")
    RK = 192; RL = 128
    def reduce():
        e(f"s_xor_b32 s{sTMP2}, s{sROLE}, 1")
        e(f"s_lshl_b32 s{sTMP}, s{sTMP2}, 5"); e(f"s_add_u32 s{sTMP}, s{sTMP}, s{sB}"); e(f"s_lshl_b32 s{sTMP}, s{sTMP}, 19")
        e(f"s_add_u32 s{sP}, s28, s{sTMP}"); e(f"s_addc_u32 s{sP+1}, s29, 0"); e(f"s_mov_b32 s{sP+2}, 0x80000"); e(f"s_mov_b32 s{sP+3}, 0x20000")
        e(f"s_mul_i32 s{sOFF}, s{sG}, {65536 + 2048}"); e(f"s_lshl_b32 s{sTMP}, s{sW}, 14"); e(f"s_add_u32 s{sOFF}, s{sOFF}, s{sTMP}")
        for k in range(7):
            e(f"s_add_u32 s{sOFF}, s{sOFF}, 0x10000"); e(f"s_and_b32 s{sOFF}, s{sOFF}, 0x7ffff")
            for f in range(2):
                e(f"buffer_load_dwordx4 {vr(RL + 8*k + 4*f, 4)}, v{vDV}, {srd(sP)}, s{sOFF} offen offset:{f*1024} sc1")
        e(f"s_mov_b32 s{sPF}, s24"); e(f"s_mov_b32 s{sPF+1}, s25"); e(f"s_mov_b32 s{sPF+2}, 0x400000"); e(f"s_mov_b32 s{sPF+3}, 0x20000")
        e(f"s_lshl_b32 s{sOFF}, s{sB}, 17"); e(f"s_lshl_b32 s{sTMP2}, s{sTMP2}, 10"); e(f"s_add_u32 s{sOFF}, s{sOFF}, s{sTMP2}")
        e(f"s_lshr_b32 s{sTMP}, s{sG}, 1"); e(f"s_lshl_b32 s{sTMP}, s{sTMP}, 15"); e(f"s_add_u32 s{sOFF}, s{sOFF}, s{sTMP}")
        e(f"s_lshl_b32 s{sTMP}, s{sW}, 8"); e(f"s_add_u32 s{sOFF}, s{sOFF}, s{sTMP}")
        e(f"s_and_b32 s{sTMP}, s{sG}, 1"); e(f"s_lshl_b32 s{sTMP}, s{sTMP}, 7"); e(f"s_add_u32 s{sOFF}, s{sOFF}, s{sTMP}")
        e(f"v_and_b32 v{vT0}, 15, v{vLN}"); e(f"v_lshlrev_b32 v{vT1}, 11, v{vT0}")
        e(f"v_bfe_u32 v{vT0}, v{vLN}, 4, 1"); e(f"v_lshl_add_u32 v{vT1}, v{vT0}, 5, v{vT1}")
        e(f"v_lshrrev_b32 v{vT0}, 5, v{vLN}"); e(f"v_lshl_add_u32 v{vT1}, v{vT0}, 4, v{vT1}")
        for k in range(7):
            for f in range(2):
                e(f"s_waitcnt vmcnt({(6 - k)*2 + 1 - f})")
                src, dst, tmp = RL + 8*k + 4*f, RK + 8*f, RK + 16 + 8*f
                for i in range(4):
                    e(f"v_lshlrev_b32 v{tmp+2*i}, 16, v{src+i}"); e(f"v_and_b32 v{tmp+2*i+1}, 0xffff0000, v{src+i}")
                for i in range(8): e(f"v_add_f32 v{dst+i}, v{dst+i}, v{tmp+i}")
        for f in range(2):
            dst = RK + 8*f
            for i in range(4): e(f"v_cvt_pk_bf16_f32 v{dst+i}, v{dst+2*i}, v{dst+2*i+1}")
        for f in range(2):
            dst = RK + 8*f
            e(f"v_permlane16_swap_b32 v{dst}, v{dst+2}"); e(f"v_permlane16_swap_b32 v{dst+1}, v{dst+3}")
            e(f"buffer_store_dwordx4 {vr(dst, 4)}, v{vT1}, {srd(sPF)}, s{sOFF} offen offset:{f*64}")
    def lds_arrive(word, last):
        e("s_waitcnt vmcnt(0)")
        e(f"v_mov_b32 v{vT0}, {CNT + 4*word}"); e(f"v_mov_b32 v{vT1}, 1")
        e("s_mov_b64 exec, 1")
        e(f"ds_add_rtn_u32 v{vT0}, v{vT0}, v{vT1}")
        e("s_waitcnt lgkmcnt(0)")
        e(f"v_readfirstlane_b32 s{sTMP}, v{vT0}")
        e(f"s_cmp_eq_u32 s{sTMP}, 3"); e(f"s_cbranch_scc0 {last}")

    if stamps: e(f"; stamps: {stamps}")
    e(f"; @launch grid=(256,1,1) block=(512,1,1) lds={LDS}")
    e('.amdgcn_target "amdgcn-amd-amdhsa--gfx950"')
    e(".text"); e(f".globl {NAME}_kernel"); e(".p2align 8"); e(f".type {NAME}_kernel,@function")
    e(f"{NAME}_kernel:")
    e("s_cmp_ge_u32 s2, 256"); e("s_cbranch_scc1 L_end")
    e("s_load_dwordx16 s[4:19], s[0:1], 0"); e("s_load_dwordx8 s[20:27], s[0:1], 64"); e("s_load_dwordx2 s[28:29], s[0:1], 96")
    if stamps:
        for i in range(16): e(f"s_mov_b32 s{sST+i}, 0")
        e("s_memtime s[100:101]")
    stamp("start")
    e(f"v_lshrrev_b32 v1, 6, v0"); e(f"v_and_b32 v{vLN}, 63, v0"); e(f"v_readfirstlane_b32 s{sTMP}, v1")
    e(f"s_and_b32 s{sG}, s2, 7"); e(f"s_lshr_b32 s{sB}, s2, 3")
    e(f"s_and_b32 s{sW}, s{sTMP}, 3"); e(f"s_lshr_b32 s{sROLE}, s{sTMP}, 2"); e(f"s_lshr_b32 s{sHI}, s{sW}, 1")
    e(f"s_mul_i32 s{sWRB}, s{sW}, {WRING}"); e(f"s_add_u32 s{sWRB}, s{sWRB}, {WR0}")
    e(f"v_lshlrev_b32 v{vDV}, 4, v{vLN}")
    w_setup("q")
    x_voff()
    e("s_waitcnt lgkmcnt(0)")
    e(f"s_cmp_eq_u32 s{sROLE}, 0")
    e(f"s_cselect_b32 s{sWQ}, s20, s10"); e(f"s_cselect_b32 s{sWQ+1}, s21, s11")
    e(f"s_lshl_b32 s{sTMP}, s{sG}, 2"); e(f"s_add_u32 s{sTMP}, s{sTMP}, s{sW}"); e(f"s_lshl_b32 s{sTMP}, s{sTMP}, 8")
    e(f"s_add_u32 s{sWQ}, s{sWQ}, s{sTMP}"); e(f"s_addc_u32 s{sWQ+1}, s{sWQ+1}, 0")
    e(f"s_sub_u32 s{sWQ}, s{sWQ}, {WBIAS}"); e(f"s_subb_u32 s{sWQ+1}, s{sWQ+1}, 0")
    e(f"s_sub_u32 s{sWQ+2}, {0x400000 + WBIAS}, s{sTMP}"); e(f"s_mov_b32 s{sWQ+3}, 0x20000")
    e(f"s_cmp_eq_u32 s{sROLE}, 0"); e("s_cbranch_scc1 L_first_B")
    if prioA: e(f"s_setprio {prioA}")
    if codepf:
        e("s_getpc_b64 s[94:95]"); e("L_pc:")
        e(f"s_lshl_b32 s{sTMP}, s{sB}, 2"); e(f"s_add_u32 s{sTMP}, s{sTMP}, s{sW}"); e(f"s_lshl_b32 s{sTMP}, s{sTMP}, 7")
        e(f"v_lshl_add_u32 v2, v{vLN}, 14, s{sTMP}")
        e(f"v_min_u32 v2, L_last-L_pc-4, v2")
        e(f"v_mov_b32 v3, s95"); e("v_add_co_u32 v2, vcc, s94, v2"); e("v_addc_co_u32 v3, vcc, 0, v3, vcc")
        e("s_mov_b64 exec, 15")
        e("global_load_dword v4, v[2:3], off")
        e("s_mov_b64 exec, -1")
    x_srd(14); x_issue(0)
    coop_prefetch(20, 13, 10, wq_pf)
    e("s_branch L_common")
    e("L_first_B:")
    if prioB: e(f"s_setprio {prioB}")
    for n in range(3): emit(w_issue(n, "q"))
    x_srd(4)
    e("L_common:")
    assert bin(mask).count("1") == 7
    wt = mask.bit_length() // 2 + 1
    for reg, k in ((sD, 0), (sD4, 1)):
        tab = [groups[b * len(groups) // 32][k] for b in range(32)]
        assert all(0 <= g[0] and g[0] + wt <= g[1] <= 15 for g in groups)
        wd = [sum(tab[8*i + j] << (4*j) for j in range(8)) for i in range(4)]
        e(f"s_bitcmp0_b32 s{sB}, 3")
        e(f"s_mov_b32 s{sTMP}, {wd[1]:#x}"); e(f"s_cselect_b32 s{sTMP}, {wd[0]:#x}, s{sTMP}")
        e(f"s_mov_b32 s{sTMP2}, {wd[3]:#x}"); e(f"s_cselect_b32 s{sTMP2}, {wd[2]:#x}, s{sTMP2}")
        e(f"s_bitcmp0_b32 s{sB}, 4"); e(f"s_cselect_b32 s{sTMP}, s{sTMP}, s{sTMP2}")
        e(f"s_and_b32 s{sTMP2}, s{sB}, 7"); e(f"s_lshl_b32 s{sTMP2}, s{sTMP2}, 2")
        e(f"s_lshr_b32 s{sTMP}, s{sTMP}, s{sTMP2}"); e(f"s_and_b32 s{reg}, s{sTMP}, 15")
    e(f"s_lshl_b32 s{sTMP}, s{sHI}, 1"); e(f"s_add_u32 s{sTMP}, s{sTMP}, s{sW}"); e(f"s_mul_i32 s{sKB}, s{sTMP}, {CHUNK}")
    def dk_setup():
        e(f"v_bfe_u32 v{vT0}, v{vLN}, 4, 1"); e(f"v_lshlrev_b32 v{vT0}, 4, v{vT0}"); e(f"v_xor_b32 v{vDK}, v{vDV}, v{vT0}")
    dk_setup()
    t0, t1 = F, F + 1
    e(f"v_and_b32 v{t0}, 7, v{vLN}"); e(f"v_mul_u32_u24 v{vKA}, {KBLK}, v{t0}")
    e(f"v_bfe_u32 v{t0}, v{vLN}, 3, 1"); e(f"v_lshl_add_u32 v{vKA}, v{t0}, 8, v{vKA}")
    e(f"v_lshrrev_b32 v{t1}, 5, v{vLN}"); e(f"v_xor_b32 v{t0}, v{t0}, v{t1}"); e(f"v_lshl_add_u32 v{vKA}, v{t0}, 4, v{vKA}")
    e(f"v_bfe_u32 v{t0}, v{vLN}, 4, 1"); e(f"v_lshl_add_u32 v{vKA}, v{t0}, 5, v{vKA}")
    e(f"v_bfe_u32 v{t0}, v{vLN}, 2, 3"); e(f"v_mul_u32_u24 v{vVA}, {VBLK}, v{t0}")
    e(f"v_lshl_add_u32 v{vVA}, v{t1}, 8, v{vVA}")
    e(f"v_and_b32 v{t0}, 3, v{vLN}"); e(f"v_lshl_add_u32 v{vVA}, v{t0}, 3, v{vVA}")
    def wx_setup():
        e(f"v_and_b32 v{t0}, 3, v{vLN}")
        e(f"v_bfe_u32 v{t1}, v{vLN}, 2, 2"); e(f"v_mul_u32_u24 v{vWA}, {VBLK}, v{t1}")
        e(f"v_lshl_add_u32 v{vWA}, v{t0}, 3, v{vWA}")
        e(f"v_lshrrev_b32 v{t0+2}, 4, v{vLN}"); e(f"v_lshl_add_u32 v{vWA}, v{t0+2}, 7, v{vWA}"); e(f"v_add_u32 v{vWA}, s{sWRB}, v{vWA}")
        e(f"v_mul_u32_u24 v{vXA}, {KBLK}, v{t0}"); e(f"v_lshl_add_u32 v{vXA}, v{t1}, 8, v{vXA}")
        e(f"v_sub_u32 v{t0+3}, 0, v{t1}"); e(f"v_and_b32 v{t0+3}, 3, v{t0+3}"); e(f"v_xor_b32 v{t0+3}, v{t0+3}, v{t0+2}")
        e(f"v_lshl_add_u32 v{vXA}, v{t0+3}, 4, v{vXA}"); e(f"v_add_u32 v{vXA}, {XB}, v{vXA}")
    wx_setup()
    e(f"v_cmp_eq_u32 vcc, v{t0}, v{t1}"); e(f"v_mov_b32 v{t0+2}, 0x3f803f80")
    e(f"v_cndmask_b32 v{ONES}, 0, v{t0+2}, vcc"); e(f"v_mov_b32 v{ONES+1}, v{ONES}")
    for i in range(4): e(f"v_mov_b32 v{L+i}, 0")
    e(f"s_lshl_b32 s{sTMP}, s2, 2"); e(f"s_add_u32 s{sTMP}, s{sTMP}, s{sW}")
    e(f"s_mul_i32 s{sROT}, s{sTMP}, {rot_mul}"); e(f"s_and_b32 s{sROT}, s{sROT}, 15"); e(f"s_lshl_b32 s{sROT}, s{sROT}, 13")
    e(f"s_lshl_b32 s{sTMP}, s{sTMP}, 17")
    for r, p in ((sK, 16), (sV, 18)):
        e(f"s_add_u32 s{r}, s{p}, s{sTMP}"); e(f"s_addc_u32 s{r+1}, s{p+1}, 0"); e(f"s_mov_b32 s{r+2}, 0x20000"); e(f"s_mov_b32 s{r+3}, 0x20000")
    e(f"s_bitcmp0_b32 s{sW}, 0")
    e(f"s_cselect_b32 s{sIT}, s6, s8"); e(f"s_cselect_b32 s{sIT+1}, s7, s9"); e(f"s_cselect_b32 s{sIST}, {KBLK-1024}, {VBLK-1024}")
    e(f"s_cselect_b64 vcc, -1, 0")
    e(f"v_cndmask_b32 v{vIT}, v{vDV}, v{vDK}, vcc")
    e(f"s_lshl_b32 s{sTMP}, s2, 17")
    e(f"s_add_u32 s{sIT}, s{sIT}, s{sTMP}"); e(f"s_addc_u32 s{sIT+1}, s{sIT+1}, 0"); e(f"s_mov_b32 s{sIT+2}, 0x20000"); e(f"s_mov_b32 s{sIT+3}, 0x20000")
    e(f"s_mul_i32 s{sROTA}, s2, {rot_mul}"); e(f"s_add_u32 s{sROTA}, s{sROTA}, s{sHI}"); e(f"s_and_b32 s{sROTA}, s{sROTA}, 15"); e(f"s_lshl_b32 s{sROTA}, s{sROTA}, 13")
    wo_srd(12)
    e(f"s_cmp_eq_u32 s{sROLE}, 0"); e("s_cbranch_scc1 L_Binit")
    e(f"v_add_u32 v{vKA}, {WR0}, v{vKA}"); e(f"v_add_u32 v{vVA}, {WR0 + WRING}, v{vVA}")
    e(f"v_mov_b32 v{t0}, {CNT}"); e(f"ds_write_b128 v{t0}, {vr(L, 4)}")
    e("s_waitcnt vmcnt(4) lgkmcnt(0)"); e("s_barrier")
    x_issue(1)
    e(f"s_or_b32 s{sTMP}, s{sG}, s{sW}"); e(f"s_cmp_eq_u32 s{sTMP}, 0"); e("s_cbranch_scc0 L_noinit")
    flag_srd(0)
    e("s_mov_b64 exec, 1")
    e(f"buffer_store_dword v{L}, off, {srd(sPF)}, s{sOFF} sc1"); e(f"buffer_store_dword v{L}, off, {srd(sPF)}, s{sOFF} offset:256 sc1")
    e("s_waitcnt vmcnt(0)")
    dbg_srd()
    e(f"v_mov_b32 v{vT0}, 8"); e(f"buffer_store_dword v{vT0}, off, {srd(sPF)}, s{sOFF} sc1")
    e("s_mov_b64 exec, -1")
    e("s_branch L_init2")
    e("L_noinit:")
    e("s_waitcnt vmcnt(0)")
    e("L_init2:")
    e("s_barrier")
    x_issue(2); x_issue(3)
    e("s_waitcnt vmcnt(4)"); e("s_barrier")
    if hpf == 1:
        coop_prefetch(10, 13, 10, w_pf); xa_touch()
        e("s_waitcnt vmcnt(6)"); e("s_barrier")
        coop_prefetch(12, 10, 19, w_pf); coop_prefetch(22, 10, 19, w_pf)
    elif hpf == 2:
        coop_prefetch(10, 13, 10, w_pf); xa_touch()
        e("s_waitcnt vmcnt(6)"); e("s_barrier")
        coop_prefetch(12, 10, 19, w_pf)
    else:
        e("s_waitcnt vmcnt(0)"); e("s_barrier")
    if early01:
        e(f"s_cmp_eq_u32 s{sHI}, 0"); e("s_cbranch_scc0 L_h23")
        emit(k_issue()); emit(v_issue()); e("s_barrier"); e("s_branch L_h01")
        e("L_h23:")
    e("s_barrier")
    x_srd(4)
    if any(g[0] == 0 for g in groups):
        e(f"s_cmp_lt_u32 s{sD}, s{sHI}"); e("s_cbranch_scc0 L_hkv")
        emit(x_own(0)); emit(x_own(1)); e("s_branch L_h01")
        e("L_hkv:")
    emit(k_issue()); emit(v_issue())
    e("L_h01:")
    x_srd(4); x_issue(0, xaflag)
    e("s_waitcnt vmcnt(4)"); e("s_barrier")
    if not hpf: coop_prefetch(10, 13, 10, w_pf)
    x_issue(1, xaflag)
    if not hpf: coop_prefetch(12, 10, 19, w_pf)
    e(f"s_lshl_b32 s{sTMP}, s2, 17")
    for r, p in ((sK, 6), (sV, 8)):
        e(f"s_add_u32 s{r}, s{p}, s{sTMP}"); e(f"s_addc_u32 s{r+1}, s{p+1}, 0")
    for n in range(3): emit(w_issue(n, "q"))
    e("s_waitcnt vmcnt(12)")
    e("s_branch L_Qstart")
    e("L_Binit:")
    e(f"v_add_u32 v{vKA}, s{sKB}, v{vKA}"); e(f"v_add_u32 v{vVA}, s{sKB}, v{vVA}"); e(f"v_add_u32 v{vVA}, {SLOT}, v{vVA}")
    e("L_Qstart:")
    e("s_barrier")
    stamp("P0")
    proj("q")
    c = f2u(math.log2(math.e) / math.sqrt(128.0))
    e(f"v_mov_b32 v{vT0}, {c:#x}"); e(f"v_mov_b32 v{vT1}, {c:#x}")
    for s in range(4):
        for qt in range(4):
            b = acc(2*s, qt); q = Q + (qt*4 + s)*4
            for i in range(4): e(f"v_pk_mul_f32 {vr(b+2*i, 2)}, {vr(b+2*i, 2)}, {vr(vT0, 2)}")
            for i in range(4): e(f"v_cvt_pk_bf16_f32 v{q+i}, v{b+2*i}, v{b+2*i+1}")
            for i in range(0, 8, 2): e(f"v_mov_b64 {vr(b+i, 2)}, 0")
            e(f"v_permlane16_swap_b32 v{q}, v{q+2}"); e(f"v_permlane16_swap_b32 v{q+1}, v{q+3}")
    stamp("Qdone")
    e(f"s_mov_b32 s{sI}, 0")
    e(f"s_cmp_eq_u32 s{sROLE}, 0"); e("s_cbranch_scc0 L_Aattn")

    def b_wsetup():
        w_setup("o"); e(f"s_mov_b32 s{sWOFF}, {(32 << 10) + 128}")
    w_setup("o")
    x_voff()
    e(f"s_mov_b32 s{sN}, 1")
    e("s_barrier")
    e("L_Bloop:")
    e(f"s_cmp_eq_u32 s{sI}, s{sD}"); e("s_cbranch_scc1 L_Bpause1")
    e(f"s_cmp_eq_u32 s{sI}, s{sD4}"); e("s_cbranch_scc1 L_Bpause2")
    e("L_Bgo:")
    if e0:
        e(f"s_cmp_eq_u32 s{sI}, 15"); e("s_cbranch_scc0 L_noE0"); e("s_barrier"); e("L_noE0:")
    waitn(sN, 2)
    if tl:
        e("s_memrealtime s[98:99]"); e("s_memtime s[96:97]"); e("s_waitcnt lgkmcnt(0)"); e(f"s_mov_b32 m0, s{sI}"); e("s_nop 0"); e(f"v_writelane_b32 v254, s98, m0")
        e(f"s_add_u32 m0, s{sI}, 16"); e("s_nop 0"); e(f"v_writelane_b32 v254, s96, m0")
    def next_item(sbase):
        e(f"s_add_u32 s{sROTA}, s{sROTA}, 16384"); e(f"s_and_b32 s{sROTA}, s{sROTA}, 0x1ffff")
        emit(item_issue(sbase))
    def refill(lst, h):
        go, xl, done, skip = lab("rf"), lab("rf"), lab("rf"), lab("rf")
        e(f"s_cmp_eq_u32 s{sTMP2}, 16"); e(f"s_cbranch_scc1 {skip}")
        e(f"s_cmp_eq_u32 s{sHI}, 0"); e(f"s_cbranch_scc1 {go}")
        e(f"s_cmp_eq_u32 s{sTMP2}, s{sD4}"); e(f"s_cbranch_scc1 {skip}")
        e(f"s_cmp_eq_u32 s{sTMP2}, s{sD}"); e(f"s_cbranch_scc1 {xl}")
        e(f"{go}:")
        emit(lst)
        e(f"{done}:")
        e(f"s_add_u32 s{sN}, s{sN}, 1"); e(f"s_add_u32 s{sM}, s{sM}, 1")
        e(f"{skip}:")
        late.append((xl, x_own(h), done))
    late = []
    def window(half):
        l = lab("nw")
        e(f"s_mov_b32 s{sN}, 0")
        e(f"s_sub_u32 s{sTMP2}, s{sI}, s{sD}"); e(f"s_cmp_lt_u32 s{sTMP2}, 8"); e(f"s_cbranch_scc0 {l}")
        m = sum(((mask >> (2*k + half)) & 1) << k for k in range(8))
        if m == 0:
            e(f"{l}:"); return
        e(f"s_bitcmp1_b32 {m}, s{sTMP2}"); e(f"s_cbranch_scc0 {l}")
        waitn(sM, 2)
        e("s_barrier")
        e(f"s_add_u32 s{sJ}, s{sJ}, 1")
        if (mask.bit_length() - 1) % 2 == half:
            lw = lab("wo")
            e(f"s_cmp_eq_u32 s{sJ}, 7"); e(f"s_cbranch_scc1 {lw}")
            late.append((lw, w_issue(0, "o") + w_issue(1, "o") + w_issue(2, "o") + [f"s_mov_b32 s{sN}, 1"], l))
        e(f"s_bitcmp1_b32 s{sJ}, 0"); e(f"s_cselect_b32 s{sM}, s{sWRB}, s{sDK}")
        next_item(sM)
        e(f"s_mov_b32 s{sN}, 1"); e(f"s_mov_b32 s{sM}, 0")
        e(f"{l}:")
    def b_after_qk():
        window(0)
        e(f"s_add_u32 s{sROT}, s{sROT}, 8192"); e(f"s_and_b32 s{sROT}, s{sROT}, 0x1ffff")
        e(f"s_add_u32 s{sTMP2}, s{sI}, 1")
        refill(k_issue(), 0)
    def b_after_pv():
        window(1)
        e(f"s_add_u32 s{sI}, s{sI}, 1"); e(f"s_mov_b32 s{sTMP2}, s{sI}")
        refill(v_issue(), 1)
        e(f"s_cmp_eq_u32 s{sI}, 16"); e("s_cbranch_scc0 L_Bloop")
        e("s_branch L_Oepi")
    tile(b_after_qk, lambda: waitn(sN, 2), b_after_pv)
    for xl, lst, done in late:
        e(f"{xl}:"); emit(lst); e(f"s_branch {done}")
    e("L_Bpause1:")
    e(f"s_mul_i32 s{sDK}, s{sW}, {SLOT}"); e(f"s_add_u32 s{sDK}, s{sDK}, {XB}")
    e("s_barrier")
    e(f"s_cmp_eq_u32 s{sW}, 0"); e("s_cbranch_scc0 L_nochk")
    poll(None, tmp=F)
    e("L_nochk:")
    e("s_barrier")
    e("s_waitcnt vmcnt(0)"); e("s_barrier")
    e("s_barrier"); e("s_barrier")
    emit(item_issue(sWRB))
    e(f"s_cmp_eq_u32 s{sHI}, 0"); e(f"s_cbranch_scc1 L_rs01")
    emit(k_issue())
    e("s_waitcnt vmcnt(8)"); e("s_barrier")
    emit(v_issue()); next_item(sDK)
    e(f"s_mov_b32 s{sN}, 2"); e(f"s_mov_b32 s{sM}, 0"); e(f"s_mov_b32 s{sJ}, 0")
    e("s_branch L_Bgo")
    e("L_rs01:")
    next_item(sDK)
    e("s_waitcnt vmcnt(8)"); e("s_barrier")
    e(f"s_mov_b32 s{sN}, 2"); e(f"s_mov_b32 s{sM}, 0"); e(f"s_mov_b32 s{sJ}, 0")
    e("s_branch L_Bgo")
    e("L_Bpause2:")
    wo_srd(22)
    e("s_barrier")
    e(f"s_xor_b32 s{sN}, s{sHI}, 1"); e(f"s_lshl_b32 s{sN}, s{sN}, 1")
    waitn(sN, 2)
    e("s_barrier"); e("s_barrier")
    e(f"s_mov_b32 s{sN}, 1")
    e(f"s_cmp_eq_u32 s{sHI}, 0"); e(f"s_cbranch_scc1 L_Bgo")
    emit(k_issue()); emit(v_issue())
    e("s_branch L_Bgo")

    FB = [F, F + 4, F + 8, 244, 248, 252]
    kb = [0, 1, 2, 3, 4, 5, 0, 1]
    vb = [FB[2], FB[3], FB[4], FB[5], FB[0], FB[1], S + 4, S + 12]
    def akr(f): return f"ds_read_b128 {vr(FB[kb[f]], 4)}, v{vKA} offset:{(f >> 2)*512 + (f & 3)*64}"
    def avr(dt): return [f"ds_read_b64_tr_b16 {vr(vb[dt] + 2*u, 2)}, v{vVA} offset:{u*512 + dt*32}" for u in range(2)]
    def apv(dt, qt): return f"{MF} {vr(acc(dt, qt), 4)}, {vr(vb[dt], 4)}, {vr(S + qt*8, 4)}, {vr(acc(dt, qt), 4)}"
    def weave(mf, fill):
        cost = [2 if (x.startswith("v_exp") or x.startswith("v_mfma")) else 1 for x in fill]
        tot = sum(cost); cum = 0; k = 0
        for i, m in enumerate(mf):
            e(m)
            while k < len(fill) and (cum + cost[k]) * len(mf) <= (i + 1) * tot + len(mf) // 2:
                e(fill[k]); cum += cost[k]; k += 1
        emit(fill[k:])
    def atile(odd):
        ex = exps(0, 0) + exps(1, 0) + exps(2, 0)
        for f in range(8):
            u, sx = f >> 2, f & 3
            if f == 0: e("s_waitcnt lgkmcnt(2)")
            if f in (2, 4): e("s_waitcnt lgkmcnt(4)")
            for qt in range(4):
                r = vr(Sr(qt, u), 4)
                e(f"{MF} {r}, {vr(FB[kb[f]], 4)}, {vr(Q + (qt*4 + sx)*4, 4)}, {r if sx else '0'}")
                if f == 0 and qt < 2: e(akr(4 + qt))
                if f == 2 and qt == 0: e(f"v_add_u32 v{vKA}, s{sDK if odd else sM}, v{vKA}")
                if u == 1 and (f, qt) != (4, 0) and (qt < 3 or f == 7): e(ex.pop(0))
            if f < 2: e(akr(6 + f))
            else: emit(avr(f - 2))
        assert not ex
        emit(exps(0, 1)); emit(cvts(0, 0)); emit(cvts(0, 1)); emit(avr(6))
        e("s_waitcnt lgkmcnt(6)")
        b0 = [apv(dt, 0) for dt in range(6)]
        b0[3] += "\ns_waitcnt lgkmcnt(2)"
        weave(b0, exps(1, 1) + cvts(1, 0) + cvts(1, 1))
        emit(avr(7))
        s0, s1, s2, s3 = (sums(qt) for qt in range(4))
        b1 = [apv(dt, 1) for dt in range(6)]
        b1[1] = s0[0] + "\n" + b1[1]; b1[3] = s0[1] + "\n" + b1[3]
        weave(b1, exps(2, 1) + cvts(2, 0) + cvts(2, 1))
        e(f"v_add_u32 v{vVA}, s{sDV if odd else sM}, v{vVA}")
        b2 = [apv(dt, 2) for dt in range(6)] + [apv(6, 0), apv(7, 0), apv(6, 1), apv(7, 1)]
        b2[0] = s1[0] + "\n" + b2[0]; b2[2] = s1[1] + "\n" + b2[2]; b2[4] = s2[0] + "\n" + b2[4]
        b2[6] = "s_waitcnt lgkmcnt(0)\n" + b2[6]
        weave(b2, exps(3, 0) + exps(3, 1) + cvts(3, 0) + cvts(3, 1))
        e(s2[1])
        if not odd: e(f"s_xor_b32 s{sM}, s{sM}, {(2*WRING) ^ (2*SLOT):#x}")
        if odd:
            e(f"s_add_u32 s{sI}, s{sI}, 1"); e(f"s_cmp_eq_u32 s{sI}, 8"); e("s_cbranch_scc1 L_Anb")
            e("s_barrier"); e("L_Anb:")
        for k, dt in enumerate((4, 5, 0, 1)):
            e(apv(dt, 3)); e(akr(k))
        e(s3[0]); e(apv(2, 3))
        if odd: e(f"s_xor_b32 s{sDK}, s{sDK}, {dKx:#x}"); e(f"s_xor_b32 s{sDV}, s{sDV}, {dVx:#x}")
        e(apv(3, 3)); e(s3[1])
        e(apv(6, 2)); e(apv(7, 2))
        if odd: e(f"s_cmp_eq_u32 s{sI}, 8")
        e(apv(6, 3)); e(apv(7, 3))
    kad = [WR0, WR0 + 2*WRING, XB, XB + 2*SLOT]
    vad = [WR0 + WRING, WR0 + 3*WRING, XB + SLOT, XB + 3*SLOT]
    dK = [(kad[2] - kad[1]) & 0xffffffff, (kad[0] - kad[3]) & 0xffffffff]; dKx = dK[0] ^ dK[1]
    dV = [(vad[2] - vad[1]) & 0xffffffff, (vad[0] - vad[3]) & 0xffffffff]; dVx = dV[0] ^ dV[1]
    e("L_Aattn:")
    e(f"s_mov_b32 s{sM}, {2*WRING}"); e(f"s_mov_b32 s{sDK}, {dK[0]:#x}"); e(f"s_mov_b32 s{sDV}, {dV[0]:#x}")
    e("s_barrier")
    stamp("L0")
    if stamps and "L0" in stamps: e("s_waitcnt lgkmcnt(0)")
    for f in range(4): e(akr(f))
    e("L_Aloop:")
    atile(0); atile(1)
    e("s_cbranch_scc0 L_Aloop")
    e("s_waitcnt lgkmcnt(0)")
    e(f"v_mbcnt_lo_u32_b32 v{vLN}, -1, 0"); e(f"v_mbcnt_hi_u32_b32 v{vLN}, -1, v{vLN}")
    e(f"v_lshlrev_b32 v{vDV}, 4, v{vLN}")
    dk_setup(); wx_setup(); b_wsetup()

    e("L_Oepi:")
    if tl:
        e(f"s_cmp_eq_u32 s{sROLE}, 0"); e("s_cbranch_scc0 L_tl0"); e("v_mov_b32 v252, v254   ; v_writelane_b32 v247"); e("L_tl0:")
    stamp("attn_done")
    e(f"s_mov_b32 s{sPH}, s{sROLE}")
    for qt in range(4): xlane("v_add_f32", L + qt, vT0)
    e(f"v_min3_f32 v{vT0}, v{L}, v{L+1}, v{L+2}"); e(f"v_min_f32 v{vT0}, v{vT0}, v{L+3}")
    e(f"v_add_f32 v{vT1}, v{L}, v{L+1}"); e(f"v_add_f32 v{vT1}, v{vT1}, v{L+2}"); e(f"v_add_f32 v{vT1}, v{vT1}, v{L+3}")
    e(f"v_cmp_nle_f32 vcc, {f2u(2.0**lo_exp):#x}, v{vT0}"); e("s_cbranch_vccnz L_slow")
    e(f"v_cmp_nge_f32 vcc, {f2u(2.0**hi_exp):#x}, v{vT1}"); e("s_cbranch_vccnz L_slow")
    if force_slow: e("s_branch L_slow")
    e("L_slow_back:")
    for qt in range(4): e(f"v_rcp_f32 v{L+qt}, v{L+qt}")
    e(f"s_mul_i32 s{sTMP}, s{sW}, {CHUNK}"); e(f"v_add_u32 v{vT0}, s{sTMP}, v{vXA}")
    def norm(s, qt):
        b = acc(2*s, qt)
        sel = "op_sel_hi:[1,0]" if qt % 2 == 0 else "op_sel:[0,1]"
        for i in range(4): e(f"v_pk_mul_f32 {vr(b+2*i, 2)}, {vr(b+2*i, 2)}, {vr(L + (qt & 2), 2)} {sel}")
        for i in range(4): e(f"v_cvt_pk_bf16_f32 v{b+i}, v{b+2*i}, v{b+2*i+1}")
    def owr(s, qt): e(f"ds_write_b128 v{vT0}, {vr(acc(2*s, qt), 4)} offset:{qt*HALF + s*64}")
    e(f"s_cmp_eq_u32 s{sPH}, 0"); e("s_cbranch_scc1 L_Bend")
    for s in range(4):
        for qt in range(4): norm(s, qt)
    e("s_barrier")
    for s in range(4):
        for qt in range(4): owr(s, qt)
    e("s_branch L_Oproj")
    e("L_Bend:")
    for s in range(4):
        for qt in range(4):
            norm(s, qt); owr(s, qt)
    e("L_Oproj:")
    e("s_waitcnt lgkmcnt(0)")
    e("s_barrier")
    stamp("Owritten")
    proj("o")
    stamp("Odone")
    e(f"s_xor_b32 s{sTMP}, s{sROLE}, 1"); e(f"s_lshl_b32 s{sTMP}, s{sTMP}, 8"); e(f"s_add_u32 s{sTMP}, s{sTMP}, s2")
    e(f"s_lshl_b32 s{sTMP}, s{sTMP}, 2"); e(f"s_add_u32 s{sTMP}, s{sTMP}, s{sW}"); e(f"s_lshl_b32 s{sTMP}, s{sTMP}, 14")
    e(f"s_add_u32 s{sP}, s28, s{sTMP}"); e(f"s_addc_u32 s{sP+1}, s29, 0"); e(f"s_mov_b32 s{sP+2}, 0x4000"); e(f"s_mov_b32 s{sP+3}, 0x20000")
    e(f"s_cmp_eq_u32 s{sROLE}, 0"); e("s_cbranch_scc1 L_store")
    e(f"s_setprio {prioT}")
    assert not late_pf
    wo_srd(22); e(f"s_mov_b32 s{sWOFF}, 0")
    for n in range(3): emit(w_issue(n, "o"))
    if not e0: e("s_waitcnt vmcnt(0)")
    e("s_barrier")
    e("L_store:")
    keep = []
    for sp in range(2):
        for qt in range(4):
            lk, lb = lab("kp"), lab("kp")
            e(f"s_cmp_eq_u32 s{sG}, {qt*2 + sp}"); e(f"s_cbranch_scc1 {lk}")
            e(f"s_mov_b32 s{sOFF}, {qt*4096}")
            for sx in (2*sp, 2*sp + 1):
                b = acc(2*sx, qt)
                for i in range(4): e(f"v_cvt_pk_bf16_f32 v{b+i}, v{b+2*i}, v{b+2*i+1}")
                e(f"buffer_store_dwordx4 {vr(b, 4)}, v{vDV}, {srd(sP)}, s{sOFF} offen offset:{sx*1024} {pstore}")
            e(f"{lb}:")
            keep.append((lk, lb, sp, qt))
    e(f"s_cmp_eq_u32 s{sROLE}, 0"); e("s_cbranch_scc0 L_Apub")
    e("s_barrier")
    lds_arrive(1, "L_Bwait")
    stamp("pub")
    def first(done):
        e(f"buffer_atomic_add v{vT1}, off, {srd(sPF)}, s{sOFF} sc0")
        e("s_waitcnt vmcnt(0)")
        e(f"v_readfirstlane_b32 s{sTMP}, v{vT1}")
        e(f"s_cmp_ge_u32 s{sTMP}, 7"); e(f"s_cbranch_scc1 {done}")
    poll(1, first)
    e(f"v_mov_b32 v{vT0}, {CNT + 8}"); e(f"v_mov_b32 v{vT1}, 1")
    e(f"ds_write_b32 v{vT0}, v{vT1}")
    e("s_branch L_final")
    e("L_Bwait:")
    e(f"v_mov_b32 v{vT0}, {CNT + 8}")
    e("L_Bspin:")
    e(f"ds_read_b32 v{vT1}, v{vT0}")
    e("s_waitcnt lgkmcnt(0)")
    e(f"v_readfirstlane_b32 s{sTMP}, v{vT1}")
    e(f"s_cmp_eq_u32 s{sTMP}, 0"); e("s_cbranch_scc0 L_final")
    e("s_sleep 1")
    e("s_branch L_Bspin")
    for lk, lb, sp, qt in keep:
        e(f"{lk}:")
        for f in range(2):
            for i in range(0, 8, 2): e(f"v_mov_b64 {vr(RK + 8*f + i, 2)}, {vr(acc(2*(2*sp + f), qt) + i, 2)}")
        e(f"s_branch {lb}")
    e("L_Apub:")
    if e0:
        e("s_waitcnt vmcnt(14)"); e("s_barrier")
    lds_arrive(0, "L_nosig")
    flag_srd(0)
    e(f"buffer_atomic_add v{vT1}, off, {srd(sPF)}, s{sOFF}")
    e("L_nosig:")
    e("s_mov_b64 exec, -1")
    stamp("pubA")
    e("s_barrier")
    e(f"s_cmp_eq_u32 s{sW}, 0"); e("s_cbranch_scc0 L_nopoll")
    poll(0)
    e("L_nopoll:")
    e("s_barrier")
    e("L_final:")
    e("s_mov_b64 exec, -1")
    stamp("flag")
    reduce()
    if stamps:
        e("s_waitcnt vmcnt(0)")
        stamp("end")
        e("s_memtime s[4:5]")
        e("s_waitcnt lgkmcnt(0)")
        e("s_sub_u32 s4, s4, s100")
        e(f"s_lshl_b32 s{sTMP}, s2, 1"); e(f"s_add_u32 s{sTMP}, s{sTMP}, s{sROLE}"); e(f"s_lshl_b32 s{sTMP}, s{sTMP}, 2"); e(f"s_add_u32 s{sTMP}, s{sTMP}, s{sW}")
        e(f"s_lshl_b32 s{sTMP}, s{sTMP}, 7")
        e(f"s_add_u32 s{sPF}, s28, 0x4000000"); e(f"s_addc_u32 s{sPF+1}, s29, 0"); e(f"s_mov_b32 s{sPF+2}, 0x100000"); e(f"s_mov_b32 s{sPF+3}, 0x20000")
        for i in range(16): e(f"v_mov_b32 v{i}, s{sST+i}")
        e(f"v_mov_b32 v16, s4"); e("v_mov_b32 v17, 0"); e("v_mov_b32 v18, 0"); e("v_mov_b32 v19, 0")
        e(f"v_mov_b32 v20, s{sTMP}")
        if tl:
            e(f"v_lshl_add_u32 v21, v{vLN}, 2, v20"); e("s_mov_b32 exec_hi, 0"); e(f"s_mov_b32 s{sOFF}, 0x80000")
            e(f"buffer_store_dword v252, v21, {srd(sPF)}, s{sOFF} offen")
        e("s_mov_b64 exec, 1")
        for i in range(5): e(f"buffer_store_dwordx4 {vr(4*i, 4)}, v20, {srd(sPF)}, 0 offen offset:{16*i}")
    e("L_end:")
    e("s_endpgm")

    e("L_slow:")
    e("s_waitcnt vmcnt(0)")
    e(f"s_cmp_eq_u32 s{sROLE}, 0"); e("s_cbranch_scc1 L_slowB")
    e("s_barrier")
    e(f"s_mov_b32 s{sPH}, 0")
    e(f"s_mul_i32 s{sKB}, s{sW}, {CHUNK}"); e(f"s_add_u32 s{sKB}, s{sKB}, {XB}")
    e(f"s_sub_u32 s{sTMP}, s{sKB}, {WR0}"); e(f"v_add_u32 v{vKA}, s{sTMP}, v{vKA}")
    e(f"s_sub_u32 s{sTMP}, s{sTMP}, {WRING}"); e(f"v_add_u32 v{vVA}, s{sTMP}, v{vVA}")
    e("s_branch L_slowC")
    e("L_slowB:")
    e(f"v_add_u32 v{vVA}, {(-SLOT) & 0xffffffff:#x}, v{vVA}")
    e("L_slowC:")
    for i in range(0, 128, 2): e(f"v_mov_b64 {vr(i, 2)}, 0")
    for i in range(4): e(f"v_mov_b32 v{L+i}, 0"); e(f"v_mov_b32 v{M+i}, {f2u(-3.0e38):#x}")
    e(f"s_mov_b32 s{sROT}, 0")
    e("L_slowloop:")
    emit(k_issue())
    e("s_waitcnt vmcnt(0)")
    qk(None)
    emit(kv_issue(sV, vDV, sKB, 0, VBLK))
    for qt in range(4):
        b = S + qt*8; t = F + 2*qt
        e(f"v_max3_f32 v{t}, v{b}, v{b+1}, v{b+2}"); e(f"v_max3_f32 v{t}, v{t}, v{b+3}, v{b+4}")
        e(f"v_max3_f32 v{t}, v{t}, v{b+5}, v{b+6}"); e(f"v_max3_f32 v{t}, v{t}, v{b+7}, v{M+qt}")
        xlane("v_max_f32", t, vT0)
        e(f"v_sub_f32 v{t+1}, v{M+qt}, v{t}"); e(f"v_mov_b32 v{M+qt}, v{t}")
        e(f"v_exp_f32 v{t+1}, v{t+1}")
        for i in range(8): e(f"v_sub_f32 v{b+i}, v{b+i}, v{M+qt}")
        e(f"v_mul_f32 v{L+qt}, v{L+qt}, v{t+1}")
        for dt in range(8):
            for i in range(0, 4, 2): e(f"v_pk_mul_f32 {vr(acc(dt, qt)+i, 2)}, {vr(acc(dt, qt)+i, 2)}, {vr(t, 2)} op_sel:[0,1]")
        emit(exps(qt, 0)); emit(cvts(qt, 0))
    e("s_waitcnt vmcnt(0)")
    for dt in range(3): emit(vrd(dt))
    pv_phase([exps(qt, 1) + cvts(qt, 1) for qt in range(4)])
    e(f"s_add_u32 s{sROT}, s{sROT}, 8192"); e(f"s_cmp_lt_u32 s{sROT}, 0x20000"); e("s_cbranch_scc1 L_slowloop")
    for qt in range(4): xlane("v_add_f32", L + qt, vT0)
    b_wsetup()
    e("s_branch L_slow_back")
    e("L_last:")

    e('.section .rodata,"a"')
    e(".p2align 6"); e(f".amdhsa_kernel {NAME}_kernel")
    for l in [".amdhsa_next_free_vgpr 256", ".amdhsa_next_free_sgpr 102", ".amdhsa_accum_offset 256", ".amdhsa_group_segment_fixed_size 0",
              ".amdhsa_kernarg_size 104", ".amdhsa_user_sgpr_count 2", ".amdhsa_user_sgpr_kernarg_segment_ptr 1", ".amdhsa_system_sgpr_workgroup_id_x 1",
              ".amdhsa_float_denorm_mode_32 3"]:
        e("  " + l)
    e(".end_amdhsa_kernel")
    n = a.pad()
    return a.text(), n

if __name__ == "__main__":
    kw = eval("dict(" + (sys.argv[2] if len(sys.argv) > 2 else "") + ")")
    txt, n = gen(**kw)
    out = sys.argv[1] if len(sys.argv) > 1 else f"cdna_kernels/{NAME}.s"
    open(out, "w").write(txt)
    print("pad states:", n, "lines:", txt.count("\n"), "LDS", LDS)
```

```python
import sys, math, struct
from asmlib import Asm

NAME = "concat_heads__gqa_block_cached__mha_block_cached__near_ridge"
KBLK = 1088; VBLK = 1056; HALF = 4352; SLOT = 8704; CHUNK = 2*SLOT
XB = 2*CHUNK
WR0 = XB + 4*CHUNK
WRING = 3*HALF
CNT = WR0 + 4*WRING
LDS = CNT + 64
assert LDS <= 163840
WBIAS = 128

sK, sV, sWQ, sWO, sX, sP, sIT, sPF = 32, 36, 40, 44, 48, 52, 56, 60
(sROLE, sW, sG, sB, sD, sI, sROT, sOFF, sWRB, sKB, sTMP, sTMP2, sD4, sWOFF, sN, sM, sROTA, sIST, sPH, sDK) = range(64, 84)
sDV = 30; sHI = 31; sJ = 3
sST = 84
def srd(n): return f"s[{n}:{n+3}]"
ACC = 0; Q = 128; S = 192; F = 224; L = 236; ONES = 240
vKA, vVA, vDK, vDV = 242, 243, 244, 245
vWO = 246
vWA, vXA, vIT, vLN, vT0, vT1 = 250, 251, 252, 253, 254, 255
M = 246
AF = 128; BF = 160
def vr(b, n): return f"v[{b}:{b+n-1}]"
def acc(dt, qt): return ACC + ((dt >> 1)*4 + qt)*8 + (dt & 1)*4
def f2u(x): return struct.unpack("<I", struct.pack("<f", x))[0]
MF = "v_mfma_f32_16x16x32_bf16"

def gen(kv="nt", wq_pf="", w_pf="", wflag="", xflag="", stamps=False, groups=(0,0,0,0,0,2,4,7,10,13,14,15,15,15,15,15), mask=0, early01=False, e0=True, prioT=0, hpf=1, xaflag='nt', late_pf=False, prioA=1, prioB=0, T=10.0,
        rot_mul=1, cyc=False, lo_exp=-30, hi_exp=30, force_slow=False, codepf=True, slp=6, pstore="sc1", tl=False, calib=0, calib_wg=None, ostore='sc1', capN=8, capI=None, capK=0, capV=0, capn=6, snake=True, depth=3):
    a = Asm(); e = a
    if stamps is True: stamps = ["start", "P0", "Qdone", "attn_done", "Owritten", "Odone", "pub", "end"]
    def stamp(nm):
        if stamps and nm in stamps:
            i = stamps.index(nm); e(f"{'s_memtime' if cyc else 's_memrealtime'} s[{sST+2*i}:{sST+2*i+1}]")
    def emit(lst):
        for x in lst: e(x)
    uid = [0]
    def lab(p):
        uid[0] += 1; return f"L_{p}{uid[0]}"

    def w_setup(kind):
        sh = 13 if kind == "q" else 10
        if kind == "q":
            e(f"v_bfe_u32 v{vT0}, v{vLN}, 3, 2"); e(f"v_lshlrev_b32 v{vWO}, {sh+3}, v{vT0}")
            e(f"v_lshrrev_b32 v{vT0}, 5, v{vLN}"); e(f"v_lshl_add_u32 v{vWO}, v{vT0}, {sh+2}, v{vWO}")
        else:
            e(f"v_lshrrev_b32 v{vT0}, 3, v{vLN}"); e(f"v_lshlrev_b32 v{vWO}, {sh+2}, v{vT0}")
        e(f"v_and_b32 v{vT0}, 7, v{vLN}"); e(f"v_lshl_add_u32 v{vWO}, v{vT0}, 4, v{vWO}")
        for r in (3, 2, 1, 0):
            e(f"v_add_u32 v{vWO+r}, {r*((1 << sh) - VBLK) + WBIAS}, v{vWO}")
        e(f"s_mov_b32 s{sWOFF}, 0")
    def wslot(n): return (n + 1) % 3
    def w_issue(n, kind):
        sr, sh = (sWQ, 13) if kind == "q" else (sWO, 10)
        out = [f"s_add_u32 m0, s{sWRB}, {wslot(n)*HALF}"]
        for r in range(4):
            out.append(f"buffer_load_dwordx4 v{vWO+r}, {srd(sr)}, s{sWOFF} offen offset:{r*VBLK} {wflag} lds")
        out.append(f"s_add_u32 s{sWOFF}, s{sWOFF}, {128 if n % 2 == 0 else (32 << sh) - 128}")
        return out
    def kv_issue(sr, voff, sbase, imm, blk, rot=sROT):
        out = [f"s_mov_b32 s{sOFF}, s{rot}"]
        for j in range(8):
            if j == 4: out.append(f"s_add_u32 s{sOFF}, s{sOFF}, 4096")
            out.append(f"s_add_u32 m0, s{sbase}, {imm + j*blk - (j % 4)*1024}")
            out.append(f"buffer_load_dwordx4 v{voff}, {srd(sr)}, s{sOFF} offen offset:{(j % 4)*1024} {kv} lds")
        return out
    def capped(lst, n):
        if not n: return lst
        out = []
        for x in lst:
            if x.startswith("buffer_load"): out.append(f"s_waitcnt vmcnt({n-1})")
            out.append(x)
        return out
    def k_issue(): return kv_issue(sK, vDK, sKB, 0, KBLK)
    def v_issue(): return kv_issue(sV, vDV, sKB, SLOT, VBLK)
    def item_issue(sbase, blocks=range(8)):
        out = []
        for j in blocks:
            if j == 0: out += [f"s_mov_b32 s{sOFF}, s{sROTA}", f"s_mov_b32 m0, s{sbase}"]
            elif j == 4:
                out += [f"s_add_u32 s{sOFF}, s{sROTA}, 4096", f"s_lshl_b32 s{sTMP}, s{sIST}, 2", f"s_add_u32 s{sTMP}, s{sTMP}, s{sbase}", f"s_add_u32 m0, s{sTMP}, 4096"]
            else: out.append(f"s_add_u32 m0, m0, s{sIST}")
            out.append(f"buffer_load_dwordx4 v{vIT}, {srd(sIT)}, s{sOFF} offen offset:{(j % 4)*1024} {kv} lds")
        return out
    def x_issue(c, xflag=xflag):
        e(f"s_lshl_b32 s{sOFF}, s{sW}, 14"); e(f"s_add_u32 s{sOFF}, s{sOFF}, {c*256}")
        e(f"s_mul_i32 s{sTMP}, s{sW}, {HALF}")
        for j in range(4):
            e(f"s_add_u32 m0, s{sTMP}, {XB + c*CHUNK + j*64}")
            e(f"buffer_load_dwordx4 v{vT1}, {srd(sX)}, s{sOFF} offen offset:{j*1024} {xflag} lds")
    def x_own(h):
        out = [f"s_lshl_b32 s{sOFF}, s{sW}, 8", f"s_add_u32 s{sOFF}, s{sOFF}, {h*32768}"]
        for j in range(8):
            if j == 4: out.append(f"s_add_u32 s{sOFF}, s{sOFF}, 16384")
            out.append(f"s_add_u32 m0, s{sKB}, {h*SLOT + (j >> 2)*HALF + (j & 3)*64}")
            out.append(f"buffer_load_dwordx4 v{vT1}, {srd(sX)}, s{sOFF} offen offset:{(j & 3)*1024} {xaflag} lds")
        return out
    def xa_touch():
        e(f"s_mov_b32 s{sPF}, s4"); e(f"s_mov_b32 s{sPF+1}, s5"); e(f"s_mov_b32 s{sPF+2}, 0x200000"); e(f"s_mov_b32 s{sPF+3}, 0x20000")
        e(f"s_lshl_b32 s{sTMP}, s2, 2"); e(f"s_add_u32 s{sTMP}, s{sTMP}, s{sW}"); e(f"s_lshl_b32 s{sTMP}, s{sTMP}, 11")
        for r in range(2): e(f"buffer_load_dwordx4 {vr(S + 16 + 4*r, 4)}, v{vDV}, {srd(sPF)}, s{sTMP} offen offset:{r*1024}")
    def x_voff():
        e(f"v_lshrrev_b32 v{vT0}, 4, v{vLN}"); e(f"v_sub_u32 v{vT1}, 0, v{vT0}"); e(f"v_and_b32 v{vT1}, 3, v{vT1}")
        e(f"v_xor_b32 v{vT1}, v{vT1}, v{vLN}"); e(f"v_and_b32 v{vT1}, 15, v{vT1}"); e(f"v_lshlrev_b32 v{vT1}, 4, v{vT1}")
        e(f"v_lshl_add_u32 v{vT1}, v{vT0}, 12, v{vT1}")
    def x_srd(lo):
        e(f"s_lshl_b32 s{sTMP}, s{sB}, 16")
        e(f"s_add_u32 s{sX}, s{lo}, s{sTMP}"); e(f"s_addc_u32 s{sX+1}, s{lo+1}, 0"); e(f"s_mov_b32 s{sX+2}, 0x10000"); e(f"s_mov_b32 s{sX+3}, 0x20000")
    def wo_srd(lo):
        e(f"s_lshl_b32 s{sTMP}, s{sG}, 19"); e(f"s_lshl_b32 s{sTMP2}, s{sW}, 8"); e(f"s_add_u32 s{sTMP}, s{sTMP}, s{sTMP2}")
        e(f"s_add_u32 s{sWO}, s{lo}, s{sTMP}"); e(f"s_addc_u32 s{sWO+1}, s{lo+1}, 0")
        e(f"s_sub_u32 s{sWO}, s{sWO}, {WBIAS}"); e(f"s_subb_u32 s{sWO+1}, s{sWO+1}, 0")
        e(f"s_sub_u32 s{sWO+2}, {0x400000 + WBIAS}, s{sTMP}"); e(f"s_mov_b32 s{sWO+3}, 0x20000")
    def coop_prefetch(lo, sh, goff_sh, flag):
        if flag == "2x":
            coop_prefetch(lo, sh, goff_sh, "nt"); e("s_waitcnt vmcnt(0)"); coop_prefetch(lo, sh, goff_sh, ""); return
        e(f"s_lshl_b32 s{sTMP}, s{sG}, {goff_sh}")
        e(f"s_add_u32 s{sPF}, s{lo}, s{sTMP}"); e(f"s_addc_u32 s{sPF+1}, s{lo+1}, 0")
        e(f"s_sub_u32 s{sPF+2}, 0x400000, s{sTMP}"); e(f"s_mov_b32 s{sPF+3}, 0x20000")
        e(f"s_lshl_b32 s{sTMP}, s{sB}, 2"); e(f"s_add_u32 s{sTMP}, s{sTMP}, s{sW}"); e(f"s_lshl_b32 s{sTMP}, s{sTMP}, {sh+2}")
        for r in range(4):
            e(f"buffer_load_dwordx4 {vr(S + 4*r, 4)}, v{vDV}, {srd(sPF)}, s{sTMP} offen {flag}")
            if r < 3: e(f"s_add_u32 s{sTMP}, s{sTMP}, {1 << sh}")

    def proj(kind):
        def ra(n):
            p = n % 2
            return [f"ds_read_b64_tr_b16 {vr(AF + p*16 + d*4 + ee*2, 2)}, v{vWA} offset:{wslot(n)*HALF + ee*512 + d*32}" for d in range(4) for ee in range(2)]
        def rb(ks, qts):
            return [f"ds_read_b128 {vr(BF + (ks % 2)*16 + qt*4, 4)}, v{vXA} offset:{(ks >> 2)*CHUNK + qt*HALF + (ks & 3)*64}" for qt in qts]
        e("s_waitcnt vmcnt(8)")
        emit(rb(0, range(4))); emit(ra(0))
        e("s_waitcnt lgkmcnt(0)")
        for n in range(32):
            stamp(f"{kind}{n}")
            ks, ch, p = n >> 1, n & 1, n % 2
            rd = ra(n + 1) if n < 31 else []
            if ks < 15: rd = rd + rb(ks + 1, (2*ch, 2*ch + 1))
            dm = w_issue(n + 3, kind) if n + 3 < 32 else []
            if n < 31:
                e("s_waitcnt vmcnt(4)" if (n <= 29) else "s_waitcnt vmcnt(0)")
            if kind == "q" and n in (6, 14, 22): e("s_barrier")
            if n == 30:
                if kind == "q": e("s_barrier")
                else: e("s_barrier")
            gaps = [[] for _ in range(16)]
            for i, x in enumerate(rd): gaps[i].append(x)
            if dm:
                gaps[3].append(dm[0])
                for i in range(4): gaps[4 + 2*i].append(dm[1 + i])
                gaps[11].append(dm[5])
            k = 0
            for d in range(4):
                for qt in (range(3, -1, -1) if (snake and d % 2) else range(4)):
                    r = vr(acc(4*ch + d, qt), 4)
                    e(f"{MF} {r}, {vr(AF + p*16 + d*4, 4)}, {vr(BF + (ks % 2)*16 + qt*4, 4)}, {r if ks else '0'}")
                    emit(gaps[k]); k += 1
            if n < 31: e("s_waitcnt lgkmcnt(0)")

    def Sr(qt, u): return S + qt*8 + u*4
    def exps(qt, u): return [f"v_exp_f32 v{Sr(qt, u)+i}, v{Sr(qt, u)+i}" for i in range(4)]
    def cvts(qt, u): return [f"v_cvt_pk_bf16_f32 v{S+qt*8+2*u+i}, v{Sr(qt, u)+2*i}, v{Sr(qt, u)+2*i+1}" for i in range(2)]
    def kr(f): return f"ds_read_b128 {vr(F + (f % 3)*4, 4)}, v{vKA} offset:{(f >> 2)*512 + (f & 3)*64}"
    vbuf = [F, F + 4, F + 8, S + 4, S + 12, S + 20, S + 28, F]
    def vrd(dt): return [f"ds_read_b64_tr_b16 {vr(vbuf[dt] + 2*u, 2)}, v{vVA} offset:{u*512 + dt*32}" for u in range(2)]
    def sums(qt): return [f"v_mfma_f32_4x4x4_16b_bf16 {vr(L, 4)}, {vr(ONES, 2)}, {vr(S + qt*8 + 2*h, 2)}, {vr(L, 4)} cbsz:2 abid:{qt}" for h in range(2)]
    def pv(dt, qt): return f"{MF} {vr(acc(dt, qt), 4)}, {vr(vbuf[dt], 4)}, {vr(S + qt*8, 4)}, {vr(acc(dt, qt), 4)}"
    def qk(fill):
        for f in range(3): e(kr(f))
        m = 0
        for f in range(8):
            u, s = f >> 2, f & 3
            e(f"s_waitcnt lgkmcnt({min(2, 7 - f)})")
            for qt in range(4):
                r = vr(Sr(qt, u), 4)
                e(f"{MF} {r}, {vr(F + (f % 3)*4, 4)}, {vr(Q + (qt*4 + s)*4, 4)}, {r if s else '0'}")
                if u == 1:
                    if m >= 3 and fill: e(fill.pop(0))
                    m += 1
            if f + 3 < 8: e(kr(f + 3))
    def pv_phase(pre):
        emit(pre[0]); emit(vrd(3))
        for qt in range(4):
            nxt = (pre[qt + 1] + vrd(4 + qt)) if qt < 3 else []
            per = math.ceil(len(nxt) / 4)
            sm = sums(qt)
            for dt in range(3):
                if qt == 0: e(f"s_waitcnt lgkmcnt({6 - 2*dt})")
                e(pv(dt, qt)); emit(nxt[dt*per:(dt+1)*per])
                if dt == 0: e(sm[0])
            e(sm[1]); emit(nxt[3*per:])
        emit(vrd(7))
        for dt in range(3, 8):
            e(f"s_waitcnt lgkmcnt({2*(7 - dt)})")
            for qt in (range(3, -1, -1) if (snake and dt % 2) else range(4)): e(pv(dt, qt))
    def tile(after_qk, before_v, after_pv):
        fill = []
        for qt in range(4): fill += exps(qt, 0)
        for qt in range(4): fill += cvts(qt, 0)
        qk(fill)
        emit(fill)
        after_qk()
        before_v()
        for dt in range(3): emit(vrd(dt))
        pv_phase([exps(qt, 1) + cvts(qt, 1) for qt in range(4)])
        after_pv()
    def xlane(op, reg, tmp):
        for sw in ("32", "16"):
            e(f"v_mov_b32 v{tmp}, v{reg}"); e(f"v_permlane{sw}_swap_b32 v{reg}, v{tmp}"); e(f"{op} v{reg}, v{reg}, v{tmp}")
    def waitn(sreg, mx):
        end = lab("wn")
        for n in range(mx, 0, -1):
            e(f"s_waitcnt vmcnt({8*n})"); e(f"s_cmp_ge_u32 s{sreg}, {n}"); e(f"s_cbranch_scc1 {end}")
        e("s_waitcnt vmcnt(0)"); e(f"{end}:")
    def flag_srd(branch):
        e(f"s_add_u32 s{sPF}, s28, 0x2000000"); e(f"s_addc_u32 s{sPF+1}, s29, 0"); e(f"s_mov_b32 s{sPF+2}, 0x8000"); e(f"s_mov_b32 s{sPF+3}, 0x20000")
        e(f"s_mul_i32 s{sOFF}, s{sB}, 768"); e(f"s_add_u32 s{sOFF}, s{sOFF}, {branch*256}")
    def dbg_srd():
        e(f"s_mov_b32 s{sPF}, s26"); e(f"s_mov_b32 s{sPF+1}, s27"); e(f"s_mov_b32 s{sPF+2}, 256"); e(f"s_mov_b32 s{sPF+3}, 0x20000")
        e(f"s_lshl_b32 s{sOFF}, s{sB}, 3")
    def poll(branch_off, first=None, tmp=vT0):
        l0, l1 = lab("pl"), lab("pl")
        if branch_off is None: dbg_srd()
        else: flag_srd(branch_off)
        e("s_mov_b64 exec, 1")
        if first: first(l1)
        e(f"s_mov_b32 s{sTMP2}, 0x40000")
        e(f"{l0}:")
        e(f"buffer_load_dword v{tmp}, off, {srd(sPF)}, s{sOFF} sc1")
        e("s_waitcnt vmcnt(0)")
        e(f"v_readfirstlane_b32 s{sTMP}, v{tmp}")
        e(f"s_cmp_eq_u32 s{sTMP}, 8"); e(f"s_cbranch_scc1 {l1}")
        e(f"s_sleep {slp}")
        e(f"s_sub_u32 s{sTMP2}, s{sTMP2}, 1"); e(f"s_cmp_lg_u32 s{sTMP2}, 0"); e(f"s_cbranch_scc1 {l0}")
        e(f"{l1}:")
        e("s_mov_b64 exec, -1")
    RK = 192; RL = 128
    def reduce():
        e(f"s_xor_b32 s{sTMP2}, s{sROLE}, 1")
        e(f"s_lshl_b32 s{sTMP}, s{sTMP2}, 5"); e(f"s_add_u32 s{sTMP}, s{sTMP}, s{sB}"); e(f"s_lshl_b32 s{sTMP}, s{sTMP}, 19")
        e(f"s_add_u32 s{sP}, s28, s{sTMP}"); e(f"s_addc_u32 s{sP+1}, s29, 0"); e(f"s_mov_b32 s{sP+2}, 0x80000"); e(f"s_mov_b32 s{sP+3}, 0x20000")
        e(f"s_mul_i32 s{sOFF}, s{sG}, {65536 + 2048}"); e(f"s_lshl_b32 s{sTMP}, s{sW}, 14"); e(f"s_add_u32 s{sOFF}, s{sOFF}, s{sTMP}")
        for k in range(7):
            e(f"s_add_u32 s{sOFF}, s{sOFF}, 0x10000"); e(f"s_and_b32 s{sOFF}, s{sOFF}, 0x7ffff")
            for f in range(2):
                e(f"buffer_load_dwordx4 {vr(RL + 8*k + 4*f, 4)}, v{vDV}, {srd(sP)}, s{sOFF} offen offset:{f*1024} sc1")
        e(f"s_mov_b32 s{sPF}, s24"); e(f"s_mov_b32 s{sPF+1}, s25"); e(f"s_mov_b32 s{sPF+2}, 0x400000"); e(f"s_mov_b32 s{sPF+3}, 0x20000")
        e(f"s_lshl_b32 s{sOFF}, s{sB}, 17"); e(f"s_lshl_b32 s{sTMP2}, s{sTMP2}, 10"); e(f"s_add_u32 s{sOFF}, s{sOFF}, s{sTMP2}")
        e(f"s_lshr_b32 s{sTMP}, s{sG}, 1"); e(f"s_lshl_b32 s{sTMP}, s{sTMP}, 15"); e(f"s_add_u32 s{sOFF}, s{sOFF}, s{sTMP}")
        e(f"s_lshl_b32 s{sTMP}, s{sW}, 8"); e(f"s_add_u32 s{sOFF}, s{sOFF}, s{sTMP}")
        e(f"s_and_b32 s{sTMP}, s{sG}, 1"); e(f"s_lshl_b32 s{sTMP}, s{sTMP}, 7"); e(f"s_add_u32 s{sOFF}, s{sOFF}, s{sTMP}")
        e(f"v_and_b32 v{vT0}, 15, v{vLN}"); e(f"v_lshlrev_b32 v{vT1}, 11, v{vT0}")
        e(f"v_bfe_u32 v{vT0}, v{vLN}, 4, 1"); e(f"v_lshl_add_u32 v{vT1}, v{vT0}, 5, v{vT1}")
        e(f"v_lshrrev_b32 v{vT0}, 5, v{vLN}"); e(f"v_lshl_add_u32 v{vT1}, v{vT0}, 4, v{vT1}")
        for k in range(7):
            for f in range(2):
                e(f"s_waitcnt vmcnt({(6 - k)*2 + 1 - f})")
                src, dst, tmp = RL + 8*k + 4*f, RK + 8*f, RK + 16 + 8*f
                for i in range(4):
                    e(f"v_lshlrev_b32 v{tmp+2*i}, 16, v{src+i}"); e(f"v_and_b32 v{tmp+2*i+1}, 0xffff0000, v{src+i}")
                for i in range(8): e(f"v_add_f32 v{dst+i}, v{dst+i}, v{tmp+i}")
        for f in range(2):
            dst = RK + 8*f
            for i in range(4): e(f"v_cvt_pk_bf16_f32 v{dst+i}, v{dst+2*i}, v{dst+2*i+1}")
        for f in range(2):
            dst = RK + 8*f
            e(f"v_permlane16_swap_b32 v{dst}, v{dst+2}"); e(f"v_permlane16_swap_b32 v{dst+1}, v{dst+3}")
            e(f"buffer_store_dwordx4 {vr(dst, 4)}, v{vT1}, {srd(sPF)}, s{sOFF} offen offset:{f*64} {ostore}")
    def lds_arrive(word, last):
        e("s_waitcnt vmcnt(0)")
        e(f"v_mov_b32 v{vT0}, {CNT + 4*word}"); e(f"v_mov_b32 v{vT1}, 1")
        e("s_mov_b64 exec, 1")
        e(f"ds_add_rtn_u32 v{vT0}, v{vT0}, v{vT1}")
        e("s_waitcnt lgkmcnt(0)")
        e(f"v_readfirstlane_b32 s{sTMP}, v{vT0}")
        e(f"s_cmp_eq_u32 s{sTMP}, 3"); e(f"s_cbranch_scc0 {last}")

    if stamps: e(f"; stamps: {stamps}")
    e(f"; @launch grid=(256,1,1) block=(512,1,1) lds={LDS}")
    e('.amdgcn_target "amdgcn-amd-amdhsa--gfx950"')
    e(".text"); e(f".globl {NAME}_kernel"); e(".p2align 8"); e(f".type {NAME}_kernel,@function")
    e(f"{NAME}_kernel:")
    e("s_cmp_ge_u32 s2, 256"); e("s_cbranch_scc1 L_end")
    e("s_load_dwordx16 s[4:19], s[0:1], 0"); e("s_load_dwordx8 s[20:27], s[0:1], 64"); e("s_load_dwordx2 s[28:29], s[0:1], 96")
    if stamps:
        for i in range(16): e(f"s_mov_b32 s{sST+i}, 0")
        e("s_memtime s[100:101]")
    stamp("start")
    if calib: e("s_memrealtime s[92:93]")
    e(f"v_lshrrev_b32 v1, 6, v0"); e(f"v_and_b32 v{vLN}, 63, v0"); e(f"v_readfirstlane_b32 s{sTMP}, v1")
    e(f"s_and_b32 s{sG}, s2, 7"); e(f"s_lshr_b32 s{sB}, s2, 3")
    e(f"s_and_b32 s{sW}, s{sTMP}, 3"); e(f"s_lshr_b32 s{sROLE}, s{sTMP}, 2"); e(f"s_lshr_b32 s{sHI}, s{sW}, 1")
    e(f"s_mul_i32 s{sWRB}, s{sW}, {WRING}"); e(f"s_add_u32 s{sWRB}, s{sWRB}, {WR0}")
    e(f"v_lshlrev_b32 v{vDV}, 4, v{vLN}")
    w_setup("q")
    x_voff()
    e("s_waitcnt lgkmcnt(0)")
    e(f"s_cmp_eq_u32 s{sROLE}, 0")
    e(f"s_cselect_b32 s{sWQ}, s20, s10"); e(f"s_cselect_b32 s{sWQ+1}, s21, s11")
    e(f"s_lshl_b32 s{sTMP}, s{sG}, 2"); e(f"s_add_u32 s{sTMP}, s{sTMP}, s{sW}"); e(f"s_lshl_b32 s{sTMP}, s{sTMP}, 8")
    e(f"s_add_u32 s{sWQ}, s{sWQ}, s{sTMP}"); e(f"s_addc_u32 s{sWQ+1}, s{sWQ+1}, 0")
    e(f"s_sub_u32 s{sWQ}, s{sWQ}, {WBIAS}"); e(f"s_subb_u32 s{sWQ+1}, s{sWQ+1}, 0")
    e(f"s_sub_u32 s{sWQ+2}, {0x400000 + WBIAS}, s{sTMP}"); e(f"s_mov_b32 s{sWQ+3}, 0x20000")
    e(f"s_cmp_eq_u32 s{sROLE}, 0"); e("s_cbranch_scc1 L_first_B")
    if prioA: e(f"s_setprio {prioA}")
    if codepf:
        e("s_getpc_b64 s[94:95]"); e("L_pc:")
        e(f"s_lshl_b32 s{sTMP}, s{sB}, 2"); e(f"s_add_u32 s{sTMP}, s{sTMP}, s{sW}"); e(f"s_lshl_b32 s{sTMP}, s{sTMP}, 7")
        e(f"v_lshl_add_u32 v2, v{vLN}, 14, s{sTMP}")
        e(f"v_min_u32 v2, L_last-L_pc-4, v2")
        e(f"v_mov_b32 v3, s95"); e("v_add_co_u32 v2, vcc, s94, v2"); e("v_addc_co_u32 v3, vcc, 0, v3, vcc")
        e("s_mov_b64 exec, 15")
        e("global_load_dword v4, v[2:3], off")
        e("s_mov_b64 exec, -1")
    x_srd(14); x_issue(0)
    coop_prefetch(20, 13, 10, wq_pf)
    e("s_branch L_common")
    e("L_first_B:")
    if prioB: e(f"s_setprio {prioB}")
    for n in range(3): emit(w_issue(n, "q"))
    x_srd(4)
    e("L_common:")
    assert mask == 0
    wt = mask.bit_length() // 2 + 1 if mask else 0
    if not mask: groups = tuple((d, d) for d in groups)
    for reg, k in ((sD, 0), (sD4, 1)):
        tab = [groups[b * len(groups) // 32][k] for b in range(32)]
        assert all(0 <= g[0] and g[0] + wt <= g[1] <= 15 for g in groups)
        wd = [sum(tab[8*i + j] << (4*j) for j in range(8)) for i in range(4)]
        e(f"s_bitcmp0_b32 s{sB}, 3")
        e(f"s_mov_b32 s{sTMP}, {wd[1]:#x}"); e(f"s_cselect_b32 s{sTMP}, {wd[0]:#x}, s{sTMP}")
        e(f"s_mov_b32 s{sTMP2}, {wd[3]:#x}"); e(f"s_cselect_b32 s{sTMP2}, {wd[2]:#x}, s{sTMP2}")
        e(f"s_bitcmp0_b32 s{sB}, 4"); e(f"s_cselect_b32 s{sTMP}, s{sTMP}, s{sTMP2}")
        e(f"s_and_b32 s{sTMP2}, s{sB}, 7"); e(f"s_lshl_b32 s{sTMP2}, s{sTMP2}, 2")
        e(f"s_lshr_b32 s{sTMP}, s{sTMP}, s{sTMP2}"); e(f"s_and_b32 s{reg}, s{sTMP}, 15")
    e(f"s_lshl_b32 s{sTMP}, s{sHI}, 1"); e(f"s_add_u32 s{sTMP}, s{sTMP}, s{sW}"); e(f"s_mul_i32 s{sKB}, s{sTMP}, {CHUNK}")
    def dk_setup():
        e(f"v_bfe_u32 v{vT0}, v{vLN}, 4, 1"); e(f"v_lshlrev_b32 v{vT0}, 4, v{vT0}"); e(f"v_xor_b32 v{vDK}, v{vDV}, v{vT0}")
    dk_setup()
    t0, t1 = F, F + 1
    e(f"v_and_b32 v{t0}, 7, v{vLN}"); e(f"v_mul_u32_u24 v{vKA}, {KBLK}, v{t0}")
    e(f"v_bfe_u32 v{t0}, v{vLN}, 3, 1"); e(f"v_lshl_add_u32 v{vKA}, v{t0}, 8, v{vKA}")
    e(f"v_lshrrev_b32 v{t1}, 5, v{vLN}"); e(f"v_xor_b32 v{t0}, v{t0}, v{t1}"); e(f"v_lshl_add_u32 v{vKA}, v{t0}, 4, v{vKA}")
    e(f"v_bfe_u32 v{t0}, v{vLN}, 4, 1"); e(f"v_lshl_add_u32 v{vKA}, v{t0}, 5, v{vKA}")
    e(f"v_bfe_u32 v{t0}, v{vLN}, 2, 3"); e(f"v_mul_u32_u24 v{vVA}, {VBLK}, v{t0}")
    e(f"v_lshl_add_u32 v{vVA}, v{t1}, 8, v{vVA}")
    e(f"v_and_b32 v{t0}, 3, v{vLN}"); e(f"v_lshl_add_u32 v{vVA}, v{t0}, 3, v{vVA}")
    def wx_setup():
        e(f"v_and_b32 v{t0}, 3, v{vLN}")
        e(f"v_bfe_u32 v{t1}, v{vLN}, 2, 2"); e(f"v_mul_u32_u24 v{vWA}, {VBLK}, v{t1}")
        e(f"v_lshl_add_u32 v{vWA}, v{t0}, 3, v{vWA}")
        e(f"v_lshrrev_b32 v{t0+2}, 4, v{vLN}"); e(f"v_lshl_add_u32 v{vWA}, v{t0+2}, 7, v{vWA}"); e(f"v_add_u32 v{vWA}, s{sWRB}, v{vWA}")
        e(f"v_mul_u32_u24 v{vXA}, {KBLK}, v{t0}"); e(f"v_lshl_add_u32 v{vXA}, v{t1}, 8, v{vXA}")
        e(f"v_sub_u32 v{t0+3}, 0, v{t1}"); e(f"v_and_b32 v{t0+3}, 3, v{t0+3}"); e(f"v_xor_b32 v{t0+3}, v{t0+3}, v{t0+2}")
        e(f"v_lshl_add_u32 v{vXA}, v{t0+3}, 4, v{vXA}"); e(f"v_add_u32 v{vXA}, {XB}, v{vXA}")
    wx_setup()
    e(f"v_cmp_eq_u32 vcc, v{t0}, v{t1}"); e(f"v_mov_b32 v{t0+2}, 0x3f803f80")
    e(f"v_cndmask_b32 v{ONES}, 0, v{t0+2}, vcc"); e(f"v_mov_b32 v{ONES+1}, v{ONES}")
    for i in range(4): e(f"v_mov_b32 v{L+i}, 0")
    e(f"s_lshl_b32 s{sTMP}, s2, 2"); e(f"s_add_u32 s{sTMP}, s{sTMP}, s{sW}")
    e(f"s_mul_i32 s{sROT}, s{sTMP}, {rot_mul}"); e(f"s_and_b32 s{sROT}, s{sROT}, 15"); e(f"s_lshl_b32 s{sROT}, s{sROT}, 13")
    e(f"s_lshl_b32 s{sTMP}, s{sTMP}, 17")
    for r, p in ((sK, 16), (sV, 18)):
        e(f"s_add_u32 s{r}, s{p}, s{sTMP}"); e(f"s_addc_u32 s{r+1}, s{p+1}, 0"); e(f"s_mov_b32 s{r+2}, 0x20000"); e(f"s_mov_b32 s{r+3}, 0x20000")
    e(f"s_bitcmp0_b32 s{sW}, 0")
    e(f"s_cselect_b32 s{sIT}, s6, s8"); e(f"s_cselect_b32 s{sIT+1}, s7, s9"); e(f"s_cselect_b32 s{sIST}, {KBLK-1024}, {VBLK-1024}")
    e(f"s_cselect_b64 vcc, -1, 0")
    e(f"v_cndmask_b32 v{vIT}, v{vDV}, v{vDK}, vcc")
    e(f"s_lshl_b32 s{sTMP}, s2, 17")
    e(f"s_add_u32 s{sIT}, s{sIT}, s{sTMP}"); e(f"s_addc_u32 s{sIT+1}, s{sIT+1}, 0"); e(f"s_mov_b32 s{sIT+2}, 0x20000"); e(f"s_mov_b32 s{sIT+3}, 0x20000")
    e(f"s_mul_i32 s{sROTA}, s2, {rot_mul}"); e(f"s_and_b32 s{sROTA}, s{sROTA}, 15"); e(f"s_lshl_b32 s{sROTA}, s{sROTA}, 1"); e(f"s_add_u32 s{sROTA}, s{sROTA}, s{sHI}"); e(f"s_lshl_b32 s{sROTA}, s{sROTA}, 12")
    wo_srd(12)
    e(f"s_cmp_eq_u32 s{sROLE}, 0"); e("s_cbranch_scc1 L_Binit")
    e(f"v_add_u32 v{vKA}, {XB}, v{vKA}"); e(f"v_add_u32 v{vVA}, {XB + SLOT}, v{vVA}")
    e(f"v_mov_b32 v{t0}, {CNT}"); e(f"ds_write_b128 v{t0}, {vr(L, 4)}")
    e("s_waitcnt vmcnt(4) lgkmcnt(0)"); e("s_barrier")
    x_issue(1)
    e(f"s_or_b32 s{sTMP}, s{sG}, s{sW}"); e(f"s_cmp_eq_u32 s{sTMP}, 0"); e("s_cbranch_scc0 L_noinit")
    flag_srd(0)
    e("s_mov_b64 exec, 1")
    e(f"buffer_store_dword v{L}, off, {srd(sPF)}, s{sOFF} sc1"); e(f"buffer_store_dword v{L}, off, {srd(sPF)}, s{sOFF} offset:256 sc1")
    e("s_waitcnt vmcnt(0)")
    dbg_srd()
    e(f"v_mov_b32 v{vT0}, 8"); e(f"buffer_store_dword v{vT0}, off, {srd(sPF)}, s{sOFF} sc1")
    e("s_mov_b64 exec, -1")
    e("s_branch L_init2")
    e("L_noinit:")
    e("s_waitcnt vmcnt(0)")
    e("L_init2:")
    e("s_barrier")
    x_issue(2); x_issue(3)
    e("s_waitcnt vmcnt(4)"); e("s_barrier")
    if hpf == 1:
        coop_prefetch(10, 13, 10, w_pf); xa_touch()
        e("s_waitcnt vmcnt(6)"); e("s_barrier")
        coop_prefetch(12, 10, 19, w_pf); coop_prefetch(22, 10, 19, w_pf)
    elif hpf == 2:
        coop_prefetch(10, 13, 10, w_pf); xa_touch()
        e("s_waitcnt vmcnt(6)"); e("s_barrier")
        coop_prefetch(12, 10, 19, w_pf)
    else:
        e("s_waitcnt vmcnt(0)"); e("s_barrier")
    if early01:
        e(f"s_cmp_eq_u32 s{sHI}, 0"); e("s_cbranch_scc0 L_h23")
        emit(k_issue()); emit(v_issue()); e("s_barrier"); e("s_branch L_h01")
        e("L_h23:")
    e("s_barrier")
    x_srd(4)
    if any(g[0] == 0 for g in groups):
        e(f"s_cmp_lt_u32 s{sD}, s{sHI}"); e("s_cbranch_scc0 L_hkv")
        emit(x_own(0)); emit(x_own(1)); e("s_branch L_h01")
        e("L_hkv:")
    emit(k_issue()); emit(v_issue())
    e("L_h01:")
    x_srd(4); x_issue(0, xaflag)
    e("s_waitcnt vmcnt(4)"); e("s_barrier")
    if not hpf: coop_prefetch(10, 13, 10, w_pf)
    x_issue(1, xaflag)
    if not hpf: coop_prefetch(12, 10, 19, w_pf)
    e(f"s_lshl_b32 s{sTMP}, s2, 17")
    for r, p in ((sK, 6), (sV, 8)):
        e(f"s_add_u32 s{r}, s{p}, s{sTMP}"); e(f"s_addc_u32 s{r+1}, s{p+1}, 0")
    for n in range(3): emit(w_issue(n, "q"))
    e("s_waitcnt vmcnt(12)")
    e("s_branch L_Qstart")
    e("L_Binit:")
    e(f"v_add_u32 v{vKA}, s{sKB}, v{vKA}"); e(f"v_add_u32 v{vVA}, s{sKB}, v{vVA}"); e(f"v_add_u32 v{vVA}, {SLOT}, v{vVA}")
    e("L_Qstart:")
    e("s_barrier")
    stamp("P0")
    proj("q")
    c = f2u(math.log2(math.e) / math.sqrt(128.0))
    e(f"v_mov_b32 v{vT0}, {c:#x}"); e(f"v_mov_b32 v{vT1}, {c:#x}")
    pend = []
    for s in range(4):
        for qt in range(4):
            b = acc(2*s, qt); q = Q + (qt*4 + s)*4
            for i in range(4): e(f"v_pk_mul_f32 {vr(b+2*i, 2)}, {vr(b+2*i, 2)}, {vr(vT0, 2)}")
            for pq in pend[-1:]: e(f"v_permlane16_swap_b32 v{pq}, v{pq+2}"); e(f"v_permlane16_swap_b32 v{pq+1}, v{pq+3}")
            for i in range(4): e(f"v_cvt_pk_bf16_f32 v{q+i}, v{b+2*i}, v{b+2*i+1}")
            pend.append(q)
    for q in pend[-1:]: e(f"v_permlane16_swap_b32 v{q}, v{q+2}"); e(f"v_permlane16_swap_b32 v{q+1}, v{q+3}")
    stamp("Qdone")
    e(f"s_mov_b32 s{sI}, 0")
    e(f"s_cmp_eq_u32 s{sROLE}, 0"); e("s_cbranch_scc0 L_Aattn")

    def b_wsetup():
        w_setup("o"); e(f"s_mov_b32 s{sWOFF}, {(32 << 10) + 128}")
    for i in range(0, 128, 2): e(f"v_mov_b64 {vr(i, 2)}, 0")
    w_setup("o")
    x_voff()
    e(f"s_mov_b32 s{sN}, 1")
    e("s_barrier")
    e("L_Bloop:")
    e(f"s_cmp_eq_u32 s{sI}, s{sD}"); e("s_cbranch_scc1 L_Bpause1")
    e("L_Bgo:")
    if e0:
        e(f"s_cmp_eq_u32 s{sI}, 15"); e("s_cbranch_scc0 L_noE0"); e("s_barrier"); e("L_noE0:")
    waitn(sN, 2)
    if tl:
        e("s_memrealtime s[98:99]"); e("s_memtime s[96:97]"); e("s_waitcnt lgkmcnt(0)"); e(f"s_mov_b32 m0, s{sI}"); e("s_nop 0"); e(f"v_writelane_b32 v254, s98, m0")
        e(f"s_add_u32 m0, s{sI}, 16"); e("s_nop 0"); e(f"v_writelane_b32 v254, s96, m0")
    def next_item(sbase, cap=None):
        e(f"s_add_u32 s{sROTA}, s{sROTA}, 16384"); e(f"s_and_b32 s{sROTA}, s{sROTA}, 0x1ffff")
        emit(capped(item_issue(sbase), cap))
    def refill(lst, h):
        go, xl, done, skip = lab("rf"), lab("rf"), lab("rf"), lab("rf")
        e(f"s_cmp_eq_u32 s{sTMP2}, 16"); e(f"s_cbranch_scc1 {skip}")
        e(f"s_cmp_eq_u32 s{sHI}, 0"); e(f"s_cbranch_scc1 {go}")
        e(f"s_cmp_eq_u32 s{sTMP2}, s{sD}"); e(f"s_cbranch_scc1 {xl}")
        if mask: e(f"s_cmp_eq_u32 s{sTMP2}, s{sD4}"); e(f"s_cbranch_scc1 {skip}")
        e(f"{go}:")
        cm = (capK, capV)[h]
        if cm:
            lc = lab("cp")
            e(f"s_bitcmp1_b32 {cm:#x}, s{sTMP2}"); e(f"s_cbranch_scc1 {lc}")
            late.append((lc, capped(lst, capn), done))
        emit(lst)
        e(f"{done}:")
        e(f"s_add_u32 s{sN}, s{sN}, 1"); e(f"s_add_u32 s{sM}, s{sM}, 1")
        e(f"{skip}:")
        late.append((xl, x_own(h), done))
    late = []
    def window(half):
        l = lab("nw")
        e(f"s_mov_b32 s{sN}, 0")
        if not mask: return
        e(f"s_sub_u32 s{sTMP2}, s{sI}, s{sD}"); e(f"s_cmp_lt_u32 s{sTMP2}, 8"); e(f"s_cbranch_scc0 {l}")
        m = sum(((mask >> (2*k + half)) & 1) << k for k in range(8))
        if m == 0:
            e(f"{l}:"); return
        e(f"s_bitcmp1_b32 {m}, s{sTMP2}"); e(f"s_cbranch_scc0 {l}")
        waitn(sM, 2)
        e("s_barrier")
        e(f"s_add_u32 s{sJ}, s{sJ}, 1")
        if (mask.bit_length() - 1) % 2 == half:
            lw = lab("wo")
            e(f"s_cmp_eq_u32 s{sJ}, 7"); e(f"s_cbranch_scc1 {lw}")
            late.append((lw, w_issue(0, "o") + w_issue(1, "o") + w_issue(2, "o") + [f"s_mov_b32 s{sN}, 1"], l))
        e(f"s_bitcmp1_b32 s{sJ}, 0"); e(f"s_cselect_b32 s{sM}, s{sWRB}, s{sDK}")
        next_item(sM, capI)
        e(f"s_mov_b32 s{sN}, 1"); e(f"s_mov_b32 s{sM}, 0")
        e(f"{l}:")
    def b_after_qk():
        window(0)
        e(f"s_add_u32 s{sROT}, s{sROT}, 8192"); e(f"s_and_b32 s{sROT}, s{sROT}, 0x1ffff")
        e(f"s_add_u32 s{sTMP2}, s{sI}, 1")
        refill(capped(k_issue(), capN), 0)
    def b_after_pv():
        window(1)
        e(f"s_add_u32 s{sI}, s{sI}, 1"); e(f"s_mov_b32 s{sTMP2}, s{sI}")
        refill(capped(v_issue(), capN), 1)
        e(f"s_cmp_eq_u32 s{sI}, 16"); e("s_cbranch_scc0 L_Bloop")
        e("s_branch L_Oepi")
    tile(b_after_qk, lambda: waitn(sN, 2), b_after_pv)
    for xl, lst, done in late:
        e(f"{xl}:"); emit(lst); e(f"s_branch {done}")
    e("L_Bpause1:")
    e(f"s_and_b32 s{sDK}, s{sW}, 1"); e(f"s_mul_i32 s{sDK}, s{sDK}, {SLOT}"); e(f"s_add_u32 s{sDK}, s{sDK}, {XB}")
    e(f"s_add_u32 s{sTMP}, s{sIST}, 1024"); e(f"s_mul_i32 s{sTMP}, s{sTMP}, s{sHI}"); e(f"s_lshl_b32 s{sTMP}, s{sTMP}, 2"); e(f"s_add_u32 s{sDK}, s{sDK}, s{sTMP}")
    e("s_barrier")
    e(f"s_cmp_eq_u32 s{sW}, 0"); e("s_cbranch_scc0 L_nochk")
    poll(None, tmp=F)
    e("L_nochk:")
    e("s_barrier")
    e("s_waitcnt vmcnt(0)"); e("s_barrier")
    e("s_barrier"); e("s_barrier")
    def half_item(t):
        e(f"s_add_u32 m0, s{sDK}, {(t % 4)*CHUNK}")
        for j in range(4):
            if j: e(f"s_add_u32 m0, m0, s{sIST}")
            e(f"buffer_load_dwordx4 v{vIT}, {srd(sIT)}, s{sROTA} offen offset:{j*1024} {kv} lds")
        e(f"s_add_u32 s{sROTA}, s{sROTA}, 8192"); e(f"s_and_b32 s{sROTA}, s{sROTA}, 0x1ffff")
    half_item(0); half_item(1)
    issued = 2
    for t in range(16):
        e(f"s_waitcnt vmcnt({4*(issued - t - 1)})"); e("s_barrier")
        while issued < min(16, t + depth + 1):
            half_item(issued); issued += 1
    for n in range(3): emit(w_issue(n, "o"))
    e("L_Bpause2:")
    wo_srd(22)
    e("s_barrier"); e("s_waitcnt vmcnt(0)"); e("s_barrier"); e("s_barrier")
    e(f"s_mov_b32 s{sN}, 1")
    e(f"s_cmp_eq_u32 s{sHI}, 0"); e(f"s_cbranch_scc1 L_Bgo")
    emit(k_issue()); emit(v_issue())
    e("s_branch L_Bgo")

    FB = [F, F + 4, F + 8, 244, 248, 252]
    kb = [0, 1, 2, 3, 4, 5, 0, 1]
    vb = [FB[2], FB[3], FB[4], FB[5], FB[0], FB[1], S + 4, S + 12]
    def akr(f): return f"ds_read_b128 {vr(FB[kb[f]], 4)}, v{vKA} offset:{(f >> 2)*512 + (f & 3)*64}"
    def avr(dt): return [f"ds_read_b64_tr_b16 {vr(vb[dt] + 2*u, 2)}, v{vVA} offset:{u*512 + dt*32}" for u in range(2)]
    first = [False]
    def apv(dt, qt): return f"{MF} {vr(acc(dt, qt), 4)}, {vr(vb[dt], 4)}, {vr(S + qt*8, 4)}, {'0' if first[0] else vr(acc(dt, qt), 4)}"
    def weave(mf, fill):
        cost = [2 if (x.startswith("v_exp") or x.startswith("v_mfma")) else 1 for x in fill]
        tot = sum(cost); cum = 0; k = 0
        for i, m in enumerate(mf):
            e(m)
            while k < len(fill) and (cum + cost[k]) * len(mf) <= (i + 1) * tot + len(mf) // 2:
                e(fill[k]); cum += cost[k]; k += 1
        emit(fill[k:])
    def atile(odd):
        ex = exps(0, 0) + exps(1, 0) + exps(2, 0)
        for f in range(8):
            u, sx = f >> 2, f & 3
            if f == 0: e("s_waitcnt lgkmcnt(2)")
            if f in (2, 4): e("s_waitcnt lgkmcnt(4)")
            for qt in range(4):
                r = vr(Sr(qt, u), 4)
                e(f"{MF} {r}, {vr(FB[kb[f]], 4)}, {vr(Q + (qt*4 + sx)*4, 4)}, {r if sx else '0'}")
                if f == 0 and qt < 2: e(akr(4 + qt))
                if f == 2 and qt == 0: e(f"v_add_u32 v{vKA}, {f's{sDK}' if odd else CHUNK}, v{vKA}")
                if u == 1 and (f, qt) != (4, 0) and (qt < 3 or f == 7): e(ex.pop(0))
            if f < 2: e(akr(6 + f))
            else: emit(avr(f - 2))
        assert not ex
        emit(exps(0, 1)); emit(cvts(0, 0)); emit(cvts(0, 1)); emit(avr(6))
        e("s_waitcnt lgkmcnt(6)")
        b0 = [apv(dt, 0) for dt in range(6)]
        b0[3] += "\ns_waitcnt lgkmcnt(2)"
        weave(b0, exps(1, 1) + cvts(1, 0) + cvts(1, 1))
        emit(avr(7))
        s0, s1, s2, s3 = (sums(qt) for qt in range(4))
        b1 = [apv(dt, 1) for dt in (range(5, -1, -1) if snake else range(6))]
        b1[1] = s0[0] + "\n" + b1[1]; b1[3] = s0[1] + "\n" + b1[3]
        weave(b1, exps(2, 1) + cvts(2, 0) + cvts(2, 1))
        e(f"v_add_u32 v{vVA}, {f's{sDK}' if odd else CHUNK}, v{vVA}")
        b2 = [apv(dt, 2) for dt in range(6)] + ([apv(6, 0), apv(7, 0), apv(7, 1), apv(6, 1)] if snake else [apv(6, 0), apv(7, 0), apv(6, 1), apv(7, 1)])
        b2[0] = s1[0] + "\n" + b2[0]; b2[2] = s1[1] + "\n" + b2[2]; b2[4] = s2[0] + "\n" + b2[4]
        b2[6] = "s_waitcnt lgkmcnt(0)\n" + b2[6]
        weave(b2, exps(3, 0) + exps(3, 1) + cvts(3, 0) + cvts(3, 1))
        e(s2[1])
        if not odd: e(f"s_add_u32 s{sI}, s{sI}, 1")
        e("s_barrier")
        for k, dt in enumerate((4, 5, 0, 1)):
            e(apv(dt, 3)); e(akr(k))
        e(s3[0]); e(apv(2, 3))
        if odd: e(f"s_xor_b32 s{sDK}, s{sDK}, {dKx:#x}")
        e(apv(3, 3)); e(s3[1])
        e(apv(6, 3)); e(apv(7, 3))
        if odd: e(f"s_cmp_eq_u32 s{sI}, 8")
        e(apv(7, 2)); e(apv(6, 2))
    dKx = CHUNK ^ ((-3*CHUNK) & 0xffffffff)
    e("L_Aattn:")
    e(f"s_mov_b32 s{sDK}, {CHUNK}")
    e("s_barrier")
    stamp("L0")
    if stamps and "L0" in stamps: e("s_waitcnt lgkmcnt(0)")
    for f in range(4): e(akr(f))
    first[0] = True; atile(0); first[0] = False
    e("s_branch L_Aodd")
    e("L_Aloop:")
    atile(0)
    e("L_Aodd:")
    atile(1)
    e("s_cbranch_scc0 L_Aloop")
    e("s_waitcnt lgkmcnt(0)")
    e(f"v_mbcnt_lo_u32_b32 v{vLN}, -1, 0"); e(f"v_mbcnt_hi_u32_b32 v{vLN}, -1, v{vLN}")
    e(f"v_lshlrev_b32 v{vDV}, 4, v{vLN}")
    dk_setup(); wx_setup(); b_wsetup()

    e("L_Oepi:")
    if tl:
        e(f"s_cmp_eq_u32 s{sROLE}, 0"); e("s_cbranch_scc0 L_tl0"); e("v_mov_b32 v252, v254   ; v_writelane_b32 v247"); e("L_tl0:")
    stamp("attn_done")
    def lsum():
        for sw in ("32", "16"):
            for qt in range(4): e(f"v_mov_b32 v{F+qt}, v{L+qt}")
            for qt in range(4): e(f"v_permlane{sw}_swap_b32 v{L+qt}, v{F+qt}")
            for qt in range(4): e(f"v_add_f32 v{L+qt}, v{L+qt}, v{F+qt}")
    lsum()
    e(f"v_min3_f32 v{vT0}, v{L}, v{L+1}, v{L+2}"); e(f"v_min_f32 v{vT0}, v{vT0}, v{L+3}")
    e(f"v_add_f32 v{vT1}, v{L}, v{L+1}"); e(f"v_add_f32 v{vT1}, v{vT1}, v{L+2}"); e(f"v_add_f32 v{vT1}, v{vT1}, v{L+3}")
    e(f"v_cmp_nle_f32 vcc, {f2u(2.0**lo_exp):#x}, v{vT0}"); e("s_cbranch_vccnz L_slow")
    e(f"v_cmp_nge_f32 vcc, {f2u(2.0**hi_exp):#x}, v{vT1}"); e("s_cbranch_vccnz L_slow")
    if force_slow: e("s_branch L_slow")
    e("L_slow_back:")
    for qt in range(4): e(f"v_rcp_f32 v{L+qt}, v{L+qt}")
    e(f"s_mul_i32 s{sTMP}, s{sW}, {CHUNK}"); e(f"v_add_u32 v{vT0}, s{sTMP}, v{vXA}")
    def norm(s, qt):
        b = acc(2*s, qt)
        sel = "op_sel_hi:[1,0]" if qt % 2 == 0 else "op_sel:[0,1]"
        for i in range(4): e(f"v_pk_mul_f32 {vr(b+2*i, 2)}, {vr(b+2*i, 2)}, {vr(L + (qt & 2), 2)} {sel}")
        for i in range(4): e(f"v_cvt_pk_bf16_f32 v{b+i}, v{b+2*i}, v{b+2*i+1}")
    def owr(s, qt): e(f"ds_write_b128 v{vT0}, {vr(acc(2*s, qt), 4)} offset:{qt*HALF + s*64}")
    for s in range(4):
        for qt in range(4):
            norm(s, qt); owr(s, qt)
    e("L_Oproj:")
    e("s_waitcnt lgkmcnt(0)")
    e("s_barrier")
    stamp("Owritten")
    proj("o")
    stamp("Odone")
    e(f"s_xor_b32 s{sTMP}, s{sROLE}, 1"); e(f"s_lshl_b32 s{sTMP}, s{sTMP}, 8"); e(f"s_add_u32 s{sTMP}, s{sTMP}, s2")
    e(f"s_lshl_b32 s{sTMP}, s{sTMP}, 2"); e(f"s_add_u32 s{sTMP}, s{sTMP}, s{sW}"); e(f"s_lshl_b32 s{sTMP}, s{sTMP}, 14")
    e(f"s_add_u32 s{sP}, s28, s{sTMP}"); e(f"s_addc_u32 s{sP+1}, s29, 0"); e(f"s_mov_b32 s{sP+2}, 0x4000"); e(f"s_mov_b32 s{sP+3}, 0x20000")
    e(f"s_cmp_eq_u32 s{sROLE}, 0"); e("s_cbranch_scc1 L_store")
    e(f"s_setprio {prioT}")
    assert not late_pf
    wo_srd(22); e(f"s_mov_b32 s{sWOFF}, 0")
    for n in range(3): emit(w_issue(n, "o"))
    if not e0: e("s_waitcnt vmcnt(0)")
    e("s_barrier")
    e("L_store:")
    keep = []
    for sp in range(2):
        for qt in range(4):
            lk, lb = lab("kp"), lab("kp")
            e(f"s_cmp_eq_u32 s{sG}, {qt*2 + sp}"); e(f"s_cbranch_scc1 {lk}")
            e(f"s_mov_b32 s{sOFF}, {qt*4096}")
            for sx in (2*sp, 2*sp + 1):
                b = acc(2*sx, qt)
                for i in range(4): e(f"v_cvt_pk_bf16_f32 v{b+i}, v{b+2*i}, v{b+2*i+1}")
                e(f"buffer_store_dwordx4 {vr(b, 4)}, v{vDV}, {srd(sP)}, s{sOFF} offen offset:{sx*1024} {pstore}")
            e(f"{lb}:")
            keep.append((lk, lb, sp, qt))
    e(f"s_cmp_eq_u32 s{sROLE}, 0"); e("s_cbranch_scc0 L_Apub")
    e("s_barrier")
    lds_arrive(1, "L_Bwait")
    stamp("pub")
    def first(done):
        e(f"buffer_atomic_add v{vT1}, off, {srd(sPF)}, s{sOFF} sc0")
        e("s_waitcnt vmcnt(0)")
        e(f"v_readfirstlane_b32 s{sTMP}, v{vT1}")
        e(f"s_cmp_ge_u32 s{sTMP}, 7"); e(f"s_cbranch_scc1 {done}")
    poll(1, first)
    e(f"v_mov_b32 v{vT0}, {CNT + 8}"); e(f"v_mov_b32 v{vT1}, 1")
    e(f"ds_write_b32 v{vT0}, v{vT1}")
    e("s_branch L_final")
    e("L_Bwait:")
    e(f"v_mov_b32 v{vT0}, {CNT + 8}")
    e("L_Bspin:")
    e(f"ds_read_b32 v{vT1}, v{vT0}")
    e("s_waitcnt lgkmcnt(0)")
    e(f"v_readfirstlane_b32 s{sTMP}, v{vT1}")
    e(f"s_cmp_eq_u32 s{sTMP}, 0"); e("s_cbranch_scc0 L_final")
    e("s_sleep 1")
    e("s_branch L_Bspin")
    for lk, lb, sp, qt in keep:
        e(f"{lk}:")
        for f in range(2):
            for i in range(0, 8, 2): e(f"v_mov_b64 {vr(RK + 8*f + i, 2)}, {vr(acc(2*(2*sp + f), qt) + i, 2)}")
        e(f"s_branch {lb}")
    e("L_Apub:")
    if e0:
        e("s_waitcnt vmcnt(14)"); e("s_barrier")
    lds_arrive(0, "L_nosig")
    flag_srd(0)
    e(f"buffer_atomic_add v{vT1}, off, {srd(sPF)}, s{sOFF}")
    e("L_nosig:")
    e("s_mov_b64 exec, -1")
    stamp("pubA")
    e("s_barrier")
    e(f"s_cmp_eq_u32 s{sW}, 0"); e("s_cbranch_scc0 L_nopoll")
    poll(0)
    e("L_nopoll:")
    e("s_barrier")
    e("L_final:")
    e("s_mov_b64 exec, -1")
    stamp("flag")
    reduce()
    if calib:
        if calib_wg is not None: e(f"s_cmp_eq_u32 s2, {calib_wg}"); e("s_cbranch_scc0 L_end")
        e("L_cal:"); e("s_sleep 4"); e("s_memrealtime s[90:91]"); e("s_waitcnt lgkmcnt(0)"); e("s_sub_u32 s90, s90, s92"); e(f"s_cmp_lt_u32 s90, {calib*100}"); e("s_cbranch_scc1 L_cal")
    if stamps:
        e("s_waitcnt vmcnt(0)")
        stamp("end")
        e("s_memtime s[4:5]")
        e("s_waitcnt lgkmcnt(0)")
        e("s_sub_u32 s4, s4, s100")
        e(f"s_lshl_b32 s{sTMP}, s2, 1"); e(f"s_add_u32 s{sTMP}, s{sTMP}, s{sROLE}"); e(f"s_lshl_b32 s{sTMP}, s{sTMP}, 2"); e(f"s_add_u32 s{sTMP}, s{sTMP}, s{sW}")
        e(f"s_lshl_b32 s{sTMP}, s{sTMP}, 7")
        e(f"s_add_u32 s{sPF}, s28, 0x4000000"); e(f"s_addc_u32 s{sPF+1}, s29, 0"); e(f"s_mov_b32 s{sPF+2}, 0x100000"); e(f"s_mov_b32 s{sPF+3}, 0x20000")
        for i in range(16): e(f"v_mov_b32 v{i}, s{sST+i}")
        e(f"v_mov_b32 v16, s4"); e("v_mov_b32 v17, 0"); e("v_mov_b32 v18, 0"); e("v_mov_b32 v19, 0")
        e(f"v_mov_b32 v20, s{sTMP}")
        if tl:
            e(f"v_lshl_add_u32 v21, v{vLN}, 2, v20"); e("s_mov_b32 exec_hi, 0"); e(f"s_mov_b32 s{sOFF}, 0x80000")
            e(f"buffer_store_dword v252, v21, {srd(sPF)}, s{sOFF} offen")
        e("s_mov_b64 exec, 1")
        for i in range(5): e(f"buffer_store_dwordx4 {vr(4*i, 4)}, v20, {srd(sPF)}, 0 offen offset:{16*i}")
    e("L_end:")
    e("s_endpgm")

    e("L_slow:")
    e("s_waitcnt vmcnt(0)")
    e(f"s_cmp_eq_u32 s{sROLE}, 0"); e("s_cbranch_scc1 L_slowB")
    e(f"s_mul_i32 s{sTMP}, s{sW}, {CHUNK}"); e(f"s_add_u32 s{sKB}, s{sTMP}, {XB}")
    e(f"v_add_u32 v{vKA}, s{sTMP}, v{vKA}"); e(f"v_add_u32 v{vVA}, s{sTMP}, v{vVA}")
    e("L_slowB:")
    e(f"v_add_u32 v{vVA}, {(-SLOT) & 0xffffffff:#x}, v{vVA}")
    for i in range(0, 128, 2): e(f"v_mov_b64 {vr(i, 2)}, 0")
    for i in range(4): e(f"v_mov_b32 v{L+i}, 0"); e(f"v_mov_b32 v{M+i}, {f2u(-3.0e38):#x}")
    e(f"s_mov_b32 s{sROT}, 0")
    e("L_slowloop:")
    emit(k_issue())
    e("s_waitcnt vmcnt(0)")
    qk(None)
    emit(kv_issue(sV, vDV, sKB, 0, VBLK))
    for qt in range(4):
        b = S + qt*8; t = F + 2*qt
        e(f"v_max3_f32 v{t}, v{b}, v{b+1}, v{b+2}"); e(f"v_max3_f32 v{t}, v{t}, v{b+3}, v{b+4}")
        e(f"v_max3_f32 v{t}, v{t}, v{b+5}, v{b+6}"); e(f"v_max3_f32 v{t}, v{t}, v{b+7}, v{M+qt}")
        xlane("v_max_f32", t, vT0)
        e(f"v_sub_f32 v{t+1}, v{M+qt}, v{t}"); e(f"v_mov_b32 v{M+qt}, v{t}")
        e(f"v_exp_f32 v{t+1}, v{t+1}")
        for i in range(8): e(f"v_sub_f32 v{b+i}, v{b+i}, v{M+qt}")
        e(f"v_mul_f32 v{L+qt}, v{L+qt}, v{t+1}")
        for dt in range(8):
            for i in range(0, 4, 2): e(f"v_pk_mul_f32 {vr(acc(dt, qt)+i, 2)}, {vr(acc(dt, qt)+i, 2)}, {vr(t, 2)} op_sel:[0,1]")
        emit(exps(qt, 0)); emit(cvts(qt, 0))
    e("s_waitcnt vmcnt(0)")
    for dt in range(3): emit(vrd(dt))
    pv_phase([exps(qt, 1) + cvts(qt, 1) for qt in range(4)])
    e(f"s_add_u32 s{sROT}, s{sROT}, 8192"); e(f"s_cmp_lt_u32 s{sROT}, 0x20000"); e("s_cbranch_scc1 L_slowloop")
    for qt in range(4): xlane("v_add_f32", L + qt, vT0)
    b_wsetup()
    e("s_branch L_slow_back")
    e("L_last:")

    e('.section .rodata,"a"')
    e(".p2align 6"); e(f".amdhsa_kernel {NAME}_kernel")
    for l in [".amdhsa_next_free_vgpr 256", ".amdhsa_next_free_sgpr 102", ".amdhsa_accum_offset 256", ".amdhsa_group_segment_fixed_size 0",
              ".amdhsa_kernarg_size 104", ".amdhsa_user_sgpr_count 2", ".amdhsa_user_sgpr_kernarg_segment_ptr 1", ".amdhsa_system_sgpr_workgroup_id_x 1",
              ".amdhsa_float_denorm_mode_32 3"]:
        e("  " + l)
    e(".end_amdhsa_kernel")
    n = a.pad()
    return a.text(), n

if __name__ == "__main__":
    kw = eval("dict(" + (sys.argv[2] if len(sys.argv) > 2 else "") + ")")
    txt, n = gen(**kw)
    out = sys.argv[1] if len(sys.argv) > 1 else f"cdna_kernels/{NAME}.s"
    open(out, "w").write(txt)
    print("pad states:", n, "lines:", txt.count("\n"), "LDS", LDS)
```

```python
import sys, math, struct
from asmlib import Asm

NAME = "concat_heads__gqa_block_cached__mha_block_cached__near_ridge"
KBLK = 1088; VBLK = 1056; HALF = 4352; SLOT = 8704; CHUNK = 2*SLOT
XB = 2*CHUNK
WR0 = XB + 4*CHUNK
WRING = 3*HALF
CNT = WR0 + 4*WRING
LDS = CNT + 64
assert LDS <= 163840
WBIAS = 128

sK, sV, sWQ, sWO, sX, sP, sIT, sPF = 32, 36, 40, 44, 48, 52, 56, 60
(sROLE, sW, sG, sB, sD, sI, sROT, sOFF, sWRB, sKB, sTMP, sTMP2, sD4, sWOFF, sN, sM, sROTA, sIST, sPH, sDK) = range(64, 84)
sDV = 30; sHI = 31; sJ = 3
sST = 84
def srd(n): return f"s[{n}:{n+3}]"
ACC = 0; Q = 128; S = 192; F = 224; L = 236; ONES = 240
vKA, vVA, vDK, vDV = 242, 243, 244, 245
vWO = 246
vWA, vXA, vIT, vLN, vT0, vT1 = 250, 251, 252, 253, 254, 255
M = 246
AF = 128; BF = 160
def vr(b, n): return f"v[{b}:{b+n-1}]"
def acc(dt, qt): return ACC + ((dt >> 1)*4 + qt)*8 + (dt & 1)*4
def f2u(x): return struct.unpack("<I", struct.pack("<f", x))[0]
MF = "v_mfma_f32_16x16x32_bf16"

def gen(kv="nt", wq_pf="", w_pf="", wflag="", xflag="", stamps=False, groups=(0,0,0,0,0,2,4,7,10,13,14,15,15,15,15,15), mask=0, early01=False, e0=True, prioT=0, hpf=1, xaflag='nt', late_pf=False, prioA=1, prioB=0, T=10.0,
        rot_mul=1, cyc=False, lo_exp=-30, hi_exp=30, force_slow=False, codepf=True, slp=6, pstore="sc1", tl=False, calib=0, calib_wg=None, ostore='sc1', capN=8, capI=None, capK=0, capV=0, capn=6, snake=True, depth=2, ared='bars', slpA=24, abar=30, defer01=True, coopAA=True):
    a = Asm(); e = a
    if stamps is True: stamps = ["start", "P0", "Qdone", "attn_done", "Owritten", "Odone", "pub", "end"]
    def stamp(nm):
        if stamps and nm in stamps:
            i = stamps.index(nm); e(f"{'s_memtime' if cyc else 's_memrealtime'} s[{sST+2*i}:{sST+2*i+1}]")
    def emit(lst):
        for x in lst: e(x)
    uid = [0]
    def lab(p):
        uid[0] += 1; return f"L_{p}{uid[0]}"

    def w_setup(kind):
        sh = 13 if kind == "q" else 10
        if kind == "q":
            e(f"v_bfe_u32 v{vT0}, v{vLN}, 3, 2"); e(f"v_lshlrev_b32 v{vWO}, {sh+3}, v{vT0}")
            e(f"v_lshrrev_b32 v{vT0}, 5, v{vLN}"); e(f"v_lshl_add_u32 v{vWO}, v{vT0}, {sh+2}, v{vWO}")
        else:
            e(f"v_lshrrev_b32 v{vT0}, 3, v{vLN}"); e(f"v_lshlrev_b32 v{vWO}, {sh+2}, v{vT0}")
        e(f"v_and_b32 v{vT0}, 7, v{vLN}"); e(f"v_lshl_add_u32 v{vWO}, v{vT0}, 4, v{vWO}")
        for r in (3, 2, 1, 0):
            e(f"v_add_u32 v{vWO+r}, {r*((1 << sh) - VBLK) + WBIAS}, v{vWO}")
        e(f"s_mov_b32 s{sWOFF}, 0")
    def wslot(n): return (n + 1) % 3
    def w_issue(n, kind):
        sr, sh = (sWQ, 13) if kind == "q" else (sWO, 10)
        out = [f"s_add_u32 m0, s{sWRB}, {wslot(n)*HALF}"]
        for r in range(4):
            out.append(f"buffer_load_dwordx4 v{vWO+r}, {srd(sr)}, s{sWOFF} offen offset:{r*VBLK} {wflag} lds")
        out.append(f"s_add_u32 s{sWOFF}, s{sWOFF}, {128 if n % 2 == 0 else (32 << sh) - 128}")
        return out
    def kv_issue(sr, voff, sbase, imm, blk, rot=sROT):
        out = [f"s_mov_b32 s{sOFF}, s{rot}"]
        for j in range(8):
            if j == 4: out.append(f"s_add_u32 s{sOFF}, s{sOFF}, 4096")
            out.append(f"s_add_u32 m0, s{sbase}, {imm + j*blk - (j % 4)*1024}")
            out.append(f"buffer_load_dwordx4 v{voff}, {srd(sr)}, s{sOFF} offen offset:{(j % 4)*1024} {kv} lds")
        return out
    def capped(lst, n):
        if not n: return lst
        out = []
        for x in lst:
            if x.startswith("buffer_load"): out.append(f"s_waitcnt vmcnt({n-1})")
            out.append(x)
        return out
    def k_issue(): return kv_issue(sK, vDK, sKB, 0, KBLK)
    def v_issue(): return kv_issue(sV, vDV, sKB, SLOT, VBLK)
    def item_issue(sbase, blocks=range(8)):
        out = []
        for j in blocks:
            if j == 0: out += [f"s_mov_b32 s{sOFF}, s{sROTA}", f"s_mov_b32 m0, s{sbase}"]
            elif j == 4:
                out += [f"s_add_u32 s{sOFF}, s{sROTA}, 4096", f"s_lshl_b32 s{sTMP}, s{sIST}, 2", f"s_add_u32 s{sTMP}, s{sTMP}, s{sbase}", f"s_add_u32 m0, s{sTMP}, 4096"]
            else: out.append(f"s_add_u32 m0, m0, s{sIST}")
            out.append(f"buffer_load_dwordx4 v{vIT}, {srd(sIT)}, s{sOFF} offen offset:{(j % 4)*1024} {kv} lds")
        return out
    def x_issue(c, xflag=xflag):
        e(f"s_lshl_b32 s{sOFF}, s{sW}, 14"); e(f"s_add_u32 s{sOFF}, s{sOFF}, {c*256}")
        e(f"s_mul_i32 s{sTMP}, s{sW}, {HALF}")
        for j in range(4):
            e(f"s_add_u32 m0, s{sTMP}, {XB + c*CHUNK + j*64}")
            e(f"buffer_load_dwordx4 v{vT1}, {srd(sX)}, s{sOFF} offen offset:{j*1024} {xflag} lds")
    def x_own(h):
        out = [f"s_lshl_b32 s{sOFF}, s{sW}, 8", f"s_add_u32 s{sOFF}, s{sOFF}, {h*32768}"]
        for j in range(8):
            if j == 4: out.append(f"s_add_u32 s{sOFF}, s{sOFF}, 16384")
            out.append(f"s_add_u32 m0, s{sKB}, {h*SLOT + (j >> 2)*HALF + (j & 3)*64}")
            out.append(f"buffer_load_dwordx4 v{vT1}, {srd(sX)}, s{sOFF} offen offset:{(j & 3)*1024} {xaflag} lds")
        return out
    def xa_touch():
        e(f"s_mov_b32 s{sPF}, s4"); e(f"s_mov_b32 s{sPF+1}, s5"); e(f"s_mov_b32 s{sPF+2}, 0x200000"); e(f"s_mov_b32 s{sPF+3}, 0x20000")
        e(f"s_lshl_b32 s{sTMP}, s2, 2"); e(f"s_add_u32 s{sTMP}, s{sTMP}, s{sW}"); e(f"s_lshl_b32 s{sTMP}, s{sTMP}, 11")
        for r in range(2): e(f"buffer_load_dwordx4 {vr(S + 16 + 4*r, 4)}, v{vDV}, {srd(sPF)}, s{sTMP} offen offset:{r*1024}")
    def x_voff():
        e(f"v_lshrrev_b32 v{vT0}, 4, v{vLN}"); e(f"v_sub_u32 v{vT1}, 0, v{vT0}"); e(f"v_and_b32 v{vT1}, 3, v{vT1}")
        e(f"v_xor_b32 v{vT1}, v{vT1}, v{vLN}"); e(f"v_and_b32 v{vT1}, 15, v{vT1}"); e(f"v_lshlrev_b32 v{vT1}, 4, v{vT1}")
        e(f"v_lshl_add_u32 v{vT1}, v{vT0}, 12, v{vT1}")
    def x_srd(lo):
        e(f"s_lshl_b32 s{sTMP}, s{sB}, 16")
        e(f"s_add_u32 s{sX}, s{lo}, s{sTMP}"); e(f"s_addc_u32 s{sX+1}, s{lo+1}, 0"); e(f"s_mov_b32 s{sX+2}, 0x10000"); e(f"s_mov_b32 s{sX+3}, 0x20000")
    def wo_srd(lo):
        e(f"s_lshl_b32 s{sTMP}, s{sG}, 19"); e(f"s_lshl_b32 s{sTMP2}, s{sW}, 8"); e(f"s_add_u32 s{sTMP}, s{sTMP}, s{sTMP2}")
        e(f"s_add_u32 s{sWO}, s{lo}, s{sTMP}"); e(f"s_addc_u32 s{sWO+1}, s{lo+1}, 0")
        e(f"s_sub_u32 s{sWO}, s{sWO}, {WBIAS}"); e(f"s_subb_u32 s{sWO+1}, s{sWO+1}, 0")
        e(f"s_sub_u32 s{sWO+2}, {0x400000 + WBIAS}, s{sTMP}"); e(f"s_mov_b32 s{sWO+3}, 0x20000")
    def coop_prefetch(lo, sh, goff_sh, flag):
        if flag == "2x":
            coop_prefetch(lo, sh, goff_sh, "nt"); e("s_waitcnt vmcnt(0)"); coop_prefetch(lo, sh, goff_sh, ""); return
        e(f"s_lshl_b32 s{sTMP}, s{sG}, {goff_sh}")
        e(f"s_add_u32 s{sPF}, s{lo}, s{sTMP}"); e(f"s_addc_u32 s{sPF+1}, s{lo+1}, 0")
        e(f"s_sub_u32 s{sPF+2}, 0x400000, s{sTMP}"); e(f"s_mov_b32 s{sPF+3}, 0x20000")
        e(f"s_lshl_b32 s{sTMP}, s{sB}, 2"); e(f"s_add_u32 s{sTMP}, s{sTMP}, s{sW}"); e(f"s_lshl_b32 s{sTMP}, s{sTMP}, {sh+2}")
        for r in range(4):
            e(f"buffer_load_dwordx4 {vr(S + 4*r, 4)}, v{vDV}, {srd(sPF)}, s{sTMP} offen {flag}")
            if r < 3: e(f"s_add_u32 s{sTMP}, s{sTMP}, {1 << sh}")

    def proj(kind):
        def ra(n):
            p = n % 2
            return [f"ds_read_b64_tr_b16 {vr(AF + p*16 + d*4 + ee*2, 2)}, v{vWA} offset:{wslot(n)*HALF + ee*512 + d*32}" for d in range(4) for ee in range(2)]
        def rb(ks, qts):
            return [f"ds_read_b128 {vr(BF + (ks % 2)*16 + qt*4, 4)}, v{vXA} offset:{(ks >> 2)*CHUNK + qt*HALF + (ks & 3)*64}" for qt in qts]
        e("s_waitcnt vmcnt(8)")
        emit(rb(0, range(4))); emit(ra(0))
        e("s_waitcnt lgkmcnt(0)")
        for n in range(32):
            stamp(f"{kind}{n}")
            ks, ch, p = n >> 1, n & 1, n % 2
            rd = ra(n + 1) if n < 31 else []
            if ks < 15: rd = rd + rb(ks + 1, (2*ch, 2*ch + 1))
            dm = w_issue(n + 3, kind) if n + 3 < 32 else []
            if n < 31:
                e("s_waitcnt vmcnt(4)" if (n <= 29) else "s_waitcnt vmcnt(0)")
            if kind == "q" and n in (6, 14, 22): e("s_barrier")
            if n == 30:
                if kind == "q": e("s_barrier")
                elif abar == 30: e("s_barrier")
                else:
                    l1 = lab("nb"); e(f"s_cmp_eq_u32 s{sROLE}, 0"); e(f"s_cbranch_scc1 {l1}"); e("s_barrier"); e(f"{l1}:")
            if kind == "o" and n == abar and abar != 30:
                l1 = lab("nb"); e(f"s_cmp_eq_u32 s{sROLE}, 0"); e(f"s_cbranch_scc0 {l1}"); e("s_barrier"); e(f"{l1}:")
            gaps = [[] for _ in range(16)]
            for i, x in enumerate(rd): gaps[i].append(x)
            if dm:
                gaps[3].append(dm[0])
                for i in range(4): gaps[4 + 2*i].append(dm[1 + i])
                gaps[11].append(dm[5])
            k = 0
            for d in range(4):
                for qt in (range(3, -1, -1) if (snake and d % 2) else range(4)):
                    r = vr(acc(4*ch + d, qt), 4)
                    e(f"{MF} {r}, {vr(AF + p*16 + d*4, 4)}, {vr(BF + (ks % 2)*16 + qt*4, 4)}, {r if ks else '0'}")
                    emit(gaps[k]); k += 1
            if n < 31: e("s_waitcnt lgkmcnt(0)")

    def Sr(qt, u): return S + qt*8 + u*4
    def exps(qt, u): return [f"v_exp_f32 v{Sr(qt, u)+i}, v{Sr(qt, u)+i}" for i in range(4)]
    def cvts(qt, u): return [f"v_cvt_pk_bf16_f32 v{S+qt*8+2*u+i}, v{Sr(qt, u)+2*i}, v{Sr(qt, u)+2*i+1}" for i in range(2)]
    def kr(f): return f"ds_read_b128 {vr(F + (f % 3)*4, 4)}, v{vKA} offset:{(f >> 2)*512 + (f & 3)*64}"
    vbuf = [F, F + 4, F + 8, S + 4, S + 12, S + 20, S + 28, F]
    def vrd(dt): return [f"ds_read_b64_tr_b16 {vr(vbuf[dt] + 2*u, 2)}, v{vVA} offset:{u*512 + dt*32}" for u in range(2)]
    def sums(qt): return [f"v_mfma_f32_4x4x4_16b_bf16 {vr(L, 4)}, {vr(ONES, 2)}, {vr(S + qt*8 + 2*h, 2)}, {vr(L, 4)} cbsz:2 abid:{qt}" for h in range(2)]
    def pv(dt, qt): return f"{MF} {vr(acc(dt, qt), 4)}, {vr(vbuf[dt], 4)}, {vr(S + qt*8, 4)}, {vr(acc(dt, qt), 4)}"
    def qk(fill):
        for f in range(3): e(kr(f))
        m = 0
        for f in range(8):
            u, s = f >> 2, f & 3
            e(f"s_waitcnt lgkmcnt({min(2, 7 - f)})")
            for qt in range(4):
                r = vr(Sr(qt, u), 4)
                e(f"{MF} {r}, {vr(F + (f % 3)*4, 4)}, {vr(Q + (qt*4 + s)*4, 4)}, {r if s else '0'}")
                if u == 1:
                    if m >= 3 and fill: e(fill.pop(0))
                    m += 1
            if f + 3 < 8: e(kr(f + 3))
    def pv_phase(pre):
        emit(pre[0]); emit(vrd(3))
        for qt in range(4):
            nxt = (pre[qt + 1] + vrd(4 + qt)) if qt < 3 else []
            per = math.ceil(len(nxt) / 4)
            sm = sums(qt)
            for dt in range(3):
                if qt == 0: e(f"s_waitcnt lgkmcnt({6 - 2*dt})")
                e(pv(dt, qt)); emit(nxt[dt*per:(dt+1)*per])
                if dt == 0: e(sm[0])
            e(sm[1]); emit(nxt[3*per:])
        emit(vrd(7))
        for dt in range(3, 8):
            e(f"s_waitcnt lgkmcnt({2*(7 - dt)})")
            for qt in (range(3, -1, -1) if (snake and dt % 2) else range(4)): e(pv(dt, qt))
    def tile(after_qk, before_v, after_pv):
        fill = []
        for qt in range(4): fill += exps(qt, 0)
        for qt in range(4): fill += cvts(qt, 0)
        qk(fill)
        emit(fill)
        after_qk()
        before_v()
        for dt in range(3): emit(vrd(dt))
        pv_phase([exps(qt, 1) + cvts(qt, 1) for qt in range(4)])
        after_pv()
    def xlane(op, reg, tmp):
        for sw in ("32", "16"):
            e(f"v_mov_b32 v{tmp}, v{reg}"); e(f"v_permlane{sw}_swap_b32 v{reg}, v{tmp}"); e(f"{op} v{reg}, v{reg}, v{tmp}")
    def waitn(sreg, mx):
        end = lab("wn")
        for n in range(mx, 0, -1):
            e(f"s_waitcnt vmcnt({8*n})"); e(f"s_cmp_ge_u32 s{sreg}, {n}"); e(f"s_cbranch_scc1 {end}")
        e("s_waitcnt vmcnt(0)"); e(f"{end}:")
    def flag_srd(branch):
        e(f"s_add_u32 s{sPF}, s28, 0x2000000"); e(f"s_addc_u32 s{sPF+1}, s29, 0"); e(f"s_mov_b32 s{sPF+2}, 0x8000"); e(f"s_mov_b32 s{sPF+3}, 0x20000")
        e(f"s_mul_i32 s{sOFF}, s{sB}, 768"); e(f"s_add_u32 s{sOFF}, s{sOFF}, {branch*256}")
    def dbg_srd():
        e(f"s_mov_b32 s{sPF}, s26"); e(f"s_mov_b32 s{sPF+1}, s27"); e(f"s_mov_b32 s{sPF+2}, 256"); e(f"s_mov_b32 s{sPF+3}, 0x20000")
        e(f"s_lshl_b32 s{sOFF}, s{sB}, 3")
    def poll(branch_off, first=None, tmp=vT0, slp=slp):
        l0, l1 = lab("pl"), lab("pl")
        if branch_off is None: dbg_srd()
        else: flag_srd(branch_off)
        e("s_mov_b64 exec, 1")
        if first: first(l1)
        e(f"s_mov_b32 s{sTMP2}, 0x40000")
        e(f"{l0}:")
        e(f"buffer_load_dword v{tmp}, off, {srd(sPF)}, s{sOFF} sc1")
        e("s_waitcnt vmcnt(0)")
        e(f"v_readfirstlane_b32 s{sTMP}, v{tmp}")
        e(f"s_cmp_eq_u32 s{sTMP}, 8"); e(f"s_cbranch_scc1 {l1}")
        e(f"s_sleep {slp}")
        e(f"s_sub_u32 s{sTMP2}, s{sTMP2}, 1"); e(f"s_cmp_lg_u32 s{sTMP2}, 0"); e(f"s_cbranch_scc1 {l0}")
        e(f"{l1}:")
        e("s_mov_b64 exec, -1")
    RK = 192; RL = 128
    def reduce():
        e(f"s_xor_b32 s{sTMP2}, s{sROLE}, 1")
        e(f"s_lshl_b32 s{sTMP}, s{sTMP2}, 5"); e(f"s_add_u32 s{sTMP}, s{sTMP}, s{sB}"); e(f"s_lshl_b32 s{sTMP}, s{sTMP}, 19")
        e(f"s_add_u32 s{sP}, s28, s{sTMP}"); e(f"s_addc_u32 s{sP+1}, s29, 0"); e(f"s_mov_b32 s{sP+2}, 0x80000"); e(f"s_mov_b32 s{sP+3}, 0x20000")
        e(f"s_mul_i32 s{sOFF}, s{sG}, {65536 + 2048}"); e(f"s_lshl_b32 s{sTMP}, s{sW}, 14"); e(f"s_add_u32 s{sOFF}, s{sOFF}, s{sTMP}")
        for k in range(7):
            e(f"s_add_u32 s{sOFF}, s{sOFF}, 0x10000"); e(f"s_and_b32 s{sOFF}, s{sOFF}, 0x7ffff")
            for f in range(2):
                e(f"buffer_load_dwordx4 {vr(RL + 8*k + 4*f, 4)}, v{vDV}, {srd(sP)}, s{sOFF} offen offset:{f*1024} sc1")
        e(f"s_mov_b32 s{sPF}, s24"); e(f"s_mov_b32 s{sPF+1}, s25"); e(f"s_mov_b32 s{sPF+2}, 0x400000"); e(f"s_mov_b32 s{sPF+3}, 0x20000")
        e(f"s_lshl_b32 s{sOFF}, s{sB}, 17"); e(f"s_lshl_b32 s{sTMP2}, s{sTMP2}, 10"); e(f"s_add_u32 s{sOFF}, s{sOFF}, s{sTMP2}")
        e(f"s_lshr_b32 s{sTMP}, s{sG}, 1"); e(f"s_lshl_b32 s{sTMP}, s{sTMP}, 15"); e(f"s_add_u32 s{sOFF}, s{sOFF}, s{sTMP}")
        e(f"s_lshl_b32 s{sTMP}, s{sW}, 8"); e(f"s_add_u32 s{sOFF}, s{sOFF}, s{sTMP}")
        e(f"s_and_b32 s{sTMP}, s{sG}, 1"); e(f"s_lshl_b32 s{sTMP}, s{sTMP}, 7"); e(f"s_add_u32 s{sOFF}, s{sOFF}, s{sTMP}")
        e(f"v_and_b32 v{vT0}, 15, v{vLN}"); e(f"v_lshlrev_b32 v{vT1}, 11, v{vT0}")
        e(f"v_bfe_u32 v{vT0}, v{vLN}, 4, 1"); e(f"v_lshl_add_u32 v{vT1}, v{vT0}, 5, v{vT1}")
        e(f"v_lshrrev_b32 v{vT0}, 5, v{vLN}"); e(f"v_lshl_add_u32 v{vT1}, v{vT0}, 4, v{vT1}")
        for k in range(7):
            for f in range(2):
                e(f"s_waitcnt vmcnt({(6 - k)*2 + 1 - f})")
                src, dst, tmp = RL + 8*k + 4*f, RK + 8*f, RK + 16 + 8*f
                for i in range(4):
                    e(f"v_lshlrev_b32 v{tmp+2*i}, 16, v{src+i}"); e(f"v_and_b32 v{tmp+2*i+1}, 0xffff0000, v{src+i}")
                for i in range(8): e(f"v_add_f32 v{dst+i}, v{dst+i}, v{tmp+i}")
        stamp("summed")
        for f in range(2):
            dst = RK + 8*f
            for i in range(4): e(f"v_cvt_pk_bf16_f32 v{dst+i}, v{dst+2*i}, v{dst+2*i+1}")
        for f in range(2):
            dst = RK + 8*f
            e(f"v_permlane16_swap_b32 v{dst}, v{dst+2}"); e(f"v_permlane16_swap_b32 v{dst+1}, v{dst+3}")
            e(f"buffer_store_dwordx4 {vr(dst, 4)}, v{vT1}, {srd(sPF)}, s{sOFF} offen offset:{f*64} {ostore}")
    def lds_arrive(word, last):
        e("s_waitcnt vmcnt(0)")
        e(f"v_mov_b32 v{vT0}, {CNT + 4*word}"); e(f"v_mov_b32 v{vT1}, 1")
        e("s_mov_b64 exec, 1")
        e(f"ds_add_rtn_u32 v{vT0}, v{vT0}, v{vT1}")
        e("s_waitcnt lgkmcnt(0)")
        e(f"v_readfirstlane_b32 s{sTMP}, v{vT0}")
        e(f"s_cmp_eq_u32 s{sTMP}, 3"); e(f"s_cbranch_scc0 {last}")

    if stamps: e(f"; stamps: {stamps}")
    e(f"; @launch grid=(256,1,1) block=(512,1,1) lds={LDS}")
    e('.amdgcn_target "amdgcn-amd-amdhsa--gfx950"')
    e(".text"); e(f".globl {NAME}_kernel"); e(".p2align 8"); e(f".type {NAME}_kernel,@function")
    e(f"{NAME}_kernel:")
    e("s_cmp_ge_u32 s2, 256"); e("s_cbranch_scc1 L_end")
    e("s_load_dwordx16 s[4:19], s[0:1], 0"); e("s_load_dwordx8 s[20:27], s[0:1], 64"); e("s_load_dwordx2 s[28:29], s[0:1], 96")
    if stamps:
        for i in range(16): e(f"s_mov_b32 s{sST+i}, 0")
        e("s_memtime s[100:101]")
    stamp("start")
    if calib: e("s_memrealtime s[92:93]")
    e(f"v_lshrrev_b32 v1, 6, v0"); e(f"v_and_b32 v{vLN}, 63, v0"); e(f"v_readfirstlane_b32 s{sTMP}, v1")
    e(f"s_and_b32 s{sG}, s2, 7"); e(f"s_lshr_b32 s{sB}, s2, 3")
    e(f"s_and_b32 s{sW}, s{sTMP}, 3"); e(f"s_lshr_b32 s{sROLE}, s{sTMP}, 2"); e(f"s_lshr_b32 s{sHI}, s{sW}, 1")
    e(f"s_mul_i32 s{sWRB}, s{sW}, {WRING}"); e(f"s_add_u32 s{sWRB}, s{sWRB}, {WR0}")
    e(f"v_lshlrev_b32 v{vDV}, 4, v{vLN}")
    w_setup("q")
    x_voff()
    e("s_waitcnt lgkmcnt(0)")
    e(f"s_cmp_eq_u32 s{sROLE}, 0")
    e(f"s_cselect_b32 s{sWQ}, s20, s10"); e(f"s_cselect_b32 s{sWQ+1}, s21, s11")
    e(f"s_lshl_b32 s{sTMP}, s{sG}, 2"); e(f"s_add_u32 s{sTMP}, s{sTMP}, s{sW}"); e(f"s_lshl_b32 s{sTMP}, s{sTMP}, 8")
    e(f"s_add_u32 s{sWQ}, s{sWQ}, s{sTMP}"); e(f"s_addc_u32 s{sWQ+1}, s{sWQ+1}, 0")
    e(f"s_sub_u32 s{sWQ}, s{sWQ}, {WBIAS}"); e(f"s_subb_u32 s{sWQ+1}, s{sWQ+1}, 0")
    e(f"s_sub_u32 s{sWQ+2}, {0x400000 + WBIAS}, s{sTMP}"); e(f"s_mov_b32 s{sWQ+3}, 0x20000")
    e(f"s_cmp_eq_u32 s{sROLE}, 0"); e("s_cbranch_scc1 L_first_B")
    if prioA: e(f"s_setprio {prioA}")
    if codepf:
        e("s_getpc_b64 s[94:95]"); e("L_pc:")
        e(f"s_lshl_b32 s{sTMP}, s{sB}, 2"); e(f"s_add_u32 s{sTMP}, s{sTMP}, s{sW}"); e(f"s_lshl_b32 s{sTMP}, s{sTMP}, 7")
        e(f"v_lshl_add_u32 v2, v{vLN}, 14, s{sTMP}")
        e(f"v_min_u32 v2, L_last-L_pc-4, v2")
        e(f"v_mov_b32 v3, s95"); e("v_add_co_u32 v2, vcc, s94, v2"); e("v_addc_co_u32 v3, vcc, 0, v3, vcc")
        e("s_mov_b64 exec, 15")
        e("global_load_dword v4, v[2:3], off")
        e("s_mov_b64 exec, -1")
    x_srd(14); x_issue(0)
    coop_prefetch(20, 13, 10, wq_pf)
    e("s_branch L_common")
    e("L_first_B:")
    if prioB: e(f"s_setprio {prioB}")
    for n in range(3): emit(w_issue(n, "q"))
    x_srd(4)
    e("L_common:")
    assert mask == 0
    wt = mask.bit_length() // 2 + 1 if mask else 0
    if not mask: groups = tuple((d, d) for d in groups)
    for reg, k in ((sD, 0), (sD4, 1)):
        tab = [groups[b * len(groups) // 32][k] for b in range(32)]
        assert all(0 <= g[0] and g[0] + wt <= g[1] <= 15 for g in groups)
        wd = [sum(tab[8*i + j] << (4*j) for j in range(8)) for i in range(4)]
        e(f"s_bitcmp0_b32 s{sB}, 3")
        e(f"s_mov_b32 s{sTMP}, {wd[1]:#x}"); e(f"s_cselect_b32 s{sTMP}, {wd[0]:#x}, s{sTMP}")
        e(f"s_mov_b32 s{sTMP2}, {wd[3]:#x}"); e(f"s_cselect_b32 s{sTMP2}, {wd[2]:#x}, s{sTMP2}")
        e(f"s_bitcmp0_b32 s{sB}, 4"); e(f"s_cselect_b32 s{sTMP}, s{sTMP}, s{sTMP2}")
        e(f"s_and_b32 s{sTMP2}, s{sB}, 7"); e(f"s_lshl_b32 s{sTMP2}, s{sTMP2}, 2")
        e(f"s_lshr_b32 s{sTMP}, s{sTMP}, s{sTMP2}"); e(f"s_and_b32 s{reg}, s{sTMP}, 15")
    e(f"s_lshl_b32 s{sTMP}, s{sHI}, 1"); e(f"s_add_u32 s{sTMP}, s{sTMP}, s{sW}"); e(f"s_mul_i32 s{sKB}, s{sTMP}, {CHUNK}")
    def dk_setup():
        e(f"v_bfe_u32 v{vT0}, v{vLN}, 4, 1"); e(f"v_lshlrev_b32 v{vT0}, 4, v{vT0}"); e(f"v_xor_b32 v{vDK}, v{vDV}, v{vT0}")
    dk_setup()
    t0, t1 = F, F + 1
    e(f"v_and_b32 v{t0}, 7, v{vLN}"); e(f"v_mul_u32_u24 v{vKA}, {KBLK}, v{t0}")
    e(f"v_bfe_u32 v{t0}, v{vLN}, 3, 1"); e(f"v_lshl_add_u32 v{vKA}, v{t0}, 8, v{vKA}")
    e(f"v_lshrrev_b32 v{t1}, 5, v{vLN}"); e(f"v_xor_b32 v{t0}, v{t0}, v{t1}"); e(f"v_lshl_add_u32 v{vKA}, v{t0}, 4, v{vKA}")
    e(f"v_bfe_u32 v{t0}, v{vLN}, 4, 1"); e(f"v_lshl_add_u32 v{vKA}, v{t0}, 5, v{vKA}")
    e(f"v_bfe_u32 v{t0}, v{vLN}, 2, 3"); e(f"v_mul_u32_u24 v{vVA}, {VBLK}, v{t0}")
    e(f"v_lshl_add_u32 v{vVA}, v{t1}, 8, v{vVA}")
    e(f"v_and_b32 v{t0}, 3, v{vLN}"); e(f"v_lshl_add_u32 v{vVA}, v{t0}, 3, v{vVA}")
    def wx_setup():
        e(f"v_and_b32 v{t0}, 3, v{vLN}")
        e(f"v_bfe_u32 v{t1}, v{vLN}, 2, 2"); e(f"v_mul_u32_u24 v{vWA}, {VBLK}, v{t1}")
        e(f"v_lshl_add_u32 v{vWA}, v{t0}, 3, v{vWA}")
        e(f"v_lshrrev_b32 v{t0+2}, 4, v{vLN}"); e(f"v_lshl_add_u32 v{vWA}, v{t0+2}, 7, v{vWA}"); e(f"v_add_u32 v{vWA}, s{sWRB}, v{vWA}")
        e(f"v_mul_u32_u24 v{vXA}, {KBLK}, v{t0}"); e(f"v_lshl_add_u32 v{vXA}, v{t1}, 8, v{vXA}")
        e(f"v_sub_u32 v{t0+3}, 0, v{t1}"); e(f"v_and_b32 v{t0+3}, 3, v{t0+3}"); e(f"v_xor_b32 v{t0+3}, v{t0+3}, v{t0+2}")
        e(f"v_lshl_add_u32 v{vXA}, v{t0+3}, 4, v{vXA}"); e(f"v_add_u32 v{vXA}, {XB}, v{vXA}")
    wx_setup()
    e(f"v_cmp_eq_u32 vcc, v{t0}, v{t1}"); e(f"v_mov_b32 v{t0+2}, 0x3f803f80")
    e(f"v_cndmask_b32 v{ONES}, 0, v{t0+2}, vcc"); e(f"v_mov_b32 v{ONES+1}, v{ONES}")
    for i in range(4): e(f"v_mov_b32 v{L+i}, 0")
    e(f"s_lshl_b32 s{sTMP}, s2, 2"); e(f"s_add_u32 s{sTMP}, s{sTMP}, s{sW}")
    e(f"s_mul_i32 s{sROT}, s{sTMP}, {rot_mul}"); e(f"s_and_b32 s{sROT}, s{sROT}, 15"); e(f"s_lshl_b32 s{sROT}, s{sROT}, 13")
    e(f"s_lshl_b32 s{sTMP}, s{sTMP}, 17")
    for r, p in ((sK, 16), (sV, 18)):
        e(f"s_add_u32 s{r}, s{p}, s{sTMP}"); e(f"s_addc_u32 s{r+1}, s{p+1}, 0"); e(f"s_mov_b32 s{r+2}, 0x20000"); e(f"s_mov_b32 s{r+3}, 0x20000")
    e(f"s_bitcmp0_b32 s{sW}, 0")
    e(f"s_cselect_b32 s{sIT}, s6, s8"); e(f"s_cselect_b32 s{sIT+1}, s7, s9"); e(f"s_cselect_b32 s{sIST}, {KBLK-1024}, {VBLK-1024}")
    e(f"s_cselect_b64 vcc, -1, 0")
    e(f"v_cndmask_b32 v{vIT}, v{vDV}, v{vDK}, vcc")
    e(f"s_lshl_b32 s{sTMP}, s2, 17")
    e(f"s_add_u32 s{sIT}, s{sIT}, s{sTMP}"); e(f"s_addc_u32 s{sIT+1}, s{sIT+1}, 0"); e(f"s_mov_b32 s{sIT+2}, 0x20000"); e(f"s_mov_b32 s{sIT+3}, 0x20000")
    e(f"s_mul_i32 s{sROTA}, s2, {rot_mul}"); e(f"s_and_b32 s{sROTA}, s{sROTA}, 15"); e(f"s_lshl_b32 s{sROTA}, s{sROTA}, 1"); e(f"s_add_u32 s{sROTA}, s{sROTA}, s{sHI}"); e(f"s_lshl_b32 s{sROTA}, s{sROTA}, 12")
    wo_srd(12)
    e(f"s_cmp_eq_u32 s{sROLE}, 0"); e("s_cbranch_scc1 L_Binit")
    e(f"v_add_u32 v{vKA}, {XB}, v{vKA}"); e(f"v_add_u32 v{vVA}, {XB + SLOT}, v{vVA}")
    e(f"v_mov_b32 v{t0}, {CNT}"); e(f"ds_write_b128 v{t0}, {vr(L, 4)}")
    e("s_waitcnt vmcnt(4) lgkmcnt(0)"); e("s_barrier")
    x_issue(1)
    e(f"s_or_b32 s{sTMP}, s{sG}, s{sW}"); e(f"s_cmp_eq_u32 s{sTMP}, 0"); e("s_cbranch_scc0 L_noinit")
    flag_srd(0)
    e("s_mov_b64 exec, 1")
    e(f"buffer_store_dword v{L}, off, {srd(sPF)}, s{sOFF} sc1"); e(f"buffer_store_dword v{L}, off, {srd(sPF)}, s{sOFF} offset:256 sc1")
    e("s_waitcnt vmcnt(0)")
    dbg_srd()
    e(f"v_mov_b32 v{vT0}, 8"); e(f"buffer_store_dword v{vT0}, off, {srd(sPF)}, s{sOFF} sc1")
    e("s_mov_b64 exec, -1")
    e("s_branch L_init2")
    e("L_noinit:")
    e("s_waitcnt vmcnt(0)")
    e("L_init2:")
    e("s_barrier")
    x_issue(2); x_issue(3)
    e("s_waitcnt vmcnt(4)"); e("s_barrier")
    if hpf == 1:
        coop_prefetch(10, 13, 10, w_pf); xa_touch()
        e("s_waitcnt vmcnt(6)"); e("s_barrier")
        if not coopAA: coop_prefetch(12, 10, 19, w_pf); coop_prefetch(22, 10, 19, w_pf)
    elif hpf == 2:
        coop_prefetch(10, 13, 10, w_pf); xa_touch()
        e("s_waitcnt vmcnt(6)"); e("s_barrier")
        coop_prefetch(12, 10, 19, w_pf)
    else:
        e("s_waitcnt vmcnt(0)"); e("s_barrier")
    if early01:
        e(f"s_cmp_eq_u32 s{sHI}, 0"); e("s_cbranch_scc0 L_h23")
        emit(k_issue()); emit(v_issue()); e("s_barrier"); e("s_branch L_h01")
        e("L_h23:")
    e("s_barrier")
    x_srd(4)
    if any(g[0] == 0 for g in groups):
        if defer01:
            e(f"s_cmp_eq_u32 s{sD}, 0"); e("s_cbranch_scc0 L_hkv")
            e(f"s_cmp_eq_u32 s{sHI}, 0"); e("s_cbranch_scc1 L_h01")
        else:
            e(f"s_cmp_lt_u32 s{sD}, s{sHI}"); e("s_cbranch_scc0 L_hkv")
        emit(x_own(0)); emit(x_own(1)); e("s_branch L_h01")
        e("L_hkv:")
    emit(k_issue()); emit(v_issue())
    e("L_h01:")
    x_srd(4); x_issue(0, xaflag)
    e("s_waitcnt vmcnt(4)"); e("s_barrier")
    if not hpf: coop_prefetch(10, 13, 10, w_pf)
    x_issue(1, xaflag)
    if not hpf: coop_prefetch(12, 10, 19, w_pf)
    e(f"s_lshl_b32 s{sTMP}, s2, 17")
    for r, p in ((sK, 6), (sV, 8)):
        e(f"s_add_u32 s{r}, s{p}, s{sTMP}"); e(f"s_addc_u32 s{r+1}, s{p+1}, 0")
    for n in range(3): emit(w_issue(n, "q"))
    e("s_waitcnt vmcnt(12)")
    e("s_branch L_Qstart")
    e("L_Binit:")
    e(f"v_add_u32 v{vKA}, s{sKB}, v{vKA}"); e(f"v_add_u32 v{vVA}, s{sKB}, v{vVA}"); e(f"v_add_u32 v{vVA}, {SLOT}, v{vVA}")
    e("L_Qstart:")
    e("s_barrier")
    stamp("P0")
    proj("q")
    c = f2u(math.log2(math.e) / math.sqrt(128.0))
    e(f"v_mov_b32 v{vT0}, {c:#x}"); e(f"v_mov_b32 v{vT1}, {c:#x}")
    pend = []
    for s in range(4):
        for qt in range(4):
            b = acc(2*s, qt); q = Q + (qt*4 + s)*4
            for i in range(4): e(f"v_pk_mul_f32 {vr(b+2*i, 2)}, {vr(b+2*i, 2)}, {vr(vT0, 2)}")
            for pq in pend[-1:]: e(f"v_permlane16_swap_b32 v{pq}, v{pq+2}"); e(f"v_permlane16_swap_b32 v{pq+1}, v{pq+3}")
            for i in range(4): e(f"v_cvt_pk_bf16_f32 v{q+i}, v{b+2*i}, v{b+2*i+1}")
            pend.append(q)
    for q in pend[-1:]: e(f"v_permlane16_swap_b32 v{q}, v{q+2}"); e(f"v_permlane16_swap_b32 v{q+1}, v{q+3}")
    stamp("Qdone")
    e(f"s_mov_b32 s{sI}, 0")
    e(f"s_cmp_eq_u32 s{sROLE}, 0"); e("s_cbranch_scc0 L_Aattn")

    def b_wsetup():
        w_setup("o"); e(f"s_mov_b32 s{sWOFF}, {(32 << 10) + 128}")
    for i in range(0, 128, 2): e(f"v_mov_b64 {vr(i, 2)}, 0")
    w_setup("o")
    x_voff()
    e(f"s_mov_b32 s{sN}, 1")
    e("s_barrier")
    e("L_Bloop:")
    e(f"s_cmp_eq_u32 s{sI}, s{sD}"); e("s_cbranch_scc1 L_Bpause1")
    e("L_Bgo:")
    if e0:
        e(f"s_cmp_eq_u32 s{sI}, 15"); e("s_cbranch_scc0 L_noE0"); e("s_barrier"); e("L_noE0:")
    waitn(sN, 2)
    if tl:
        e("s_memrealtime s[98:99]"); e("s_memtime s[96:97]"); e("s_waitcnt lgkmcnt(0)"); e(f"s_mov_b32 m0, s{sI}"); e("s_nop 0"); e(f"v_writelane_b32 v254, s98, m0")
        e(f"s_add_u32 m0, s{sI}, 16"); e("s_nop 0"); e(f"v_writelane_b32 v254, s96, m0")
    def next_item(sbase, cap=None):
        e(f"s_add_u32 s{sROTA}, s{sROTA}, 16384"); e(f"s_and_b32 s{sROTA}, s{sROTA}, 0x1ffff")
        emit(capped(item_issue(sbase), cap))
    def refill(lst, h):
        go, xl, done, skip = lab("rf"), lab("rf"), lab("rf"), lab("rf")
        e(f"s_cmp_eq_u32 s{sTMP2}, 16"); e(f"s_cbranch_scc1 {skip}")
        if defer01:
            e(f"s_cmp_eq_u32 s{sTMP2}, s{sD}"); e(f"s_cbranch_scc0 {go}")
            e(f"s_cmp_eq_u32 s{sHI}, 0"); e(f"s_cbranch_scc1 {skip}")
            e(f"s_branch {xl}")
        else:
            e(f"s_cmp_eq_u32 s{sHI}, 0"); e(f"s_cbranch_scc1 {go}")
            e(f"s_cmp_eq_u32 s{sTMP2}, s{sD}"); e(f"s_cbranch_scc1 {xl}")
        if mask: e(f"s_cmp_eq_u32 s{sTMP2}, s{sD4}"); e(f"s_cbranch_scc1 {skip}")
        e(f"{go}:")
        cm = (capK, capV)[h]
        if cm:
            lc = lab("cp")
            e(f"s_bitcmp1_b32 {cm:#x}, s{sTMP2}"); e(f"s_cbranch_scc1 {lc}")
            late.append((lc, capped(lst, capn), done))
        emit(lst)
        e(f"{done}:")
        e(f"s_add_u32 s{sN}, s{sN}, 1"); e(f"s_add_u32 s{sM}, s{sM}, 1")
        e(f"{skip}:")
        late.append((xl, x_own(h), done))
    late = []
    def window(half):
        l = lab("nw")
        e(f"s_mov_b32 s{sN}, 0")
        if not mask: return
        e(f"s_sub_u32 s{sTMP2}, s{sI}, s{sD}"); e(f"s_cmp_lt_u32 s{sTMP2}, 8"); e(f"s_cbranch_scc0 {l}")
        m = sum(((mask >> (2*k + half)) & 1) << k for k in range(8))
        if m == 0:
            e(f"{l}:"); return
        e(f"s_bitcmp1_b32 {m}, s{sTMP2}"); e(f"s_cbranch_scc0 {l}")
        waitn(sM, 2)
        e("s_barrier")
        e(f"s_add_u32 s{sJ}, s{sJ}, 1")
        if (mask.bit_length() - 1) % 2 == half:
            lw = lab("wo")
            e(f"s_cmp_eq_u32 s{sJ}, 7"); e(f"s_cbranch_scc1 {lw}")
            late.append((lw, w_issue(0, "o") + w_issue(1, "o") + w_issue(2, "o") + [f"s_mov_b32 s{sN}, 1"], l))
        e(f"s_bitcmp1_b32 s{sJ}, 0"); e(f"s_cselect_b32 s{sM}, s{sWRB}, s{sDK}")
        next_item(sM, capI)
        e(f"s_mov_b32 s{sN}, 1"); e(f"s_mov_b32 s{sM}, 0")
        e(f"{l}:")
    def b_after_qk():
        window(0)
        e(f"s_add_u32 s{sROT}, s{sROT}, 8192"); e(f"s_and_b32 s{sROT}, s{sROT}, 0x1ffff")
        e(f"s_add_u32 s{sTMP2}, s{sI}, 1")
        refill(capped(k_issue(), capN), 0)
    def b_after_pv():
        window(1)
        e(f"s_add_u32 s{sI}, s{sI}, 1"); e(f"s_mov_b32 s{sTMP2}, s{sI}")
        refill(capped(v_issue(), capN), 1)
        e(f"s_cmp_eq_u32 s{sI}, 16"); e("s_cbranch_scc0 L_Bloop")
        e("s_branch L_Oepi")
    tile(b_after_qk, lambda: waitn(sN, 2), b_after_pv)
    for xl, lst, done in late:
        e(f"{xl}:"); emit(lst); e(f"s_branch {done}")
    e("L_Bpause1:")
    e(f"s_and_b32 s{sDK}, s{sW}, 1"); e(f"s_mul_i32 s{sDK}, s{sDK}, {SLOT}"); e(f"s_add_u32 s{sDK}, s{sDK}, {XB}")
    e(f"s_add_u32 s{sTMP}, s{sIST}, 1024"); e(f"s_mul_i32 s{sTMP}, s{sTMP}, s{sHI}"); e(f"s_lshl_b32 s{sTMP}, s{sTMP}, 2"); e(f"s_add_u32 s{sDK}, s{sDK}, s{sTMP}")
    e("s_barrier")
    e(f"s_cmp_eq_u32 s{sW}, 0"); e("s_cbranch_scc0 L_nochk")
    poll(None, tmp=F)
    e("L_nochk:")
    e("s_barrier")
    e("s_waitcnt vmcnt(0)"); e("s_barrier")
    e("s_barrier"); e("s_barrier")
    def half_item(t):
        e(f"s_add_u32 m0, s{sDK}, {(t % 4)*CHUNK}")
        for j in range(4):
            if j: e(f"s_add_u32 m0, m0, s{sIST}")
            e(f"buffer_load_dwordx4 v{vIT}, {srd(sIT)}, s{sROTA} offen offset:{j*1024} {kv} lds")
        e(f"s_add_u32 s{sROTA}, s{sROTA}, 8192"); e(f"s_and_b32 s{sROTA}, s{sROTA}, 0x1ffff")
    def serve(extra):
        q = []
        def item(t): half_item(t); q.extend([t]*4)
        item(0); item(1); issued = 2
        for t in range(16):
            last = max(i for i, x in enumerate(q) if x == t)
            e(f"s_waitcnt vmcnt({len(q) - 1 - last})"); e("s_barrier")
            while issued < min(16, t + depth + 1):
                item(issued); issued += 1
            for x in extra.get(t, []):
                e(x)
                if x.startswith("buffer_load"): q.append(-1)
    lo, hi = {}, {}
    if defer01:
        ks, vs = k_issue(), v_issue()
        cut = lambda l: (l[:9], l[9:])
        lo[2], lo[4] = cut(ks); lo[6], lo[8] = cut(vs)
    if coopAA:
        assert all(g[0] == 0 for g in [groups[b * len(groups) // 32] for b in range(8)])
        e(f"s_cmp_lt_u32 s{sB}, 8"); e(f"s_cselect_b32 s{sPF}, s12, s22"); e(f"s_cselect_b32 s{sPF+1}, s13, s23")
        e(f"s_lshl_b32 s{sTMP}, s{sG}, 3"); e(f"s_and_b32 s{sTMP2}, s{sB}, 7"); e(f"s_add_u32 s{sTMP}, s{sTMP}, s{sTMP2}")
        e(f"s_lshl_b32 s{sTMP}, s{sTMP}, 1"); e(f"s_and_b32 s{sTMP2}, s{sW}, 1"); e(f"s_add_u32 s{sTMP}, s{sTMP}, s{sTMP2}"); e(f"s_lshl_b32 s{sTMP}, s{sTMP}, 15")
        e(f"s_add_u32 s{sPF}, s{sPF}, s{sTMP}"); e(f"s_addc_u32 s{sPF+1}, s{sPF+1}, 0")
        e(f"s_sub_u32 s{sTMP}, s{sB}, 8"); e(f"s_cmp_lt_u32 s{sTMP}, 16"); e(f"s_cselect_b32 s{sPF+2}, 0, 0x8000"); e(f"s_mov_b32 s{sPF+3}, 0x20000")
        for t in range(8):
            hi[t + 1] = [f"s_mov_b32 s{sOFF}, {t*4096}"] + [f"buffer_load_dwordx4 {vr(S + 4*j, 4)}, v{vDV}, {srd(sPF)}, s{sOFF} offen offset:{j*1024} {w_pf}" for j in range(4)]
    if lo != hi:
        e(f"s_cmp_eq_u32 s{sHI}, 0"); e("s_cbranch_scc1 L_servelo")
        serve(hi); e("s_branch L_served")
        e("L_servelo:")
    serve(lo)
    e("L_served:")
    for n in range(3): emit(w_issue(n, "o"))
    e("L_Bpause2:")
    wo_srd(22)
    e("s_barrier"); e("s_waitcnt vmcnt(0)"); e("s_barrier"); e("s_barrier")
    e(f"s_mov_b32 s{sN}, 1")
    e(f"s_cmp_eq_u32 s{sHI}, 0"); e(f"s_cbranch_scc1 L_Bgo")
    emit(k_issue()); emit(v_issue())
    e("s_branch L_Bgo")

    FB = [F, F + 4, F + 8, 244, 248, 252]
    kb = [0, 1, 2, 3, 4, 5, 0, 1]
    vb = [FB[2], FB[3], FB[4], FB[5], FB[0], FB[1], S + 4, S + 12]
    def akr(f): return f"ds_read_b128 {vr(FB[kb[f]], 4)}, v{vKA} offset:{(f >> 2)*512 + (f & 3)*64}"
    def avr(dt): return [f"ds_read_b64_tr_b16 {vr(vb[dt] + 2*u, 2)}, v{vVA} offset:{u*512 + dt*32}" for u in range(2)]
    first = [False]
    def apv(dt, qt): return f"{MF} {vr(acc(dt, qt), 4)}, {vr(vb[dt], 4)}, {vr(S + qt*8, 4)}, {'0' if first[0] else vr(acc(dt, qt), 4)}"
    def weave(mf, fill):
        cost = [2 if (x.startswith("v_exp") or x.startswith("v_mfma")) else 1 for x in fill]
        tot = sum(cost); cum = 0; k = 0
        for i, m in enumerate(mf):
            e(m)
            while k < len(fill) and (cum + cost[k]) * len(mf) <= (i + 1) * tot + len(mf) // 2:
                e(fill[k]); cum += cost[k]; k += 1
        emit(fill[k:])
    def atile(odd):
        ex = exps(0, 0) + exps(1, 0) + exps(2, 0)
        for f in range(8):
            u, sx = f >> 2, f & 3
            if f == 0: e("s_waitcnt lgkmcnt(2)")
            if f in (2, 4): e("s_waitcnt lgkmcnt(4)")
            for qt in range(4):
                r = vr(Sr(qt, u), 4)
                e(f"{MF} {r}, {vr(FB[kb[f]], 4)}, {vr(Q + (qt*4 + sx)*4, 4)}, {r if sx else '0'}")
                if f == 0 and qt < 2: e(akr(4 + qt))
                if f == 2 and qt == 0: e(f"v_add_u32 v{vKA}, {f's{sDK}' if odd else CHUNK}, v{vKA}")
                if u == 1 and (f, qt) != (4, 0) and (qt < 3 or f == 7): e(ex.pop(0))
            if f < 2: e(akr(6 + f))
            else: emit(avr(f - 2))
        assert not ex
        emit(exps(0, 1)); emit(cvts(0, 0)); emit(cvts(0, 1)); emit(avr(6))
        e("s_waitcnt lgkmcnt(6)")
        b0 = [apv(dt, 0) for dt in range(6)]
        b0[3] += "\ns_waitcnt lgkmcnt(2)"
        weave(b0, exps(1, 1) + cvts(1, 0) + cvts(1, 1))
        emit(avr(7))
        s0, s1, s2, s3 = (sums(qt) for qt in range(4))
        b1 = [apv(dt, 1) for dt in (range(5, -1, -1) if snake else range(6))]
        b1[1] = s0[0] + "\n" + b1[1]; b1[3] = s0[1] + "\n" + b1[3]
        weave(b1, exps(2, 1) + cvts(2, 0) + cvts(2, 1))
        e(f"v_add_u32 v{vVA}, {f's{sDK}' if odd else CHUNK}, v{vVA}")
        b2 = [apv(dt, 2) for dt in range(6)] + ([apv(6, 0), apv(7, 0), apv(7, 1), apv(6, 1)] if snake else [apv(6, 0), apv(7, 0), apv(6, 1), apv(7, 1)])
        b2[0] = s1[0] + "\n" + b2[0]; b2[2] = s1[1] + "\n" + b2[2]; b2[4] = s2[0] + "\n" + b2[4]
        b2[6] = "s_waitcnt lgkmcnt(0)\n" + b2[6]
        weave(b2, exps(3, 0) + exps(3, 1) + cvts(3, 0) + cvts(3, 1))
        e(s2[1])
        if not odd: e(f"s_add_u32 s{sI}, s{sI}, 1")
        e("s_barrier")
        for k, dt in enumerate((4, 5, 0, 1)):
            e(apv(dt, 3)); e(akr(k))
        e(s3[0]); e(apv(2, 3))
        if odd: e(f"s_xor_b32 s{sDK}, s{sDK}, {dKx:#x}")
        e(apv(3, 3)); e(s3[1])
        e(apv(6, 3)); e(apv(7, 3))
        if odd: e(f"s_cmp_eq_u32 s{sI}, 8")
        e(apv(7, 2)); e(apv(6, 2))
    dKx = CHUNK ^ ((-3*CHUNK) & 0xffffffff)
    e("L_Aattn:")
    e(f"s_mov_b32 s{sDK}, {CHUNK}")
    e("s_barrier")
    stamp("L0")
    if stamps and "L0" in stamps: e("s_waitcnt lgkmcnt(0)")
    for f in range(4): e(akr(f))
    first[0] = True; atile(0); first[0] = False
    e("s_branch L_Aodd")
    e("L_Aloop:")
    atile(0)
    e("L_Aodd:")
    atile(1)
    e("s_cbranch_scc0 L_Aloop")
    e("s_waitcnt lgkmcnt(0)")
    e(f"v_mbcnt_lo_u32_b32 v{vLN}, -1, 0"); e(f"v_mbcnt_hi_u32_b32 v{vLN}, -1, v{vLN}")
    e(f"v_lshlrev_b32 v{vDV}, 4, v{vLN}")
    dk_setup(); wx_setup(); b_wsetup()

    e("L_Oepi:")
    if tl:
        e(f"s_cmp_eq_u32 s{sROLE}, 0"); e("s_cbranch_scc0 L_tl0"); e("v_mov_b32 v252, v254   ; v_writelane_b32 v247"); e("L_tl0:")
    stamp("attn_done")
    def lsum():
        for sw in ("32", "16"):
            for qt in range(4): e(f"v_mov_b32 v{F+qt}, v{L+qt}")
            for qt in range(4): e(f"v_permlane{sw}_swap_b32 v{L+qt}, v{F+qt}")
            for qt in range(4): e(f"v_add_f32 v{L+qt}, v{L+qt}, v{F+qt}")
    lsum()
    e(f"v_min3_f32 v{vT0}, v{L}, v{L+1}, v{L+2}"); e(f"v_min_f32 v{vT0}, v{vT0}, v{L+3}")
    e(f"v_add_f32 v{vT1}, v{L}, v{L+1}"); e(f"v_add_f32 v{vT1}, v{vT1}, v{L+2}"); e(f"v_add_f32 v{vT1}, v{vT1}, v{L+3}")
    e(f"v_cmp_nle_f32 vcc, {f2u(2.0**lo_exp):#x}, v{vT0}"); e("s_cbranch_vccnz L_slow")
    e(f"v_cmp_nge_f32 vcc, {f2u(2.0**hi_exp):#x}, v{vT1}"); e("s_cbranch_vccnz L_slow")
    if force_slow: e("s_branch L_slow")
    e("L_slow_back:")
    for qt in range(4): e(f"v_rcp_f32 v{L+qt}, v{L+qt}")
    e(f"s_mul_i32 s{sTMP}, s{sW}, {CHUNK}"); e(f"v_add_u32 v{vT0}, s{sTMP}, v{vXA}")
    def norm(s, qt):
        b = acc(2*s, qt)
        sel = "op_sel_hi:[1,0]" if qt % 2 == 0 else "op_sel:[0,1]"
        for i in range(4): e(f"v_pk_mul_f32 {vr(b+2*i, 2)}, {vr(b+2*i, 2)}, {vr(L + (qt & 2), 2)} {sel}")
        for i in range(4): e(f"v_cvt_pk_bf16_f32 v{b+i}, v{b+2*i}, v{b+2*i+1}")
    def owr(s, qt): e(f"ds_write_b128 v{vT0}, {vr(acc(2*s, qt), 4)} offset:{qt*HALF + s*64}")
    for s in range(4):
        for qt in range(4):
            norm(s, qt); owr(s, qt)
    e("L_Oproj:")
    e("s_waitcnt lgkmcnt(0)")
    e("s_barrier")
    stamp("Owritten")
    proj("o")
    stamp("Odone")
    e(f"s_xor_b32 s{sTMP}, s{sROLE}, 1"); e(f"s_lshl_b32 s{sTMP}, s{sTMP}, 8"); e(f"s_add_u32 s{sTMP}, s{sTMP}, s2")
    e(f"s_lshl_b32 s{sTMP}, s{sTMP}, 2"); e(f"s_add_u32 s{sTMP}, s{sTMP}, s{sW}"); e(f"s_lshl_b32 s{sTMP}, s{sTMP}, 14")
    e(f"s_add_u32 s{sP}, s28, s{sTMP}"); e(f"s_addc_u32 s{sP+1}, s29, 0"); e(f"s_mov_b32 s{sP+2}, 0x4000"); e(f"s_mov_b32 s{sP+3}, 0x20000")
    e(f"s_cmp_eq_u32 s{sROLE}, 0"); e("s_cbranch_scc1 L_store")
    e(f"s_setprio {prioT}")
    assert not late_pf
    wo_srd(22); e(f"s_mov_b32 s{sWOFF}, 0")
    for n in range(3): emit(w_issue(n, "o"))
    if not e0: e("s_waitcnt vmcnt(0)")
    e("s_barrier")
    e("L_store:")
    keep = []
    for sp in range(2):
        for qt in range(4):
            lk, lb = lab("kp"), lab("kp")
            e(f"s_cmp_eq_u32 s{sG}, {qt*2 + sp}"); e(f"s_cbranch_scc1 {lk}")
            e(f"s_mov_b32 s{sOFF}, {qt*4096}")
            for sx in (2*sp, 2*sp + 1):
                b = acc(2*sx, qt)
                for i in range(4): e(f"v_cvt_pk_bf16_f32 v{b+i}, v{b+2*i}, v{b+2*i+1}")
                e(f"buffer_store_dwordx4 {vr(b, 4)}, v{vDV}, {srd(sP)}, s{sOFF} offen offset:{sx*1024} {pstore}")
            e(f"{lb}:")
            keep.append((lk, lb, sp, qt))
    e(f"s_cmp_eq_u32 s{sROLE}, 0"); e("s_cbranch_scc0 L_Apub")
    stamp("issued")
    if ared == "bars": e("s_barrier")
    stamp("bars")
    if stamps and "drained" in stamps: e("s_waitcnt vmcnt(0)"); stamp("drained")
    lds_arrive(1, "L_Bwait")
    stamp("pub")
    def first(done):
        e(f"buffer_atomic_add v{vT1}, off, {srd(sPF)}, s{sOFF} sc0")
        e("s_waitcnt vmcnt(0)")
        e(f"v_readfirstlane_b32 s{sTMP}, v{vT1}")
        e(f"s_cmp_ge_u32 s{sTMP}, 7"); e(f"s_cbranch_scc1 {done}")
    poll(1, first)
    e(f"v_mov_b32 v{vT0}, {CNT + 8}"); e(f"v_mov_b32 v{vT1}, 1")
    e(f"ds_write_b32 v{vT0}, v{vT1}")
    e("s_branch L_final")
    e("L_Bwait:")
    e(f"v_mov_b32 v{vT0}, {CNT + 8}")
    e("L_Bspin:")
    e(f"ds_read_b32 v{vT1}, v{vT0}")
    e("s_waitcnt lgkmcnt(0)")
    e(f"v_readfirstlane_b32 s{sTMP}, v{vT1}")
    e(f"s_cmp_eq_u32 s{sTMP}, 0"); e("s_cbranch_scc0 L_final")
    e("s_sleep 1")
    e("s_branch L_Bspin")
    for lk, lb, sp, qt in keep:
        e(f"{lk}:")
        for f in range(2):
            for i in range(0, 8, 2): e(f"v_mov_b64 {vr(RK + 8*f + i, 2)}, {vr(acc(2*(2*sp + f), qt) + i, 2)}")
        e(f"s_branch {lb}")
    e("L_Apub:")
    if e0:
        e("s_waitcnt vmcnt(14)"); e("s_barrier")
    lds_arrive(0, "L_nosig")
    if ared == "bars":
        flag_srd(0)
        e(f"buffer_atomic_add v{vT1}, off, {srd(sPF)}, s{sOFF}")
    else:
        poll(0, first, slp=slpA)
    e("L_nosig:")
    e("s_mov_b64 exec, -1")
    stamp("pubA")
    e("s_barrier")
    if ared == "bars":
        e(f"s_cmp_eq_u32 s{sW}, 0"); e("s_cbranch_scc0 L_nopoll")
        poll(0)
        e("L_nopoll:")
        e("s_barrier")
    e("L_final:")
    e("s_mov_b64 exec, -1")
    stamp("flag")
    reduce()
    if calib:
        if calib_wg is not None: e(f"s_cmp_eq_u32 s2, {calib_wg}"); e("s_cbranch_scc0 L_end")
        e("L_cal:"); e("s_sleep 4"); e("s_memrealtime s[90:91]"); e("s_waitcnt lgkmcnt(0)"); e("s_sub_u32 s90, s90, s92"); e(f"s_cmp_lt_u32 s90, {calib*100}"); e("s_cbranch_scc1 L_cal")
    if stamps:
        e("s_waitcnt vmcnt(0)")
        stamp("end")
        e("s_memtime s[4:5]")
        e("s_waitcnt lgkmcnt(0)")
        e("s_sub_u32 s4, s4, s100")
        e(f"s_lshl_b32 s{sTMP}, s2, 1"); e(f"s_add_u32 s{sTMP}, s{sTMP}, s{sROLE}"); e(f"s_lshl_b32 s{sTMP}, s{sTMP}, 2"); e(f"s_add_u32 s{sTMP}, s{sTMP}, s{sW}")
        e(f"s_lshl_b32 s{sTMP}, s{sTMP}, 7")
        e(f"s_add_u32 s{sPF}, s28, 0x4000000"); e(f"s_addc_u32 s{sPF+1}, s29, 0"); e(f"s_mov_b32 s{sPF+2}, 0x100000"); e(f"s_mov_b32 s{sPF+3}, 0x20000")
        for i in range(16): e(f"v_mov_b32 v{i}, s{sST+i}")
        e(f"v_mov_b32 v16, s4"); e("v_mov_b32 v17, 0"); e("v_mov_b32 v18, 0"); e("v_mov_b32 v19, 0")
        e(f"v_mov_b32 v20, s{sTMP}")
        if tl:
            e(f"v_lshl_add_u32 v21, v{vLN}, 2, v20"); e("s_mov_b32 exec_hi, 0"); e(f"s_mov_b32 s{sOFF}, 0x80000")
            e(f"buffer_store_dword v252, v21, {srd(sPF)}, s{sOFF} offen")
        e("s_mov_b64 exec, 1")
        for i in range(5): e(f"buffer_store_dwordx4 {vr(4*i, 4)}, v20, {srd(sPF)}, 0 offen offset:{16*i}")
    e("L_end:")
    e("s_endpgm")

    e("L_slow:")
    e("s_waitcnt vmcnt(0)")
    e(f"s_cmp_eq_u32 s{sROLE}, 0"); e("s_cbranch_scc1 L_slowB")
    e(f"s_mul_i32 s{sTMP}, s{sW}, {CHUNK}"); e(f"s_add_u32 s{sKB}, s{sTMP}, {XB}")
    e(f"v_add_u32 v{vKA}, s{sTMP}, v{vKA}"); e(f"v_add_u32 v{vVA}, s{sTMP}, v{vVA}")
    e("L_slowB:")
    e(f"v_add_u32 v{vVA}, {(-SLOT) & 0xffffffff:#x}, v{vVA}")
    for i in range(0, 128, 2): e(f"v_mov_b64 {vr(i, 2)}, 0")
    for i in range(4): e(f"v_mov_b32 v{L+i}, 0"); e(f"v_mov_b32 v{M+i}, {f2u(-3.0e38):#x}")
    e(f"s_mov_b32 s{sROT}, 0")
    e("L_slowloop:")
    emit(k_issue())
    e("s_waitcnt vmcnt(0)")
    qk(None)
    emit(kv_issue(sV, vDV, sKB, 0, VBLK))
    for qt in range(4):
        b = S + qt*8; t = F + 2*qt
        e(f"v_max3_f32 v{t}, v{b}, v{b+1}, v{b+2}"); e(f"v_max3_f32 v{t}, v{t}, v{b+3}, v{b+4}")
        e(f"v_max3_f32 v{t}, v{t}, v{b+5}, v{b+6}"); e(f"v_max3_f32 v{t}, v{t}, v{b+7}, v{M+qt}")
        xlane("v_max_f32", t, vT0)
        e(f"v_sub_f32 v{t+1}, v{M+qt}, v{t}"); e(f"v_mov_b32 v{M+qt}, v{t}")
        e(f"v_exp_f32 v{t+1}, v{t+1}")
        for i in range(8): e(f"v_sub_f32 v{b+i}, v{b+i}, v{M+qt}")
        e(f"v_mul_f32 v{L+qt}, v{L+qt}, v{t+1}")
        for dt in range(8):
            for i in range(0, 4, 2): e(f"v_pk_mul_f32 {vr(acc(dt, qt)+i, 2)}, {vr(acc(dt, qt)+i, 2)}, {vr(t, 2)} op_sel:[0,1]")
        emit(exps(qt, 0)); emit(cvts(qt, 0))
    e("s_waitcnt vmcnt(0)")
    for dt in range(3): emit(vrd(dt))
    pv_phase([exps(qt, 1) + cvts(qt, 1) for qt in range(4)])
    e(f"s_add_u32 s{sROT}, s{sROT}, 8192"); e(f"s_cmp_lt_u32 s{sROT}, 0x20000"); e("s_cbranch_scc1 L_slowloop")
    for qt in range(4): xlane("v_add_f32", L + qt, vT0)
    b_wsetup()
    e("s_branch L_slow_back")
    e("L_last:")

    e('.section .rodata,"a"')
    e(".p2align 6"); e(f".amdhsa_kernel {NAME}_kernel")
    for l in [".amdhsa_next_free_vgpr 256", ".amdhsa_next_free_sgpr 102", ".amdhsa_accum_offset 256", ".amdhsa_group_segment_fixed_size 0",
              ".amdhsa_kernarg_size 104", ".amdhsa_user_sgpr_count 2", ".amdhsa_user_sgpr_kernarg_segment_ptr 1", ".amdhsa_system_sgpr_workgroup_id_x 1",
              ".amdhsa_float_denorm_mode_32 3"]:
        e("  " + l)
    e(".end_amdhsa_kernel")
    n = a.pad()
    return a.text(), n

if __name__ == "__main__":
    kw = eval("dict(" + (sys.argv[2] if len(sys.argv) > 2 else "") + ")")
    txt, n = gen(**kw)
    out = sys.argv[1] if len(sys.argv) > 1 else f"cdna_kernels/{NAME}.s"
    open(out, "w").write(txt)
    print("pad states:", n, "lines:", txt.count("\n"), "LDS", LDS)
```

```python
import sys, math, struct
from asmlib import Asm

NAME = "concat_heads__gqa_block_cached__mha_block_cached__near_ridge"
KBLK = 1088; VBLK = 1056; HALF = 4352; SLOT = 8704; CHUNK = 2*SLOT
XB = 2*CHUNK
WR0 = XB + 4*CHUNK
WRING = 3*HALF
CNT = WR0 + 4*WRING
LDS = CNT + 64
assert LDS <= 163840
WBIAS = 128

sK, sV, sWQ, sWO, sX, sP, sIT, sPF = 32, 36, 40, 44, 48, 52, 56, 60
(sROLE, sW, sG, sB, sD, sI, sROT, sOFF, sWRB, sKB, sTMP, sTMP2, sD4, sWOFF, sN, sM, sROTA, sIST, sPH, sDK) = range(64, 84)
sDV = 30; sHI = 31; sJ = 3
sST = 84
def srd(n): return f"s[{n}:{n+3}]"
ACC = 0; Q = 128; S = 192; F = 224; L = 236; ONES = 240
vKA, vVA, vDK, vDV = 242, 243, 244, 245
vWO = 246
vWA, vXA, vIT, vLN, vT0, vT1 = 250, 251, 252, 253, 254, 255
M = 246
AF = 128; BF = 160
def vr(b, n): return f"v[{b}:{b+n-1}]"
def acc(dt, qt): return ACC + ((dt >> 1)*4 + qt)*8 + (dt & 1)*4
def f2u(x): return struct.unpack("<I", struct.pack("<f", x))[0]
MF = "v_mfma_f32_16x16x32_bf16"

def gen(kv="nt", wq_pf="", w_pf="", wflag="", xflag="", stamps=False, groups=(0,0,0,0,0,2,4,7,10,13,14,15,15,15,15,15), mask=0, early01=False, e0=True, prioT=0, hpf=1, xaflag='nt', late_pf=False, prioA=1, prioB=0, T=10.0,
        rot_mul=1, cyc=False, lo_exp=-30, hi_exp=30, force_slow=False, codepf=True, slp=6, pstore="sc1", tl=False, calib=0, calib_wg=None, ostore='sc1', capN=8, capI=None, capK=0, capV=0, capn=6, snake=True, depth=2, ared='bars', slpA=24, abar=30, defer01=False, coopAA=False, calat='start'):
    a = Asm(); e = a
    if stamps is True: stamps = ["start", "P0", "Qdone", "attn_done", "Owritten", "Odone", "pub", "end"]
    def stamp(nm):
        if calib and nm == calat and nm != "start":
            lc = lab("cal"); e(f"s_cmp_eq_u32 s{sROLE}, 0"); e(f"s_cbranch_scc0 {lc}"); e("s_memrealtime s[92:93]"); e("s_waitcnt lgkmcnt(0)"); e(f"{lc}:")
        if stamps and nm in stamps:
            i = stamps.index(nm); e(f"{'s_memtime' if cyc else 's_memrealtime'} s[{sST+2*i}:{sST+2*i+1}]")
    def emit(lst):
        for x in lst: e(x)
    uid = [0]
    def lab(p):
        uid[0] += 1; return f"L_{p}{uid[0]}"

    def w_setup(kind):
        sh = 13 if kind == "q" else 10
        if kind == "q":
            e(f"v_bfe_u32 v{vT0}, v{vLN}, 3, 2"); e(f"v_lshlrev_b32 v{vWO}, {sh+3}, v{vT0}")
            e(f"v_lshrrev_b32 v{vT0}, 5, v{vLN}"); e(f"v_lshl_add_u32 v{vWO}, v{vT0}, {sh+2}, v{vWO}")
        else:
            e(f"v_lshrrev_b32 v{vT0}, 3, v{vLN}"); e(f"v_lshlrev_b32 v{vWO}, {sh+2}, v{vT0}")
        e(f"v_and_b32 v{vT0}, 7, v{vLN}"); e(f"v_lshl_add_u32 v{vWO}, v{vT0}, 4, v{vWO}")
        for r in (3, 2, 1, 0):
            e(f"v_add_u32 v{vWO+r}, {r*((1 << sh) - VBLK) + WBIAS}, v{vWO}")
        e(f"s_mov_b32 s{sWOFF}, 0")
    def wslot(n): return (n + 1) % 3
    def w_issue(n, kind):
        sr, sh = (sWQ, 13) if kind == "q" else (sWO, 10)
        out = [f"s_add_u32 m0, s{sWRB}, {wslot(n)*HALF}"]
        for r in range(4):
            out.append(f"buffer_load_dwordx4 v{vWO+r}, {srd(sr)}, s{sWOFF} offen offset:{r*VBLK} {wflag} lds")
        out.append(f"s_add_u32 s{sWOFF}, s{sWOFF}, {128 if n % 2 == 0 else (32 << sh) - 128}")
        return out
    def kv_issue(sr, voff, sbase, imm, blk, rot=sROT):
        out = [f"s_mov_b32 s{sOFF}, s{rot}"]
        for j in range(8):
            if j == 4: out.append(f"s_add_u32 s{sOFF}, s{sOFF}, 4096")
            out.append(f"s_add_u32 m0, s{sbase}, {imm + j*blk - (j % 4)*1024}")
            out.append(f"buffer_load_dwordx4 v{voff}, {srd(sr)}, s{sOFF} offen offset:{(j % 4)*1024} {kv} lds")
        return out
    def capped(lst, n):
        if not n: return lst
        out = []
        for x in lst:
            if x.startswith("buffer_load"): out.append(f"s_waitcnt vmcnt({n-1})")
            out.append(x)
        return out
    def k_issue(): return kv_issue(sK, vDK, sKB, 0, KBLK)
    def v_issue(): return kv_issue(sV, vDV, sKB, SLOT, VBLK)
    def item_issue(sbase, blocks=range(8)):
        out = []
        for j in blocks:
            if j == 0: out += [f"s_mov_b32 s{sOFF}, s{sROTA}", f"s_mov_b32 m0, s{sbase}"]
            elif j == 4:
                out += [f"s_add_u32 s{sOFF}, s{sROTA}, 4096", f"s_lshl_b32 s{sTMP}, s{sIST}, 2", f"s_add_u32 s{sTMP}, s{sTMP}, s{sbase}", f"s_add_u32 m0, s{sTMP}, 4096"]
            else: out.append(f"s_add_u32 m0, m0, s{sIST}")
            out.append(f"buffer_load_dwordx4 v{vIT}, {srd(sIT)}, s{sOFF} offen offset:{(j % 4)*1024} {kv} lds")
        return out
    def x_issue(c, xflag=xflag):
        e(f"s_lshl_b32 s{sOFF}, s{sW}, 14"); e(f"s_add_u32 s{sOFF}, s{sOFF}, {c*256}")
        e(f"s_mul_i32 s{sTMP}, s{sW}, {HALF}")
        for j in range(4):
            e(f"s_add_u32 m0, s{sTMP}, {XB + c*CHUNK + j*64}")
            e(f"buffer_load_dwordx4 v{vT1}, {srd(sX)}, s{sOFF} offen offset:{j*1024} {xflag} lds")
    def x_own(h):
        out = [f"s_lshl_b32 s{sOFF}, s{sW}, 8", f"s_add_u32 s{sOFF}, s{sOFF}, {h*32768}"]
        for j in range(8):
            if j == 4: out.append(f"s_add_u32 s{sOFF}, s{sOFF}, 16384")
            out.append(f"s_add_u32 m0, s{sKB}, {h*SLOT + (j >> 2)*HALF + (j & 3)*64}")
            out.append(f"buffer_load_dwordx4 v{vT1}, {srd(sX)}, s{sOFF} offen offset:{(j & 3)*1024} {xaflag} lds")
        return out
    def xa_touch():
        e(f"s_mov_b32 s{sPF}, s4"); e(f"s_mov_b32 s{sPF+1}, s5"); e(f"s_mov_b32 s{sPF+2}, 0x200000"); e(f"s_mov_b32 s{sPF+3}, 0x20000")
        e(f"s_lshl_b32 s{sTMP}, s2, 2"); e(f"s_add_u32 s{sTMP}, s{sTMP}, s{sW}"); e(f"s_lshl_b32 s{sTMP}, s{sTMP}, 11")
        for r in range(2): e(f"buffer_load_dwordx4 {vr(S + 16 + 4*r, 4)}, v{vDV}, {srd(sPF)}, s{sTMP} offen offset:{r*1024}")
    def x_voff():
        e(f"v_lshrrev_b32 v{vT0}, 4, v{vLN}"); e(f"v_sub_u32 v{vT1}, 0, v{vT0}"); e(f"v_and_b32 v{vT1}, 3, v{vT1}")
        e(f"v_xor_b32 v{vT1}, v{vT1}, v{vLN}"); e(f"v_and_b32 v{vT1}, 15, v{vT1}"); e(f"v_lshlrev_b32 v{vT1}, 4, v{vT1}")
        e(f"v_lshl_add_u32 v{vT1}, v{vT0}, 12, v{vT1}")
    def x_srd(lo):
        e(f"s_lshl_b32 s{sTMP}, s{sB}, 16")
        e(f"s_add_u32 s{sX}, s{lo}, s{sTMP}"); e(f"s_addc_u32 s{sX+1}, s{lo+1}, 0"); e(f"s_mov_b32 s{sX+2}, 0x10000"); e(f"s_mov_b32 s{sX+3}, 0x20000")
    def wo_srd(lo):
        e(f"s_lshl_b32 s{sTMP}, s{sG}, 19"); e(f"s_lshl_b32 s{sTMP2}, s{sW}, 8"); e(f"s_add_u32 s{sTMP}, s{sTMP}, s{sTMP2}")
        e(f"s_add_u32 s{sWO}, s{lo}, s{sTMP}"); e(f"s_addc_u32 s{sWO+1}, s{lo+1}, 0")
        e(f"s_sub_u32 s{sWO}, s{sWO}, {WBIAS}"); e(f"s_subb_u32 s{sWO+1}, s{sWO+1}, 0")
        e(f"s_sub_u32 s{sWO+2}, {0x400000 + WBIAS}, s{sTMP}"); e(f"s_mov_b32 s{sWO+3}, 0x20000")
    def coop_prefetch(lo, sh, goff_sh, flag):
        if flag == "2x":
            coop_prefetch(lo, sh, goff_sh, "nt"); e("s_waitcnt vmcnt(0)"); coop_prefetch(lo, sh, goff_sh, ""); return
        e(f"s_lshl_b32 s{sTMP}, s{sG}, {goff_sh}")
        e(f"s_add_u32 s{sPF}, s{lo}, s{sTMP}"); e(f"s_addc_u32 s{sPF+1}, s{lo+1}, 0")
        e(f"s_sub_u32 s{sPF+2}, 0x400000, s{sTMP}"); e(f"s_mov_b32 s{sPF+3}, 0x20000")
        e(f"s_lshl_b32 s{sTMP}, s{sB}, 2"); e(f"s_add_u32 s{sTMP}, s{sTMP}, s{sW}"); e(f"s_lshl_b32 s{sTMP}, s{sTMP}, {sh+2}")
        for r in range(4):
            e(f"buffer_load_dwordx4 {vr(S + 4*r, 4)}, v{vDV}, {srd(sPF)}, s{sTMP} offen {flag}")
            if r < 3: e(f"s_add_u32 s{sTMP}, s{sTMP}, {1 << sh}")

    def proj(kind):
        def ra(n):
            p = n % 2
            return [f"ds_read_b64_tr_b16 {vr(AF + p*16 + d*4 + ee*2, 2)}, v{vWA} offset:{wslot(n)*HALF + ee*512 + d*32}" for d in range(4) for ee in range(2)]
        def rb(ks, qts):
            return [f"ds_read_b128 {vr(BF + (ks % 2)*16 + qt*4, 4)}, v{vXA} offset:{(ks >> 2)*CHUNK + qt*HALF + (ks & 3)*64}" for qt in qts]
        e("s_waitcnt vmcnt(8)")
        emit(rb(0, range(4))); emit(ra(0))
        e("s_waitcnt lgkmcnt(0)")
        for n in range(32):
            stamp(f"{kind}{n}")
            ks, ch, p = n >> 1, n & 1, n % 2
            rd = ra(n + 1) if n < 31 else []
            if ks < 15: rd = rd + rb(ks + 1, (2*ch, 2*ch + 1))
            dm = w_issue(n + 3, kind) if n + 3 < 32 else []
            if n < 31:
                e("s_waitcnt vmcnt(4)" if (n <= 29) else "s_waitcnt vmcnt(0)")
            if kind == "q" and n in (6, 14, 22): e("s_barrier")
            if n == 30:
                if kind == "q": e("s_barrier")
                elif abar == 30: e("s_barrier")
                else:
                    l1 = lab("nb"); e(f"s_cmp_eq_u32 s{sROLE}, 0"); e(f"s_cbranch_scc1 {l1}"); e("s_barrier"); e(f"{l1}:")
            if kind == "o" and n == abar and abar != 30:
                l1 = lab("nb"); e(f"s_cmp_eq_u32 s{sROLE}, 0"); e(f"s_cbranch_scc0 {l1}"); e("s_barrier"); e(f"{l1}:")
            gaps = [[] for _ in range(16)]
            for i, x in enumerate(rd): gaps[i].append(x)
            if dm:
                gaps[3].append(dm[0])
                for i in range(4): gaps[4 + 2*i].append(dm[1 + i])
                gaps[11].append(dm[5])
            k = 0
            for d in range(4):
                for qt in (range(3, -1, -1) if (snake and d % 2) else range(4)):
                    r = vr(acc(4*ch + d, qt), 4)
                    e(f"{MF} {r}, {vr(AF + p*16 + d*4, 4)}, {vr(BF + (ks % 2)*16 + qt*4, 4)}, {r if ks else '0'}")
                    emit(gaps[k]); k += 1
            if n < 31: e("s_waitcnt lgkmcnt(0)")

    def Sr(qt, u): return S + qt*8 + u*4
    def exps(qt, u): return [f"v_exp_f32 v{Sr(qt, u)+i}, v{Sr(qt, u)+i}" for i in range(4)]
    def cvts(qt, u): return [f"v_cvt_pk_bf16_f32 v{S+qt*8+2*u+i}, v{Sr(qt, u)+2*i}, v{Sr(qt, u)+2*i+1}" for i in range(2)]
    def kr(f): return f"ds_read_b128 {vr(F + (f % 3)*4, 4)}, v{vKA} offset:{(f >> 2)*512 + (f & 3)*64}"
    vbuf = [F, F + 4, F + 8, S + 4, S + 12, S + 20, S + 28, F]
    def vrd(dt): return [f"ds_read_b64_tr_b16 {vr(vbuf[dt] + 2*u, 2)}, v{vVA} offset:{u*512 + dt*32}" for u in range(2)]
    def sums(qt): return [f"v_mfma_f32_4x4x4_16b_bf16 {vr(L, 4)}, {vr(ONES, 2)}, {vr(S + qt*8 + 2*h, 2)}, {vr(L, 4)} cbsz:2 abid:{qt}" for h in range(2)]
    def pv(dt, qt): return f"{MF} {vr(acc(dt, qt), 4)}, {vr(vbuf[dt], 4)}, {vr(S + qt*8, 4)}, {vr(acc(dt, qt), 4)}"
    def qk(fill):
        for f in range(3): e(kr(f))
        m = 0
        for f in range(8):
            u, s = f >> 2, f & 3
            e(f"s_waitcnt lgkmcnt({min(2, 7 - f)})")
            for qt in range(4):
                r = vr(Sr(qt, u), 4)
                e(f"{MF} {r}, {vr(F + (f % 3)*4, 4)}, {vr(Q + (qt*4 + s)*4, 4)}, {r if s else '0'}")
                if u == 1:
                    if m >= 3 and fill: e(fill.pop(0))
                    m += 1
            if f + 3 < 8: e(kr(f + 3))
    def pv_phase(pre):
        emit(pre[0]); emit(vrd(3))
        for qt in range(4):
            nxt = (pre[qt + 1] + vrd(4 + qt)) if qt < 3 else []
            per = math.ceil(len(nxt) / 4)
            sm = sums(qt)
            for dt in range(3):
                if qt == 0: e(f"s_waitcnt lgkmcnt({6 - 2*dt})")
                e(pv(dt, qt)); emit(nxt[dt*per:(dt+1)*per])
                if dt == 0: e(sm[0])
            e(sm[1]); emit(nxt[3*per:])
        emit(vrd(7))
        for dt in range(3, 8):
            e(f"s_waitcnt lgkmcnt({2*(7 - dt)})")
            for qt in (range(3, -1, -1) if (snake and dt % 2) else range(4)): e(pv(dt, qt))
    def tile(after_qk, before_v, after_pv):
        fill = []
        for qt in range(4): fill += exps(qt, 0)
        for qt in range(4): fill += cvts(qt, 0)
        qk(fill)
        emit(fill)
        after_qk()
        before_v()
        for dt in range(3): emit(vrd(dt))
        pv_phase([exps(qt, 1) + cvts(qt, 1) for qt in range(4)])
        after_pv()
    def xlane(op, reg, tmp):
        for sw in ("32", "16"):
            e(f"v_mov_b32 v{tmp}, v{reg}"); e(f"v_permlane{sw}_swap_b32 v{reg}, v{tmp}"); e(f"{op} v{reg}, v{reg}, v{tmp}")
    def waitn(sreg, mx):
        end = lab("wn")
        for n in range(mx, 0, -1):
            e(f"s_waitcnt vmcnt({8*n})"); e(f"s_cmp_ge_u32 s{sreg}, {n}"); e(f"s_cbranch_scc1 {end}")
        e("s_waitcnt vmcnt(0)"); e(f"{end}:")
    def flag_srd(branch):
        e(f"s_add_u32 s{sPF}, s28, 0x2000000"); e(f"s_addc_u32 s{sPF+1}, s29, 0"); e(f"s_mov_b32 s{sPF+2}, 0x8000"); e(f"s_mov_b32 s{sPF+3}, 0x20000")
        e(f"s_mul_i32 s{sOFF}, s{sB}, 768"); e(f"s_add_u32 s{sOFF}, s{sOFF}, {branch*256}")
    def dbg_srd():
        e(f"s_mov_b32 s{sPF}, s26"); e(f"s_mov_b32 s{sPF+1}, s27"); e(f"s_mov_b32 s{sPF+2}, 256"); e(f"s_mov_b32 s{sPF+3}, 0x20000")
        e(f"s_lshl_b32 s{sOFF}, s{sB}, 3")
    def poll(branch_off, first=None, tmp=vT0, slp=slp):
        l0, l1 = lab("pl"), lab("pl")
        if branch_off is None: dbg_srd()
        else: flag_srd(branch_off)
        e("s_mov_b64 exec, 1")
        if first: first(l1)
        e(f"s_mov_b32 s{sTMP2}, 0x40000")
        e(f"{l0}:")
        e(f"buffer_load_dword v{tmp}, off, {srd(sPF)}, s{sOFF} sc1")
        e("s_waitcnt vmcnt(0)")
        e(f"v_readfirstlane_b32 s{sTMP}, v{tmp}")
        e(f"s_cmp_eq_u32 s{sTMP}, 8"); e(f"s_cbranch_scc1 {l1}")
        e(f"s_sleep {slp}")
        e(f"s_sub_u32 s{sTMP2}, s{sTMP2}, 1"); e(f"s_cmp_lg_u32 s{sTMP2}, 0"); e(f"s_cbranch_scc1 {l0}")
        e(f"{l1}:")
        e("s_mov_b64 exec, -1")
    RK = 192; RL = 128
    def reduce():
        e(f"s_xor_b32 s{sTMP2}, s{sROLE}, 1")
        e(f"s_lshl_b32 s{sTMP}, s{sTMP2}, 5"); e(f"s_add_u32 s{sTMP}, s{sTMP}, s{sB}"); e(f"s_lshl_b32 s{sTMP}, s{sTMP}, 19")
        e(f"s_add_u32 s{sP}, s28, s{sTMP}"); e(f"s_addc_u32 s{sP+1}, s29, 0"); e(f"s_mov_b32 s{sP+2}, 0x80000"); e(f"s_mov_b32 s{sP+3}, 0x20000")
        e(f"s_mul_i32 s{sOFF}, s{sG}, {65536 + 2048}"); e(f"s_lshl_b32 s{sTMP}, s{sW}, 14"); e(f"s_add_u32 s{sOFF}, s{sOFF}, s{sTMP}")
        for k in range(7):
            e(f"s_add_u32 s{sOFF}, s{sOFF}, 0x10000"); e(f"s_and_b32 s{sOFF}, s{sOFF}, 0x7ffff")
            for f in range(2):
                e(f"buffer_load_dwordx4 {vr(RL + 8*k + 4*f, 4)}, v{vDV}, {srd(sP)}, s{sOFF} offen offset:{f*1024} sc1")
        e(f"s_mov_b32 s{sPF}, s24"); e(f"s_mov_b32 s{sPF+1}, s25"); e(f"s_mov_b32 s{sPF+2}, 0x400000"); e(f"s_mov_b32 s{sPF+3}, 0x20000")
        e(f"s_lshl_b32 s{sOFF}, s{sB}, 17"); e(f"s_lshl_b32 s{sTMP2}, s{sTMP2}, 10"); e(f"s_add_u32 s{sOFF}, s{sOFF}, s{sTMP2}")
        e(f"s_lshr_b32 s{sTMP}, s{sG}, 1"); e(f"s_lshl_b32 s{sTMP}, s{sTMP}, 15"); e(f"s_add_u32 s{sOFF}, s{sOFF}, s{sTMP}")
        e(f"s_lshl_b32 s{sTMP}, s{sW}, 8"); e(f"s_add_u32 s{sOFF}, s{sOFF}, s{sTMP}")
        e(f"s_and_b32 s{sTMP}, s{sG}, 1"); e(f"s_lshl_b32 s{sTMP}, s{sTMP}, 7"); e(f"s_add_u32 s{sOFF}, s{sOFF}, s{sTMP}")
        e(f"v_and_b32 v{vT0}, 15, v{vLN}"); e(f"v_lshlrev_b32 v{vT1}, 11, v{vT0}")
        e(f"v_bfe_u32 v{vT0}, v{vLN}, 4, 1"); e(f"v_lshl_add_u32 v{vT1}, v{vT0}, 5, v{vT1}")
        e(f"v_lshrrev_b32 v{vT0}, 5, v{vLN}"); e(f"v_lshl_add_u32 v{vT1}, v{vT0}, 4, v{vT1}")
        for k in range(7):
            for f in range(2):
                e(f"s_waitcnt vmcnt({(6 - k)*2 + 1 - f})")
                src, dst, tmp = RL + 8*k + 4*f, RK + 8*f, RK + 16 + 8*f
                for i in range(4):
                    e(f"v_lshlrev_b32 v{tmp+2*i}, 16, v{src+i}"); e(f"v_and_b32 v{tmp+2*i+1}, 0xffff0000, v{src+i}")
                for i in range(8): e(f"v_add_f32 v{dst+i}, v{dst+i}, v{tmp+i}")
        stamp("summed")
        for f in range(2):
            dst = RK + 8*f
            for i in range(4): e(f"v_cvt_pk_bf16_f32 v{dst+i}, v{dst+2*i}, v{dst+2*i+1}")
        for f in range(2):
            dst = RK + 8*f
            e(f"v_permlane16_swap_b32 v{dst}, v{dst+2}"); e(f"v_permlane16_swap_b32 v{dst+1}, v{dst+3}")
            e(f"buffer_store_dwordx4 {vr(dst, 4)}, v{vT1}, {srd(sPF)}, s{sOFF} offen offset:{f*64} {ostore}")
    def lds_arrive(word, last):
        e("s_waitcnt vmcnt(0)")
        e(f"v_mov_b32 v{vT0}, {CNT + 4*word}"); e(f"v_mov_b32 v{vT1}, 1")
        e("s_mov_b64 exec, 1")
        e(f"ds_add_rtn_u32 v{vT0}, v{vT0}, v{vT1}")
        e("s_waitcnt lgkmcnt(0)")
        e(f"v_readfirstlane_b32 s{sTMP}, v{vT0}")
        e(f"s_cmp_eq_u32 s{sTMP}, 3"); e(f"s_cbranch_scc0 {last}")

    if stamps: e(f"; stamps: {stamps}")
    e(f"; @launch grid=(256,1,1) block=(512,1,1) lds={LDS}")
    e('.amdgcn_target "amdgcn-amd-amdhsa--gfx950"')
    e(".text"); e(f".globl {NAME}_kernel"); e(".p2align 8"); e(f".type {NAME}_kernel,@function")
    e(f"{NAME}_kernel:")
    e("s_cmp_ge_u32 s2, 256"); e("s_cbranch_scc1 L_end")
    e("s_load_dwordx16 s[4:19], s[0:1], 0"); e("s_load_dwordx8 s[20:27], s[0:1], 64"); e("s_load_dwordx2 s[28:29], s[0:1], 96")
    if stamps:
        for i in range(16): e(f"s_mov_b32 s{sST+i}, 0")
        e("s_memtime s[100:101]")
    stamp("start")
    if calib: e("s_memrealtime s[92:93]")
    e(f"v_lshrrev_b32 v1, 6, v0"); e(f"v_and_b32 v{vLN}, 63, v0"); e(f"v_readfirstlane_b32 s{sTMP}, v1")
    e(f"s_and_b32 s{sG}, s2, 7"); e(f"s_lshr_b32 s{sB}, s2, 3")
    e(f"s_and_b32 s{sW}, s{sTMP}, 3"); e(f"s_lshr_b32 s{sROLE}, s{sTMP}, 2"); e(f"s_lshr_b32 s{sHI}, s{sW}, 1")
    e(f"s_mul_i32 s{sWRB}, s{sW}, {WRING}"); e(f"s_add_u32 s{sWRB}, s{sWRB}, {WR0}")
    e(f"v_lshlrev_b32 v{vDV}, 4, v{vLN}")
    w_setup("q")
    x_voff()
    e("s_waitcnt lgkmcnt(0)")
    e(f"s_cmp_eq_u32 s{sROLE}, 0")
    e(f"s_cselect_b32 s{sWQ}, s20, s10"); e(f"s_cselect_b32 s{sWQ+1}, s21, s11")
    e(f"s_lshl_b32 s{sTMP}, s{sG}, 2"); e(f"s_add_u32 s{sTMP}, s{sTMP}, s{sW}"); e(f"s_lshl_b32 s{sTMP}, s{sTMP}, 8")
    e(f"s_add_u32 s{sWQ}, s{sWQ}, s{sTMP}"); e(f"s_addc_u32 s{sWQ+1}, s{sWQ+1}, 0")
    e(f"s_sub_u32 s{sWQ}, s{sWQ}, {WBIAS}"); e(f"s_subb_u32 s{sWQ+1}, s{sWQ+1}, 0")
    e(f"s_sub_u32 s{sWQ+2}, {0x400000 + WBIAS}, s{sTMP}"); e(f"s_mov_b32 s{sWQ+3}, 0x20000")
    e(f"s_cmp_eq_u32 s{sROLE}, 0"); e("s_cbranch_scc1 L_first_B")
    if prioA: e(f"s_setprio {prioA}")
    if codepf:
        e("s_getpc_b64 s[94:95]"); e("L_pc:")
        e(f"s_lshl_b32 s{sTMP}, s{sB}, 2"); e(f"s_add_u32 s{sTMP}, s{sTMP}, s{sW}"); e(f"s_lshl_b32 s{sTMP}, s{sTMP}, 7")
        e(f"v_lshl_add_u32 v2, v{vLN}, 14, s{sTMP}")
        e(f"v_min_u32 v2, L_last-L_pc-4, v2")
        e(f"v_mov_b32 v3, s95"); e("v_add_co_u32 v2, vcc, s94, v2"); e("v_addc_co_u32 v3, vcc, 0, v3, vcc")
        e("s_mov_b64 exec, 15")
        e("global_load_dword v4, v[2:3], off")
        e("s_mov_b64 exec, -1")
    x_srd(14); x_issue(0)
    coop_prefetch(20, 13, 10, wq_pf)
    e("s_branch L_common")
    e("L_first_B:")
    stamp("first")
    if prioB: e(f"s_setprio {prioB}")
    for n in range(3): emit(w_issue(n, "q"))
    x_srd(4)
    e("L_common:")
    assert mask == 0
    wt = mask.bit_length() // 2 + 1 if mask else 0
    if not mask: groups = tuple((d, d) for d in groups)
    for reg, k in ((sD, 0), (sD4, 1)):
        tab = [groups[b * len(groups) // 32][k] for b in range(32)]
        assert all(0 <= g[0] and g[0] + wt <= g[1] <= 15 for g in groups)
        wd = [sum(tab[8*i + j] << (4*j) for j in range(8)) for i in range(4)]
        e(f"s_bitcmp0_b32 s{sB}, 3")
        e(f"s_mov_b32 s{sTMP}, {wd[1]:#x}"); e(f"s_cselect_b32 s{sTMP}, {wd[0]:#x}, s{sTMP}")
        e(f"s_mov_b32 s{sTMP2}, {wd[3]:#x}"); e(f"s_cselect_b32 s{sTMP2}, {wd[2]:#x}, s{sTMP2}")
        e(f"s_bitcmp0_b32 s{sB}, 4"); e(f"s_cselect_b32 s{sTMP}, s{sTMP}, s{sTMP2}")
        e(f"s_and_b32 s{sTMP2}, s{sB}, 7"); e(f"s_lshl_b32 s{sTMP2}, s{sTMP2}, 2")
        e(f"s_lshr_b32 s{sTMP}, s{sTMP}, s{sTMP2}"); e(f"s_and_b32 s{reg}, s{sTMP}, 15")
    e(f"s_lshl_b32 s{sTMP}, s{sHI}, 1"); e(f"s_add_u32 s{sTMP}, s{sTMP}, s{sW}"); e(f"s_mul_i32 s{sKB}, s{sTMP}, {CHUNK}")
    def dk_setup():
        e(f"v_bfe_u32 v{vT0}, v{vLN}, 4, 1"); e(f"v_lshlrev_b32 v{vT0}, 4, v{vT0}"); e(f"v_xor_b32 v{vDK}, v{vDV}, v{vT0}")
    dk_setup()
    t0, t1 = F, F + 1
    e(f"v_and_b32 v{t0}, 7, v{vLN}"); e(f"v_mul_u32_u24 v{vKA}, {KBLK}, v{t0}")
    e(f"v_bfe_u32 v{t0}, v{vLN}, 3, 1"); e(f"v_lshl_add_u32 v{vKA}, v{t0}, 8, v{vKA}")
    e(f"v_lshrrev_b32 v{t1}, 5, v{vLN}"); e(f"v_xor_b32 v{t0}, v{t0}, v{t1}"); e(f"v_lshl_add_u32 v{vKA}, v{t0}, 4, v{vKA}")
    e(f"v_bfe_u32 v{t0}, v{vLN}, 4, 1"); e(f"v_lshl_add_u32 v{vKA}, v{t0}, 5, v{vKA}")
    e(f"v_bfe_u32 v{t0}, v{vLN}, 2, 3"); e(f"v_mul_u32_u24 v{vVA}, {VBLK}, v{t0}")
    e(f"v_lshl_add_u32 v{vVA}, v{t1}, 8, v{vVA}")
    e(f"v_and_b32 v{t0}, 3, v{vLN}"); e(f"v_lshl_add_u32 v{vVA}, v{t0}, 3, v{vVA}")
    def wx_setup():
        e(f"v_and_b32 v{t0}, 3, v{vLN}")
        e(f"v_bfe_u32 v{t1}, v{vLN}, 2, 2"); e(f"v_mul_u32_u24 v{vWA}, {VBLK}, v{t1}")
        e(f"v_lshl_add_u32 v{vWA}, v{t0}, 3, v{vWA}")
        e(f"v_lshrrev_b32 v{t0+2}, 4, v{vLN}"); e(f"v_lshl_add_u32 v{vWA}, v{t0+2}, 7, v{vWA}"); e(f"v_add_u32 v{vWA}, s{sWRB}, v{vWA}")
        e(f"v_mul_u32_u24 v{vXA}, {KBLK}, v{t0}"); e(f"v_lshl_add_u32 v{vXA}, v{t1}, 8, v{vXA}")
        e(f"v_sub_u32 v{t0+3}, 0, v{t1}"); e(f"v_and_b32 v{t0+3}, 3, v{t0+3}"); e(f"v_xor_b32 v{t0+3}, v{t0+3}, v{t0+2}")
        e(f"v_lshl_add_u32 v{vXA}, v{t0+3}, 4, v{vXA}"); e(f"v_add_u32 v{vXA}, {XB}, v{vXA}")
    wx_setup()
    e(f"v_cmp_eq_u32 vcc, v{t0}, v{t1}"); e(f"v_mov_b32 v{t0+2}, 0x3f803f80")
    e(f"v_cndmask_b32 v{ONES}, 0, v{t0+2}, vcc"); e(f"v_mov_b32 v{ONES+1}, v{ONES}")
    for i in range(4): e(f"v_mov_b32 v{L+i}, 0")
    e(f"s_lshl_b32 s{sTMP}, s2, 2"); e(f"s_add_u32 s{sTMP}, s{sTMP}, s{sW}")
    e(f"s_mul_i32 s{sROT}, s{sTMP}, {rot_mul}"); e(f"s_and_b32 s{sROT}, s{sROT}, 15"); e(f"s_lshl_b32 s{sROT}, s{sROT}, 13")
    e(f"s_lshl_b32 s{sTMP}, s{sTMP}, 17")
    for r, p in ((sK, 16), (sV, 18)):
        e(f"s_add_u32 s{r}, s{p}, s{sTMP}"); e(f"s_addc_u32 s{r+1}, s{p+1}, 0"); e(f"s_mov_b32 s{r+2}, 0x20000"); e(f"s_mov_b32 s{r+3}, 0x20000")
    e(f"s_bitcmp0_b32 s{sW}, 0")
    e(f"s_cselect_b32 s{sIT}, s6, s8"); e(f"s_cselect_b32 s{sIT+1}, s7, s9"); e(f"s_cselect_b32 s{sIST}, {KBLK-1024}, {VBLK-1024}")
    e(f"s_cselect_b64 vcc, -1, 0")
    e(f"v_cndmask_b32 v{vIT}, v{vDV}, v{vDK}, vcc")
    e(f"s_lshl_b32 s{sTMP}, s2, 17")
    e(f"s_add_u32 s{sIT}, s{sIT}, s{sTMP}"); e(f"s_addc_u32 s{sIT+1}, s{sIT+1}, 0"); e(f"s_mov_b32 s{sIT+2}, 0x20000"); e(f"s_mov_b32 s{sIT+3}, 0x20000")
    e(f"s_mul_i32 s{sROTA}, s2, {rot_mul}"); e(f"s_and_b32 s{sROTA}, s{sROTA}, 15"); e(f"s_lshl_b32 s{sROTA}, s{sROTA}, 1"); e(f"s_add_u32 s{sROTA}, s{sROTA}, s{sHI}"); e(f"s_lshl_b32 s{sROTA}, s{sROTA}, 12")
    wo_srd(12)
    e(f"s_cmp_eq_u32 s{sROLE}, 0"); e("s_cbranch_scc1 L_Binit")
    e(f"v_add_u32 v{vKA}, {XB}, v{vKA}"); e(f"v_add_u32 v{vVA}, {XB + SLOT}, v{vVA}")
    e(f"v_mov_b32 v{t0}, {CNT}"); e(f"ds_write_b128 v{t0}, {vr(L, 4)}")
    e("s_waitcnt vmcnt(4) lgkmcnt(0)"); e("s_barrier")
    x_issue(1)
    e(f"s_or_b32 s{sTMP}, s{sG}, s{sW}"); e(f"s_cmp_eq_u32 s{sTMP}, 0"); e("s_cbranch_scc0 L_noinit")
    flag_srd(0)
    e("s_mov_b64 exec, 1")
    e(f"buffer_store_dword v{L}, off, {srd(sPF)}, s{sOFF} sc1"); e(f"buffer_store_dword v{L}, off, {srd(sPF)}, s{sOFF} offset:256 sc1")
    e("s_waitcnt vmcnt(0)")
    dbg_srd()
    e(f"v_mov_b32 v{vT0}, 8"); e(f"buffer_store_dword v{vT0}, off, {srd(sPF)}, s{sOFF} sc1")
    e("s_mov_b64 exec, -1")
    e("s_branch L_init2")
    e("L_noinit:")
    e("s_waitcnt vmcnt(0)")
    e("L_init2:")
    e("s_barrier")
    x_issue(2); x_issue(3)
    e("s_waitcnt vmcnt(4)"); e("s_barrier")
    if hpf == 1:
        coop_prefetch(10, 13, 10, w_pf); xa_touch()
        e("s_waitcnt vmcnt(6)"); e("s_barrier")
        if not coopAA: coop_prefetch(12, 10, 19, w_pf); coop_prefetch(22, 10, 19, w_pf)
    elif hpf == 2:
        coop_prefetch(10, 13, 10, w_pf); xa_touch()
        e("s_waitcnt vmcnt(6)"); e("s_barrier")
        coop_prefetch(12, 10, 19, w_pf)
    else:
        e("s_waitcnt vmcnt(0)"); e("s_barrier")
    if early01:
        e(f"s_cmp_eq_u32 s{sHI}, 0"); e("s_cbranch_scc0 L_h23")
        emit(k_issue()); emit(v_issue()); e("s_barrier"); e("s_branch L_h01")
        e("L_h23:")
    e("s_barrier")
    x_srd(4)
    if any(g[0] == 0 for g in groups):
        if defer01:
            e(f"s_cmp_eq_u32 s{sD}, 0"); e("s_cbranch_scc0 L_hkv")
            e(f"s_cmp_eq_u32 s{sHI}, 0"); e("s_cbranch_scc1 L_h01")
        else:
            e(f"s_cmp_lt_u32 s{sD}, s{sHI}"); e("s_cbranch_scc0 L_hkv")
        emit(x_own(0)); emit(x_own(1)); e("s_branch L_h01")
        e("L_hkv:")
    emit(k_issue()); emit(v_issue())
    e("L_h01:")
    x_srd(4); x_issue(0, xaflag)
    e("s_waitcnt vmcnt(4)"); e("s_barrier")
    if not hpf: coop_prefetch(10, 13, 10, w_pf)
    x_issue(1, xaflag)
    if not hpf: coop_prefetch(12, 10, 19, w_pf)
    e(f"s_lshl_b32 s{sTMP}, s2, 17")
    for r, p in ((sK, 6), (sV, 8)):
        e(f"s_add_u32 s{r}, s{p}, s{sTMP}"); e(f"s_addc_u32 s{r+1}, s{p+1}, 0")
    for n in range(3): emit(w_issue(n, "q"))
    e("s_waitcnt vmcnt(12)")
    e("s_branch L_Qstart")
    e("L_Binit:")
    e(f"v_add_u32 v{vKA}, s{sKB}, v{vKA}"); e(f"v_add_u32 v{vVA}, s{sKB}, v{vVA}"); e(f"v_add_u32 v{vVA}, {SLOT}, v{vVA}")
    e("L_Qstart:")
    e("s_barrier")
    stamp("P0")
    proj("q")
    c = f2u(math.log2(math.e) / math.sqrt(128.0))
    e(f"v_mov_b32 v{vT0}, {c:#x}"); e(f"v_mov_b32 v{vT1}, {c:#x}")
    pend = []
    for s in range(4):
        for qt in range(4):
            b = acc(2*s, qt); q = Q + (qt*4 + s)*4
            for i in range(4): e(f"v_pk_mul_f32 {vr(b+2*i, 2)}, {vr(b+2*i, 2)}, {vr(vT0, 2)}")
            for pq in pend[-1:]: e(f"v_permlane16_swap_b32 v{pq}, v{pq+2}"); e(f"v_permlane16_swap_b32 v{pq+1}, v{pq+3}")
            for i in range(4): e(f"v_cvt_pk_bf16_f32 v{q+i}, v{b+2*i}, v{b+2*i+1}")
            pend.append(q)
    for q in pend[-1:]: e(f"v_permlane16_swap_b32 v{q}, v{q+2}"); e(f"v_permlane16_swap_b32 v{q+1}, v{q+3}")
    stamp("Qdone")
    e(f"s_mov_b32 s{sI}, 0")
    e(f"s_cmp_eq_u32 s{sROLE}, 0"); e("s_cbranch_scc0 L_Aattn")

    def b_wsetup():
        w_setup("o"); e(f"s_mov_b32 s{sWOFF}, {(32 << 10) + 128}")
    for i in range(0, 128, 2): e(f"v_mov_b64 {vr(i, 2)}, 0")
    w_setup("o")
    x_voff()
    e(f"s_mov_b32 s{sN}, 1")
    e("s_barrier")
    e("L_Bloop:")
    e(f"s_cmp_eq_u32 s{sI}, s{sD}"); e("s_cbranch_scc1 L_Bpause1")
    e("L_Bgo:")
    if e0:
        e(f"s_cmp_eq_u32 s{sI}, 15"); e("s_cbranch_scc0 L_noE0"); e("s_barrier"); e("L_noE0:")
    waitn(sN, 2)
    if tl:
        e("s_memrealtime s[98:99]"); e("s_memtime s[96:97]"); e("s_waitcnt lgkmcnt(0)"); e(f"s_mov_b32 m0, s{sI}"); e("s_nop 0"); e(f"v_writelane_b32 v254, s98, m0")
        e(f"s_add_u32 m0, s{sI}, 16"); e("s_nop 0"); e(f"v_writelane_b32 v254, s96, m0")
    def next_item(sbase, cap=None):
        e(f"s_add_u32 s{sROTA}, s{sROTA}, 16384"); e(f"s_and_b32 s{sROTA}, s{sROTA}, 0x1ffff")
        emit(capped(item_issue(sbase), cap))
    def refill(lst, h):
        go, xl, done, skip = lab("rf"), lab("rf"), lab("rf"), lab("rf")
        e(f"s_cmp_eq_u32 s{sTMP2}, 16"); e(f"s_cbranch_scc1 {skip}")
        if defer01:
            e(f"s_cmp_eq_u32 s{sTMP2}, s{sD}"); e(f"s_cbranch_scc0 {go}")
            e(f"s_cmp_eq_u32 s{sHI}, 0"); e(f"s_cbranch_scc1 {skip}")
            e(f"s_branch {xl}")
        else:
            e(f"s_cmp_eq_u32 s{sHI}, 0"); e(f"s_cbranch_scc1 {go}")
            e(f"s_cmp_eq_u32 s{sTMP2}, s{sD}"); e(f"s_cbranch_scc1 {xl}")
        if mask: e(f"s_cmp_eq_u32 s{sTMP2}, s{sD4}"); e(f"s_cbranch_scc1 {skip}")
        e(f"{go}:")
        cm = (capK, capV)[h]
        if cm:
            lc = lab("cp")
            e(f"s_bitcmp1_b32 {cm:#x}, s{sTMP2}"); e(f"s_cbranch_scc1 {lc}")
            late.append((lc, capped(lst, capn), done))
        emit(lst)
        e(f"{done}:")
        e(f"s_add_u32 s{sN}, s{sN}, 1"); e(f"s_add_u32 s{sM}, s{sM}, 1")
        e(f"{skip}:")
        late.append((xl, x_own(h), done))
    late = []
    def window(half):
        l = lab("nw")
        e(f"s_mov_b32 s{sN}, 0")
        if not mask: return
        e(f"s_sub_u32 s{sTMP2}, s{sI}, s{sD}"); e(f"s_cmp_lt_u32 s{sTMP2}, 8"); e(f"s_cbranch_scc0 {l}")
        m = sum(((mask >> (2*k + half)) & 1) << k for k in range(8))
        if m == 0:
            e(f"{l}:"); return
        e(f"s_bitcmp1_b32 {m}, s{sTMP2}"); e(f"s_cbranch_scc0 {l}")
        waitn(sM, 2)
        e("s_barrier")
        e(f"s_add_u32 s{sJ}, s{sJ}, 1")
        if (mask.bit_length() - 1) % 2 == half:
            lw = lab("wo")
            e(f"s_cmp_eq_u32 s{sJ}, 7"); e(f"s_cbranch_scc1 {lw}")
            late.append((lw, w_issue(0, "o") + w_issue(1, "o") + w_issue(2, "o") + [f"s_mov_b32 s{sN}, 1"], l))
        e(f"s_bitcmp1_b32 s{sJ}, 0"); e(f"s_cselect_b32 s{sM}, s{sWRB}, s{sDK}")
        next_item(sM, capI)
        e(f"s_mov_b32 s{sN}, 1"); e(f"s_mov_b32 s{sM}, 0")
        e(f"{l}:")
    def b_after_qk():
        window(0)
        e(f"s_add_u32 s{sROT}, s{sROT}, 8192"); e(f"s_and_b32 s{sROT}, s{sROT}, 0x1ffff")
        e(f"s_add_u32 s{sTMP2}, s{sI}, 1")
        refill(capped(k_issue(), capN), 0)
    def b_after_pv():
        window(1)
        e(f"s_add_u32 s{sI}, s{sI}, 1"); e(f"s_mov_b32 s{sTMP2}, s{sI}")
        refill(capped(v_issue(), capN), 1)
        e(f"s_cmp_eq_u32 s{sI}, 16"); e("s_cbranch_scc0 L_Bloop")
        e("s_branch L_Oepi")
    tile(b_after_qk, lambda: waitn(sN, 2), b_after_pv)
    for xl, lst, done in late:
        e(f"{xl}:"); emit(lst); e(f"s_branch {done}")
    e("L_Bpause1:")
    e(f"s_and_b32 s{sDK}, s{sW}, 1"); e(f"s_mul_i32 s{sDK}, s{sDK}, {SLOT}"); e(f"s_add_u32 s{sDK}, s{sDK}, {XB}")
    e(f"s_add_u32 s{sTMP}, s{sIST}, 1024"); e(f"s_mul_i32 s{sTMP}, s{sTMP}, s{sHI}"); e(f"s_lshl_b32 s{sTMP}, s{sTMP}, 2"); e(f"s_add_u32 s{sDK}, s{sDK}, s{sTMP}")
    e("s_barrier")
    e(f"s_cmp_eq_u32 s{sW}, 0"); e("s_cbranch_scc0 L_nochk")
    poll(None, tmp=F)
    e("L_nochk:")
    e("s_barrier")
    e("s_waitcnt vmcnt(0)"); e("s_barrier")
    e("s_barrier"); e("s_barrier")
    def half_item(t):
        e(f"s_add_u32 m0, s{sDK}, {(t % 4)*CHUNK}")
        for j in range(4):
            if j: e(f"s_add_u32 m0, m0, s{sIST}")
            e(f"buffer_load_dwordx4 v{vIT}, {srd(sIT)}, s{sROTA} offen offset:{j*1024} {kv} lds")
        e(f"s_add_u32 s{sROTA}, s{sROTA}, 8192"); e(f"s_and_b32 s{sROTA}, s{sROTA}, 0x1ffff")
    def serve(extra):
        q = []
        def item(t): half_item(t); q.extend([t]*4)
        item(0); item(1); issued = 2
        for t in range(16):
            last = max(i for i, x in enumerate(q) if x == t)
            e(f"s_waitcnt vmcnt({len(q) - 1 - last})"); e("s_barrier")
            while issued < min(16, t + depth + 1):
                item(issued); issued += 1
            for x in extra.get(t, []):
                e(x)
                if x.startswith("buffer_load"): q.append(-1)
    lo, hi = {}, {}
    if defer01:
        ks, vs = k_issue(), v_issue()
        cut = lambda l: (l[:9], l[9:])
        lo[2], lo[4] = cut(ks); lo[6], lo[8] = cut(vs)
    if coopAA:
        assert all(g[0] == 0 for g in [groups[b * len(groups) // 32] for b in range(8)])
        e(f"s_cmp_lt_u32 s{sB}, 8"); e(f"s_cselect_b32 s{sPF}, s12, s22"); e(f"s_cselect_b32 s{sPF+1}, s13, s23")
        e(f"s_lshl_b32 s{sTMP}, s{sG}, 3"); e(f"s_and_b32 s{sTMP2}, s{sB}, 7"); e(f"s_add_u32 s{sTMP}, s{sTMP}, s{sTMP2}")
        e(f"s_lshl_b32 s{sTMP}, s{sTMP}, 1"); e(f"s_and_b32 s{sTMP2}, s{sW}, 1"); e(f"s_add_u32 s{sTMP}, s{sTMP}, s{sTMP2}"); e(f"s_lshl_b32 s{sTMP}, s{sTMP}, 15")
        e(f"s_add_u32 s{sPF}, s{sPF}, s{sTMP}"); e(f"s_addc_u32 s{sPF+1}, s{sPF+1}, 0")
        e(f"s_sub_u32 s{sTMP}, s{sB}, 8"); e(f"s_cmp_lt_u32 s{sTMP}, 16"); e(f"s_cselect_b32 s{sPF+2}, 0, 0x8000"); e(f"s_mov_b32 s{sPF+3}, 0x20000")
        for t in range(8):
            hi[t + 1] = [f"s_mov_b32 s{sOFF}, {t*4096}"] + [f"buffer_load_dwordx4 {vr(S + 4*j, 4)}, v{vDV}, {srd(sPF)}, s{sOFF} offen offset:{j*1024} {w_pf}" for j in range(4)]
    if lo != hi:
        e(f"s_cmp_eq_u32 s{sHI}, 0"); e("s_cbranch_scc1 L_servelo")
        serve(hi); e("s_branch L_served")
        e("L_servelo:")
    serve(lo)
    e("L_served:")
    for n in range(3): emit(w_issue(n, "o"))
    e("L_Bpause2:")
    wo_srd(22)
    e("s_barrier"); e("s_waitcnt vmcnt(0)"); e("s_barrier"); e("s_barrier")
    e(f"s_mov_b32 s{sN}, 1")
    e(f"s_cmp_eq_u32 s{sHI}, 0"); e(f"s_cbranch_scc1 L_Bgo")
    emit(k_issue()); emit(v_issue())
    e("s_branch L_Bgo")

    FB = [F, F + 4, F + 8, 244, 248, 252]
    kb = [0, 1, 2, 3, 4, 5, 0, 1]
    vb = [FB[2], FB[3], FB[4], FB[5], FB[0], FB[1], S + 4, S + 12]
    def akr(f): return f"ds_read_b128 {vr(FB[kb[f]], 4)}, v{vKA} offset:{(f >> 2)*512 + (f & 3)*64}"
    def avr(dt): return [f"ds_read_b64_tr_b16 {vr(vb[dt] + 2*u, 2)}, v{vVA} offset:{u*512 + dt*32}" for u in range(2)]
    first = [False]
    def apv(dt, qt): return f"{MF} {vr(acc(dt, qt), 4)}, {vr(vb[dt], 4)}, {vr(S + qt*8, 4)}, {'0' if first[0] else vr(acc(dt, qt), 4)}"
    def weave(mf, fill):
        cost = [2 if (x.startswith("v_exp") or x.startswith("v_mfma")) else 1 for x in fill]
        tot = sum(cost); cum = 0; k = 0
        for i, m in enumerate(mf):
            e(m)
            while k < len(fill) and (cum + cost[k]) * len(mf) <= (i + 1) * tot + len(mf) // 2:
                e(fill[k]); cum += cost[k]; k += 1
        emit(fill[k:])
    def atile(odd):
        ex = exps(0, 0) + exps(1, 0) + exps(2, 0)
        for f in range(8):
            u, sx = f >> 2, f & 3
            if f == 0: e("s_waitcnt lgkmcnt(2)")
            if f in (2, 4): e("s_waitcnt lgkmcnt(4)")
            for qt in range(4):
                r = vr(Sr(qt, u), 4)
                e(f"{MF} {r}, {vr(FB[kb[f]], 4)}, {vr(Q + (qt*4 + sx)*4, 4)}, {r if sx else '0'}")
                if f == 0 and qt < 2: e(akr(4 + qt))
                if f == 2 and qt == 0: e(f"v_add_u32 v{vKA}, {f's{sDK}' if odd else CHUNK}, v{vKA}")
                if u == 1 and (f, qt) != (4, 0) and (qt < 3 or f == 7): e(ex.pop(0))
            if f < 2: e(akr(6 + f))
            else: emit(avr(f - 2))
        assert not ex
        emit(exps(0, 1)); emit(cvts(0, 0)); emit(cvts(0, 1)); emit(avr(6))
        e("s_waitcnt lgkmcnt(6)")
        b0 = [apv(dt, 0) for dt in range(6)]
        b0[3] += "\ns_waitcnt lgkmcnt(2)"
        weave(b0, exps(1, 1) + cvts(1, 0) + cvts(1, 1))
        emit(avr(7))
        s0, s1, s2, s3 = (sums(qt) for qt in range(4))
        b1 = [apv(dt, 1) for dt in (range(5, -1, -1) if snake else range(6))]
        b1[1] = s0[0] + "\n" + b1[1]; b1[3] = s0[1] + "\n" + b1[3]
        weave(b1, exps(2, 1) + cvts(2, 0) + cvts(2, 1))
        e(f"v_add_u32 v{vVA}, {f's{sDK}' if odd else CHUNK}, v{vVA}")
        b2 = [apv(dt, 2) for dt in range(6)] + ([apv(6, 0), apv(7, 0), apv(7, 1), apv(6, 1)] if snake else [apv(6, 0), apv(7, 0), apv(6, 1), apv(7, 1)])
        b2[0] = s1[0] + "\n" + b2[0]; b2[2] = s1[1] + "\n" + b2[2]; b2[4] = s2[0] + "\n" + b2[4]
        b2[6] = "s_waitcnt lgkmcnt(0)\n" + b2[6]
        weave(b2, exps(3, 0) + exps(3, 1) + cvts(3, 0) + cvts(3, 1))
        e(s2[1])
        if not odd: e(f"s_add_u32 s{sI}, s{sI}, 1")
        e("s_barrier")
        for k, dt in enumerate((4, 5, 0, 1)):
            e(apv(dt, 3)); e(akr(k))
        e(s3[0]); e(apv(2, 3))
        if odd: e(f"s_xor_b32 s{sDK}, s{sDK}, {dKx:#x}")
        e(apv(3, 3)); e(s3[1])
        e(apv(6, 3)); e(apv(7, 3))
        if odd: e(f"s_cmp_eq_u32 s{sI}, 8")
        e(apv(7, 2)); e(apv(6, 2))
    dKx = CHUNK ^ ((-3*CHUNK) & 0xffffffff)
    e("L_Aattn:")
    e(f"s_mov_b32 s{sDK}, {CHUNK}")
    e("s_barrier")
    stamp("L0")
    if stamps and "L0" in stamps: e("s_waitcnt lgkmcnt(0)")
    for f in range(4): e(akr(f))
    first[0] = True; atile(0); first[0] = False
    e("s_branch L_Aodd")
    e("L_Aloop:")
    atile(0)
    e("L_Aodd:")
    atile(1)
    e("s_cbranch_scc0 L_Aloop")
    e("s_waitcnt lgkmcnt(0)")
    e(f"v_mbcnt_lo_u32_b32 v{vLN}, -1, 0"); e(f"v_mbcnt_hi_u32_b32 v{vLN}, -1, v{vLN}")
    e(f"v_lshlrev_b32 v{vDV}, 4, v{vLN}")
    dk_setup(); wx_setup(); b_wsetup()

    e("L_Oepi:")
    if tl:
        e(f"s_cmp_eq_u32 s{sROLE}, 0"); e("s_cbranch_scc0 L_tl0"); e("v_mov_b32 v252, v254   ; v_writelane_b32 v247"); e("L_tl0:")
    stamp("attn_done")
    def lsum():
        for sw in ("32", "16"):
            for qt in range(4): e(f"v_mov_b32 v{F+qt}, v{L+qt}")
            for qt in range(4): e(f"v_permlane{sw}_swap_b32 v{L+qt}, v{F+qt}")
            for qt in range(4): e(f"v_add_f32 v{L+qt}, v{L+qt}, v{F+qt}")
    lsum()
    e(f"v_min3_f32 v{vT0}, v{L}, v{L+1}, v{L+2}"); e(f"v_min_f32 v{vT0}, v{vT0}, v{L+3}")
    e(f"v_add_f32 v{vT1}, v{L}, v{L+1}"); e(f"v_add_f32 v{vT1}, v{vT1}, v{L+2}"); e(f"v_add_f32 v{vT1}, v{vT1}, v{L+3}")
    e(f"v_cmp_nle_f32 vcc, {f2u(2.0**lo_exp):#x}, v{vT0}"); e("s_cbranch_vccnz L_slow")
    e(f"v_cmp_nge_f32 vcc, {f2u(2.0**hi_exp):#x}, v{vT1}"); e("s_cbranch_vccnz L_slow")
    if force_slow: e("s_branch L_slow")
    e("L_slow_back:")
    for qt in range(4): e(f"v_rcp_f32 v{L+qt}, v{L+qt}")
    e(f"s_mul_i32 s{sTMP}, s{sW}, {CHUNK}"); e(f"v_add_u32 v{vT0}, s{sTMP}, v{vXA}")
    def norm(s, qt):
        b = acc(2*s, qt)
        sel = "op_sel_hi:[1,0]" if qt % 2 == 0 else "op_sel:[0,1]"
        for i in range(4): e(f"v_pk_mul_f32 {vr(b+2*i, 2)}, {vr(b+2*i, 2)}, {vr(L + (qt & 2), 2)} {sel}")
        for i in range(4): e(f"v_cvt_pk_bf16_f32 v{b+i}, v{b+2*i}, v{b+2*i+1}")
    def owr(s, qt): e(f"ds_write_b128 v{vT0}, {vr(acc(2*s, qt), 4)} offset:{qt*HALF + s*64}")
    for s in range(4):
        for qt in range(4):
            norm(s, qt); owr(s, qt)
    e("L_Oproj:")
    e("s_waitcnt lgkmcnt(0)")
    e("s_barrier")
    stamp("Owritten")
    proj("o")
    stamp("Odone")
    e(f"s_xor_b32 s{sTMP}, s{sROLE}, 1"); e(f"s_lshl_b32 s{sTMP}, s{sTMP}, 8"); e(f"s_add_u32 s{sTMP}, s{sTMP}, s2")
    e(f"s_lshl_b32 s{sTMP}, s{sTMP}, 2"); e(f"s_add_u32 s{sTMP}, s{sTMP}, s{sW}"); e(f"s_lshl_b32 s{sTMP}, s{sTMP}, 14")
    e(f"s_add_u32 s{sP}, s28, s{sTMP}"); e(f"s_addc_u32 s{sP+1}, s29, 0"); e(f"s_mov_b32 s{sP+2}, 0x4000"); e(f"s_mov_b32 s{sP+3}, 0x20000")
    e(f"s_cmp_eq_u32 s{sROLE}, 0"); e("s_cbranch_scc1 L_store")
    e(f"s_setprio {prioT}")
    assert not late_pf
    wo_srd(22); e(f"s_mov_b32 s{sWOFF}, 0")
    for n in range(3): emit(w_issue(n, "o"))
    if not e0: e("s_waitcnt vmcnt(0)")
    e("s_barrier")
    e("L_store:")
    keep = []
    for sp in range(2):
        for qt in range(4):
            lk, lb = lab("kp"), lab("kp")
            e(f"s_cmp_eq_u32 s{sG}, {qt*2 + sp}"); e(f"s_cbranch_scc1 {lk}")
            e(f"s_mov_b32 s{sOFF}, {qt*4096}")
            for sx in (2*sp, 2*sp + 1):
                b = acc(2*sx, qt)
                for i in range(4): e(f"v_cvt_pk_bf16_f32 v{b+i}, v{b+2*i}, v{b+2*i+1}")
                e(f"buffer_store_dwordx4 {vr(b, 4)}, v{vDV}, {srd(sP)}, s{sOFF} offen offset:{sx*1024} {pstore}")
            e(f"{lb}:")
            keep.append((lk, lb, sp, qt))
    e(f"s_cmp_eq_u32 s{sROLE}, 0"); e("s_cbranch_scc0 L_Apub")
    stamp("issued")
    if ared == "bars": e("s_barrier")
    stamp("bars")
    if stamps and "drained" in stamps: e("s_waitcnt vmcnt(0)"); stamp("drained")
    lds_arrive(1, "L_Bwait")
    stamp("pub")
    def first(done):
        e(f"buffer_atomic_add v{vT1}, off, {srd(sPF)}, s{sOFF} sc0")
        e("s_waitcnt vmcnt(0)")
        e(f"v_readfirstlane_b32 s{sTMP}, v{vT1}")
        e(f"s_cmp_ge_u32 s{sTMP}, 7"); e(f"s_cbranch_scc1 {done}")
    poll(1, first)
    e(f"v_mov_b32 v{vT0}, {CNT + 8}"); e(f"v_mov_b32 v{vT1}, 1")
    e(f"ds_write_b32 v{vT0}, v{vT1}")
    e("s_branch L_final")
    e("L_Bwait:")
    e(f"v_mov_b32 v{vT0}, {CNT + 8}")
    e("L_Bspin:")
    e(f"ds_read_b32 v{vT1}, v{vT0}")
    e("s_waitcnt lgkmcnt(0)")
    e(f"v_readfirstlane_b32 s{sTMP}, v{vT1}")
    e(f"s_cmp_eq_u32 s{sTMP}, 0"); e("s_cbranch_scc0 L_final")
    e("s_sleep 1")
    e("s_branch L_Bspin")
    for lk, lb, sp, qt in keep:
        e(f"{lk}:")
        for f in range(2):
            for i in range(0, 8, 2): e(f"v_mov_b64 {vr(RK + 8*f + i, 2)}, {vr(acc(2*(2*sp + f), qt) + i, 2)}")
        e(f"s_branch {lb}")
    e("L_Apub:")
    if e0:
        e("s_waitcnt vmcnt(14)"); e("s_barrier")
    lds_arrive(0, "L_nosig")
    if ared == "bars":
        flag_srd(0)
        e(f"buffer_atomic_add v{vT1}, off, {srd(sPF)}, s{sOFF}")
    else:
        poll(0, first, slp=slpA)
    e("L_nosig:")
    e("s_mov_b64 exec, -1")
    stamp("pubA")
    e("s_barrier")
    if ared == "bars":
        e(f"s_cmp_eq_u32 s{sW}, 0"); e("s_cbranch_scc0 L_nopoll")
        poll(0)
        e("L_nopoll:")
        e("s_barrier")
    e("L_final:")
    e("s_mov_b64 exec, -1")
    stamp("flag")
    reduce()
    if calib:
        if calib_wg is not None: e(f"s_cmp_eq_u32 s2, {calib_wg}"); e("s_cbranch_scc0 L_end")
        e("L_cal:"); e("s_sleep 4"); e("s_memrealtime s[90:91]"); e("s_waitcnt lgkmcnt(0)"); e("s_sub_u32 s90, s90, s92"); e(f"s_cmp_lt_u32 s90, {calib*100}"); e("s_cbranch_scc1 L_cal")
    if stamps:
        e("s_waitcnt vmcnt(0)")
        stamp("end")
        e("s_memtime s[4:5]")
        e("s_waitcnt lgkmcnt(0)")
        e("s_sub_u32 s4, s4, s100")
        e(f"s_lshl_b32 s{sTMP}, s2, 1"); e(f"s_add_u32 s{sTMP}, s{sTMP}, s{sROLE}"); e(f"s_lshl_b32 s{sTMP}, s{sTMP}, 2"); e(f"s_add_u32 s{sTMP}, s{sTMP}, s{sW}")
        e(f"s_lshl_b32 s{sTMP}, s{sTMP}, 7")
        e(f"s_add_u32 s{sPF}, s28, 0x4000000"); e(f"s_addc_u32 s{sPF+1}, s29, 0"); e(f"s_mov_b32 s{sPF+2}, 0x100000"); e(f"s_mov_b32 s{sPF+3}, 0x20000")
        for i in range(16): e(f"v_mov_b32 v{i}, s{sST+i}")
        e(f"v_mov_b32 v16, s4"); e("v_mov_b32 v17, 0"); e("v_mov_b32 v18, 0"); e("v_mov_b32 v19, 0")
        e(f"v_mov_b32 v20, s{sTMP}")
        if tl:
            e(f"v_lshl_add_u32 v21, v{vLN}, 2, v20"); e("s_mov_b32 exec_hi, 0"); e(f"s_mov_b32 s{sOFF}, 0x80000")
            e(f"buffer_store_dword v252, v21, {srd(sPF)}, s{sOFF} offen")
        e("s_mov_b64 exec, 1")
        for i in range(5): e(f"buffer_store_dwordx4 {vr(4*i, 4)}, v20, {srd(sPF)}, 0 offen offset:{16*i}")
    e("L_end:")
    e("s_endpgm")

    e("L_slow:")
    e("s_waitcnt vmcnt(0)")
    e(f"s_cmp_eq_u32 s{sROLE}, 0"); e("s_cbranch_scc1 L_slowB")
    e(f"s_mul_i32 s{sTMP}, s{sW}, {CHUNK}"); e(f"s_add_u32 s{sKB}, s{sTMP}, {XB}")
    e(f"v_add_u32 v{vKA}, s{sTMP}, v{vKA}"); e(f"v_add_u32 v{vVA}, s{sTMP}, v{vVA}")
    e("L_slowB:")
    e(f"v_add_u32 v{vVA}, {(-SLOT) & 0xffffffff:#x}, v{vVA}")
    for i in range(0, 128, 2): e(f"v_mov_b64 {vr(i, 2)}, 0")
    for i in range(4): e(f"v_mov_b32 v{L+i}, 0"); e(f"v_mov_b32 v{M+i}, {f2u(-3.0e38):#x}")
    e(f"s_mov_b32 s{sROT}, 0")
    e("L_slowloop:")
    emit(k_issue())
    e("s_waitcnt vmcnt(0)")
    qk(None)
    emit(kv_issue(sV, vDV, sKB, 0, VBLK))
    for qt in range(4):
        b = S + qt*8; t = F + 2*qt
        e(f"v_max3_f32 v{t}, v{b}, v{b+1}, v{b+2}"); e(f"v_max3_f32 v{t}, v{t}, v{b+3}, v{b+4}")
        e(f"v_max3_f32 v{t}, v{t}, v{b+5}, v{b+6}"); e(f"v_max3_f32 v{t}, v{t}, v{b+7}, v{M+qt}")
        xlane("v_max_f32", t, vT0)
        e(f"v_sub_f32 v{t+1}, v{M+qt}, v{t}"); e(f"v_mov_b32 v{M+qt}, v{t}")
        e(f"v_exp_f32 v{t+1}, v{t+1}")
        for i in range(8): e(f"v_sub_f32 v{b+i}, v{b+i}, v{M+qt}")
        e(f"v_mul_f32 v{L+qt}, v{L+qt}, v{t+1}")
        for dt in range(8):
            for i in range(0, 4, 2): e(f"v_pk_mul_f32 {vr(acc(dt, qt)+i, 2)}, {vr(acc(dt, qt)+i, 2)}, {vr(t, 2)} op_sel:[0,1]")
        emit(exps(qt, 0)); emit(cvts(qt, 0))
    e("s_waitcnt vmcnt(0)")
    for dt in range(3): emit(vrd(dt))
    pv_phase([exps(qt, 1) + cvts(qt, 1) for qt in range(4)])
    e(f"s_add_u32 s{sROT}, s{sROT}, 8192"); e(f"s_cmp_lt_u32 s{sROT}, 0x20000"); e("s_cbranch_scc1 L_slowloop")
    for qt in range(4): xlane("v_add_f32", L + qt, vT0)
    b_wsetup()
    e("s_branch L_slow_back")
    e("L_last:")

    e('.section .rodata,"a"')
    e(".p2align 6"); e(f".amdhsa_kernel {NAME}_kernel")
    for l in [".amdhsa_next_free_vgpr 256", ".amdhsa_next_free_sgpr 102", ".amdhsa_accum_offset 256", ".amdhsa_group_segment_fixed_size 0",
              ".amdhsa_kernarg_size 104", ".amdhsa_user_sgpr_count 2", ".amdhsa_user_sgpr_kernarg_segment_ptr 1", ".amdhsa_system_sgpr_workgroup_id_x 1",
              ".amdhsa_float_denorm_mode_32 3"]:
        e("  " + l)
    e(".end_amdhsa_kernel")
    n = a.pad()
    return a.text(), n

if __name__ == "__main__":
    kw = eval("dict(" + (sys.argv[2] if len(sys.argv) > 2 else "") + ")")
    txt, n = gen(**kw)
    out = sys.argv[1] if len(sys.argv) > 1 else f"cdna_kernels/{NAME}.s"
    open(out, "w").write(txt)
    print("pad states:", n, "lines:", txt.count("\n"), "LDS", LDS)
```

```python
import sys, math, struct
from asmlib import Asm

NAME = "concat_heads__gqa_block_cached__mha_block_cached__near_ridge"
KBLK = 1088; VBLK = 1056; HALF = 4352; SLOT = 8704; CHUNK = 2*SLOT
XB = 2*CHUNK
WR0 = XB + 4*CHUNK
WRING = 3*HALF
CNT = WR0 + 4*WRING
LDS = CNT + 64
assert LDS <= 163840
WBIAS = 128

sK, sV, sWQ, sWO, sX, sP, sIT, sPF = 32, 36, 40, 44, 48, 52, 56, 60
(sROLE, sW, sG, sB, sD, sI, sROT, sOFF, sWRB, sKB, sTMP, sTMP2, sD4, sWOFF, sN, sM, sROTA, sIST, sPH, sDK) = range(64, 84)
sDV = 30; sHI = 31; sJ = 3
sST = 84
def srd(n): return f"s[{n}:{n+3}]"
ACC = 0; Q = 128; S = 192; F = 224; L = 236; ONES = 240
vKA, vVA, vDK, vDV = 242, 243, 244, 245
vWO = 246
vWA, vXA, vIT, vLN, vT0, vT1 = 250, 251, 252, 253, 254, 255
M = 246
AF = 128; BF = 160
def vr(b, n): return f"v[{b}:{b+n-1}]"
def acc(dt, qt): return ACC + ((dt >> 1)*4 + qt)*8 + (dt & 1)*4
def f2u(x): return struct.unpack("<I", struct.pack("<f", x))[0]
MF = "v_mfma_f32_16x16x32_bf16"

def gen(kv="nt", wq_pf="", w_pf="", wflag="", xflag="", stamps=False, groups=(0,0,0,0,0,2,4,7,10,13,14,15,15,15,15,15), mask=0, early01=False, e0=True, prioT=0, hpf=1, xaflag='nt', late_pf=False, prioA=1, prioB=0, T=10.0,
        rot_mul=1, cyc=False, lo_exp=-30, hi_exp=30, force_slow=False, codepf=True, slp=6, pstore="sc1", tl=False, calib=0, calib_wg=None, ostore='sc1', capN=8, capI=None, capK=0, capV=0, capn=6, snake=True, depth=2, ared='bars', slpA=24, abar=30, defer01=False, coopAA=False, calat='start', pf2=True):
    a = Asm(); e = a
    if stamps is True: stamps = ["start", "P0", "Qdone", "attn_done", "Owritten", "Odone", "pub", "end"]
    def stamp(nm):
        if calib and nm == calat and nm != "start":
            lc = lab("cal"); e(f"s_cmp_eq_u32 s{sROLE}, 0"); e(f"s_cbranch_scc0 {lc}"); e("s_memrealtime s[92:93]"); e("s_waitcnt lgkmcnt(0)"); e(f"{lc}:")
        if stamps and nm in stamps:
            i = stamps.index(nm); e(f"{'s_memtime' if cyc else 's_memrealtime'} s[{sST+2*i}:{sST+2*i+1}]")
    def emit(lst):
        for x in lst: e(x)
    uid = [0]
    def lab(p):
        uid[0] += 1; return f"L_{p}{uid[0]}"

    def w_setup(kind):
        sh = 13 if kind == "q" else 10
        if kind == "q":
            e(f"v_bfe_u32 v{vT0}, v{vLN}, 3, 2"); e(f"v_lshlrev_b32 v{vWO}, {sh+3}, v{vT0}")
            e(f"v_lshrrev_b32 v{vT0}, 5, v{vLN}"); e(f"v_lshl_add_u32 v{vWO}, v{vT0}, {sh+2}, v{vWO}")
        else:
            e(f"v_lshrrev_b32 v{vT0}, 3, v{vLN}"); e(f"v_lshlrev_b32 v{vWO}, {sh+2}, v{vT0}")
        e(f"v_and_b32 v{vT0}, 7, v{vLN}"); e(f"v_lshl_add_u32 v{vWO}, v{vT0}, 4, v{vWO}")
        for r in (3, 2, 1, 0):
            e(f"v_add_u32 v{vWO+r}, {r*((1 << sh) - VBLK) + WBIAS}, v{vWO}")
        e(f"s_mov_b32 s{sWOFF}, 0")
    def wslot(n): return (n + 1) % 3
    def w_issue(n, kind):
        sr, sh = (sWQ, 13) if kind == "q" else (sWO, 10)
        out = [f"s_add_u32 m0, s{sWRB}, {wslot(n)*HALF}"]
        for r in range(4):
            out.append(f"buffer_load_dwordx4 v{vWO+r}, {srd(sr)}, s{sWOFF} offen offset:{r*VBLK} {wflag} lds")
        out.append(f"s_add_u32 s{sWOFF}, s{sWOFF}, {128 if n % 2 == 0 else (32 << sh) - 128}")
        return out
    def kv_issue(sr, voff, sbase, imm, blk, rot=sROT):
        out = [f"s_mov_b32 s{sOFF}, s{rot}"]
        for j in range(8):
            if j == 4: out.append(f"s_add_u32 s{sOFF}, s{sOFF}, 4096")
            out.append(f"s_add_u32 m0, s{sbase}, {imm + j*blk - (j % 4)*1024}")
            out.append(f"buffer_load_dwordx4 v{voff}, {srd(sr)}, s{sOFF} offen offset:{(j % 4)*1024} {kv} lds")
        return out
    def capped(lst, n):
        if not n: return lst
        out = []
        for x in lst:
            if x.startswith("buffer_load"): out.append(f"s_waitcnt vmcnt({n-1})")
            out.append(x)
        return out
    def k_issue(): return kv_issue(sK, vDK, sKB, 0, KBLK)
    def v_issue(): return kv_issue(sV, vDV, sKB, SLOT, VBLK)
    def item_issue(sbase, blocks=range(8)):
        out = []
        for j in blocks:
            if j == 0: out += [f"s_mov_b32 s{sOFF}, s{sROTA}", f"s_mov_b32 m0, s{sbase}"]
            elif j == 4:
                out += [f"s_add_u32 s{sOFF}, s{sROTA}, 4096", f"s_lshl_b32 s{sTMP}, s{sIST}, 2", f"s_add_u32 s{sTMP}, s{sTMP}, s{sbase}", f"s_add_u32 m0, s{sTMP}, 4096"]
            else: out.append(f"s_add_u32 m0, m0, s{sIST}")
            out.append(f"buffer_load_dwordx4 v{vIT}, {srd(sIT)}, s{sOFF} offen offset:{(j % 4)*1024} {kv} lds")
        return out
    def x_issue(c, xflag=xflag):
        e(f"s_lshl_b32 s{sOFF}, s{sW}, 14"); e(f"s_add_u32 s{sOFF}, s{sOFF}, {c*256}")
        e(f"s_mul_i32 s{sTMP}, s{sW}, {HALF}")
        for j in range(4):
            e(f"s_add_u32 m0, s{sTMP}, {XB + c*CHUNK + j*64}")
            e(f"buffer_load_dwordx4 v{vT1}, {srd(sX)}, s{sOFF} offen offset:{j*1024} {xflag} lds")
    def x_own(h):
        out = [f"s_lshl_b32 s{sOFF}, s{sW}, 8", f"s_add_u32 s{sOFF}, s{sOFF}, {h*32768}"]
        for j in range(8):
            if j == 4: out.append(f"s_add_u32 s{sOFF}, s{sOFF}, 16384")
            out.append(f"s_add_u32 m0, s{sKB}, {h*SLOT + (j >> 2)*HALF + (j & 3)*64}")
            out.append(f"buffer_load_dwordx4 v{vT1}, {srd(sX)}, s{sOFF} offen offset:{(j & 3)*1024} {xaflag} lds")
        return out
    def xa_touch():
        e(f"s_mov_b32 s{sPF}, s4"); e(f"s_mov_b32 s{sPF+1}, s5"); e(f"s_mov_b32 s{sPF+2}, 0x200000"); e(f"s_mov_b32 s{sPF+3}, 0x20000")
        e(f"s_lshl_b32 s{sTMP}, s2, 2"); e(f"s_add_u32 s{sTMP}, s{sTMP}, s{sW}"); e(f"s_lshl_b32 s{sTMP}, s{sTMP}, 11")
        for r in range(2): e(f"buffer_load_dwordx4 {vr(S + 16 + 4*r, 4)}, v{vDV}, {srd(sPF)}, s{sTMP} offen offset:{r*1024}")
    def x_voff():
        e(f"v_lshrrev_b32 v{vT0}, 4, v{vLN}"); e(f"v_sub_u32 v{vT1}, 0, v{vT0}"); e(f"v_and_b32 v{vT1}, 3, v{vT1}")
        e(f"v_xor_b32 v{vT1}, v{vT1}, v{vLN}"); e(f"v_and_b32 v{vT1}, 15, v{vT1}"); e(f"v_lshlrev_b32 v{vT1}, 4, v{vT1}")
        e(f"v_lshl_add_u32 v{vT1}, v{vT0}, 12, v{vT1}")
    def x_srd(lo):
        e(f"s_lshl_b32 s{sTMP}, s{sB}, 16")
        e(f"s_add_u32 s{sX}, s{lo}, s{sTMP}"); e(f"s_addc_u32 s{sX+1}, s{lo+1}, 0"); e(f"s_mov_b32 s{sX+2}, 0x10000"); e(f"s_mov_b32 s{sX+3}, 0x20000")
    def wo_srd(lo):
        e(f"s_lshl_b32 s{sTMP}, s{sG}, 19"); e(f"s_lshl_b32 s{sTMP2}, s{sW}, 8"); e(f"s_add_u32 s{sTMP}, s{sTMP}, s{sTMP2}")
        e(f"s_add_u32 s{sWO}, s{lo}, s{sTMP}"); e(f"s_addc_u32 s{sWO+1}, s{lo+1}, 0")
        e(f"s_sub_u32 s{sWO}, s{sWO}, {WBIAS}"); e(f"s_subb_u32 s{sWO+1}, s{sWO+1}, 0")
        e(f"s_sub_u32 s{sWO+2}, {0x400000 + WBIAS}, s{sTMP}"); e(f"s_mov_b32 s{sWO+3}, 0x20000")
    def coop_prefetch(lo, sh, goff_sh, flag):
        if flag == "2x":
            coop_prefetch(lo, sh, goff_sh, "nt"); e("s_waitcnt vmcnt(0)"); coop_prefetch(lo, sh, goff_sh, ""); return
        e(f"s_lshl_b32 s{sTMP}, s{sG}, {goff_sh}")
        e(f"s_add_u32 s{sPF}, s{lo}, s{sTMP}"); e(f"s_addc_u32 s{sPF+1}, s{lo+1}, 0")
        e(f"s_sub_u32 s{sPF+2}, 0x400000, s{sTMP}"); e(f"s_mov_b32 s{sPF+3}, 0x20000")
        e(f"s_lshl_b32 s{sTMP}, s{sB}, 2"); e(f"s_add_u32 s{sTMP}, s{sTMP}, s{sW}"); e(f"s_lshl_b32 s{sTMP}, s{sTMP}, {sh+2}")
        for r in range(4):
            e(f"buffer_load_dwordx4 {vr(S + 4*r, 4)}, v{vDV}, {srd(sPF)}, s{sTMP} offen {flag}")
            if r < 3: e(f"s_add_u32 s{sTMP}, s{sTMP}, {1 << sh}")

    def proj(kind):
        def ra(n):
            p = n % 2
            return [f"ds_read_b64_tr_b16 {vr(AF + p*16 + d*4 + ee*2, 2)}, v{vWA} offset:{wslot(n)*HALF + ee*512 + d*32}" for d in range(4) for ee in range(2)]
        def rb(ks, qts):
            return [f"ds_read_b128 {vr(BF + (ks % 2)*16 + qt*4, 4)}, v{vXA} offset:{(ks >> 2)*CHUNK + qt*HALF + (ks & 3)*64}" for qt in qts]
        e("s_waitcnt vmcnt(8)")
        emit(rb(0, range(4))); emit(ra(0))
        e("s_waitcnt lgkmcnt(0)")
        for n in range(32):
            stamp(f"{kind}{n}")
            ks, ch, p = n >> 1, n & 1, n % 2
            rd = ra(n + 1) if n < 31 else []
            if ks < 15: rd = rd + rb(ks + 1, (2*ch, 2*ch + 1))
            dm = w_issue(n + 3, kind) if n + 3 < 32 else []
            if n < 31:
                e("s_waitcnt vmcnt(4)" if (n <= 29) else "s_waitcnt vmcnt(0)")
            if kind == "q" and n in (6, 14, 22): e("s_barrier")
            if n == 30:
                if kind == "q": e("s_barrier")
                elif abar == 30: e("s_barrier")
                else:
                    l1 = lab("nb"); e(f"s_cmp_eq_u32 s{sROLE}, 0"); e(f"s_cbranch_scc1 {l1}"); e("s_barrier"); e(f"{l1}:")
            if kind == "o" and n == abar and abar != 30:
                l1 = lab("nb"); e(f"s_cmp_eq_u32 s{sROLE}, 0"); e(f"s_cbranch_scc0 {l1}"); e("s_barrier"); e(f"{l1}:")
            gaps = [[] for _ in range(16)]
            for i, x in enumerate(rd): gaps[i].append(x)
            if dm:
                gaps[3].append(dm[0])
                for i in range(4): gaps[4 + 2*i].append(dm[1 + i])
                gaps[11].append(dm[5])
            k = 0
            for d in range(4):
                for qt in (range(3, -1, -1) if (snake and d % 2) else range(4)):
                    r = vr(acc(4*ch + d, qt), 4)
                    e(f"{MF} {r}, {vr(AF + p*16 + d*4, 4)}, {vr(BF + (ks % 2)*16 + qt*4, 4)}, {r if ks else '0'}")
                    emit(gaps[k]); k += 1
            if n < 31: e("s_waitcnt lgkmcnt(0)")

    def Sr(qt, u): return S + qt*8 + u*4
    def exps(qt, u): return [f"v_exp_f32 v{Sr(qt, u)+i}, v{Sr(qt, u)+i}" for i in range(4)]
    def cvts(qt, u): return [f"v_cvt_pk_bf16_f32 v{S+qt*8+2*u+i}, v{Sr(qt, u)+2*i}, v{Sr(qt, u)+2*i+1}" for i in range(2)]
    def kr(f): return f"ds_read_b128 {vr(F + (f % 3)*4, 4)}, v{vKA} offset:{(f >> 2)*512 + (f & 3)*64}"
    vbuf = [F, F + 4, F + 8, S + 4, S + 12, S + 20, S + 28, F]
    def vrd(dt): return [f"ds_read_b64_tr_b16 {vr(vbuf[dt] + 2*u, 2)}, v{vVA} offset:{u*512 + dt*32}" for u in range(2)]
    def sums(qt): return [f"v_mfma_f32_4x4x4_16b_bf16 {vr(L, 4)}, {vr(ONES, 2)}, {vr(S + qt*8 + 2*h, 2)}, {vr(L, 4)} cbsz:2 abid:{qt}" for h in range(2)]
    def pv(dt, qt): return f"{MF} {vr(acc(dt, qt), 4)}, {vr(vbuf[dt], 4)}, {vr(S + qt*8, 4)}, {vr(acc(dt, qt), 4)}"
    def qk(fill):
        for f in range(3): e(kr(f))
        m = 0
        for f in range(8):
            u, s = f >> 2, f & 3
            e(f"s_waitcnt lgkmcnt({min(2, 7 - f)})")
            for qt in range(4):
                r = vr(Sr(qt, u), 4)
                e(f"{MF} {r}, {vr(F + (f % 3)*4, 4)}, {vr(Q + (qt*4 + s)*4, 4)}, {r if s else '0'}")
                if u == 1:
                    if m >= 3 and fill: e(fill.pop(0))
                    m += 1
            if f + 3 < 8: e(kr(f + 3))
    def pv_phase(pre):
        emit(pre[0]); emit(vrd(3))
        for qt in range(4):
            nxt = (pre[qt + 1] + vrd(4 + qt)) if qt < 3 else []
            per = math.ceil(len(nxt) / 4)
            sm = sums(qt)
            for dt in range(3):
                if qt == 0: e(f"s_waitcnt lgkmcnt({6 - 2*dt})")
                e(pv(dt, qt)); emit(nxt[dt*per:(dt+1)*per])
                if dt == 0: e(sm[0])
            e(sm[1]); emit(nxt[3*per:])
        emit(vrd(7))
        for dt in range(3, 8):
            e(f"s_waitcnt lgkmcnt({2*(7 - dt)})")
            for qt in (range(3, -1, -1) if (snake and dt % 2) else range(4)): e(pv(dt, qt))
    def tile(after_qk, before_v, after_pv):
        fill = []
        for qt in range(4): fill += exps(qt, 0)
        for qt in range(4): fill += cvts(qt, 0)
        qk(fill)
        emit(fill)
        after_qk()
        before_v()
        for dt in range(3): emit(vrd(dt))
        pv_phase([exps(qt, 1) + cvts(qt, 1) for qt in range(4)])
        after_pv()
    def xlane(op, reg, tmp):
        for sw in ("32", "16"):
            e(f"v_mov_b32 v{tmp}, v{reg}"); e(f"v_permlane{sw}_swap_b32 v{reg}, v{tmp}"); e(f"{op} v{reg}, v{reg}, v{tmp}")
    def waitn(sreg, mx):
        end = lab("wn")
        for n in range(mx, 0, -1):
            e(f"s_waitcnt vmcnt({8*n})"); e(f"s_cmp_ge_u32 s{sreg}, {n}"); e(f"s_cbranch_scc1 {end}")
        e("s_waitcnt vmcnt(0)"); e(f"{end}:")
    def flag_srd(branch):
        e(f"s_add_u32 s{sPF}, s28, 0x2000000"); e(f"s_addc_u32 s{sPF+1}, s29, 0"); e(f"s_mov_b32 s{sPF+2}, 0x8000"); e(f"s_mov_b32 s{sPF+3}, 0x20000")
        e(f"s_mul_i32 s{sOFF}, s{sB}, 768"); e(f"s_add_u32 s{sOFF}, s{sOFF}, {branch*256}")
    def dbg_srd():
        e(f"s_mov_b32 s{sPF}, s26"); e(f"s_mov_b32 s{sPF+1}, s27"); e(f"s_mov_b32 s{sPF+2}, 256"); e(f"s_mov_b32 s{sPF+3}, 0x20000")
        e(f"s_lshl_b32 s{sOFF}, s{sB}, 3")
    def poll(branch_off, first=None, tmp=vT0, slp=slp):
        l0, l1 = lab("pl"), lab("pl")
        if branch_off is None: dbg_srd()
        else: flag_srd(branch_off)
        e("s_mov_b64 exec, 1")
        if first: first(l1)
        e(f"s_mov_b32 s{sTMP2}, 0x40000")
        e(f"{l0}:")
        e(f"buffer_load_dword v{tmp}, off, {srd(sPF)}, s{sOFF} sc1")
        e("s_waitcnt vmcnt(0)")
        e(f"v_readfirstlane_b32 s{sTMP}, v{tmp}")
        e(f"s_cmp_eq_u32 s{sTMP}, 8"); e(f"s_cbranch_scc1 {l1}")
        e(f"s_sleep {slp}")
        e(f"s_sub_u32 s{sTMP2}, s{sTMP2}, 1"); e(f"s_cmp_lg_u32 s{sTMP2}, 0"); e(f"s_cbranch_scc1 {l0}")
        e(f"{l1}:")
        e("s_mov_b64 exec, -1")
    RK = 192; RL = 128
    def reduce():
        e(f"s_xor_b32 s{sTMP2}, s{sROLE}, 1")
        e(f"s_lshl_b32 s{sTMP}, s{sTMP2}, 5"); e(f"s_add_u32 s{sTMP}, s{sTMP}, s{sB}"); e(f"s_lshl_b32 s{sTMP}, s{sTMP}, 19")
        e(f"s_add_u32 s{sP}, s28, s{sTMP}"); e(f"s_addc_u32 s{sP+1}, s29, 0"); e(f"s_mov_b32 s{sP+2}, 0x80000"); e(f"s_mov_b32 s{sP+3}, 0x20000")
        e(f"s_mul_i32 s{sOFF}, s{sG}, {65536 + 2048}"); e(f"s_lshl_b32 s{sTMP}, s{sW}, 14"); e(f"s_add_u32 s{sOFF}, s{sOFF}, s{sTMP}")
        for k in range(7):
            e(f"s_add_u32 s{sOFF}, s{sOFF}, 0x10000"); e(f"s_and_b32 s{sOFF}, s{sOFF}, 0x7ffff")
            for f in range(2):
                e(f"buffer_load_dwordx4 {vr(RL + 8*k + 4*f, 4)}, v{vDV}, {srd(sP)}, s{sOFF} offen offset:{f*1024} sc1")
        e(f"s_mov_b32 s{sPF}, s24"); e(f"s_mov_b32 s{sPF+1}, s25"); e(f"s_mov_b32 s{sPF+2}, 0x400000"); e(f"s_mov_b32 s{sPF+3}, 0x20000")
        e(f"s_lshl_b32 s{sOFF}, s{sB}, 17"); e(f"s_lshl_b32 s{sTMP2}, s{sTMP2}, 10"); e(f"s_add_u32 s{sOFF}, s{sOFF}, s{sTMP2}")
        e(f"s_lshr_b32 s{sTMP}, s{sG}, 1"); e(f"s_lshl_b32 s{sTMP}, s{sTMP}, 15"); e(f"s_add_u32 s{sOFF}, s{sOFF}, s{sTMP}")
        e(f"s_lshl_b32 s{sTMP}, s{sW}, 8"); e(f"s_add_u32 s{sOFF}, s{sOFF}, s{sTMP}")
        e(f"s_and_b32 s{sTMP}, s{sG}, 1"); e(f"s_lshl_b32 s{sTMP}, s{sTMP}, 7"); e(f"s_add_u32 s{sOFF}, s{sOFF}, s{sTMP}")
        e(f"v_and_b32 v{vT0}, 15, v{vLN}"); e(f"v_lshlrev_b32 v{vT1}, 11, v{vT0}")
        e(f"v_bfe_u32 v{vT0}, v{vLN}, 4, 1"); e(f"v_lshl_add_u32 v{vT1}, v{vT0}, 5, v{vT1}")
        e(f"v_lshrrev_b32 v{vT0}, 5, v{vLN}"); e(f"v_lshl_add_u32 v{vT1}, v{vT0}, 4, v{vT1}")
        for k in range(7):
            for f in range(2):
                e(f"s_waitcnt vmcnt({(6 - k)*2 + 1 - f})")
                src, dst, tmp = RL + 8*k + 4*f, RK + 8*f, RK + 16 + 8*f
                for i in range(4):
                    e(f"v_lshlrev_b32 v{tmp+2*i}, 16, v{src+i}"); e(f"v_and_b32 v{tmp+2*i+1}, 0xffff0000, v{src+i}")
                for i in range(8): e(f"v_add_f32 v{dst+i}, v{dst+i}, v{tmp+i}")
        stamp("summed")
        for f in range(2):
            dst = RK + 8*f
            for i in range(4): e(f"v_cvt_pk_bf16_f32 v{dst+i}, v{dst+2*i}, v{dst+2*i+1}")
        for f in range(2):
            dst = RK + 8*f
            e(f"v_permlane16_swap_b32 v{dst}, v{dst+2}"); e(f"v_permlane16_swap_b32 v{dst+1}, v{dst+3}")
            e(f"buffer_store_dwordx4 {vr(dst, 4)}, v{vT1}, {srd(sPF)}, s{sOFF} offen offset:{f*64} {ostore}")
    def lds_arrive(word, last):
        e("s_waitcnt vmcnt(0)")
        e(f"v_mov_b32 v{vT0}, {CNT + 4*word}"); e(f"v_mov_b32 v{vT1}, 1")
        e("s_mov_b64 exec, 1")
        e(f"ds_add_rtn_u32 v{vT0}, v{vT0}, v{vT1}")
        e("s_waitcnt lgkmcnt(0)")
        e(f"v_readfirstlane_b32 s{sTMP}, v{vT0}")
        e(f"s_cmp_eq_u32 s{sTMP}, 3"); e(f"s_cbranch_scc0 {last}")

    if stamps: e(f"; stamps: {stamps}")
    e(f"; @launch grid=(256,1,1) block=(512,1,1) lds={LDS}")
    e('.amdgcn_target "amdgcn-amd-amdhsa--gfx950"')
    e(".text"); e(f".globl {NAME}_kernel"); e(".p2align 8"); e(f".type {NAME}_kernel,@function")
    e(f"{NAME}_kernel:")
    e("s_cmp_ge_u32 s2, 256"); e("s_cbranch_scc1 L_end")
    e("s_load_dwordx16 s[4:19], s[0:1], 0"); e("s_load_dwordx8 s[20:27], s[0:1], 64"); e("s_load_dwordx2 s[28:29], s[0:1], 96")
    if stamps:
        for i in range(16): e(f"s_mov_b32 s{sST+i}, 0")
        e("s_memtime s[100:101]")
    stamp("start")
    if calib: e("s_memrealtime s[92:93]")
    if calib and calat == "karg": e("s_waitcnt lgkmcnt(0)"); e("s_memrealtime s[92:93]")
    if codepf and pf2:
        e("s_getpc_b64 s[94:95]"); e("L_pc:")
        e("v_lshlrev_b32 v2, 3, v0"); e("v_mov_b32 v3, s95")
        e("v_add_co_u32 v4, vcc, s94, v2"); e("s_lshr_b32 s96, s2, 4"); e("s_add_u32 s96, s96, 1"); e("v_addc_co_u32 v5, vcc, 0, v3, vcc")
        e("s_mov_b32 exec_lo, 0x10001"); e("s_mov_b32 exec_hi, exec_lo")
        e("global_load_dword v8, v[4:5], off")
        e("s_mov_b64 exec, -1")
        e("v_lshl_add_u32 v2, s96, 12, v2"); e("v_min_u32 v2, L_last-L_pc-4, v2")
        e("v_add_co_u32 v6, vcc, s94, v2"); e("s_bitcmp1_b32 s2, 3"); e("s_mov_b32 s96, 0x10001"); e("v_addc_co_u32 v7, vcc, 0, v3, vcc")
        e("s_cselect_b32 exec_lo, 0, s96"); e("s_cselect_b32 exec_hi, s96, 0")
        e("global_load_dword v9, v[6:7], off")
        e("s_mov_b64 exec, -1")
    e(f"v_lshrrev_b32 v1, 6, v0"); e(f"v_and_b32 v{vLN}, 63, v0"); e(f"v_readfirstlane_b32 s{sTMP}, v1")
    e(f"s_and_b32 s{sG}, s2, 7"); e(f"s_lshr_b32 s{sB}, s2, 3")
    e(f"s_and_b32 s{sW}, s{sTMP}, 3"); e(f"s_lshr_b32 s{sROLE}, s{sTMP}, 2"); e(f"s_lshr_b32 s{sHI}, s{sW}, 1")
    e(f"s_mul_i32 s{sWRB}, s{sW}, {WRING}"); e(f"s_add_u32 s{sWRB}, s{sWRB}, {WR0}")
    e(f"v_lshlrev_b32 v{vDV}, 4, v{vLN}")
    w_setup("q")
    x_voff()
    e("s_waitcnt lgkmcnt(0)")
    e(f"s_cmp_eq_u32 s{sROLE}, 0")
    e(f"s_cselect_b32 s{sWQ}, s20, s10"); e(f"s_cselect_b32 s{sWQ+1}, s21, s11")
    e(f"s_lshl_b32 s{sTMP}, s{sG}, 2"); e(f"s_add_u32 s{sTMP}, s{sTMP}, s{sW}"); e(f"s_lshl_b32 s{sTMP}, s{sTMP}, 8")
    e(f"s_add_u32 s{sWQ}, s{sWQ}, s{sTMP}"); e(f"s_addc_u32 s{sWQ+1}, s{sWQ+1}, 0")
    e(f"s_sub_u32 s{sWQ}, s{sWQ}, {WBIAS}"); e(f"s_subb_u32 s{sWQ+1}, s{sWQ+1}, 0")
    e(f"s_sub_u32 s{sWQ+2}, {0x400000 + WBIAS}, s{sTMP}"); e(f"s_mov_b32 s{sWQ+3}, 0x20000")
    e(f"s_cmp_eq_u32 s{sROLE}, 0"); e("s_cbranch_scc1 L_first_B")
    if prioA: e(f"s_setprio {prioA}")
    if codepf and not pf2:
        e("s_getpc_b64 s[94:95]"); e("L_pc:")
        e(f"s_lshl_b32 s{sTMP}, s{sB}, 2"); e(f"s_add_u32 s{sTMP}, s{sTMP}, s{sW}"); e(f"s_lshl_b32 s{sTMP}, s{sTMP}, 7")
        e(f"v_lshl_add_u32 v2, v{vLN}, 14, s{sTMP}")
        e(f"v_min_u32 v2, L_last-L_pc-4, v2")
        e(f"v_mov_b32 v3, s95"); e("v_add_co_u32 v2, vcc, s94, v2"); e("v_addc_co_u32 v3, vcc, 0, v3, vcc")
        e("s_mov_b64 exec, 15")
        e("global_load_dword v4, v[2:3], off")
        e("s_mov_b64 exec, -1")
    x_srd(14); x_issue(0)
    coop_prefetch(20, 13, 10, wq_pf)
    e("s_branch L_common")
    e("L_first_B:")
    stamp("first")
    if prioB: e(f"s_setprio {prioB}")
    for n in range(3): emit(w_issue(n, "q"))
    x_srd(4)
    e("L_common:")
    assert mask == 0
    wt = mask.bit_length() // 2 + 1 if mask else 0
    if not mask: groups = tuple((d, d) for d in groups)
    for reg, k in ((sD, 0), (sD4, 1)):
        tab = [groups[b * len(groups) // 32][k] for b in range(32)]
        assert all(0 <= g[0] and g[0] + wt <= g[1] <= 15 for g in groups)
        wd = [sum(tab[8*i + j] << (4*j) for j in range(8)) for i in range(4)]
        e(f"s_bitcmp0_b32 s{sB}, 3")
        e(f"s_mov_b32 s{sTMP}, {wd[1]:#x}"); e(f"s_cselect_b32 s{sTMP}, {wd[0]:#x}, s{sTMP}")
        e(f"s_mov_b32 s{sTMP2}, {wd[3]:#x}"); e(f"s_cselect_b32 s{sTMP2}, {wd[2]:#x}, s{sTMP2}")
        e(f"s_bitcmp0_b32 s{sB}, 4"); e(f"s_cselect_b32 s{sTMP}, s{sTMP}, s{sTMP2}")
        e(f"s_and_b32 s{sTMP2}, s{sB}, 7"); e(f"s_lshl_b32 s{sTMP2}, s{sTMP2}, 2")
        e(f"s_lshr_b32 s{sTMP}, s{sTMP}, s{sTMP2}"); e(f"s_and_b32 s{reg}, s{sTMP}, 15")
    e(f"s_lshl_b32 s{sTMP}, s{sHI}, 1"); e(f"s_add_u32 s{sTMP}, s{sTMP}, s{sW}"); e(f"s_mul_i32 s{sKB}, s{sTMP}, {CHUNK}")
    def dk_setup():
        e(f"v_bfe_u32 v{vT0}, v{vLN}, 4, 1"); e(f"v_lshlrev_b32 v{vT0}, 4, v{vT0}"); e(f"v_xor_b32 v{vDK}, v{vDV}, v{vT0}")
    dk_setup()
    t0, t1 = F, F + 1
    e(f"v_and_b32 v{t0}, 7, v{vLN}"); e(f"v_mul_u32_u24 v{vKA}, {KBLK}, v{t0}")
    e(f"v_bfe_u32 v{t0}, v{vLN}, 3, 1"); e(f"v_lshl_add_u32 v{vKA}, v{t0}, 8, v{vKA}")
    e(f"v_lshrrev_b32 v{t1}, 5, v{vLN}"); e(f"v_xor_b32 v{t0}, v{t0}, v{t1}"); e(f"v_lshl_add_u32 v{vKA}, v{t0}, 4, v{vKA}")
    e(f"v_bfe_u32 v{t0}, v{vLN}, 4, 1"); e(f"v_lshl_add_u32 v{vKA}, v{t0}, 5, v{vKA}")
    e(f"v_bfe_u32 v{t0}, v{vLN}, 2, 3"); e(f"v_mul_u32_u24 v{vVA}, {VBLK}, v{t0}")
    e(f"v_lshl_add_u32 v{vVA}, v{t1}, 8, v{vVA}")
    e(f"v_and_b32 v{t0}, 3, v{vLN}"); e(f"v_lshl_add_u32 v{vVA}, v{t0}, 3, v{vVA}")
    def wx_setup():
        e(f"v_and_b32 v{t0}, 3, v{vLN}")
        e(f"v_bfe_u32 v{t1}, v{vLN}, 2, 2"); e(f"v_mul_u32_u24 v{vWA}, {VBLK}, v{t1}")
        e(f"v_lshl_add_u32 v{vWA}, v{t0}, 3, v{vWA}")
        e(f"v_lshrrev_b32 v{t0+2}, 4, v{vLN}"); e(f"v_lshl_add_u32 v{vWA}, v{t0+2}, 7, v{vWA}"); e(f"v_add_u32 v{vWA}, s{sWRB}, v{vWA}")
        e(f"v_mul_u32_u24 v{vXA}, {KBLK}, v{t0}"); e(f"v_lshl_add_u32 v{vXA}, v{t1}, 8, v{vXA}")
        e(f"v_sub_u32 v{t0+3}, 0, v{t1}"); e(f"v_and_b32 v{t0+3}, 3, v{t0+3}"); e(f"v_xor_b32 v{t0+3}, v{t0+3}, v{t0+2}")
        e(f"v_lshl_add_u32 v{vXA}, v{t0+3}, 4, v{vXA}"); e(f"v_add_u32 v{vXA}, {XB}, v{vXA}")
    wx_setup()
    e(f"v_cmp_eq_u32 vcc, v{t0}, v{t1}"); e(f"v_mov_b32 v{t0+2}, 0x3f803f80")
    e(f"v_cndmask_b32 v{ONES}, 0, v{t0+2}, vcc"); e(f"v_mov_b32 v{ONES+1}, v{ONES}")
    for i in range(4): e(f"v_mov_b32 v{L+i}, 0")
    e(f"s_lshl_b32 s{sTMP}, s2, 2"); e(f"s_add_u32 s{sTMP}, s{sTMP}, s{sW}")
    e(f"s_mul_i32 s{sROT}, s{sTMP}, {rot_mul}"); e(f"s_and_b32 s{sROT}, s{sROT}, 15"); e(f"s_lshl_b32 s{sROT}, s{sROT}, 13")
    e(f"s_lshl_b32 s{sTMP}, s{sTMP}, 17")
    for r, p in ((sK, 16), (sV, 18)):
        e(f"s_add_u32 s{r}, s{p}, s{sTMP}"); e(f"s_addc_u32 s{r+1}, s{p+1}, 0"); e(f"s_mov_b32 s{r+2}, 0x20000"); e(f"s_mov_b32 s{r+3}, 0x20000")
    e(f"s_bitcmp0_b32 s{sW}, 0")
    e(f"s_cselect_b32 s{sIT}, s6, s8"); e(f"s_cselect_b32 s{sIT+1}, s7, s9"); e(f"s_cselect_b32 s{sIST}, {KBLK-1024}, {VBLK-1024}")
    e(f"s_cselect_b64 vcc, -1, 0")
    e(f"v_cndmask_b32 v{vIT}, v{vDV}, v{vDK}, vcc")
    e(f"s_lshl_b32 s{sTMP}, s2, 17")
    e(f"s_add_u32 s{sIT}, s{sIT}, s{sTMP}"); e(f"s_addc_u32 s{sIT+1}, s{sIT+1}, 0"); e(f"s_mov_b32 s{sIT+2}, 0x20000"); e(f"s_mov_b32 s{sIT+3}, 0x20000")
    e(f"s_mul_i32 s{sROTA}, s2, {rot_mul}"); e(f"s_and_b32 s{sROTA}, s{sROTA}, 15"); e(f"s_lshl_b32 s{sROTA}, s{sROTA}, 1"); e(f"s_add_u32 s{sROTA}, s{sROTA}, s{sHI}"); e(f"s_lshl_b32 s{sROTA}, s{sROTA}, 12")
    wo_srd(12)
    e(f"s_cmp_eq_u32 s{sROLE}, 0"); e("s_cbranch_scc1 L_Binit")
    e(f"v_add_u32 v{vKA}, {XB}, v{vKA}"); e(f"v_add_u32 v{vVA}, {XB + SLOT}, v{vVA}")
    e(f"v_mov_b32 v{t0}, {CNT}"); e(f"ds_write_b128 v{t0}, {vr(L, 4)}")
    e("s_waitcnt vmcnt(4) lgkmcnt(0)"); e("s_barrier")
    x_issue(1)
    e(f"s_or_b32 s{sTMP}, s{sG}, s{sW}"); e(f"s_cmp_eq_u32 s{sTMP}, 0"); e("s_cbranch_scc0 L_noinit")
    flag_srd(0)
    e("s_mov_b64 exec, 1")
    e(f"buffer_store_dword v{L}, off, {srd(sPF)}, s{sOFF} sc1"); e(f"buffer_store_dword v{L}, off, {srd(sPF)}, s{sOFF} offset:256 sc1")
    e("s_waitcnt vmcnt(0)")
    dbg_srd()
    e(f"v_mov_b32 v{vT0}, 8"); e(f"buffer_store_dword v{vT0}, off, {srd(sPF)}, s{sOFF} sc1")
    e("s_mov_b64 exec, -1")
    e("s_branch L_init2")
    e("L_noinit:")
    e("s_waitcnt vmcnt(0)")
    e("L_init2:")
    e("s_barrier")
    x_issue(2); x_issue(3)
    e("s_waitcnt vmcnt(4)"); e("s_barrier")
    if hpf == 1:
        coop_prefetch(10, 13, 10, w_pf); xa_touch()
        e("s_waitcnt vmcnt(6)"); e("s_barrier")
        if not coopAA: coop_prefetch(12, 10, 19, w_pf); coop_prefetch(22, 10, 19, w_pf)
    elif hpf == 2:
        coop_prefetch(10, 13, 10, w_pf); xa_touch()
        e("s_waitcnt vmcnt(6)"); e("s_barrier")
        coop_prefetch(12, 10, 19, w_pf)
    else:
        e("s_waitcnt vmcnt(0)"); e("s_barrier")
    if early01:
        e(f"s_cmp_eq_u32 s{sHI}, 0"); e("s_cbranch_scc0 L_h23")
        emit(k_issue()); emit(v_issue()); e("s_barrier"); e("s_branch L_h01")
        e("L_h23:")
    e("s_barrier")
    x_srd(4)
    if any(g[0] == 0 for g in groups):
        if defer01:
            e(f"s_cmp_eq_u32 s{sD}, 0"); e("s_cbranch_scc0 L_hkv")
            e(f"s_cmp_eq_u32 s{sHI}, 0"); e("s_cbranch_scc1 L_h01")
        else:
            e(f"s_cmp_lt_u32 s{sD}, s{sHI}"); e("s_cbranch_scc0 L_hkv")
        emit(x_own(0)); emit(x_own(1)); e("s_branch L_h01")
        e("L_hkv:")
    emit(k_issue()); emit(v_issue())
    e("L_h01:")
    x_srd(4); x_issue(0, xaflag)
    e("s_waitcnt vmcnt(4)"); e("s_barrier")
    if not hpf: coop_prefetch(10, 13, 10, w_pf)
    x_issue(1, xaflag)
    if not hpf: coop_prefetch(12, 10, 19, w_pf)
    e(f"s_lshl_b32 s{sTMP}, s2, 17")
    for r, p in ((sK, 6), (sV, 8)):
        e(f"s_add_u32 s{r}, s{p}, s{sTMP}"); e(f"s_addc_u32 s{r+1}, s{p+1}, 0")
    for n in range(3): emit(w_issue(n, "q"))
    e("s_waitcnt vmcnt(12)")
    e("s_branch L_Qstart")
    e("L_Binit:")
    e(f"v_add_u32 v{vKA}, s{sKB}, v{vKA}"); e(f"v_add_u32 v{vVA}, s{sKB}, v{vVA}"); e(f"v_add_u32 v{vVA}, {SLOT}, v{vVA}")
    e("L_Qstart:")
    e("s_barrier")
    stamp("P0")
    proj("q")
    c = f2u(math.log2(math.e) / math.sqrt(128.0))
    e(f"v_mov_b32 v{vT0}, {c:#x}"); e(f"v_mov_b32 v{vT1}, {c:#x}")
    pend = []
    for s in range(4):
        for qt in range(4):
            b = acc(2*s, qt); q = Q + (qt*4 + s)*4
            for i in range(4): e(f"v_pk_mul_f32 {vr(b+2*i, 2)}, {vr(b+2*i, 2)}, {vr(vT0, 2)}")
            for pq in pend[-1:]: e(f"v_permlane16_swap_b32 v{pq}, v{pq+2}"); e(f"v_permlane16_swap_b32 v{pq+1}, v{pq+3}")
            for i in range(4): e(f"v_cvt_pk_bf16_f32 v{q+i}, v{b+2*i}, v{b+2*i+1}")
            pend.append(q)
    for q in pend[-1:]: e(f"v_permlane16_swap_b32 v{q}, v{q+2}"); e(f"v_permlane16_swap_b32 v{q+1}, v{q+3}")
    stamp("Qdone")
    e(f"s_mov_b32 s{sI}, 0")
    e(f"s_cmp_eq_u32 s{sROLE}, 0"); e("s_cbranch_scc0 L_Aattn")

    def b_wsetup():
        w_setup("o"); e(f"s_mov_b32 s{sWOFF}, {(32 << 10) + 128}")
    for i in range(0, 128, 2): e(f"v_mov_b64 {vr(i, 2)}, 0")
    w_setup("o")
    x_voff()
    e(f"s_mov_b32 s{sN}, 1")
    e("s_barrier")
    e("L_Bloop:")
    e(f"s_cmp_eq_u32 s{sI}, s{sD}"); e("s_cbranch_scc1 L_Bpause1")
    e("L_Bgo:")
    if e0:
        e(f"s_cmp_eq_u32 s{sI}, 15"); e("s_cbranch_scc0 L_noE0"); e("s_barrier"); e("L_noE0:")
    waitn(sN, 2)
    if tl:
        e("s_memrealtime s[98:99]"); e("s_memtime s[96:97]"); e("s_waitcnt lgkmcnt(0)"); e(f"s_mov_b32 m0, s{sI}"); e("s_nop 0"); e(f"v_writelane_b32 v254, s98, m0")
        e(f"s_add_u32 m0, s{sI}, 16"); e("s_nop 0"); e(f"v_writelane_b32 v254, s96, m0")
    def next_item(sbase, cap=None):
        e(f"s_add_u32 s{sROTA}, s{sROTA}, 16384"); e(f"s_and_b32 s{sROTA}, s{sROTA}, 0x1ffff")
        emit(capped(item_issue(sbase), cap))
    def refill(lst, h):
        go, xl, done, skip = lab("rf"), lab("rf"), lab("rf"), lab("rf")
        e(f"s_cmp_eq_u32 s{sTMP2}, 16"); e(f"s_cbranch_scc1 {skip}")
        if defer01:
            e(f"s_cmp_eq_u32 s{sTMP2}, s{sD}"); e(f"s_cbranch_scc0 {go}")
            e(f"s_cmp_eq_u32 s{sHI}, 0"); e(f"s_cbranch_scc1 {skip}")
            e(f"s_branch {xl}")
        else:
            e(f"s_cmp_eq_u32 s{sHI}, 0"); e(f"s_cbranch_scc1 {go}")
            e(f"s_cmp_eq_u32 s{sTMP2}, s{sD}"); e(f"s_cbranch_scc1 {xl}")
        if mask: e(f"s_cmp_eq_u32 s{sTMP2}, s{sD4}"); e(f"s_cbranch_scc1 {skip}")
        e(f"{go}:")
        cm = (capK, capV)[h]
        if cm:
            lc = lab("cp")
            e(f"s_bitcmp1_b32 {cm:#x}, s{sTMP2}"); e(f"s_cbranch_scc1 {lc}")
            late.append((lc, capped(lst, capn), done))
        emit(lst)
        e(f"{done}:")
        e(f"s_add_u32 s{sN}, s{sN}, 1"); e(f"s_add_u32 s{sM}, s{sM}, 1")
        e(f"{skip}:")
        late.append((xl, x_own(h), done))
    late = []
    def window(half):
        l = lab("nw")
        e(f"s_mov_b32 s{sN}, 0")
        if not mask: return
        e(f"s_sub_u32 s{sTMP2}, s{sI}, s{sD}"); e(f"s_cmp_lt_u32 s{sTMP2}, 8"); e(f"s_cbranch_scc0 {l}")
        m = sum(((mask >> (2*k + half)) & 1) << k for k in range(8))
        if m == 0:
            e(f"{l}:"); return
        e(f"s_bitcmp1_b32 {m}, s{sTMP2}"); e(f"s_cbranch_scc0 {l}")
        waitn(sM, 2)
        e("s_barrier")
        e(f"s_add_u32 s{sJ}, s{sJ}, 1")
        if (mask.bit_length() - 1) % 2 == half:
            lw = lab("wo")
            e(f"s_cmp_eq_u32 s{sJ}, 7"); e(f"s_cbranch_scc1 {lw}")
            late.append((lw, w_issue(0, "o") + w_issue(1, "o") + w_issue(2, "o") + [f"s_mov_b32 s{sN}, 1"], l))
        e(f"s_bitcmp1_b32 s{sJ}, 0"); e(f"s_cselect_b32 s{sM}, s{sWRB}, s{sDK}")
        next_item(sM, capI)
        e(f"s_mov_b32 s{sN}, 1"); e(f"s_mov_b32 s{sM}, 0")
        e(f"{l}:")
    def b_after_qk():
        window(0)
        e(f"s_add_u32 s{sROT}, s{sROT}, 8192"); e(f"s_and_b32 s{sROT}, s{sROT}, 0x1ffff")
        e(f"s_add_u32 s{sTMP2}, s{sI}, 1")
        refill(capped(k_issue(), capN), 0)
    def b_after_pv():
        window(1)
        e(f"s_add_u32 s{sI}, s{sI}, 1"); e(f"s_mov_b32 s{sTMP2}, s{sI}")
        refill(capped(v_issue(), capN), 1)
        e(f"s_cmp_eq_u32 s{sI}, 16"); e("s_cbranch_scc0 L_Bloop")
        e("s_branch L_Oepi")
    tile(b_after_qk, lambda: waitn(sN, 2), b_after_pv)
    for xl, lst, done in late:
        e(f"{xl}:"); emit(lst); e(f"s_branch {done}")
    e("L_Bpause1:")
    e(f"s_and_b32 s{sDK}, s{sW}, 1"); e(f"s_mul_i32 s{sDK}, s{sDK}, {SLOT}"); e(f"s_add_u32 s{sDK}, s{sDK}, {XB}")
    e(f"s_add_u32 s{sTMP}, s{sIST}, 1024"); e(f"s_mul_i32 s{sTMP}, s{sTMP}, s{sHI}"); e(f"s_lshl_b32 s{sTMP}, s{sTMP}, 2"); e(f"s_add_u32 s{sDK}, s{sDK}, s{sTMP}")
    e("s_barrier")
    e(f"s_cmp_eq_u32 s{sW}, 0"); e("s_cbranch_scc0 L_nochk")
    poll(None, tmp=F)
    e("L_nochk:")
    e("s_barrier")
    e("s_waitcnt vmcnt(0)"); e("s_barrier")
    e("s_barrier"); e("s_barrier")
    def half_item(t):
        e(f"s_add_u32 m0, s{sDK}, {(t % 4)*CHUNK}")
        for j in range(4):
            if j: e(f"s_add_u32 m0, m0, s{sIST}")
            e(f"buffer_load_dwordx4 v{vIT}, {srd(sIT)}, s{sROTA} offen offset:{j*1024} {kv} lds")
        e(f"s_add_u32 s{sROTA}, s{sROTA}, 8192"); e(f"s_and_b32 s{sROTA}, s{sROTA}, 0x1ffff")
    def serve(extra):
        q = []
        def item(t): half_item(t); q.extend([t]*4)
        item(0); item(1); issued = 2
        for t in range(16):
            last = max(i for i, x in enumerate(q) if x == t)
            e(f"s_waitcnt vmcnt({len(q) - 1 - last})"); e("s_barrier")
            while issued < min(16, t + depth + 1):
                item(issued); issued += 1
            for x in extra.get(t, []):
                e(x)
                if x.startswith("buffer_load"): q.append(-1)
    lo, hi = {}, {}
    if defer01:
        ks, vs = k_issue(), v_issue()
        cut = lambda l: (l[:9], l[9:])
        lo[2], lo[4] = cut(ks); lo[6], lo[8] = cut(vs)
    if coopAA:
        assert all(g[0] == 0 for g in [groups[b * len(groups) // 32] for b in range(8)])
        e(f"s_cmp_lt_u32 s{sB}, 8"); e(f"s_cselect_b32 s{sPF}, s12, s22"); e(f"s_cselect_b32 s{sPF+1}, s13, s23")
        e(f"s_lshl_b32 s{sTMP}, s{sG}, 3"); e(f"s_and_b32 s{sTMP2}, s{sB}, 7"); e(f"s_add_u32 s{sTMP}, s{sTMP}, s{sTMP2}")
        e(f"s_lshl_b32 s{sTMP}, s{sTMP}, 1"); e(f"s_and_b32 s{sTMP2}, s{sW}, 1"); e(f"s_add_u32 s{sTMP}, s{sTMP}, s{sTMP2}"); e(f"s_lshl_b32 s{sTMP}, s{sTMP}, 15")
        e(f"s_add_u32 s{sPF}, s{sPF}, s{sTMP}"); e(f"s_addc_u32 s{sPF+1}, s{sPF+1}, 0")
        e(f"s_sub_u32 s{sTMP}, s{sB}, 8"); e(f"s_cmp_lt_u32 s{sTMP}, 16"); e(f"s_cselect_b32 s{sPF+2}, 0, 0x8000"); e(f"s_mov_b32 s{sPF+3}, 0x20000")
        for t in range(8):
            hi[t + 1] = [f"s_mov_b32 s{sOFF}, {t*4096}"] + [f"buffer_load_dwordx4 {vr(S + 4*j, 4)}, v{vDV}, {srd(sPF)}, s{sOFF} offen offset:{j*1024} {w_pf}" for j in range(4)]
    if lo != hi:
        e(f"s_cmp_eq_u32 s{sHI}, 0"); e("s_cbranch_scc1 L_servelo")
        serve(hi); e("s_branch L_served")
        e("L_servelo:")
    serve(lo)
    e("L_served:")
    for n in range(3): emit(w_issue(n, "o"))
    e("L_Bpause2:")
    wo_srd(22)
    e("s_barrier"); e("s_waitcnt vmcnt(0)"); e("s_barrier"); e("s_barrier")
    e(f"s_mov_b32 s{sN}, 1")
    e(f"s_cmp_eq_u32 s{sHI}, 0"); e(f"s_cbranch_scc1 L_Bgo")
    emit(k_issue()); emit(v_issue())
    e("s_branch L_Bgo")

    FB = [F, F + 4, F + 8, 244, 248, 252]
    kb = [0, 1, 2, 3, 4, 5, 0, 1]
    vb = [FB[2], FB[3], FB[4], FB[5], FB[0], FB[1], S + 4, S + 12]
    def akr(f): return f"ds_read_b128 {vr(FB[kb[f]], 4)}, v{vKA} offset:{(f >> 2)*512 + (f & 3)*64}"
    def avr(dt): return [f"ds_read_b64_tr_b16 {vr(vb[dt] + 2*u, 2)}, v{vVA} offset:{u*512 + dt*32}" for u in range(2)]
    first = [False]
    def apv(dt, qt): return f"{MF} {vr(acc(dt, qt), 4)}, {vr(vb[dt], 4)}, {vr(S + qt*8, 4)}, {'0' if first[0] else vr(acc(dt, qt), 4)}"
    def weave(mf, fill):
        cost = [2 if (x.startswith("v_exp") or x.startswith("v_mfma")) else 1 for x in fill]
        tot = sum(cost); cum = 0; k = 0
        for i, m in enumerate(mf):
            e(m)
            while k < len(fill) and (cum + cost[k]) * len(mf) <= (i + 1) * tot + len(mf) // 2:
                e(fill[k]); cum += cost[k]; k += 1
        emit(fill[k:])
    def atile(odd):
        ex = exps(0, 0) + exps(1, 0) + exps(2, 0)
        for f in range(8):
            u, sx = f >> 2, f & 3
            if f == 0: e("s_waitcnt lgkmcnt(2)")
            if f in (2, 4): e("s_waitcnt lgkmcnt(4)")
            for qt in range(4):
                r = vr(Sr(qt, u), 4)
                e(f"{MF} {r}, {vr(FB[kb[f]], 4)}, {vr(Q + (qt*4 + sx)*4, 4)}, {r if sx else '0'}")
                if f == 0 and qt < 2: e(akr(4 + qt))
                if f == 2 and qt == 0: e(f"v_add_u32 v{vKA}, {f's{sDK}' if odd else CHUNK}, v{vKA}")
                if u == 1 and (f, qt) != (4, 0) and (qt < 3 or f == 7): e(ex.pop(0))
            if f < 2: e(akr(6 + f))
            else: emit(avr(f - 2))
        assert not ex
        emit(exps(0, 1)); emit(cvts(0, 0)); emit(cvts(0, 1)); emit(avr(6))
        e("s_waitcnt lgkmcnt(6)")
        b0 = [apv(dt, 0) for dt in range(6)]
        b0[3] += "\ns_waitcnt lgkmcnt(2)"
        weave(b0, exps(1, 1) + cvts(1, 0) + cvts(1, 1))
        emit(avr(7))
        s0, s1, s2, s3 = (sums(qt) for qt in range(4))
        b1 = [apv(dt, 1) for dt in (range(5, -1, -1) if snake else range(6))]
        b1[1] = s0[0] + "\n" + b1[1]; b1[3] = s0[1] + "\n" + b1[3]
        weave(b1, exps(2, 1) + cvts(2, 0) + cvts(2, 1))
        e(f"v_add_u32 v{vVA}, {f's{sDK}' if odd else CHUNK}, v{vVA}")
        b2 = [apv(dt, 2) for dt in range(6)] + ([apv(6, 0), apv(7, 0), apv(7, 1), apv(6, 1)] if snake else [apv(6, 0), apv(7, 0), apv(6, 1), apv(7, 1)])
        b2[0] = s1[0] + "\n" + b2[0]; b2[2] = s1[1] + "\n" + b2[2]; b2[4] = s2[0] + "\n" + b2[4]
        b2[6] = "s_waitcnt lgkmcnt(0)\n" + b2[6]
        weave(b2, exps(3, 0) + exps(3, 1) + cvts(3, 0) + cvts(3, 1))
        e(s2[1])
        if not odd: e(f"s_add_u32 s{sI}, s{sI}, 1")
        e("s_barrier")
        for k, dt in enumerate((4, 5, 0, 1)):
            e(apv(dt, 3)); e(akr(k))
        e(s3[0]); e(apv(2, 3))
        if odd: e(f"s_xor_b32 s{sDK}, s{sDK}, {dKx:#x}")
        e(apv(3, 3)); e(s3[1])
        e(apv(6, 3)); e(apv(7, 3))
        if odd: e(f"s_cmp_eq_u32 s{sI}, 8")
        e(apv(7, 2)); e(apv(6, 2))
    dKx = CHUNK ^ ((-3*CHUNK) & 0xffffffff)
    e("L_Aattn:")
    e(f"s_mov_b32 s{sDK}, {CHUNK}")
    e("s_barrier")
    stamp("L0")
    if stamps and "L0" in stamps: e("s_waitcnt lgkmcnt(0)")
    for f in range(4): e(akr(f))
    first[0] = True; atile(0); first[0] = False
    e("s_branch L_Aodd")
    e("L_Aloop:")
    atile(0)
    e("L_Aodd:")
    atile(1)
    e("s_cbranch_scc0 L_Aloop")
    e("s_waitcnt lgkmcnt(0)")
    e(f"v_mbcnt_lo_u32_b32 v{vLN}, -1, 0"); e(f"v_mbcnt_hi_u32_b32 v{vLN}, -1, v{vLN}")
    e(f"v_lshlrev_b32 v{vDV}, 4, v{vLN}")
    dk_setup(); wx_setup(); b_wsetup()

    e("L_Oepi:")
    if tl:
        e(f"s_cmp_eq_u32 s{sROLE}, 0"); e("s_cbranch_scc0 L_tl0"); e("v_mov_b32 v252, v254   ; v_writelane_b32 v247"); e("L_tl0:")
    stamp("attn_done")
    def lsum():
        for sw in ("32", "16"):
            for qt in range(4): e(f"v_mov_b32 v{F+qt}, v{L+qt}")
            for qt in range(4): e(f"v_permlane{sw}_swap_b32 v{L+qt}, v{F+qt}")
            for qt in range(4): e(f"v_add_f32 v{L+qt}, v{L+qt}, v{F+qt}")
    lsum()
    e(f"v_min3_f32 v{vT0}, v{L}, v{L+1}, v{L+2}"); e(f"v_min_f32 v{vT0}, v{vT0}, v{L+3}")
    e(f"v_add_f32 v{vT1}, v{L}, v{L+1}"); e(f"v_add_f32 v{vT1}, v{vT1}, v{L+2}"); e(f"v_add_f32 v{vT1}, v{vT1}, v{L+3}")
    e(f"v_cmp_nle_f32 vcc, {f2u(2.0**lo_exp):#x}, v{vT0}"); e("s_cbranch_vccnz L_slow")
    e(f"v_cmp_nge_f32 vcc, {f2u(2.0**hi_exp):#x}, v{vT1}"); e("s_cbranch_vccnz L_slow")
    if force_slow: e("s_branch L_slow")
    e("L_slow_back:")
    for qt in range(4): e(f"v_rcp_f32 v{L+qt}, v{L+qt}")
    e(f"s_mul_i32 s{sTMP}, s{sW}, {CHUNK}"); e(f"v_add_u32 v{vT0}, s{sTMP}, v{vXA}")
    def norm(s, qt):
        b = acc(2*s, qt)
        sel = "op_sel_hi:[1,0]" if qt % 2 == 0 else "op_sel:[0,1]"
        for i in range(4): e(f"v_pk_mul_f32 {vr(b+2*i, 2)}, {vr(b+2*i, 2)}, {vr(L + (qt & 2), 2)} {sel}")
        for i in range(4): e(f"v_cvt_pk_bf16_f32 v{b+i}, v{b+2*i}, v{b+2*i+1}")
    def owr(s, qt): e(f"ds_write_b128 v{vT0}, {vr(acc(2*s, qt), 4)} offset:{qt*HALF + s*64}")
    for s in range(4):
        for qt in range(4):
            norm(s, qt); owr(s, qt)
    e("L_Oproj:")
    e("s_waitcnt lgkmcnt(0)")
    e("s_barrier")
    stamp("Owritten")
    proj("o")
    stamp("Odone")
    e(f"s_xor_b32 s{sTMP}, s{sROLE}, 1"); e(f"s_lshl_b32 s{sTMP}, s{sTMP}, 8"); e(f"s_add_u32 s{sTMP}, s{sTMP}, s2")
    e(f"s_lshl_b32 s{sTMP}, s{sTMP}, 2"); e(f"s_add_u32 s{sTMP}, s{sTMP}, s{sW}"); e(f"s_lshl_b32 s{sTMP}, s{sTMP}, 14")
    e(f"s_add_u32 s{sP}, s28, s{sTMP}"); e(f"s_addc_u32 s{sP+1}, s29, 0"); e(f"s_mov_b32 s{sP+2}, 0x4000"); e(f"s_mov_b32 s{sP+3}, 0x20000")
    e(f"s_cmp_eq_u32 s{sROLE}, 0"); e("s_cbranch_scc1 L_store")
    e(f"s_setprio {prioT}")
    assert not late_pf
    wo_srd(22); e(f"s_mov_b32 s{sWOFF}, 0")
    for n in range(3): emit(w_issue(n, "o"))
    if not e0: e("s_waitcnt vmcnt(0)")
    e("s_barrier")
    e("L_store:")
    keep = []
    for sp in range(2):
        for qt in range(4):
            lk, lb = lab("kp"), lab("kp")
            e(f"s_cmp_eq_u32 s{sG}, {qt*2 + sp}"); e(f"s_cbranch_scc1 {lk}")
            e(f"s_mov_b32 s{sOFF}, {qt*4096}")
            for sx in (2*sp, 2*sp + 1):
                b = acc(2*sx, qt)
                for i in range(4): e(f"v_cvt_pk_bf16_f32 v{b+i}, v{b+2*i}, v{b+2*i+1}")
                e(f"buffer_store_dwordx4 {vr(b, 4)}, v{vDV}, {srd(sP)}, s{sOFF} offen offset:{sx*1024} {pstore}")
            e(f"{lb}:")
            keep.append((lk, lb, sp, qt))
    e(f"s_cmp_eq_u32 s{sROLE}, 0"); e("s_cbranch_scc0 L_Apub")
    stamp("issued")
    if ared == "bars": e("s_barrier")
    stamp("bars")
    if stamps and "drained" in stamps: e("s_waitcnt vmcnt(0)"); stamp("drained")
    lds_arrive(1, "L_Bwait")
    stamp("pub")
    def first(done):
        e(f"buffer_atomic_add v{vT1}, off, {srd(sPF)}, s{sOFF} sc0")
        e("s_waitcnt vmcnt(0)")
        e(f"v_readfirstlane_b32 s{sTMP}, v{vT1}")
        e(f"s_cmp_ge_u32 s{sTMP}, 7"); e(f"s_cbranch_scc1 {done}")
    poll(1, first)
    e(f"v_mov_b32 v{vT0}, {CNT + 8}"); e(f"v_mov_b32 v{vT1}, 1")
    e(f"ds_write_b32 v{vT0}, v{vT1}")
    e("s_branch L_final")
    e("L_Bwait:")
    e(f"v_mov_b32 v{vT0}, {CNT + 8}")
    e("L_Bspin:")
    e(f"ds_read_b32 v{vT1}, v{vT0}")
    e("s_waitcnt lgkmcnt(0)")
    e(f"v_readfirstlane_b32 s{sTMP}, v{vT1}")
    e(f"s_cmp_eq_u32 s{sTMP}, 0"); e("s_cbranch_scc0 L_final")
    e("s_sleep 1")
    e("s_branch L_Bspin")
    for lk, lb, sp, qt in keep:
        e(f"{lk}:")
        for f in range(2):
            for i in range(0, 8, 2): e(f"v_mov_b64 {vr(RK + 8*f + i, 2)}, {vr(acc(2*(2*sp + f), qt) + i, 2)}")
        e(f"s_branch {lb}")
    e("L_Apub:")
    if e0:
        e("s_waitcnt vmcnt(14)"); e("s_barrier")
    lds_arrive(0, "L_nosig")
    if ared == "bars":
        flag_srd(0)
        e(f"buffer_atomic_add v{vT1}, off, {srd(sPF)}, s{sOFF}")
    else:
        poll(0, first, slp=slpA)
    e("L_nosig:")
    e("s_mov_b64 exec, -1")
    stamp("pubA")
    e("s_barrier")
    if ared == "bars":
        e(f"s_cmp_eq_u32 s{sW}, 0"); e("s_cbranch_scc0 L_nopoll")
        poll(0)
        e("L_nopoll:")
        e("s_barrier")
    e("L_final:")
    e("s_mov_b64 exec, -1")
    stamp("flag")
    reduce()
    if calib:
        if calib_wg is not None: e(f"s_cmp_eq_u32 s2, {calib_wg}"); e("s_cbranch_scc0 L_end")
        e("L_cal:"); e("s_sleep 4"); e("s_memrealtime s[90:91]"); e("s_waitcnt lgkmcnt(0)"); e("s_sub_u32 s90, s90, s92"); e(f"s_cmp_lt_u32 s90, {calib*100}"); e("s_cbranch_scc1 L_cal")
    if stamps:
        e("s_waitcnt vmcnt(0)")
        stamp("end")
        e("s_memtime s[4:5]")
        e("s_waitcnt lgkmcnt(0)")
        e("s_sub_u32 s4, s4, s100")
        e(f"s_lshl_b32 s{sTMP}, s2, 1"); e(f"s_add_u32 s{sTMP}, s{sTMP}, s{sROLE}"); e(f"s_lshl_b32 s{sTMP}, s{sTMP}, 2"); e(f"s_add_u32 s{sTMP}, s{sTMP}, s{sW}")
        e(f"s_lshl_b32 s{sTMP}, s{sTMP}, 7")
        e(f"s_add_u32 s{sPF}, s28, 0x4000000"); e(f"s_addc_u32 s{sPF+1}, s29, 0"); e(f"s_mov_b32 s{sPF+2}, 0x100000"); e(f"s_mov_b32 s{sPF+3}, 0x20000")
        for i in range(16): e(f"v_mov_b32 v{i}, s{sST+i}")
        e(f"v_mov_b32 v16, s4"); e("v_mov_b32 v17, 0"); e("v_mov_b32 v18, 0"); e("v_mov_b32 v19, 0")
        e(f"v_mov_b32 v20, s{sTMP}")
        if tl:
            e(f"v_lshl_add_u32 v21, v{vLN}, 2, v20"); e("s_mov_b32 exec_hi, 0"); e(f"s_mov_b32 s{sOFF}, 0x80000")
            e(f"buffer_store_dword v252, v21, {srd(sPF)}, s{sOFF} offen")
        e("s_mov_b64 exec, 1")
        for i in range(5): e(f"buffer_store_dwordx4 {vr(4*i, 4)}, v20, {srd(sPF)}, 0 offen offset:{16*i}")
    e("L_end:")
    e("s_endpgm")

    e("L_slow:")
    e("s_waitcnt vmcnt(0)")
    e(f"s_cmp_eq_u32 s{sROLE}, 0"); e("s_cbranch_scc1 L_slowB")
    e(f"s_mul_i32 s{sTMP}, s{sW}, {CHUNK}"); e(f"s_add_u32 s{sKB}, s{sTMP}, {XB}")
    e(f"v_add_u32 v{vKA}, s{sTMP}, v{vKA}"); e(f"v_add_u32 v{vVA}, s{sTMP}, v{vVA}")
    e("L_slowB:")
    e(f"v_add_u32 v{vVA}, {(-SLOT) & 0xffffffff:#x}, v{vVA}")
    for i in range(0, 128, 2): e(f"v_mov_b64 {vr(i, 2)}, 0")
    for i in range(4): e(f"v_mov_b32 v{L+i}, 0"); e(f"v_mov_b32 v{M+i}, {f2u(-3.0e38):#x}")
    e(f"s_mov_b32 s{sROT}, 0")
    e("L_slowloop:")
    emit(k_issue())
    e("s_waitcnt vmcnt(0)")
    qk(None)
    emit(kv_issue(sV, vDV, sKB, 0, VBLK))
    for qt in range(4):
        b = S + qt*8; t = F + 2*qt
        e(f"v_max3_f32 v{t}, v{b}, v{b+1}, v{b+2}"); e(f"v_max3_f32 v{t}, v{t}, v{b+3}, v{b+4}")
        e(f"v_max3_f32 v{t}, v{t}, v{b+5}, v{b+6}"); e(f"v_max3_f32 v{t}, v{t}, v{b+7}, v{M+qt}")
        xlane("v_max_f32", t, vT0)
        e(f"v_sub_f32 v{t+1}, v{M+qt}, v{t}"); e(f"v_mov_b32 v{M+qt}, v{t}")
        e(f"v_exp_f32 v{t+1}, v{t+1}")
        for i in range(8): e(f"v_sub_f32 v{b+i}, v{b+i}, v{M+qt}")
        e(f"v_mul_f32 v{L+qt}, v{L+qt}, v{t+1}")
        for dt in range(8):
            for i in range(0, 4, 2): e(f"v_pk_mul_f32 {vr(acc(dt, qt)+i, 2)}, {vr(acc(dt, qt)+i, 2)}, {vr(t, 2)} op_sel:[0,1]")
        emit(exps(qt, 0)); emit(cvts(qt, 0))
    e("s_waitcnt vmcnt(0)")
    for dt in range(3): emit(vrd(dt))
    pv_phase([exps(qt, 1) + cvts(qt, 1) for qt in range(4)])
    e(f"s_add_u32 s{sROT}, s{sROT}, 8192"); e(f"s_cmp_lt_u32 s{sROT}, 0x20000"); e("s_cbranch_scc1 L_slowloop")
    for qt in range(4): xlane("v_add_f32", L + qt, vT0)
    b_wsetup()
    e("s_branch L_slow_back")
    e("L_last:")

    e('.section .rodata,"a"')
    e(".p2align 6"); e(f".amdhsa_kernel {NAME}_kernel")
    for l in [".amdhsa_next_free_vgpr 256", ".amdhsa_next_free_sgpr 102", ".amdhsa_accum_offset 256", ".amdhsa_group_segment_fixed_size 0",
              ".amdhsa_kernarg_size 104", ".amdhsa_user_sgpr_count 2", ".amdhsa_user_sgpr_kernarg_segment_ptr 1", ".amdhsa_system_sgpr_workgroup_id_x 1",
              ".amdhsa_float_denorm_mode_32 3"]:
        e("  " + l)
    e(".end_amdhsa_kernel")
    n = a.pad()
    return a.text(), n

if __name__ == "__main__":
    kw = eval("dict(" + (sys.argv[2] if len(sys.argv) > 2 else "") + ")")
    txt, n = gen(**kw)
    out = sys.argv[1] if len(sys.argv) > 1 else f"cdna_kernels/{NAME}.s"
    open(out, "w").write(txt)
    print("pad states:", n, "lines:", txt.count("\n"), "LDS", LDS)
```

```python
import sys, math, struct
from asmlib import Asm

NAME = "concat_heads__gqa_block_cached__mha_block_cached__near_ridge"
KBLK = 1088; VBLK = 1056; HALF = 4352; SLOT = 8704; CHUNK = 2*SLOT
XB = 2*CHUNK
WR0 = XB + 4*CHUNK
WRING = 3*HALF
CNT = WR0 + 4*WRING
LDS = CNT + 64
assert LDS <= 163840
WBIAS = 128

sK, sV, sWQ, sWO, sX, sP, sIT, sPF = 32, 36, 40, 44, 48, 52, 56, 60
(sROLE, sW, sG, sB, sD, sI, sROT, sOFF, sWRB, sKB, sTMP, sTMP2, sD4, sWOFF, sN, sM, sROTA, sIST, sPH, sDK) = range(64, 84)
sDV = 30; sHI = 31; sJ = 3
sST = 84
def srd(n): return f"s[{n}:{n+3}]"
ACC = 0; Q = 128; S = 192; F = 224; L = 236; ONES = 240
vKA, vVA, vDK, vDV = 242, 243, 244, 245
vWO = 246
vWA, vXA, vIT, vLN, vT0, vT1 = 250, 251, 252, 253, 254, 255
M = 246
AF = 128; BF = 160
def vr(b, n): return f"v[{b}:{b+n-1}]"
def acc(dt, qt): return ACC + ((dt >> 1)*4 + qt)*8 + (dt & 1)*4
def f2u(x): return struct.unpack("<I", struct.pack("<f", x))[0]
MF = "v_mfma_f32_16x16x32_bf16"

def gen(kv="nt", wq_pf="", w_pf="", wflag="", xflag="", stamps=False, groups=(0,0,0,0,0,1,1,1,1,2,2,2,3,4,5,7,9,11,12,12,13,13,13,14,14,14,14,15,15,15,15,15), mask=0, early01=False, e0=True, prioT=0, hpf=1, xaflag='nt', late_pf=False, prioA=1, prioB=0, T=10.0,
        rot_mul=1, cyc=False, lo_exp=-30, hi_exp=30, force_slow=False, codepf=True, slp=6, pstore="sc1", tl=False, calib=0, calib_wg=None, ostore='sc1', capN=8, capI=None, capK=0, capV=0, capn=6, snake=True, depth=2, ared='bars', slpA=24, abar=30, defer01=False, coopAA=False, calat='start', pf2=True, br=True, qbars=(6, 14, 22),
        hs=({0: "x1", 6: "x2 x3", 14: "q t", 22: "a b"},), w0first=False, capR=None, capX=None):
    a = Asm(); e = a
    if stamps is True: stamps = ["start", "P0", "Qdone", "attn_done", "Owritten", "Odone", "pub", "end"]
    def stamp(nm):
        if calib and nm == calat and nm != "start":
            lc = lab("cal"); e(f"s_cmp_eq_u32 s{sROLE}, 0"); e(f"s_cbranch_scc0 {lc}"); e("s_memrealtime s[92:93]"); e("s_waitcnt lgkmcnt(0)"); e(f"{lc}:")
        if stamps and nm in stamps:
            i = stamps.index(nm); e(f"{'s_memtime' if cyc else 's_memrealtime'} s[{sST+2*i}:{sST+2*i+1}]")
    def emit(lst):
        for x in lst: e(x)
    uid = [0]
    def lab(p):
        uid[0] += 1; return f"L_{p}{uid[0]}"

    def w_setup(kind):
        sh = 13 if kind == "q" else 10
        if kind == "q":
            e(f"v_bfe_u32 v{vT0}, v{vLN}, 3, 2"); e(f"v_lshlrev_b32 v{vWO}, {sh+3}, v{vT0}")
            e(f"v_lshrrev_b32 v{vT0}, 5, v{vLN}"); e(f"v_lshl_add_u32 v{vWO}, v{vT0}, {sh+2}, v{vWO}")
        else:
            e(f"v_lshrrev_b32 v{vT0}, 3, v{vLN}"); e(f"v_lshlrev_b32 v{vWO}, {sh+2}, v{vT0}")
        e(f"v_and_b32 v{vT0}, 7, v{vLN}"); e(f"v_lshl_add_u32 v{vWO}, v{vT0}, 4, v{vWO}")
        for r in (3, 2, 1, 0):
            e(f"v_add_u32 v{vWO+r}, {r*((1 << sh) - VBLK) + WBIAS}, v{vWO}")
        e(f"s_mov_b32 s{sWOFF}, 0")
    def wslot(n): return (n + 1) % 3
    def w_issue(n, kind):
        sr, sh = (sWQ, 13) if kind == "q" else (sWO, 10)
        out = [f"s_add_u32 m0, s{sWRB}, {wslot(n)*HALF}"]
        for r in range(4):
            out.append(f"buffer_load_dwordx4 v{vWO+r}, {srd(sr)}, s{sWOFF} offen offset:{r*VBLK} {wflag} lds")
        out.append(f"s_add_u32 s{sWOFF}, s{sWOFF}, {128 if n % 2 == 0 else (32 << sh) - 128}")
        return out
    def kv_issue(sr, voff, sbase, imm, blk, rot=sROT):
        if br:
            out = [f"s_add_u32 s{sOFF}, s{rot}, 4096"]
            for j in (0, 4, 2, 6, 1, 5, 3, 7):
                out.append(f"s_add_u32 m0, s{sbase}, {imm + j*blk - (j % 4)*1024}")
                out.append(f"buffer_load_dwordx4 v{voff}, {srd(sr)}, s{sOFF if j >= 4 else rot} offen offset:{(j % 4)*1024} {kv} lds")
            return out
        out = [f"s_mov_b32 s{sOFF}, s{rot}"]
        for j in range(8):
            if j == 4: out.append(f"s_add_u32 s{sOFF}, s{sOFF}, 4096")
            out.append(f"s_add_u32 m0, s{sbase}, {imm + j*blk - (j % 4)*1024}")
            out.append(f"buffer_load_dwordx4 v{voff}, {srd(sr)}, s{sOFF} offen offset:{(j % 4)*1024} {kv} lds")
        return out
    def capped(lst, n):
        if not n: return lst
        if n < 0: return [f"s_waitcnt vmcnt({-n-1})"] + lst
        out = []
        for x in lst:
            if x.startswith("buffer_load"): out.append(f"s_waitcnt vmcnt({n-1})")
            out.append(x)
        return out
    def k_issue(): return kv_issue(sK, vDK, sKB, 0, KBLK)
    def v_issue(): return kv_issue(sV, vDV, sKB, SLOT, VBLK)
    def item_issue(sbase, blocks=range(8)):
        out = []
        for j in blocks:
            if j == 0: out += [f"s_mov_b32 s{sOFF}, s{sROTA}", f"s_mov_b32 m0, s{sbase}"]
            elif j == 4:
                out += [f"s_add_u32 s{sOFF}, s{sROTA}, 4096", f"s_lshl_b32 s{sTMP}, s{sIST}, 2", f"s_add_u32 s{sTMP}, s{sTMP}, s{sbase}", f"s_add_u32 m0, s{sTMP}, 4096"]
            else: out.append(f"s_add_u32 m0, m0, s{sIST}")
            out.append(f"buffer_load_dwordx4 v{vIT}, {srd(sIT)}, s{sOFF} offen offset:{(j % 4)*1024} {kv} lds")
        return out
    def x_issue(c, xflag=xflag):
        e(f"s_lshl_b32 s{sOFF}, s{sW}, 14"); e(f"s_add_u32 s{sOFF}, s{sOFF}, {c*256}")
        e(f"s_mul_i32 s{sTMP}, s{sW}, {HALF}")
        for j in range(4):
            e(f"s_add_u32 m0, s{sTMP}, {XB + c*CHUNK + j*64}")
            e(f"buffer_load_dwordx4 v{vT1}, {srd(sX)}, s{sOFF} offen offset:{j*1024} {xflag} lds")
    def x_own(h):
        out = [f"s_lshl_b32 s{sOFF}, s{sW}, 8", f"s_add_u32 s{sOFF}, s{sOFF}, {h*32768}"]
        for j in range(8):
            if j == 4: out.append(f"s_add_u32 s{sOFF}, s{sOFF}, 16384")
            out.append(f"s_add_u32 m0, s{sKB}, {h*SLOT + (j >> 2)*HALF + (j & 3)*64}")
            out.append(f"buffer_load_dwordx4 v{vT1}, {srd(sX)}, s{sOFF} offen offset:{(j & 3)*1024} {xaflag} lds")
        return out
    def xa_touch():
        e(f"s_mov_b32 s{sPF}, s4"); e(f"s_mov_b32 s{sPF+1}, s5"); e(f"s_mov_b32 s{sPF+2}, 0x200000"); e(f"s_mov_b32 s{sPF+3}, 0x20000")
        e(f"s_lshl_b32 s{sTMP}, s2, 2"); e(f"s_add_u32 s{sTMP}, s{sTMP}, s{sW}"); e(f"s_lshl_b32 s{sTMP}, s{sTMP}, 11")
        for r in range(2): e(f"buffer_load_dwordx4 {vr(S + 16 + 4*r, 4)}, v{vDV}, {srd(sPF)}, s{sTMP} offen offset:{r*1024}")
    def x_voff():
        e(f"v_lshrrev_b32 v{vT0}, 4, v{vLN}"); e(f"v_sub_u32 v{vT1}, 0, v{vT0}"); e(f"v_and_b32 v{vT1}, 3, v{vT1}")
        e(f"v_xor_b32 v{vT1}, v{vT1}, v{vLN}"); e(f"v_and_b32 v{vT1}, 15, v{vT1}"); e(f"v_lshlrev_b32 v{vT1}, 4, v{vT1}")
        e(f"v_lshl_add_u32 v{vT1}, v{vT0}, 12, v{vT1}")
    def x_srd(lo):
        e(f"s_lshl_b32 s{sTMP}, s{sB}, 16")
        e(f"s_add_u32 s{sX}, s{lo}, s{sTMP}"); e(f"s_addc_u32 s{sX+1}, s{lo+1}, 0"); e(f"s_mov_b32 s{sX+2}, 0x10000"); e(f"s_mov_b32 s{sX+3}, 0x20000")
    def wo_srd(lo):
        e(f"s_lshl_b32 s{sTMP}, s{sG}, 19"); e(f"s_lshl_b32 s{sTMP2}, s{sW}, 8"); e(f"s_add_u32 s{sTMP}, s{sTMP}, s{sTMP2}")
        e(f"s_add_u32 s{sWO}, s{lo}, s{sTMP}"); e(f"s_addc_u32 s{sWO+1}, s{lo+1}, 0")
        e(f"s_sub_u32 s{sWO}, s{sWO}, {WBIAS}"); e(f"s_subb_u32 s{sWO+1}, s{sWO+1}, 0")
        e(f"s_sub_u32 s{sWO+2}, {0x400000 + WBIAS}, s{sTMP}"); e(f"s_mov_b32 s{sWO+3}, 0x20000")
    def coop_prefetch(lo, sh, goff_sh, flag):
        if flag == "2x":
            coop_prefetch(lo, sh, goff_sh, "nt"); e("s_waitcnt vmcnt(0)"); coop_prefetch(lo, sh, goff_sh, ""); return
        e(f"s_lshl_b32 s{sTMP}, s{sG}, {goff_sh}")
        e(f"s_add_u32 s{sPF}, s{lo}, s{sTMP}"); e(f"s_addc_u32 s{sPF+1}, s{lo+1}, 0")
        e(f"s_sub_u32 s{sPF+2}, 0x400000, s{sTMP}"); e(f"s_mov_b32 s{sPF+3}, 0x20000")
        e(f"s_lshl_b32 s{sTMP}, s{sB}, 2"); e(f"s_add_u32 s{sTMP}, s{sTMP}, s{sW}"); e(f"s_lshl_b32 s{sTMP}, s{sTMP}, {sh+2}")
        for r in range(4):
            e(f"buffer_load_dwordx4 {vr(S + 4*r, 4)}, v{vDV}, {srd(sPF)}, s{sTMP} offen {flag}")
            if r < 3: e(f"s_add_u32 s{sTMP}, s{sTMP}, {1 << sh}")

    def proj(kind):
        def ra(n):
            p = n % 2
            return [f"ds_read_b64_tr_b16 {vr(AF + p*16 + d*4 + ee*2, 2)}, v{vWA} offset:{wslot(n)*HALF + ee*512 + d*32}" for d in range(4) for ee in range(2)]
        def rb(ks, qts):
            return [f"ds_read_b128 {vr(BF + (ks % 2)*16 + qt*4, 4)}, v{vXA} offset:{(ks >> 2)*CHUNK + qt*HALF + (ks & 3)*64}" for qt in qts]
        e("s_waitcnt vmcnt(8)")
        emit(rb(0, range(4))); emit(ra(0))
        e("s_waitcnt lgkmcnt(0)")
        for n in range(32):
            stamp(f"{kind}{n}")
            ks, ch, p = n >> 1, n & 1, n % 2
            rd = ra(n + 1) if n < 31 else []
            if ks < 15: rd = rd + rb(ks + 1, (2*ch, 2*ch + 1))
            dm = w_issue(n + 3, kind) if n + 3 < 32 else []
            if n < 31:
                e("s_waitcnt vmcnt(4)" if (n <= 29) else "s_waitcnt vmcnt(0)")
            if kind == "q" and n in qbars: e("s_barrier")
            if n == 30:
                if kind == "q": e("s_barrier")
                elif abar == 30: e("s_barrier")
                else:
                    l1 = lab("nb"); e(f"s_cmp_eq_u32 s{sROLE}, 0"); e(f"s_cbranch_scc1 {l1}"); e("s_barrier"); e(f"{l1}:")
            if kind == "o" and n == abar and abar != 30:
                l1 = lab("nb"); e(f"s_cmp_eq_u32 s{sROLE}, 0"); e(f"s_cbranch_scc0 {l1}"); e("s_barrier"); e(f"{l1}:")
            gaps = [[] for _ in range(16)]
            for i, x in enumerate(rd): gaps[i].append(x)
            if dm:
                gaps[3].append(dm[0])
                for i in range(4): gaps[4 + 2*i].append(dm[1 + i])
                gaps[11].append(dm[5])
            k = 0
            for d in range(4):
                for qt in (range(3, -1, -1) if (snake and d % 2) else range(4)):
                    r = vr(acc(4*ch + d, qt), 4)
                    e(f"{MF} {r}, {vr(AF + p*16 + d*4, 4)}, {vr(BF + (ks % 2)*16 + qt*4, 4)}, {r if ks else '0'}")
                    emit(gaps[k]); k += 1
            if n < 31: e("s_waitcnt lgkmcnt(0)")

    def Sr(qt, u): return S + qt*8 + u*4
    def exps(qt, u): return [f"v_exp_f32 v{Sr(qt, u)+i}, v{Sr(qt, u)+i}" for i in range(4)]
    def cvts(qt, u): return [f"v_cvt_pk_bf16_f32 v{S+qt*8+2*u+i}, v{Sr(qt, u)+2*i}, v{Sr(qt, u)+2*i+1}" for i in range(2)]
    def kr(f): return f"ds_read_b128 {vr(F + (f % 3)*4, 4)}, v{vKA} offset:{(f >> 2)*512 + (f & 3)*64}"
    vbuf = [F, F + 4, F + 8, S + 4, S + 12, S + 20, S + 28, F]
    def vrd(dt): return [f"ds_read_b64_tr_b16 {vr(vbuf[dt] + 2*u, 2)}, v{vVA} offset:{u*512 + dt*32}" for u in range(2)]
    def sums(qt): return [f"v_mfma_f32_4x4x4_16b_bf16 {vr(L, 4)}, {vr(ONES, 2)}, {vr(S + qt*8 + 2*h, 2)}, {vr(L, 4)} cbsz:2 abid:{qt}" for h in range(2)]
    def pv(dt, qt): return f"{MF} {vr(acc(dt, qt), 4)}, {vr(vbuf[dt], 4)}, {vr(S + qt*8, 4)}, {vr(acc(dt, qt), 4)}"
    def qk(fill):
        for f in range(3): e(kr(f))
        m = 0
        for f in range(8):
            u, s = f >> 2, f & 3
            e(f"s_waitcnt lgkmcnt({min(2, 7 - f)})")
            for qt in range(4):
                r = vr(Sr(qt, u), 4)
                e(f"{MF} {r}, {vr(F + (f % 3)*4, 4)}, {vr(Q + (qt*4 + s)*4, 4)}, {r if s else '0'}")
                if u == 1:
                    if m >= 3 and fill: e(fill.pop(0))
                    m += 1
            if f + 3 < 8: e(kr(f + 3))
    def pv_phase(pre):
        emit(pre[0]); emit(vrd(3))
        for qt in range(4):
            nxt = (pre[qt + 1] + vrd(4 + qt)) if qt < 3 else []
            per = math.ceil(len(nxt) / 4)
            sm = sums(qt)
            for dt in range(3):
                if qt == 0: e(f"s_waitcnt lgkmcnt({6 - 2*dt})")
                e(pv(dt, qt)); emit(nxt[dt*per:(dt+1)*per])
                if dt == 0: e(sm[0])
            e(sm[1]); emit(nxt[3*per:])
        emit(vrd(7))
        for dt in range(3, 8):
            e(f"s_waitcnt lgkmcnt({2*(7 - dt)})")
            for qt in (range(3, -1, -1) if (snake and dt % 2) else range(4)): e(pv(dt, qt))
    def tile(after_qk, before_v, after_pv):
        fill = []
        for qt in range(4): fill += exps(qt, 0)
        for qt in range(4): fill += cvts(qt, 0)
        qk(fill)
        emit(fill)
        after_qk()
        before_v()
        for dt in range(3): emit(vrd(dt))
        pv_phase([exps(qt, 1) + cvts(qt, 1) for qt in range(4)])
        after_pv()
    def xlane(op, reg, tmp):
        for sw in ("32", "16"):
            e(f"v_mov_b32 v{tmp}, v{reg}"); e(f"v_permlane{sw}_swap_b32 v{reg}, v{tmp}"); e(f"{op} v{reg}, v{reg}, v{tmp}")
    def waitn(sreg, mx):
        end = lab("wn")
        for n in range(mx, 0, -1):
            e(f"s_waitcnt vmcnt({8*n})"); e(f"s_cmp_ge_u32 s{sreg}, {n}"); e(f"s_cbranch_scc1 {end}")
        e("s_waitcnt vmcnt(0)"); e(f"{end}:")
    def flag_srd(branch):
        e(f"s_add_u32 s{sPF}, s28, 0x2000000"); e(f"s_addc_u32 s{sPF+1}, s29, 0"); e(f"s_mov_b32 s{sPF+2}, 0x8000"); e(f"s_mov_b32 s{sPF+3}, 0x20000")
        e(f"s_mul_i32 s{sOFF}, s{sB}, 768"); e(f"s_add_u32 s{sOFF}, s{sOFF}, {branch*256}")
    def dbg_srd():
        e(f"s_mov_b32 s{sPF}, s26"); e(f"s_mov_b32 s{sPF+1}, s27"); e(f"s_mov_b32 s{sPF+2}, 256"); e(f"s_mov_b32 s{sPF+3}, 0x20000")
        e(f"s_lshl_b32 s{sOFF}, s{sB}, 3")
    def poll(branch_off, first=None, tmp=vT0, slp=slp):
        l0, l1 = lab("pl"), lab("pl")
        if branch_off is None: dbg_srd()
        else: flag_srd(branch_off)
        e("s_mov_b64 exec, 1")
        if first: first(l1)
        e(f"s_mov_b32 s{sTMP2}, 0x40000")
        e(f"{l0}:")
        e(f"buffer_load_dword v{tmp}, off, {srd(sPF)}, s{sOFF} sc1")
        e("s_waitcnt vmcnt(0)")
        e(f"v_readfirstlane_b32 s{sTMP}, v{tmp}")
        e(f"s_cmp_eq_u32 s{sTMP}, 8"); e(f"s_cbranch_scc1 {l1}")
        e(f"s_sleep {slp}")
        e(f"s_sub_u32 s{sTMP2}, s{sTMP2}, 1"); e(f"s_cmp_lg_u32 s{sTMP2}, 0"); e(f"s_cbranch_scc1 {l0}")
        e(f"{l1}:")
        e("s_mov_b64 exec, -1")
    RK = 192; RL = 128
    def reduce():
        e(f"s_xor_b32 s{sTMP2}, s{sROLE}, 1")
        e(f"s_lshl_b32 s{sTMP}, s{sTMP2}, 5"); e(f"s_add_u32 s{sTMP}, s{sTMP}, s{sB}"); e(f"s_lshl_b32 s{sTMP}, s{sTMP}, 19")
        e(f"s_add_u32 s{sP}, s28, s{sTMP}"); e(f"s_addc_u32 s{sP+1}, s29, 0"); e(f"s_mov_b32 s{sP+2}, 0x80000"); e(f"s_mov_b32 s{sP+3}, 0x20000")
        e(f"s_mul_i32 s{sOFF}, s{sG}, {65536 + 2048}"); e(f"s_lshl_b32 s{sTMP}, s{sW}, 14"); e(f"s_add_u32 s{sOFF}, s{sOFF}, s{sTMP}")
        for k in range(7):
            e(f"s_add_u32 s{sOFF}, s{sOFF}, 0x10000"); e(f"s_and_b32 s{sOFF}, s{sOFF}, 0x7ffff")
            for f in range(2):
                e(f"buffer_load_dwordx4 {vr(RL + 8*k + 4*f, 4)}, v{vDV}, {srd(sP)}, s{sOFF} offen offset:{f*1024} sc1")
        e(f"s_mov_b32 s{sPF}, s24"); e(f"s_mov_b32 s{sPF+1}, s25"); e(f"s_mov_b32 s{sPF+2}, 0x400000"); e(f"s_mov_b32 s{sPF+3}, 0x20000")
        e(f"s_lshl_b32 s{sOFF}, s{sB}, 17"); e(f"s_lshl_b32 s{sTMP2}, s{sTMP2}, 10"); e(f"s_add_u32 s{sOFF}, s{sOFF}, s{sTMP2}")
        e(f"s_lshr_b32 s{sTMP}, s{sG}, 1"); e(f"s_lshl_b32 s{sTMP}, s{sTMP}, 15"); e(f"s_add_u32 s{sOFF}, s{sOFF}, s{sTMP}")
        e(f"s_lshl_b32 s{sTMP}, s{sW}, 8"); e(f"s_add_u32 s{sOFF}, s{sOFF}, s{sTMP}")
        e(f"s_and_b32 s{sTMP}, s{sG}, 1"); e(f"s_lshl_b32 s{sTMP}, s{sTMP}, 7"); e(f"s_add_u32 s{sOFF}, s{sOFF}, s{sTMP}")
        e(f"v_and_b32 v{vT0}, 15, v{vLN}"); e(f"v_lshlrev_b32 v{vT1}, 11, v{vT0}")
        e(f"v_bfe_u32 v{vT0}, v{vLN}, 4, 1"); e(f"v_lshl_add_u32 v{vT1}, v{vT0}, 5, v{vT1}")
        e(f"v_lshrrev_b32 v{vT0}, 5, v{vLN}"); e(f"v_lshl_add_u32 v{vT1}, v{vT0}, 4, v{vT1}")
        for k in range(7):
            for f in range(2):
                e(f"s_waitcnt vmcnt({(6 - k)*2 + 1 - f})")
                src, dst, tmp = RL + 8*k + 4*f, RK + 8*f, RK + 16 + 8*f
                for i in range(4):
                    e(f"v_lshlrev_b32 v{tmp+2*i}, 16, v{src+i}"); e(f"v_and_b32 v{tmp+2*i+1}, 0xffff0000, v{src+i}")
                for i in range(8): e(f"v_add_f32 v{dst+i}, v{dst+i}, v{tmp+i}")
        stamp("summed")
        for f in range(2):
            dst = RK + 8*f
            for i in range(4): e(f"v_cvt_pk_bf16_f32 v{dst+i}, v{dst+2*i}, v{dst+2*i+1}")
        for f in range(2):
            dst = RK + 8*f
            e(f"v_permlane16_swap_b32 v{dst}, v{dst+2}"); e(f"v_permlane16_swap_b32 v{dst+1}, v{dst+3}")
            e(f"buffer_store_dwordx4 {vr(dst, 4)}, v{vT1}, {srd(sPF)}, s{sOFF} offen offset:{f*64} {ostore}")
    def lds_arrive(word, last):
        e("s_waitcnt vmcnt(0)")
        e(f"v_mov_b32 v{vT0}, {CNT + 4*word}"); e(f"v_mov_b32 v{vT1}, 1")
        e("s_mov_b64 exec, 1")
        e(f"ds_add_rtn_u32 v{vT0}, v{vT0}, v{vT1}")
        e("s_waitcnt lgkmcnt(0)")
        e(f"v_readfirstlane_b32 s{sTMP}, v{vT0}")
        e(f"s_cmp_eq_u32 s{sTMP}, 3"); e(f"s_cbranch_scc0 {last}")

    if stamps: e(f"; stamps: {stamps}")
    e(f"; @launch grid=(256,1,1) block=(512,1,1) lds={LDS}")
    e('.amdgcn_target "amdgcn-amd-amdhsa--gfx950"')
    e(".text"); e(f".globl {NAME}_kernel"); e(".p2align 8"); e(f".type {NAME}_kernel,@function")
    e(f"{NAME}_kernel:")
    e("s_cmp_ge_u32 s2, 256"); e("s_cbranch_scc1 L_end")
    e("s_load_dwordx16 s[4:19], s[0:1], 0"); e("s_load_dwordx8 s[20:27], s[0:1], 64"); e("s_load_dwordx2 s[28:29], s[0:1], 96")
    if stamps:
        for i in range(16): e(f"s_mov_b32 s{sST+i}, 0")
        e("s_memtime s[100:101]")
    stamp("start")
    if calib: e("s_memrealtime s[92:93]")
    if calib and calat == "karg": e("s_waitcnt lgkmcnt(0)"); e("s_memrealtime s[92:93]")
    if codepf and pf2:
        e("s_getpc_b64 s[94:95]"); e("L_pc:")
        e("v_lshlrev_b32 v2, 3, v0"); e("v_mov_b32 v3, s95")
        e("v_add_co_u32 v4, vcc, s94, v2"); e("s_lshr_b32 s96, s2, 4"); e("s_add_u32 s96, s96, 1"); e("v_addc_co_u32 v5, vcc, 0, v3, vcc")
        e("s_mov_b32 exec_lo, 0x10001"); e("s_mov_b32 exec_hi, exec_lo")
        e("global_load_dword v8, v[4:5], off")
        e("s_mov_b64 exec, -1")
        e("v_lshl_add_u32 v2, s96, 12, v2"); e("v_min_u32 v2, L_last-L_pc-4, v2")
        e("v_add_co_u32 v6, vcc, s94, v2"); e("s_bitcmp1_b32 s2, 3"); e("s_mov_b32 s96, 0x10001"); e("v_addc_co_u32 v7, vcc, 0, v3, vcc")
        e("s_cselect_b32 exec_lo, 0, s96"); e("s_cselect_b32 exec_hi, s96, 0")
        e("global_load_dword v9, v[6:7], off")
        e("s_mov_b64 exec, -1")
    e(f"v_lshrrev_b32 v1, 6, v0"); e(f"v_and_b32 v{vLN}, 63, v0"); e(f"v_readfirstlane_b32 s{sTMP}, v1")
    e(f"s_and_b32 s{sG}, s2, 7"); e(f"s_lshr_b32 s{sB}, s2, 3")
    e(f"s_and_b32 s{sW}, s{sTMP}, 3"); e(f"s_lshr_b32 s{sROLE}, s{sTMP}, 2"); e(f"s_lshr_b32 s{sHI}, s{sW}, 1")
    e(f"s_mul_i32 s{sWRB}, s{sW}, {WRING}"); e(f"s_add_u32 s{sWRB}, s{sWRB}, {WR0}")
    e(f"v_lshlrev_b32 v{vDV}, 4, v{vLN}")
    w_setup("q")
    x_voff()
    e("s_waitcnt lgkmcnt(0)")
    e(f"s_cmp_eq_u32 s{sROLE}, 0")
    e(f"s_cselect_b32 s{sWQ}, s20, s10"); e(f"s_cselect_b32 s{sWQ+1}, s21, s11")
    e(f"s_lshl_b32 s{sTMP}, s{sG}, 2"); e(f"s_add_u32 s{sTMP}, s{sTMP}, s{sW}"); e(f"s_lshl_b32 s{sTMP}, s{sTMP}, 8")
    e(f"s_add_u32 s{sWQ}, s{sWQ}, s{sTMP}"); e(f"s_addc_u32 s{sWQ+1}, s{sWQ+1}, 0")
    e(f"s_sub_u32 s{sWQ}, s{sWQ}, {WBIAS}"); e(f"s_subb_u32 s{sWQ+1}, s{sWQ+1}, 0")
    e(f"s_sub_u32 s{sWQ+2}, {0x400000 + WBIAS}, s{sTMP}"); e(f"s_mov_b32 s{sWQ+3}, 0x20000")
    e(f"s_cmp_eq_u32 s{sROLE}, 0"); e("s_cbranch_scc1 L_first_B")
    if prioA: e(f"s_setprio {prioA}")
    if codepf and not pf2:
        e("s_getpc_b64 s[94:95]"); e("L_pc:")
        e(f"s_lshl_b32 s{sTMP}, s{sB}, 2"); e(f"s_add_u32 s{sTMP}, s{sTMP}, s{sW}"); e(f"s_lshl_b32 s{sTMP}, s{sTMP}, 7")
        e(f"v_lshl_add_u32 v2, v{vLN}, 14, s{sTMP}")
        e(f"v_min_u32 v2, L_last-L_pc-4, v2")
        e(f"v_mov_b32 v3, s95"); e("v_add_co_u32 v2, vcc, s94, v2"); e("v_addc_co_u32 v3, vcc, 0, v3, vcc")
        e("s_mov_b64 exec, 15")
        e("global_load_dword v4, v[2:3], off")
        e("s_mov_b64 exec, -1")
    x_srd(14); x_issue(0)
    coop_prefetch(20, 13, 10, wq_pf)
    e("s_branch L_common")
    e("L_first_B:")
    stamp("first")
    if prioB: e(f"s_setprio {prioB}")
    for n in range(1 if w0first else 3): emit(w_issue(n, "q"))
    x_srd(4)
    e("L_common:")
    assert mask == 0
    wt = mask.bit_length() // 2 + 1 if mask else 0
    if not mask: groups = tuple((d, d) for d in groups)
    for reg, k in ((sD, 0), (sD4, 1)):
        tab = [groups[b * len(groups) // 32][k] for b in range(32)]
        assert all(0 <= g[0] and g[0] + wt <= g[1] <= 15 for g in groups)
        wd = [sum(tab[8*i + j] << (4*j) for j in range(8)) for i in range(4)]
        e(f"s_bitcmp0_b32 s{sB}, 3")
        e(f"s_mov_b32 s{sTMP}, {wd[1]:#x}"); e(f"s_cselect_b32 s{sTMP}, {wd[0]:#x}, s{sTMP}")
        e(f"s_mov_b32 s{sTMP2}, {wd[3]:#x}"); e(f"s_cselect_b32 s{sTMP2}, {wd[2]:#x}, s{sTMP2}")
        e(f"s_bitcmp0_b32 s{sB}, 4"); e(f"s_cselect_b32 s{sTMP}, s{sTMP}, s{sTMP2}")
        e(f"s_and_b32 s{sTMP2}, s{sB}, 7"); e(f"s_lshl_b32 s{sTMP2}, s{sTMP2}, 2")
        e(f"s_lshr_b32 s{sTMP}, s{sTMP}, s{sTMP2}"); e(f"s_and_b32 s{reg}, s{sTMP}, 15")
    e(f"s_lshl_b32 s{sTMP}, s{sHI}, 1"); e(f"s_add_u32 s{sTMP}, s{sTMP}, s{sW}"); e(f"s_mul_i32 s{sKB}, s{sTMP}, {CHUNK}")
    def dk_setup():
        e(f"v_bfe_u32 v{vT0}, v{vLN}, 4, 1"); e(f"v_lshlrev_b32 v{vT0}, 4, v{vT0}"); e(f"v_xor_b32 v{vDK}, v{vDV}, v{vT0}")
    dk_setup()
    t0, t1 = F, F + 1
    e(f"v_and_b32 v{t0}, 7, v{vLN}"); e(f"v_mul_u32_u24 v{vKA}, {KBLK}, v{t0}")
    e(f"v_bfe_u32 v{t0}, v{vLN}, 3, 1"); e(f"v_lshl_add_u32 v{vKA}, v{t0}, 8, v{vKA}")
    e(f"v_lshrrev_b32 v{t1}, 5, v{vLN}"); e(f"v_xor_b32 v{t0}, v{t0}, v{t1}"); e(f"v_lshl_add_u32 v{vKA}, v{t0}, 4, v{vKA}")
    e(f"v_bfe_u32 v{t0}, v{vLN}, 4, 1"); e(f"v_lshl_add_u32 v{vKA}, v{t0}, 5, v{vKA}")
    e(f"v_bfe_u32 v{t0}, v{vLN}, 2, 3"); e(f"v_mul_u32_u24 v{vVA}, {VBLK}, v{t0}")
    e(f"v_lshl_add_u32 v{vVA}, v{t1}, 8, v{vVA}")
    e(f"v_and_b32 v{t0}, 3, v{vLN}"); e(f"v_lshl_add_u32 v{vVA}, v{t0}, 3, v{vVA}")
    def wx_setup():
        e(f"v_and_b32 v{t0}, 3, v{vLN}")
        e(f"v_bfe_u32 v{t1}, v{vLN}, 2, 2"); e(f"v_mul_u32_u24 v{vWA}, {VBLK}, v{t1}")
        e(f"v_lshl_add_u32 v{vWA}, v{t0}, 3, v{vWA}")
        e(f"v_lshrrev_b32 v{t0+2}, 4, v{vLN}"); e(f"v_lshl_add_u32 v{vWA}, v{t0+2}, 7, v{vWA}"); e(f"v_add_u32 v{vWA}, s{sWRB}, v{vWA}")
        e(f"v_mul_u32_u24 v{vXA}, {KBLK}, v{t0}"); e(f"v_lshl_add_u32 v{vXA}, v{t1}, 8, v{vXA}")
        e(f"v_sub_u32 v{t0+3}, 0, v{t1}"); e(f"v_and_b32 v{t0+3}, 3, v{t0+3}"); e(f"v_xor_b32 v{t0+3}, v{t0+3}, v{t0+2}")
        e(f"v_lshl_add_u32 v{vXA}, v{t0+3}, 4, v{vXA}"); e(f"v_add_u32 v{vXA}, {XB}, v{vXA}")
    wx_setup()
    e(f"v_cmp_eq_u32 vcc, v{t0}, v{t1}"); e(f"v_mov_b32 v{t0+2}, 0x3f803f80")
    e(f"v_cndmask_b32 v{ONES}, 0, v{t0+2}, vcc"); e(f"v_mov_b32 v{ONES+1}, v{ONES}")
    for i in range(4): e(f"v_mov_b32 v{L+i}, 0")
    e(f"s_lshl_b32 s{sTMP}, s2, 2"); e(f"s_add_u32 s{sTMP}, s{sTMP}, s{sW}")
    e(f"s_mul_i32 s{sROT}, s{sTMP}, {rot_mul}"); e(f"s_and_b32 s{sROT}, s{sROT}, 15"); e(f"s_lshl_b32 s{sROT}, s{sROT}, 13")
    e(f"s_lshl_b32 s{sTMP}, s{sTMP}, 17")
    for r, p in ((sK, 16), (sV, 18)):
        e(f"s_add_u32 s{r}, s{p}, s{sTMP}"); e(f"s_addc_u32 s{r+1}, s{p+1}, 0"); e(f"s_mov_b32 s{r+2}, 0x20000"); e(f"s_mov_b32 s{r+3}, 0x20000")
    e(f"s_bitcmp0_b32 s{sW}, 0")
    e(f"s_cselect_b32 s{sIT}, s6, s8"); e(f"s_cselect_b32 s{sIT+1}, s7, s9"); e(f"s_cselect_b32 s{sIST}, {KBLK-1024}, {VBLK-1024}")
    e(f"s_cselect_b64 vcc, -1, 0")
    e(f"v_cndmask_b32 v{vIT}, v{vDV}, v{vDK}, vcc")
    e(f"s_lshl_b32 s{sTMP}, s2, 17")
    e(f"s_add_u32 s{sIT}, s{sIT}, s{sTMP}"); e(f"s_addc_u32 s{sIT+1}, s{sIT+1}, 0"); e(f"s_mov_b32 s{sIT+2}, 0x20000"); e(f"s_mov_b32 s{sIT+3}, 0x20000")
    e(f"s_mul_i32 s{sROTA}, s2, {rot_mul}"); e(f"s_and_b32 s{sROTA}, s{sROTA}, 15"); e(f"s_lshl_b32 s{sROTA}, s{sROTA}, 1"); e(f"s_add_u32 s{sROTA}, s{sROTA}, s{sHI}"); e(f"s_lshl_b32 s{sROTA}, s{sROTA}, 12")
    wo_srd(12)
    e(f"s_cmp_eq_u32 s{sROLE}, 0"); e("s_cbranch_scc1 L_Binit")
    e(f"v_add_u32 v{vKA}, {XB}, v{vKA}"); e(f"v_add_u32 v{vVA}, {XB + SLOT}, v{vVA}")
    e(f"v_mov_b32 v{t0}, {CNT}"); e(f"ds_write_b128 v{t0}, {vr(L, 4)}")
    e("s_waitcnt vmcnt(4) lgkmcnt(0)"); e("s_barrier")
    def helper(sch):
        q = []
        due = {6: "x1", 14: "x2", 22: "x3"}
        for slot, nxt in zip((0,) + tuple(qbars), tuple(qbars) + (30,)):
            if slot in (0, 6): counter_init(slot)
            for act in sch.get(slot, "").split():
                if act[0] == "x": x_issue(int(act[1])); q += [act]*4
                elif act == "q": coop_prefetch(10, 13, 10, w_pf); q += [act]*4
                elif act == "a": coop_prefetch(12, 10, 19, w_pf); q += [act]*4
                elif act == "b": coop_prefetch(22, 10, 19, w_pf); q += [act]*4
                elif act == "t": xa_touch(); q += [act]*2
            if nxt in due:
                last = max(i for i, x in enumerate(q) if x == due[nxt])
                e(f"s_waitcnt vmcnt({len(q) - 1 - last})")
            if nxt != 30: e("s_barrier")
    def counter_init(slot):
        ln = lab("ni")
        e(f"s_or_b32 s{sTMP}, s{sG}, s{sW}"); e(f"s_cmp_eq_u32 s{sTMP}, 0"); e(f"s_cbranch_scc0 {ln}")
        e("s_mov_b64 exec, 1")
        if slot == 0:
            flag_srd(0)
            e(f"buffer_store_dword v{L}, off, {srd(sPF)}, s{sOFF} sc1"); e(f"buffer_store_dword v{L}, off, {srd(sPF)}, s{sOFF} offset:256 sc1")
        else:
            e("s_waitcnt vmcnt(0)")
            dbg_srd()
            e(f"v_mov_b32 v{vT0}, 8"); e(f"buffer_store_dword v{vT0}, off, {srd(sPF)}, s{sOFF} sc1")
        e("s_mov_b64 exec, -1")
        e(f"{ln}:")
    for k, sch in enumerate(hs):
        if k < len(hs) - 1:
            e(f"s_and_b32 s{sTMP}, s{sB}, {len(hs) - 1}"); e(f"s_cmp_eq_u32 s{sTMP}, {k}"); e(f"s_cbranch_scc0 L_hs{k}")
        helper(sch)
        if k < len(hs) - 1:
            e("s_branch L_hsdone"); e(f"L_hs{k}:")
    e("L_hsdone:")
    if early01:
        e(f"s_cmp_eq_u32 s{sHI}, 0"); e("s_cbranch_scc0 L_h23")
        emit(k_issue()); emit(v_issue()); e("s_barrier"); e("s_branch L_h01")
        e("L_h23:")
    e("s_barrier")
    x_srd(4)
    if any(g[0] == 0 for g in groups):
        if defer01:
            e(f"s_cmp_eq_u32 s{sD}, 0"); e("s_cbranch_scc0 L_hkv")
            e(f"s_cmp_eq_u32 s{sHI}, 0"); e("s_cbranch_scc1 L_h01")
        else:
            e(f"s_cmp_lt_u32 s{sD}, s{sHI}"); e("s_cbranch_scc0 L_hkv")
        emit(x_own(0)); emit(x_own(1)); e("s_branch L_h01")
        e("L_hkv:")
    emit(k_issue()); emit(v_issue())
    e("L_h01:")
    x_srd(4); x_issue(0, xaflag)
    e("s_waitcnt vmcnt(4)"); e("s_barrier")
    x_issue(1, xaflag)
    e(f"s_lshl_b32 s{sTMP}, s2, 17")
    for r, p in ((sK, 6), (sV, 8)):
        e(f"s_add_u32 s{r}, s{p}, s{sTMP}"); e(f"s_addc_u32 s{r+1}, s{p+1}, 0")
    for n in range(3): emit(w_issue(n, "q"))
    e("s_waitcnt vmcnt(12)")
    e("s_branch L_Qstart")
    e("L_Binit:")
    if w0first: emit(w_issue(1, "q")); emit(w_issue(2, "q"))
    e(f"v_add_u32 v{vKA}, s{sKB}, v{vKA}"); e(f"v_add_u32 v{vVA}, s{sKB}, v{vVA}"); e(f"v_add_u32 v{vVA}, {SLOT}, v{vVA}")
    e("L_Qstart:")
    e("s_barrier")
    stamp("P0")
    proj("q")
    c = f2u(math.log2(math.e) / math.sqrt(128.0))
    e(f"v_mov_b32 v{vT0}, {c:#x}"); e(f"v_mov_b32 v{vT1}, {c:#x}")
    pend = []
    for s in range(4):
        for qt in range(4):
            b = acc(2*s, qt); q = Q + (qt*4 + s)*4
            for i in range(4): e(f"v_pk_mul_f32 {vr(b+2*i, 2)}, {vr(b+2*i, 2)}, {vr(vT0, 2)}")
            for pq in pend[-1:]: e(f"v_permlane16_swap_b32 v{pq}, v{pq+2}"); e(f"v_permlane16_swap_b32 v{pq+1}, v{pq+3}")
            for i in range(4): e(f"v_cvt_pk_bf16_f32 v{q+i}, v{b+2*i}, v{b+2*i+1}")
            pend.append(q)
    for q in pend[-1:]: e(f"v_permlane16_swap_b32 v{q}, v{q+2}"); e(f"v_permlane16_swap_b32 v{q+1}, v{q+3}")
    stamp("Qdone")
    e(f"s_mov_b32 s{sI}, 0")
    e(f"s_cmp_eq_u32 s{sROLE}, 0"); e("s_cbranch_scc0 L_Aattn")

    def b_wsetup():
        w_setup("o"); e(f"s_mov_b32 s{sWOFF}, {(32 << 10) + 128}")
    for i in range(0, 128, 2): e(f"v_mov_b64 {vr(i, 2)}, 0")
    w_setup("o")
    x_voff()
    e(f"s_mov_b32 s{sN}, 1")
    e("s_barrier")
    e("L_Bloop:")
    e(f"s_cmp_eq_u32 s{sI}, s{sD}"); e("s_cbranch_scc1 L_Bpause1")
    e("L_Bgo:")
    if e0:
        e(f"s_cmp_eq_u32 s{sI}, 15"); e("s_cbranch_scc0 L_noE0"); e("s_barrier"); e("L_noE0:")
    waitn(sN, 2)
    if tl:
        e("s_memrealtime s[98:99]"); e("s_memtime s[96:97]"); e("s_waitcnt lgkmcnt(0)"); e(f"s_mov_b32 m0, s{sI}"); e("s_nop 0"); e(f"v_writelane_b32 v254, s98, m0")
        e(f"s_add_u32 m0, s{sI}, 16"); e("s_nop 0"); e(f"v_writelane_b32 v254, s96, m0")
    def next_item(sbase, cap=None):
        e(f"s_add_u32 s{sROTA}, s{sROTA}, 16384"); e(f"s_and_b32 s{sROTA}, s{sROTA}, 0x1ffff")
        emit(capped(item_issue(sbase), cap))
    def refill(lst, h):
        go, xl, done, skip = lab("rf"), lab("rf"), lab("rf"), lab("rf")
        e(f"s_cmp_eq_u32 s{sTMP2}, 16"); e(f"s_cbranch_scc1 {skip}")
        if defer01:
            e(f"s_cmp_eq_u32 s{sTMP2}, s{sD}"); e(f"s_cbranch_scc0 {go}")
            e(f"s_cmp_eq_u32 s{sHI}, 0"); e(f"s_cbranch_scc1 {skip}")
            e(f"s_branch {xl}")
        else:
            e(f"s_cmp_eq_u32 s{sHI}, 0"); e(f"s_cbranch_scc1 {go}")
            e(f"s_cmp_eq_u32 s{sTMP2}, s{sD}"); e(f"s_cbranch_scc1 {xl}")
        if mask: e(f"s_cmp_eq_u32 s{sTMP2}, s{sD4}"); e(f"s_cbranch_scc1 {skip}")
        e(f"{go}:")
        cm = (capK, capV)[h]
        if cm:
            lc = lab("cp")
            e(f"s_bitcmp1_b32 {cm:#x}, s{sTMP2}"); e(f"s_cbranch_scc1 {lc}")
            late.append((lc, capped(lst, capn), done))
        emit(lst)
        e(f"{done}:")
        e(f"s_add_u32 s{sN}, s{sN}, 1"); e(f"s_add_u32 s{sM}, s{sM}, 1")
        e(f"{skip}:")
        late.append((xl, capped(x_own(h), capX), done))
    late = []
    def window(half):
        l = lab("nw")
        e(f"s_mov_b32 s{sN}, 0")
        if not mask: return
        e(f"s_sub_u32 s{sTMP2}, s{sI}, s{sD}"); e(f"s_cmp_lt_u32 s{sTMP2}, 8"); e(f"s_cbranch_scc0 {l}")
        m = sum(((mask >> (2*k + half)) & 1) << k for k in range(8))
        if m == 0:
            e(f"{l}:"); return
        e(f"s_bitcmp1_b32 {m}, s{sTMP2}"); e(f"s_cbranch_scc0 {l}")
        waitn(sM, 2)
        e("s_barrier")
        e(f"s_add_u32 s{sJ}, s{sJ}, 1")
        if (mask.bit_length() - 1) % 2 == half:
            lw = lab("wo")
            e(f"s_cmp_eq_u32 s{sJ}, 7"); e(f"s_cbranch_scc1 {lw}")
            late.append((lw, w_issue(0, "o") + w_issue(1, "o") + w_issue(2, "o") + [f"s_mov_b32 s{sN}, 1"], l))
        e(f"s_bitcmp1_b32 s{sJ}, 0"); e(f"s_cselect_b32 s{sM}, s{sWRB}, s{sDK}")
        next_item(sM, capI)
        e(f"s_mov_b32 s{sN}, 1"); e(f"s_mov_b32 s{sM}, 0")
        e(f"{l}:")
    def b_after_qk():
        window(0)
        e(f"s_add_u32 s{sROT}, s{sROT}, 8192"); e(f"s_and_b32 s{sROT}, s{sROT}, 0x1ffff")
        e(f"s_add_u32 s{sTMP2}, s{sI}, 1")
        refill(capped(k_issue(), capN), 0)
    def b_after_pv():
        window(1)
        e(f"s_add_u32 s{sI}, s{sI}, 1"); e(f"s_mov_b32 s{sTMP2}, s{sI}")
        refill(capped(v_issue(), capN), 1)
        e(f"s_cmp_eq_u32 s{sI}, 16"); e("s_cbranch_scc0 L_Bloop")
        e("s_branch L_Oepi")
    tile(b_after_qk, lambda: waitn(sN, 2), b_after_pv)
    for xl, lst, done in late:
        e(f"{xl}:"); emit(lst); e(f"s_branch {done}")
    e("L_Bpause1:")
    e(f"s_and_b32 s{sDK}, s{sW}, 1"); e(f"s_mul_i32 s{sDK}, s{sDK}, {SLOT}"); e(f"s_add_u32 s{sDK}, s{sDK}, {XB}")
    e(f"s_add_u32 s{sTMP}, s{sIST}, 1024"); e(f"s_mul_i32 s{sTMP}, s{sTMP}, s{sHI}"); e(f"s_lshl_b32 s{sTMP}, s{sTMP}, 2"); e(f"s_add_u32 s{sDK}, s{sDK}, s{sTMP}")
    e("s_barrier")
    e(f"s_cmp_eq_u32 s{sW}, 0"); e("s_cbranch_scc0 L_nochk")
    poll(None, tmp=F)
    e("L_nochk:")
    for n in qbars:
        if n == 14: e("s_waitcnt vmcnt(0)")
        e("s_barrier")
    e("s_barrier")
    def half_item(t):
        e(f"s_add_u32 m0, s{sDK}, {(t % 4)*CHUNK}")
        for j in range(4):
            if j: e(f"s_add_u32 m0, m0, s{sIST}")
            e(f"buffer_load_dwordx4 v{vIT}, {srd(sIT)}, s{sROTA} offen offset:{j*1024} {kv} lds")
        e(f"s_add_u32 s{sROTA}, s{sROTA}, 8192"); e(f"s_and_b32 s{sROTA}, s{sROTA}, 0x1ffff")
    def serve(extra):
        q = []
        def item(t): half_item(t); q.extend([t]*4)
        item(0); item(1); issued = 2
        for t in range(16):
            last = max(i for i, x in enumerate(q) if x == t)
            e(f"s_waitcnt vmcnt({len(q) - 1 - last})"); e("s_barrier")
            while issued < min(16, t + depth + 1):
                item(issued); issued += 1
            for x in extra.get(t, []):
                e(x)
                if x.startswith("buffer_load"): q.append(-1)
    lo, hi = {}, {}
    if defer01:
        ks, vs = k_issue(), v_issue()
        cut = lambda l: (l[:9], l[9:])
        lo[2], lo[4] = cut(ks); lo[6], lo[8] = cut(vs)
    if coopAA:
        assert all(g[0] == 0 for g in [groups[b * len(groups) // 32] for b in range(8)])
        e(f"s_cmp_lt_u32 s{sB}, 8"); e(f"s_cselect_b32 s{sPF}, s12, s22"); e(f"s_cselect_b32 s{sPF+1}, s13, s23")
        e(f"s_lshl_b32 s{sTMP}, s{sG}, 3"); e(f"s_and_b32 s{sTMP2}, s{sB}, 7"); e(f"s_add_u32 s{sTMP}, s{sTMP}, s{sTMP2}")
        e(f"s_lshl_b32 s{sTMP}, s{sTMP}, 1"); e(f"s_and_b32 s{sTMP2}, s{sW}, 1"); e(f"s_add_u32 s{sTMP}, s{sTMP}, s{sTMP2}"); e(f"s_lshl_b32 s{sTMP}, s{sTMP}, 15")
        e(f"s_add_u32 s{sPF}, s{sPF}, s{sTMP}"); e(f"s_addc_u32 s{sPF+1}, s{sPF+1}, 0")
        e(f"s_sub_u32 s{sTMP}, s{sB}, 8"); e(f"s_cmp_lt_u32 s{sTMP}, 16"); e(f"s_cselect_b32 s{sPF+2}, 0, 0x8000"); e(f"s_mov_b32 s{sPF+3}, 0x20000")
        for t in range(8):
            hi[t + 1] = [f"s_mov_b32 s{sOFF}, {t*4096}"] + [f"buffer_load_dwordx4 {vr(S + 4*j, 4)}, v{vDV}, {srd(sPF)}, s{sOFF} offen offset:{j*1024} {w_pf}" for j in range(4)]
    if lo != hi:
        e(f"s_cmp_eq_u32 s{sHI}, 0"); e("s_cbranch_scc1 L_servelo")
        serve(hi); e("s_branch L_served")
        e("L_servelo:")
    serve(lo)
    e("L_served:")
    for n in range(3): emit(w_issue(n, "o"))
    e("L_Bpause2:")
    wo_srd(22)
    e("s_barrier"); e("s_waitcnt vmcnt(0)"); e("s_barrier"); e("s_barrier")
    e(f"s_mov_b32 s{sN}, 1")
    e(f"s_cmp_eq_u32 s{sHI}, 0"); e(f"s_cbranch_scc1 L_Bgo")
    emit(k_issue()); emit(capped(v_issue(), capR))
    e("s_branch L_Bgo")

    FB = [F, F + 4, F + 8, 244, 248, 252]
    kb = [0, 1, 2, 3, 4, 5, 0, 1]
    vb = [FB[2], FB[3], FB[4], FB[5], FB[0], FB[1], S + 4, S + 12]
    def akr(f): return f"ds_read_b128 {vr(FB[kb[f]], 4)}, v{vKA} offset:{(f >> 2)*512 + (f & 3)*64}"
    def avr(dt): return [f"ds_read_b64_tr_b16 {vr(vb[dt] + 2*u, 2)}, v{vVA} offset:{u*512 + dt*32}" for u in range(2)]
    first = [False]
    def apv(dt, qt): return f"{MF} {vr(acc(dt, qt), 4)}, {vr(vb[dt], 4)}, {vr(S + qt*8, 4)}, {'0' if first[0] else vr(acc(dt, qt), 4)}"
    def weave(mf, fill):
        cost = [2 if (x.startswith("v_exp") or x.startswith("v_mfma")) else 1 for x in fill]
        tot = sum(cost); cum = 0; k = 0
        for i, m in enumerate(mf):
            e(m)
            while k < len(fill) and (cum + cost[k]) * len(mf) <= (i + 1) * tot + len(mf) // 2:
                e(fill[k]); cum += cost[k]; k += 1
        emit(fill[k:])
    def atile(odd):
        ex = exps(0, 0) + exps(1, 0) + exps(2, 0)
        for f in range(8):
            u, sx = f >> 2, f & 3
            if f == 0: e("s_waitcnt lgkmcnt(2)")
            if f in (2, 4): e("s_waitcnt lgkmcnt(4)")
            for qt in range(4):
                r = vr(Sr(qt, u), 4)
                e(f"{MF} {r}, {vr(FB[kb[f]], 4)}, {vr(Q + (qt*4 + sx)*4, 4)}, {r if sx else '0'}")
                if f == 0 and qt < 2: e(akr(4 + qt))
                if f == 2 and qt == 0: e(f"v_add_u32 v{vKA}, {f's{sDK}' if odd else CHUNK}, v{vKA}")
                if u == 1 and (f, qt) != (4, 0) and (qt < 3 or f == 7): e(ex.pop(0))
            if f < 2: e(akr(6 + f))
            else: emit(avr(f - 2))
        assert not ex
        emit(exps(0, 1)); emit(cvts(0, 0)); emit(cvts(0, 1)); emit(avr(6))
        e("s_waitcnt lgkmcnt(6)")
        b0 = [apv(dt, 0) for dt in range(6)]
        b0[3] += "\ns_waitcnt lgkmcnt(2)"
        weave(b0, exps(1, 1) + cvts(1, 0) + cvts(1, 1))
        emit(avr(7))
        s0, s1, s2, s3 = (sums(qt) for qt in range(4))
        b1 = [apv(dt, 1) for dt in (range(5, -1, -1) if snake else range(6))]
        b1[1] = s0[0] + "\n" + b1[1]; b1[3] = s0[1] + "\n" + b1[3]
        weave(b1, exps(2, 1) + cvts(2, 0) + cvts(2, 1))
        e(f"v_add_u32 v{vVA}, {f's{sDK}' if odd else CHUNK}, v{vVA}")
        b2 = [apv(dt, 2) for dt in range(6)] + ([apv(6, 0), apv(7, 0), apv(7, 1), apv(6, 1)] if snake else [apv(6, 0), apv(7, 0), apv(6, 1), apv(7, 1)])
        b2[0] = s1[0] + "\n" + b2[0]; b2[2] = s1[1] + "\n" + b2[2]; b2[4] = s2[0] + "\n" + b2[4]
        b2[6] = "s_waitcnt lgkmcnt(0)\n" + b2[6]
        weave(b2, exps(3, 0) + exps(3, 1) + cvts(3, 0) + cvts(3, 1))
        e(s2[1])
        if not odd: e(f"s_add_u32 s{sI}, s{sI}, 1")
        e("s_barrier")
        for k, dt in enumerate((4, 5, 0, 1)):
            e(apv(dt, 3)); e(akr(k))
        e(s3[0]); e(apv(2, 3))
        if odd: e(f"s_xor_b32 s{sDK}, s{sDK}, {dKx:#x}")
        e(apv(3, 3)); e(s3[1])
        e(apv(6, 3)); e(apv(7, 3))
        if odd: e(f"s_cmp_eq_u32 s{sI}, 8")
        e(apv(7, 2)); e(apv(6, 2))
    dKx = CHUNK ^ ((-3*CHUNK) & 0xffffffff)
    e("L_Aattn:")
    e(f"s_mov_b32 s{sDK}, {CHUNK}")
    e("s_barrier")
    stamp("L0")
    if stamps and "L0" in stamps: e("s_waitcnt lgkmcnt(0)")
    for f in range(4): e(akr(f))
    first[0] = True; atile(0); first[0] = False
    e("s_branch L_Aodd")
    e("L_Aloop:")
    atile(0)
    e("L_Aodd:")
    atile(1)
    e("s_cbranch_scc0 L_Aloop")
    e("s_waitcnt lgkmcnt(0)")
    e(f"v_mbcnt_lo_u32_b32 v{vLN}, -1, 0"); e(f"v_mbcnt_hi_u32_b32 v{vLN}, -1, v{vLN}")
    e(f"v_lshlrev_b32 v{vDV}, 4, v{vLN}")
    dk_setup(); wx_setup(); b_wsetup()

    e("L_Oepi:")
    if tl:
        e(f"s_cmp_eq_u32 s{sROLE}, 0"); e("s_cbranch_scc0 L_tl0"); e("v_mov_b32 v252, v254   ; v_writelane_b32 v247"); e("L_tl0:")
    stamp("attn_done")
    def lsum():
        for sw in ("32", "16"):
            for qt in range(4): e(f"v_mov_b32 v{F+qt}, v{L+qt}")
            for qt in range(4): e(f"v_permlane{sw}_swap_b32 v{L+qt}, v{F+qt}")
            for qt in range(4): e(f"v_add_f32 v{L+qt}, v{L+qt}, v{F+qt}")
    lsum()
    e(f"v_min3_f32 v{vT0}, v{L}, v{L+1}, v{L+2}"); e(f"v_min_f32 v{vT0}, v{vT0}, v{L+3}")
    e(f"v_add_f32 v{vT1}, v{L}, v{L+1}"); e(f"v_add_f32 v{vT1}, v{vT1}, v{L+2}"); e(f"v_add_f32 v{vT1}, v{vT1}, v{L+3}")
    e(f"v_cmp_nle_f32 vcc, {f2u(2.0**lo_exp):#x}, v{vT0}"); e("s_cbranch_vccnz L_slow")
    e(f"v_cmp_nge_f32 vcc, {f2u(2.0**hi_exp):#x}, v{vT1}"); e("s_cbranch_vccnz L_slow")
    if force_slow: e("s_branch L_slow")
    e("L_slow_back:")
    for qt in range(4): e(f"v_rcp_f32 v{L+qt}, v{L+qt}")
    e(f"s_mul_i32 s{sTMP}, s{sW}, {CHUNK}"); e(f"v_add_u32 v{vT0}, s{sTMP}, v{vXA}")
    def norm(s, qt):
        b = acc(2*s, qt)
        sel = "op_sel_hi:[1,0]" if qt % 2 == 0 else "op_sel:[0,1]"
        for i in range(4): e(f"v_pk_mul_f32 {vr(b+2*i, 2)}, {vr(b+2*i, 2)}, {vr(L + (qt & 2), 2)} {sel}")
        for i in range(4): e(f"v_cvt_pk_bf16_f32 v{b+i}, v{b+2*i}, v{b+2*i+1}")
    def owr(s, qt): e(f"ds_write_b128 v{vT0}, {vr(acc(2*s, qt), 4)} offset:{qt*HALF + s*64}")
    for s in range(4):
        for qt in range(4):
            norm(s, qt); owr(s, qt)
    e("L_Oproj:")
    e("s_waitcnt lgkmcnt(0)")
    e("s_barrier")
    stamp("Owritten")
    proj("o")
    stamp("Odone")
    e(f"s_xor_b32 s{sTMP}, s{sROLE}, 1"); e(f"s_lshl_b32 s{sTMP}, s{sTMP}, 8"); e(f"s_add_u32 s{sTMP}, s{sTMP}, s2")
    e(f"s_lshl_b32 s{sTMP}, s{sTMP}, 2"); e(f"s_add_u32 s{sTMP}, s{sTMP}, s{sW}"); e(f"s_lshl_b32 s{sTMP}, s{sTMP}, 14")
    e(f"s_add_u32 s{sP}, s28, s{sTMP}"); e(f"s_addc_u32 s{sP+1}, s29, 0"); e(f"s_mov_b32 s{sP+2}, 0x4000"); e(f"s_mov_b32 s{sP+3}, 0x20000")
    e(f"s_cmp_eq_u32 s{sROLE}, 0"); e("s_cbranch_scc1 L_store")
    e(f"s_setprio {prioT}")
    assert not late_pf
    wo_srd(22); e(f"s_mov_b32 s{sWOFF}, 0")
    for n in range(3): emit(w_issue(n, "o"))
    if not e0: e("s_waitcnt vmcnt(0)")
    e("s_barrier")
    e("L_store:")
    keep = []
    for sp in range(2):
        for qt in range(4):
            lk, lb = lab("kp"), lab("kp")
            e(f"s_cmp_eq_u32 s{sG}, {qt*2 + sp}"); e(f"s_cbranch_scc1 {lk}")
            e(f"s_mov_b32 s{sOFF}, {qt*4096}")
            for sx in (2*sp, 2*sp + 1):
                b = acc(2*sx, qt)
                for i in range(4): e(f"v_cvt_pk_bf16_f32 v{b+i}, v{b+2*i}, v{b+2*i+1}")
                e(f"buffer_store_dwordx4 {vr(b, 4)}, v{vDV}, {srd(sP)}, s{sOFF} offen offset:{sx*1024} {pstore}")
            e(f"{lb}:")
            keep.append((lk, lb, sp, qt))
    e(f"s_cmp_eq_u32 s{sROLE}, 0"); e("s_cbranch_scc0 L_Apub")
    stamp("issued")
    if ared == "bars": e("s_barrier")
    stamp("bars")
    if stamps and "drained" in stamps: e("s_waitcnt vmcnt(0)"); stamp("drained")
    lds_arrive(1, "L_Bwait")
    stamp("pub")
    def first(done):
        e(f"buffer_atomic_add v{vT1}, off, {srd(sPF)}, s{sOFF} sc0")
        e("s_waitcnt vmcnt(0)")
        e(f"v_readfirstlane_b32 s{sTMP}, v{vT1}")
        e(f"s_cmp_ge_u32 s{sTMP}, 7"); e(f"s_cbranch_scc1 {done}")
    poll(1, first)
    e(f"v_mov_b32 v{vT0}, {CNT + 8}"); e(f"v_mov_b32 v{vT1}, 1")
    e(f"ds_write_b32 v{vT0}, v{vT1}")
    e("s_branch L_final")
    e("L_Bwait:")
    e(f"v_mov_b32 v{vT0}, {CNT + 8}")
    e("L_Bspin:")
    e(f"ds_read_b32 v{vT1}, v{vT0}")
    e("s_waitcnt lgkmcnt(0)")
    e(f"v_readfirstlane_b32 s{sTMP}, v{vT1}")
    e(f"s_cmp_eq_u32 s{sTMP}, 0"); e("s_cbranch_scc0 L_final")
    e("s_sleep 1")
    e("s_branch L_Bspin")
    for lk, lb, sp, qt in keep:
        e(f"{lk}:")
        for f in range(2):
            for i in range(0, 8, 2): e(f"v_mov_b64 {vr(RK + 8*f + i, 2)}, {vr(acc(2*(2*sp + f), qt) + i, 2)}")
        e(f"s_branch {lb}")
    e("L_Apub:")
    if e0:
        e("s_waitcnt vmcnt(14)"); e("s_barrier")
    lds_arrive(0, "L_nosig")
    if ared == "bars":
        flag_srd(0)
        e(f"buffer_atomic_add v{vT1}, off, {srd(sPF)}, s{sOFF}")
    else:
        poll(0, first, slp=slpA)
    e("L_nosig:")
    e("s_mov_b64 exec, -1")
    stamp("pubA")
    e("s_barrier")
    if ared == "bars":
        e(f"s_cmp_eq_u32 s{sW}, 0"); e("s_cbranch_scc0 L_nopoll")
        poll(0)
        e("L_nopoll:")
        e("s_barrier")
    e("L_final:")
    e("s_mov_b64 exec, -1")
    stamp("flag")
    reduce()
    if calib:
        if calib_wg is not None: e(f"s_cmp_eq_u32 s2, {calib_wg}"); e("s_cbranch_scc0 L_end")
        e("L_cal:"); e("s_sleep 4"); e("s_memrealtime s[90:91]"); e("s_waitcnt lgkmcnt(0)"); e("s_sub_u32 s90, s90, s92"); e(f"s_cmp_lt_u32 s90, {calib*100}"); e("s_cbranch_scc1 L_cal")
    if stamps:
        e("s_waitcnt vmcnt(0)")
        stamp("end")
        e("s_memtime s[4:5]")
        e("s_waitcnt lgkmcnt(0)")
        e("s_sub_u32 s4, s4, s100")
        e(f"s_lshl_b32 s{sTMP}, s2, 1"); e(f"s_add_u32 s{sTMP}, s{sTMP}, s{sROLE}"); e(f"s_lshl_b32 s{sTMP}, s{sTMP}, 2"); e(f"s_add_u32 s{sTMP}, s{sTMP}, s{sW}")
        e(f"s_lshl_b32 s{sTMP}, s{sTMP}, 7")
        e(f"s_add_u32 s{sPF}, s28, 0x4000000"); e(f"s_addc_u32 s{sPF+1}, s29, 0"); e(f"s_mov_b32 s{sPF+2}, 0x100000"); e(f"s_mov_b32 s{sPF+3}, 0x20000")
        for i in range(16): e(f"v_mov_b32 v{i}, s{sST+i}")
        e(f"v_mov_b32 v16, s4"); e("v_mov_b32 v17, 0"); e("v_mov_b32 v18, 0"); e("v_mov_b32 v19, 0")
        e(f"v_mov_b32 v20, s{sTMP}")
        if tl:
            e(f"v_lshl_add_u32 v21, v{vLN}, 2, v20"); e("s_mov_b32 exec_hi, 0"); e(f"s_mov_b32 s{sOFF}, 0x80000")
            e(f"buffer_store_dword v252, v21, {srd(sPF)}, s{sOFF} offen")
        e("s_mov_b64 exec, 1")
        for i in range(5): e(f"buffer_store_dwordx4 {vr(4*i, 4)}, v20, {srd(sPF)}, 0 offen offset:{16*i}")
    e("L_end:")
    e("s_endpgm")

    e("L_slow:")
    e("s_waitcnt vmcnt(0)")
    e(f"s_cmp_eq_u32 s{sROLE}, 0"); e("s_cbranch_scc1 L_slowB")
    e(f"s_mul_i32 s{sTMP}, s{sW}, {CHUNK}"); e(f"s_add_u32 s{sKB}, s{sTMP}, {XB}")
    e(f"v_add_u32 v{vKA}, s{sTMP}, v{vKA}"); e(f"v_add_u32 v{vVA}, s{sTMP}, v{vVA}")
    e("L_slowB:")
    e(f"v_add_u32 v{vVA}, {(-SLOT) & 0xffffffff:#x}, v{vVA}")
    for i in range(0, 128, 2): e(f"v_mov_b64 {vr(i, 2)}, 0")
    for i in range(4): e(f"v_mov_b32 v{L+i}, 0"); e(f"v_mov_b32 v{M+i}, {f2u(-3.0e38):#x}")
    e(f"s_mov_b32 s{sROT}, 0")
    e("L_slowloop:")
    emit(k_issue())
    e("s_waitcnt vmcnt(0)")
    qk(None)
    emit(kv_issue(sV, vDV, sKB, 0, VBLK))
    for qt in range(4):
        b = S + qt*8; t = F + 2*qt
        e(f"v_max3_f32 v{t}, v{b}, v{b+1}, v{b+2}"); e(f"v_max3_f32 v{t}, v{t}, v{b+3}, v{b+4}")
        e(f"v_max3_f32 v{t}, v{t}, v{b+5}, v{b+6}"); e(f"v_max3_f32 v{t}, v{t}, v{b+7}, v{M+qt}")
        xlane("v_max_f32", t, vT0)
        e(f"v_sub_f32 v{t+1}, v{M+qt}, v{t}"); e(f"v_mov_b32 v{M+qt}, v{t}")
        e(f"v_exp_f32 v{t+1}, v{t+1}")
        for i in range(8): e(f"v_sub_f32 v{b+i}, v{b+i}, v{M+qt}")
        e(f"v_mul_f32 v{L+qt}, v{L+qt}, v{t+1}")
        for dt in range(8):
            for i in range(0, 4, 2): e(f"v_pk_mul_f32 {vr(acc(dt, qt)+i, 2)}, {vr(acc(dt, qt)+i, 2)}, {vr(t, 2)} op_sel:[0,1]")
        emit(exps(qt, 0)); emit(cvts(qt, 0))
    e("s_waitcnt vmcnt(0)")
    for dt in range(3): emit(vrd(dt))
    pv_phase([exps(qt, 1) + cvts(qt, 1) for qt in range(4)])
    e(f"s_add_u32 s{sROT}, s{sROT}, 8192"); e(f"s_cmp_lt_u32 s{sROT}, 0x20000"); e("s_cbranch_scc1 L_slowloop")
    for qt in range(4): xlane("v_add_f32", L + qt, vT0)
    b_wsetup()
    e("s_branch L_slow_back")
    e("L_last:")

    e('.section .rodata,"a"')
    e(".p2align 6"); e(f".amdhsa_kernel {NAME}_kernel")
    for l in [".amdhsa_next_free_vgpr 256", ".amdhsa_next_free_sgpr 102", ".amdhsa_accum_offset 256", ".amdhsa_group_segment_fixed_size 0",
              ".amdhsa_kernarg_size 104", ".amdhsa_user_sgpr_count 2", ".amdhsa_user_sgpr_kernarg_segment_ptr 1", ".amdhsa_system_sgpr_workgroup_id_x 1",
              ".amdhsa_float_denorm_mode_32 3"]:
        e("  " + l)
    e(".end_amdhsa_kernel")
    n = a.pad()
    return a.text(), n

if __name__ == "__main__":
    kw = eval("dict(" + (sys.argv[2] if len(sys.argv) > 2 else "") + ")")
    txt, n = gen(**kw)
    out = sys.argv[1] if len(sys.argv) > 1 else f"cdna_kernels/{NAME}.s"
    open(out, "w").write(txt)
    print("pad states:", n, "lines:", txt.count("\n"), "LDS", LDS)
```

```python
import sys, math, struct
from asmlib import Asm

NAME = "concat_heads__gqa_block_cached__mha_block_cached__near_ridge"
KBLK = 1088; VBLK = 1056; HALF = 4352; SLOT = 8704; CHUNK = 2*SLOT
XB = 4*SLOT
VOFF = XB + 2*CHUNK
WR0 = XB + 4*CHUNK
WRING = 3*HALF
CNT = WR0 + 4*WRING
LDS = CNT + 64
WBIAS = 128

sK, sV, sWQ, sWO, sX, sP, sIT, sPF = 32, 36, 40, 44, 48, 52, 56, 60
(sROLE, sW, sG, sB, sD, sI, sROT, sOFF, sWRB, sKB, sTMP, sTMP2, sWOFF, sROTA, sIST, sDK, sHI, sOO, sRO) = range(64, 83)
sST = 84
def srd(n): return f"s[{n}:{n+3}]"
ACC = 0; Q = 128; S = 192; F = 224; L = 236; ONES = 240
vKA, vVA, vDK, vDV = 242, 243, 244, 245
vWO = 246
vWA, vXA, vIT, vLN, vT0, vT1 = 250, 251, 252, 253, 254, 255
M = 246
AF = 128; BF = 160
RK = 192; RL = 128
def vr(b, n): return f"v[{b}:{b+n-1}]"
def acc(dt, qt): return ACC + ((dt >> 1)*4 + qt)*8 + (dt & 1)*4
def f2u(x): return struct.unpack("<I", struct.pack("<f", x))[0]
MF = "v_mfma_f32_16x16x32_bf16"
GROUPS = (0,0,0,0,0,1,1,1,1,2,2,2,3,4,5,7,9,11,12,12,13,13,13,14,14,14,14,15,15,15,15,15)

def gen(groups=GROUPS, capN=8, capX=8, depth=2, slp=3, prioA=1, lo_exp=-30, hi_exp=30, rel=29, relAq=30, relAo=30, early=True, loose=(), capL=None, asym=True,
        hs={0: "x1", 6: "x2 x3", 14: "q t", 22: "a b"},
        stamps=False, cyc=False, tl=False, force_slow=False):
    a = Asm(); e = a
    qbars = (6, 14, 22)
    VOFF = SLOT if asym else XB + 2*CHUNK
    def stamp(nm):
        if stamps and nm in stamps:
            i = stamps.index(nm); e(f"{'s_memtime' if cyc else 's_memrealtime'} s[{sST+2*i}:{sST+2*i+1}]")
    def emit(lst):
        for x in lst:
            if x: e(x)
    uid = [0]
    def lab(p):
        uid[0] += 1; return f"L_{p}{uid[0]}"
    def mk_srd(r, lo, size):
        e(f"s_add_u32 s{r}, s{lo}, s{sTMP}"); e(f"s_addc_u32 s{r+1}, s{lo+1}, 0"); e(f"s_mov_b32 s{r+2}, {size:#x}"); e(f"s_mov_b32 s{r+3}, 0x20000")

    order = [(n >> 1, n & 1) for n in range(28)] + [(14, 0), (15, 0), (14, 1), (15, 1)]
    def w_setup(kind):
        sh = 13 if kind == "q" else 10
        if kind == "q":
            e(f"v_bfe_u32 v{vT0}, v{vLN}, 3, 2"); e(f"v_lshlrev_b32 v{vWO}, {sh+3}, v{vT0}")
            e(f"v_lshrrev_b32 v{vT0}, 5, v{vLN}"); e(f"v_lshl_add_u32 v{vWO}, v{vT0}, {sh+2}, v{vWO}")
        else:
            e(f"v_lshrrev_b32 v{vT0}, 3, v{vLN}"); e(f"v_lshlrev_b32 v{vWO}, {sh+2}, v{vT0}")
        e(f"v_and_b32 v{vT0}, 7, v{vLN}"); e(f"v_lshl_add_u32 v{vWO}, v{vT0}, 4, v{vWO}")
        for r in (3, 2, 1, 0):
            e(f"v_add_u32 v{vWO+r}, {r*((1 << sh) - VBLK) + WBIAS}, v{vWO}")
    def w_issue(n, kind):
        sr, sh = (sWQ, 13) if kind == "q" else (sWO, 10)
        ks, ch = order[n]
        out = [f"s_add_u32 m0, s{sWRB}, {(n % 3)*HALF}", f"s_mov_b32 s{sWOFF}, {ks*(32 << sh) + ch*128}"]
        for r in range(4):
            out.append(f"buffer_load_dwordx4 v{vWO+r}, {srd(sr)}, s{sWOFF} offen offset:{r*VBLK} lds")
        return out
    def w_srd(r, lo):
        e(f"s_add_u32 s{r}, s{lo}, s{sTMP}"); e(f"s_addc_u32 s{r+1}, s{lo+1}, 0")
        e(f"s_sub_u32 s{r}, s{r}, {WBIAS}"); e(f"s_subb_u32 s{r+1}, s{r+1}, 0")
        e(f"s_sub_u32 s{r+2}, {0x400000 + WBIAS}, s{sTMP}"); e(f"s_mov_b32 s{r+3}, 0x20000")
    def wo_srd(lo):
        e(f"s_lshl_b32 s{sTMP}, s{sG}, 19"); e(f"s_lshl_b32 s{sTMP2}, s{sW}, 8"); e(f"s_add_u32 s{sTMP}, s{sTMP}, s{sTMP2}")
        w_srd(sWO, lo)
    def kv_issue(sr, voff, imm, blk):
        out = [f"s_add_u32 s{sOFF}, s{sROT}, 4096"]
        for j in (0, 4, 2, 6, 1, 5, 3, 7):
            out.append(f"s_add_u32 m0, s{sKB}, {imm + j*blk - (j % 4)*1024}")
            out.append(f"buffer_load_dwordx4 v{voff}, {srd(sr)}, s{sOFF if j >= 4 else sROT} offen offset:{(j % 4)*1024} nt lds")
        return out
    def capped(lst, n):
        if not n: return lst
        out = []
        for x in lst:
            if x.startswith("buffer_load"): out.append(f"s_waitcnt vmcnt({n-1})")
            out.append(x)
        return out
    def k_issue(): return kv_issue(sK, vDK, 0, KBLK)
    def v_issue(): return kv_issue(sV, vDV, VOFF, VBLK)
    def x_issue(c, flag=""):
        e(f"s_lshl_b32 s{sOFF}, s{sW}, 14"); e(f"s_add_u32 s{sOFF}, s{sOFF}, {c*256}")
        e(f"s_mul_i32 s{sTMP}, s{sW}, {HALF}")
        for j in range(4):
            e(f"s_add_u32 m0, s{sTMP}, {XB + c*CHUNK + j*64}")
            e(f"buffer_load_dwordx4 v{vT1}, {srd(sX)}, s{sOFF} offen offset:{j*1024} {flag} lds")
    def x_half(h):
        out = [f"s_lshl_b32 s{sOFF}, s{sW}, 8", f"s_add_u32 s{sOFF}, s{sOFF}, {h*32768}"]
        for j in range(8):
            if j == 4: out.append(f"s_add_u32 s{sOFF}, s{sOFF}, 16384")
            out.append(f"s_add_u32 m0, s{sKB}, {h*SLOT + (j >> 2)*HALF + (j & 3)*64}")
            out.append(f"buffer_load_dwordx4 v{vT1}, {srd(sX)}, s{sOFF} offen offset:{(j & 3)*1024} nt lds")
        return out
    def x_own():
        out = [f"s_and_b32 s{sOFF}, s{sW}, 1", f"s_lshl_b32 s{sOFF}, s{sOFF}, 7", f"s_add_u32 s{sOFF}, s{sOFF}, s{sHI}",
               f"s_lshl_b32 s{sOFF}, s{sOFF}, 8", f"s_add_u32 s{sOFF}, s{sOFF}, 512"]
        for j in range(8):
            if j == 4: out.append(f"s_add_u32 s{sOFF}, s{sOFF}, 16384")
            out.append(f"s_add_u32 m0, s{sKB}, {VOFF + (j >> 2)*HALF + (j & 3)*64}")
            out.append(f"buffer_load_dwordx4 v{vT1}, {srd(sX)}, s{sOFF} offen offset:{(j & 3)*1024} nt lds")
        return out
    def x_voff():
        e(f"v_lshrrev_b32 v{vT0}, 4, v{vLN}"); e(f"v_sub_u32 v{vT1}, 0, v{vT0}"); e(f"v_and_b32 v{vT1}, 3, v{vT1}")
        e(f"v_xor_b32 v{vT1}, v{vT1}, v{vLN}"); e(f"v_and_b32 v{vT1}, 15, v{vT1}"); e(f"v_lshlrev_b32 v{vT1}, 4, v{vT1}")
        e(f"v_lshl_add_u32 v{vT1}, v{vT0}, 12, v{vT1}")
    def x_srd(lo):
        e(f"s_lshl_b32 s{sTMP}, s{sB}, 16"); mk_srd(sX, lo, 0x10000)
    def xa_touch():
        e(f"s_lshl_b32 s{sTMP}, s2, 2"); e(f"s_add_u32 s{sTMP}, s{sTMP}, s{sW}"); e(f"s_lshl_b32 s{sTMP}, s{sTMP}, 11")
        mk_srd(sPF, 4, 0x800)
        for r in range(2): e(f"buffer_load_dwordx4 {vr(S + 16 + 4*r, 4)}, v{vDV}, {srd(sPF)}, 0 offen offset:{r*1024}")
    def coop_prefetch(lo, sh, goff_sh):
        e(f"s_lshl_b32 s{sTMP}, s{sG}, {goff_sh}")
        e(f"s_add_u32 s{sPF}, s{lo}, s{sTMP}"); e(f"s_addc_u32 s{sPF+1}, s{lo+1}, 0")
        e(f"s_sub_u32 s{sPF+2}, 0x400000, s{sTMP}"); e(f"s_mov_b32 s{sPF+3}, 0x20000")
        e(f"s_lshl_b32 s{sTMP}, s{sB}, 2"); e(f"s_add_u32 s{sTMP}, s{sTMP}, s{sW}"); e(f"s_lshl_b32 s{sTMP}, s{sTMP}, {sh+2}")
        for r in range(4):
            e(f"buffer_load_dwordx4 {vr(S + 4*r, 4)}, v{vDV}, {srd(sPF)}, s{sTMP} offen")
            if r < 3: e(f"s_add_u32 s{sTMP}, s{sTMP}, {1 << sh}")

    def xoff(kind, c, qt):
        return c*CHUNK + qt*HALF if (kind == "q" or asym) else (qt >> 1)*2*CHUNK + c*SLOT + (qt & 1)*HALF
    def pack(sx, qt):
        b = acc(2*sx, qt)
        return [f"v_cvt_pk_bf16_f32 v{b+i}, v{b+2*i}, v{b+2*i+1}" for i in range(4)]
    def pstore(sp, qt):
        st = [f"buffer_store_dwordx4 {vr(acc(2*sx, qt), 4)}, v{vDV}, {srd(sP)}, s{sOFF} offen offset:{sx*1024} sc1" for sx in (2*sp, 2*sp + 1)]
        l = lab("ps")
        return [f"s_mov_b32 s{sOFF}, {qt*4096}", f"s_cmp_eq_u32 s{sG}, {qt*2 + sp}", f"s_cbranch_scc1 {l}\n{st[0]}\n{st[1]}\n{l}:", ""]
    def proj(kind, steps=range(32), extra={}):
        def ra(n):
            return [f"ds_read_b64_tr_b16 {vr(AF + (n % 2)*16 + d*4 + ee*2, 2)}, v{vWA} offset:{(n % 3)*HALF + ee*512 + d*32}" for d in range(4) for ee in range(2)]
        def rb(ks, qts):
            return [f"ds_read_b128 {vr(BF + (ks % 2)*16 + qt*4, 4)}, v{vXA} offset:{xoff(kind, ks >> 2, qt) + (ks & 3)*64}" for qt in qts]
        for n in steps:
            if n == 0:
                e("s_waitcnt vmcnt(8)")
                emit(rb(0, range(4))); emit(ra(0))
                e("s_waitcnt lgkmcnt(0)")
            stamp(f"{kind}{n}")
            ks, ch = order[n]
            rd = ra(n + 1) if n < 31 else []
            if n < 28: rd = rd + rb(ks + 1, (2*ch, 2*ch + 1))
            if n == 28: rd = rd + rb(15, range(4))
            dm = w_issue(n + 3, kind) if n + 3 < 32 else []
            if n < 31: e("s_waitcnt vmcnt(4)" if n <= 29 else "s_waitcnt vmcnt(0)")
            relA = (relAq if kind == "q" else relAo) or rel
            if (kind == "q" and n in qbars) or n == rel == relA: e("s_barrier")
            elif n in (rel, relA):
                l1 = lab("nb"); e(f"s_cmp_eq_u32 s{sROLE}, {int(n == relA)}"); e(f"s_cbranch_scc0 {l1}"); e("s_barrier"); e(f"{l1}:")
            gaps = [[] for _ in range(16)]
            for i, x in enumerate(rd): gaps[i].append(x)
            if dm:
                gaps[2].append(dm[0]); gaps[3].append(dm[1])
                for i in range(4): gaps[(4, 6, 8, 12)[i]].append(dm[2 + i])
            for g, x in extra.get(n, []): gaps[g].append(x)
            k = 0
            for d in range(4):
                for qt in (range(3, -1, -1) if d % 2 else range(4)):
                    r = vr(acc(4*ch + d, qt), 4)
                    e(f"{MF} {r}, {vr(AF + (n % 2)*16 + d*4, 4)}, {vr(BF + (ks % 2)*16 + qt*4, 4)}, {r if ks else '0'}")
                    emit(gaps[k]); k += 1
            if n < 31: e("s_waitcnt lgkmcnt(0)")

    def Sr(qt, u): return S + qt*8 + u*4
    def exps(qt, u): return [f"v_exp_f32 v{Sr(qt, u)+i}, v{Sr(qt, u)+i}" for i in range(4)]
    def cvts(qt, u): return [f"v_cvt_pk_bf16_f32 v{S+qt*8+2*u+i}, v{Sr(qt, u)+2*i}, v{Sr(qt, u)+2*i+1}" for i in range(2)]
    def kr(f): return f"ds_read_b128 {vr(F + (f % 3)*4, 4)}, v{vKA} offset:{(f >> 2)*512 + (f & 3)*64}"
    vbuf = [F, F + 4, F + 8, S + 4, S + 12, S + 20, S + 28, F]
    def vrd(dt): return [f"ds_read_b64_tr_b16 {vr(vbuf[dt] + 2*u, 2)}, v{vVA} offset:{u*512 + dt*32}" for u in range(2)]
    def sums(qt): return [f"v_mfma_f32_4x4x4_16b_bf16 {vr(L, 4)}, {vr(ONES, 2)}, {vr(S + qt*8 + 2*h, 2)}, {vr(L, 4)} cbsz:2 abid:{qt}" for h in range(2)]
    def pv(dt, qt): return f"{MF} {vr(acc(dt, qt), 4)}, {vr(vbuf[dt], 4)}, {vr(S + qt*8, 4)}, {vr(acc(dt, qt), 4)}"
    def qk(fill):
        for f in range(3): e(kr(f))
        m = 0
        for f in range(8):
            u, s = f >> 2, f & 3
            e(f"s_waitcnt lgkmcnt({min(2, 7 - f)})")
            for qt in range(4):
                r = vr(Sr(qt, u), 4)
                e(f"{MF} {r}, {vr(F + (f % 3)*4, 4)}, {vr(Q + (qt*4 + s)*4, 4)}, {r if s else '0'}")
                if u == 1:
                    if m >= 3 and fill: e(fill.pop(0))
                    m += 1
            if f + 3 < 8: e(kr(f + 3))
    def pv_phase():
        pre = [exps(qt, 1) + cvts(qt, 1) for qt in range(4)]
        for dt in range(3): emit(vrd(dt))
        emit(pre[0]); emit(vrd(3))
        for qt in range(4):
            nxt = (pre[qt + 1] + vrd(4 + qt)) if qt < 3 else []
            per = math.ceil(len(nxt) / 4)
            sm = sums(qt)
            for dt in range(3):
                if qt == 0: e(f"s_waitcnt lgkmcnt({6 - 2*dt})")
                e(pv(dt, qt)); emit(nxt[dt*per:(dt+1)*per])
                if dt == 0: e(sm[0])
            e(sm[1]); emit(nxt[3*per:])
        emit(vrd(7))
        for dt in range(3, 8):
            e(f"s_waitcnt lgkmcnt({2*(7 - dt)})")
            for qt in (range(3, -1, -1) if dt % 2 else range(4)): e(pv(dt, qt))
    def xlane(op, regs, tmps):
        for sw in ("32", "16"):
            for r, t in zip(regs, tmps): e(f"v_mov_b32 v{t}, v{r}")
            for r, t in zip(regs, tmps): e(f"v_permlane{sw}_swap_b32 v{r}, v{t}")
            for r, t in zip(regs, tmps): e(f"{op} v{r}, v{r}, v{t}")
    def lsum(): xlane("v_add_f32", range(L, L + 4), range(F, F + 4))

    def flag_srd(branch):
        e(f"s_add_u32 s{sPF}, s28, 0x2000000"); e(f"s_addc_u32 s{sPF+1}, s29, 0"); e(f"s_mov_b32 s{sPF+2}, 0x8000"); e(f"s_mov_b32 s{sPF+3}, 0x20000")
        e(f"s_mul_i32 s{sOFF}, s{sB}, 768"); e(f"s_add_u32 s{sOFF}, s{sOFF}, {branch*256}")
    def dbg_srd():
        e(f"s_mov_b32 s{sPF}, s26"); e(f"s_mov_b32 s{sPF+1}, s27"); e(f"s_mov_b32 s{sPF+2}, 256"); e(f"s_mov_b32 s{sPF+3}, 0x20000")
        e(f"s_lshl_b32 s{sOFF}, s{sB}, 3")
    def poll(first=None, tmp=vT0):
        l0, l1 = lab("pl"), lab("pl")
        e("s_mov_b64 exec, 1")
        if first: first(l1)
        e(f"s_mov_b32 s{sTMP2}, 0x40000")
        e(f"{l0}:")
        e(f"buffer_load_dword v{tmp}, off, {srd(sPF)}, s{sOFF} sc1")
        e("s_waitcnt vmcnt(0)")
        e(f"v_readfirstlane_b32 s{sTMP}, v{tmp}")
        e(f"s_cmp_eq_u32 s{sTMP}, 8"); e(f"s_cbranch_scc1 {l1}")
        e(f"s_sleep {slp}")
        e(f"s_sub_u32 s{sTMP2}, s{sTMP2}, 1"); e(f"s_cmp_lg_u32 s{sTMP2}, 0"); e(f"s_cbranch_scc1 {l0}")
        e(f"{l1}:")
        e("s_mov_b64 exec, -1")
    def lds_arrive(word, notlast):
        e(f"v_mov_b32 v{vT0}, {CNT + 4*word}"); e(f"v_mov_b32 v{vT1}, 1")
        e("s_mov_b64 exec, 1")
        e("s_waitcnt vmcnt(0)")
        stamp("drained")
        e(f"ds_add_rtn_u32 v{vT0}, v{vT0}, v{vT1}")
        e("s_waitcnt lgkmcnt(0)")
        e(f"v_readfirstlane_b32 s{sTMP}, v{vT0}")
        e(f"s_cmp_eq_u32 s{sTMP}, 3"); e(f"s_cbranch_scc0 {notlast}")
    def unpack(dst, src):
        for i in range(4):
            e(f"v_lshlrev_b32 v{dst+2*i}, 16, v{src+i}"); e(f"v_and_b32 v{dst+2*i+1}, 0xffff0000, v{src+i}")

    if stamps: e(f"; stamps: {stamps}")
    e(f"; @launch grid=(256,1,1) block=(512,1,1) lds={LDS}")
    e('.amdgcn_target "amdgcn-amd-amdhsa--gfx950"')
    e(".text"); e(f".globl {NAME}_kernel"); e(".p2align 8"); e(f".type {NAME}_kernel,@function")
    e(f"{NAME}_kernel:")
    e("s_cmp_ge_u32 s2, 256"); e("s_cbranch_scc1 L_end")
    e("s_load_dwordx16 s[4:19], s[0:1], 0"); e("s_load_dwordx8 s[20:27], s[0:1], 64"); e("s_load_dwordx2 s[28:29], s[0:1], 96")
    if stamps:
        for i in range(16): e(f"s_mov_b32 s{sST+i}, 0")
        e("s_memtime s[100:101]")
    stamp("start")
    e("s_getpc_b64 s[30:31]"); e("L_pc:")
    e("v_lshlrev_b32 v2, 3, v0"); e("v_mov_b32 v3, s31")
    e("v_add_co_u32 v4, vcc, s30, v2"); e("s_lshr_b32 s3, s2, 4"); e("s_add_u32 s3, s3, 1"); e("v_addc_co_u32 v5, vcc, 0, v3, vcc")
    e("s_mov_b32 exec_lo, 0x10001"); e("s_mov_b32 exec_hi, exec_lo")
    e("global_load_dword v8, v[4:5], off")
    e("s_mov_b64 exec, -1")
    e("v_lshl_add_u32 v2, s3, 12, v2"); e("v_min_u32 v2, L_last-L_pc-4, v2")
    e("v_add_co_u32 v6, vcc, s30, v2"); e("s_bitcmp1_b32 s2, 3"); e("s_mov_b32 s3, 0x10001"); e("v_addc_co_u32 v7, vcc, 0, v3, vcc")
    e("s_cselect_b32 exec_lo, 0, s3"); e("s_cselect_b32 exec_hi, s3, 0")
    e("global_load_dword v9, v[6:7], off")
    e("s_mov_b64 exec, -1")
    e(f"v_lshrrev_b32 v1, 6, v0"); e(f"v_and_b32 v{vLN}, 63, v0"); e(f"v_readfirstlane_b32 s{sTMP}, v1")
    e(f"s_and_b32 s{sG}, s2, 7"); e(f"s_lshr_b32 s{sB}, s2, 3")
    e(f"s_and_b32 s{sW}, s{sTMP}, 3"); e(f"s_lshr_b32 s{sROLE}, s{sTMP}, 2"); e(f"s_lshr_b32 s{sHI}, s{sW}, 1")
    e(f"s_mul_i32 s{sWRB}, s{sW}, {WRING}"); e(f"s_add_u32 s{sWRB}, s{sWRB}, {WR0}")
    e(f"v_lshlrev_b32 v{vDV}, 4, v{vLN}")
    w_setup("q")
    x_voff()
    e("s_waitcnt lgkmcnt(0)")
    e(f"s_cmp_eq_u32 s{sROLE}, 0")
    e(f"s_cselect_b32 s{sWQ}, s20, s10"); e(f"s_cselect_b32 s{sWQ+1}, s21, s11")
    e(f"s_lshl_b32 s{sTMP}, s{sG}, 2"); e(f"s_add_u32 s{sTMP}, s{sTMP}, s{sW}"); e(f"s_lshl_b32 s{sTMP}, s{sTMP}, 8")
    w_srd(sWQ, sWQ)
    e(f"s_cmp_eq_u32 s{sROLE}, 0"); e("s_cbranch_scc1 L_first_B")
    if prioA: e(f"s_setprio {prioA}")
    x_srd(14); x_issue(0)
    coop_prefetch(20, 13, 10)
    e("s_branch L_common")
    e("L_first_B:")
    for n in range(3): emit(w_issue(n, "q"))
    x_srd(4)
    e("L_common:")
    tab = [groups[b * len(groups) // 32] for b in range(32)]
    assert all(0 <= d <= 15 for d in tab)
    wd = [sum(tab[8*i + j] << (4*j) for j in range(8)) for i in range(4)]
    e(f"s_bitcmp0_b32 s{sB}, 3")
    e(f"s_mov_b32 s{sTMP}, {wd[1]:#x}"); e(f"s_cselect_b32 s{sTMP}, {wd[0]:#x}, s{sTMP}")
    e(f"s_mov_b32 s{sTMP2}, {wd[3]:#x}"); e(f"s_cselect_b32 s{sTMP2}, {wd[2]:#x}, s{sTMP2}")
    e(f"s_bitcmp0_b32 s{sB}, 4"); e(f"s_cselect_b32 s{sTMP}, s{sTMP}, s{sTMP2}")
    e(f"s_and_b32 s{sTMP2}, s{sB}, 7"); e(f"s_lshl_b32 s{sTMP2}, s{sTMP2}, 2")
    e(f"s_lshr_b32 s{sTMP}, s{sTMP}, s{sTMP2}"); e(f"s_and_b32 s{sD}, s{sTMP}, 15")
    if asym:
        e(f"s_lshl_b32 s{sTMP}, s{sHI}, 1"); e(f"s_add_u32 s{sTMP}, s{sTMP}, s{sW}"); e(f"s_mul_i32 s{sKB}, s{sTMP}, {CHUNK}")
        e(f"s_cmp_eq_u32 s{sHI}, 0"); e(f"s_cselect_b32 s{sOO}, 17, s{sD}")
    else: e(f"s_mul_i32 s{sKB}, s{sW}, {SLOT}")
    def dk_setup():
        e(f"v_bfe_u32 v{vT0}, v{vLN}, 4, 1"); e(f"v_lshlrev_b32 v{vT0}, 4, v{vT0}"); e(f"v_xor_b32 v{vDK}, v{vDV}, v{vT0}")
    dk_setup()
    t0, t1 = F, F + 1
    e(f"v_and_b32 v{t0}, 7, v{vLN}"); e(f"v_mul_u32_u24 v{vKA}, {KBLK}, v{t0}")
    e(f"v_bfe_u32 v{t0}, v{vLN}, 3, 1"); e(f"v_lshl_add_u32 v{vKA}, v{t0}, 8, v{vKA}")
    e(f"v_lshrrev_b32 v{t1}, 5, v{vLN}"); e(f"v_xor_b32 v{t0}, v{t0}, v{t1}"); e(f"v_lshl_add_u32 v{vKA}, v{t0}, 4, v{vKA}")
    e(f"v_bfe_u32 v{t0}, v{vLN}, 4, 1"); e(f"v_lshl_add_u32 v{vKA}, v{t0}, 5, v{vKA}")
    e(f"v_bfe_u32 v{t0}, v{vLN}, 2, 3"); e(f"v_mul_u32_u24 v{vVA}, {VBLK}, v{t0}")
    e(f"v_lshl_add_u32 v{vVA}, v{t1}, 8, v{vVA}")
    e(f"v_and_b32 v{t0}, 3, v{vLN}"); e(f"v_lshl_add_u32 v{vVA}, v{t0}, 3, v{vVA}")
    def wx_setup():
        e(f"v_and_b32 v{t0}, 3, v{vLN}")
        e(f"v_bfe_u32 v{t1}, v{vLN}, 2, 2"); e(f"v_mul_u32_u24 v{vWA}, {VBLK}, v{t1}")
        e(f"v_lshl_add_u32 v{vWA}, v{t0}, 3, v{vWA}")
        e(f"v_lshrrev_b32 v{t0+2}, 4, v{vLN}"); e(f"v_lshl_add_u32 v{vWA}, v{t0+2}, 7, v{vWA}"); e(f"v_add_u32 v{vWA}, s{sWRB}, v{vWA}")
        e(f"v_mul_u32_u24 v{vXA}, {KBLK}, v{t0}"); e(f"v_lshl_add_u32 v{vXA}, v{t1}, 8, v{vXA}")
        e(f"v_sub_u32 v{t0+3}, 0, v{t1}"); e(f"v_and_b32 v{t0+3}, 3, v{t0+3}"); e(f"v_xor_b32 v{t0+3}, v{t0+3}, v{t0+2}")
        e(f"v_lshl_add_u32 v{vXA}, v{t0+3}, 4, v{vXA}"); e(f"v_add_u32 v{vXA}, {XB}, v{vXA}")
    wx_setup()
    e(f"v_cmp_eq_u32 vcc, v{t0}, v{t1}"); e(f"v_mov_b32 v{t0+2}, 0x3f803f80")
    for i in range(4): e(f"v_mov_b32 v{L+i}, 0")
    e(f"v_cndmask_b32 v{ONES}, 0, v{t0+2}, vcc"); e(f"v_mov_b32 v{ONES+1}, v{ONES}")
    e(f"s_lshl_b32 s{sTMP}, s2, 2"); e(f"s_add_u32 s{sTMP2}, s{sTMP}, s{sW}")
    e(f"s_and_b32 s{sROT}, s{sTMP2}, 15"); e(f"s_lshl_b32 s{sROT}, s{sROT}, 13")
    e(f"s_lshl_b32 s{sTMP}, s{sTMP2}, 17")
    mk_srd(sK, 16, 0x20000); mk_srd(sV, 18, 0x20000)
    e(f"s_xor_b32 s{sTMP}, s{sROLE}, 1"); e(f"s_lshl_b32 s{sTMP}, s{sTMP}, 10"); e(f"s_add_u32 s{sTMP}, s{sTMP}, s{sTMP2}"); e(f"s_lshl_b32 s{sTMP}, s{sTMP}, 14")
    mk_srd(sP, 28, 0x4000)
    wo_srd(12)
    e(f"s_bitcmp0_b32 s{sW}, 0")
    e(f"s_cselect_b32 s{sIT}, s6, s8"); e(f"s_cselect_b32 s{sIT+1}, s7, s9"); e(f"s_cselect_b32 s{sIST}, {KBLK-1024}, {VBLK-1024}")
    e(f"s_cselect_b64 vcc, -1, 0"); e(f"s_cselect_b32 s{sDK}, 0, {SLOT}")
    e(f"v_cndmask_b32 v{vIT}, v{vDV}, v{vDK}, vcc")
    e(f"s_lshl_b32 s{sTMP}, s2, 17"); mk_srd(sIT, sIT, 0x20000)
    e(f"s_and_b32 s{sROTA}, s2, 15"); e(f"s_lshl_b32 s{sROTA}, s{sROTA}, 1"); e(f"s_add_u32 s{sROTA}, s{sROTA}, s{sHI}"); e(f"s_lshl_b32 s{sROTA}, s{sROTA}, 12")
    e(f"s_add_u32 s{sTMP}, s{sIST}, 1024"); e(f"s_mul_i32 s{sTMP}, s{sTMP}, s{sHI}"); e(f"s_lshl_b32 s{sTMP}, s{sTMP}, 2"); e(f"s_add_u32 s{sDK}, s{sDK}, s{sTMP}")
    e(f"s_cmp_eq_u32 s{sROLE}, 0"); e("s_cbranch_scc1 L_Binit")

    e(f"v_add_u32 v{vKA}, {XB}, v{vKA}"); e(f"v_add_u32 v{vVA}, {XB + SLOT}, v{vVA}")
    e(f"v_mov_b32 v{t0}, {CNT}"); e(f"ds_write_b128 v{t0}, {vr(L, 4)}")
    e("s_waitcnt vmcnt(4) lgkmcnt(0)"); e("s_barrier")
    def counter_init(slot):
        ln = lab("ni")
        e(f"s_or_b32 s{sTMP}, s{sG}, s{sW}"); e(f"s_cmp_eq_u32 s{sTMP}, 0"); e(f"s_cbranch_scc0 {ln}")
        e("s_mov_b64 exec, 1")
        if slot == 0:
            flag_srd(0)
            e(f"buffer_store_dword v{L}, off, {srd(sPF)}, s{sOFF} sc1"); e(f"buffer_store_dword v{L}, off, {srd(sPF)}, s{sOFF} offset:256 sc1")
        else:
            e("s_waitcnt vmcnt(0)")
            dbg_srd()
            e(f"v_mov_b32 v{vT0}, 8"); e(f"buffer_store_dword v{vT0}, off, {srd(sPF)}, s{sOFF} sc1")
        e("s_mov_b64 exec, -1")
        e(f"{ln}:")
    q = []
    due = {6: "x1", 14: "x2", 22: "x3"}
    for slot, nxt in zip((0,) + qbars, qbars + (rel,)):
        if slot in (0, 6): counter_init(slot)
        for act in hs.get(slot, "").split():
            if act[0] == "x": x_issue(int(act[1])); q += [act]*4
            elif act == "q": coop_prefetch(10, 13, 10); q += [act]*4
            elif act == "a": coop_prefetch(12, 10, 19); q += [act]*4
            elif act == "b": coop_prefetch(22, 10, 19); q += [act]*4
            elif act == "t": xa_touch(); q += [act]*2
            elif act == "k": emit(k_issue()); q += [act]*8
        if nxt in due:
            last = max(i for i, x in enumerate(q) if x == due[nxt])
            e(f"s_waitcnt vmcnt({len(q) - 1 - last})")
        e("s_barrier")
    x_srd(4)
    if asym:
        assert "k" not in q
        e(f"s_cmp_eq_u32 s{sOO}, 0"); e("s_cbranch_scc0 L_hv")
        emit(x_half(0)); emit(x_half(1)); e("s_branch L_hx")
        e("L_hv:")
        emit(k_issue())
    else:
        if "k" not in q: emit(k_issue())
        e(f"s_cmp_eq_u32 s{sD}, 0"); e("s_cbranch_scc0 L_hv")
        emit(x_own()); e("s_branch L_hx")
        e("L_hv:")
    emit(v_issue())
    e("L_hx:")
    x_issue(0, "nt")
    e("s_waitcnt vmcnt(4)"); e("s_barrier")
    x_issue(1, "nt")
    e(f"s_lshl_b32 s{sTMP}, s2, 17")
    mk_srd(sK, 6, 0x20000); mk_srd(sV, 8, 0x20000)
    for n in range(3): emit(w_issue(n, "q"))
    e("s_waitcnt vmcnt(12)")
    e("s_branch L_Qstart")
    e("L_Binit:")
    e(f"v_add_u32 v{vKA}, s{sKB}, v{vKA}"); e(f"v_add_u32 v{vVA}, s{sKB}, v{vVA}"); e(f"v_add_u32 v{vVA}, {VOFF}, v{vVA}")

    e("L_Qstart:")
    e("s_barrier")
    stamp("P0")
    proj("q")
    c = f2u(math.log2(math.e) / math.sqrt(128.0))
    e(f"v_mov_b32 v{vT0}, {c:#x}"); e(f"v_mov_b32 v{vT1}, {c:#x}")
    pend = []
    def swaps():
        for pq in pend[-1:]: e(f"v_permlane16_swap_b32 v{pq}, v{pq+2}"); e(f"v_permlane16_swap_b32 v{pq+1}, v{pq+3}")
    for s in range(4):
        for qt in range(4):
            b = acc(2*s, qt); qq = Q + (qt*4 + s)*4
            for i in range(4): e(f"v_pk_mul_f32 {vr(b+2*i, 2)}, {vr(b+2*i, 2)}, {vr(vT0, 2)}")
            swaps()
            for i in range(4): e(f"v_cvt_pk_bf16_f32 v{qq+i}, v{b+2*i}, v{b+2*i+1}")
            pend.append(qq)
    e(f"s_mov_b32 s{sI}, 0"); e(f"s_cmp_eq_u32 s{sROLE}, 0")
    swaps()
    stamp("Qdone")
    e("s_cbranch_scc0 L_Aattn")

    for i in range(0, 128, 2): e(f"v_mov_b64 {vr(i, 2)}, 0")
    w_setup("o")
    x_voff()
    e("s_barrier")
    e(f"s_cmp_eq_u32 s{sD}, 0"); e("s_cbranch_scc1 L_Bpause")
    e("L_Bgo:")
    e(f"s_cmp_eq_u32 s{sI}, 15"); e("s_cbranch_scc0 L_noE0"); e("s_barrier"); e("L_noE0:")
    e("s_waitcnt vmcnt(8)")
    if tl:
        e("s_memrealtime s[98:99]"); e("s_memtime s[96:97]"); e("s_waitcnt lgkmcnt(0)"); e(f"s_mov_b32 m0, s{sI}"); e("s_nop 0"); e(f"v_writelane_b32 v254, s98, m0")
        e(f"s_add_u32 m0, s{sI}, 16"); e("s_nop 0"); e(f"v_writelane_b32 v254, s96, m0")
    fill = []
    for qt in range(4): fill += exps(qt, 0)
    for qt in range(4): fill += cvts(qt, 0)
    qk(fill); emit(fill)
    e(f"s_add_u32 s{sROT}, s{sROT}, 8192"); e(f"s_and_b32 s{sROT}, s{sROT}, 0x1ffff")
    e(f"s_add_u32 s{sI}, s{sI}, 1"); e(f"s_cmp_eq_u32 s{sI}, 16"); e("s_cbranch_scc1 L_Blast")
    lm = sum(1 << d for d in loose)
    if asym: e(f"s_cmp_eq_u32 s{sI}, s{sOO}"); e("s_cbranch_scc1 L_Bx0")
    if lm: e(f"s_bitcmp1_b32 {lm:#x}, s{sD}"); e("s_cbranch_scc1 L_lk")
    emit(capped(k_issue(), capN))
    e("L_lkb:")
    e("s_waitcnt vmcnt(8)")
    e("L_Bpv:")
    pv_phase()
    e(f"s_cmp_eq_u32 s{sI}, 16"); e("s_cbranch_scc1 L_Oepi")
    e(f"s_cmp_eq_u32 s{sI}, s{sD}"); e("s_cbranch_scc1 L_Bx")
    if lm: e(f"s_bitcmp1_b32 {lm:#x}, s{sD}"); e("s_cbranch_scc1 L_lv")
    emit(capped(v_issue(), capN))
    e("s_branch L_Bgo")
    if lm:
        e("L_lk:"); emit(capped(k_issue(), capL)); e("s_branch L_lkb")
        e("L_lv:"); emit(capped(v_issue(), capL)); e("s_branch L_Bgo")
    e("L_Blast:")
    e("s_waitcnt vmcnt(0)"); e("s_branch L_Bpv")
    if asym:
        e("L_Bx0:"); emit(capped(x_half(0), capX)); e("s_branch L_lkb")
        e("L_Bv:"); emit(capped(v_issue(), capN)); e("s_branch L_Bpause")
    e("L_Bx:")
    if asym:
        e(f"s_cmp_eq_u32 s{sHI}, 0"); e("s_cbranch_scc1 L_Bv")
        emit(capped(x_half(1), capX))
    else: emit(capped(x_own(), capX))
    e("L_Bpause:")
    e("s_barrier")
    e(f"s_cmp_eq_u32 s{sW}, 0"); e("s_cbranch_scc0 L_nochk")
    dbg_srd(); poll(tmp=F)
    e("L_nochk:")
    for n in qbars:
        if n == 14: e("s_waitcnt vmcnt(0)")
        e("s_barrier")
    e("s_barrier")
    def half_item(t):
        e(f"s_add_u32 m0, s{sDK}, {XB + (t % 4)*CHUNK}")
        for j in range(4):
            if j: e(f"s_add_u32 m0, m0, s{sIST}")
            e(f"buffer_load_dwordx4 v{vIT}, {srd(sIT)}, s{sROTA} offen offset:{j*1024} nt lds")
        e(f"s_add_u32 s{sROTA}, s{sROTA}, 8192"); e(f"s_and_b32 s{sROTA}, s{sROTA}, 0x1ffff")
    half_item(0); half_item(1); issued = 2
    for t in range(16):
        e(f"s_waitcnt vmcnt({4*(issued - t - 1)})"); e("s_barrier")
        while issued < min(16, t + depth + 1):
            half_item(issued); issued += 1
    for n in range(3): emit(w_issue(n, "o"))
    wo_srd(22)
    e("s_barrier"); e("s_waitcnt vmcnt(0)"); e("s_barrier"); e("s_barrier")
    if asym:
        e(f"s_cmp_eq_u32 s{sHI}, 0"); e("s_cbranch_scc1 L_Bgo")
        emit(k_issue())
    emit(v_issue())
    e("s_branch L_Bgo")

    FB = [F, F + 4, F + 8, 244, 248, 252]
    kb = [0, 1, 2, 3, 4, 5, 0, 1]
    vb = [FB[2], FB[3], FB[4], FB[5], FB[0], FB[1], S + 4, S + 12]
    def akr(f): return f"ds_read_b128 {vr(FB[kb[f]], 4)}, v{vKA} offset:{(f >> 2)*512 + (f & 3)*64}"
    def avr(dt): return [f"ds_read_b64_tr_b16 {vr(vb[dt] + 2*u, 2)}, v{vVA} offset:{u*512 + dt*32}" for u in range(2)]
    def weave(mf, fill):
        cost = [2 if x.startswith("v_exp") else 1 for x in fill]
        tot = sum(cost); cum = 0; k = 0
        for i, m in enumerate(mf):
            e(m)
            while k < len(fill) and (cum + cost[k]) * len(mf) <= (i + 1) * tot + len(mf) // 2:
                e(fill[k]); cum += cost[k]; k += 1
        emit(fill[k:])
    def atile(first):
        def apv(dt, qt): return f"{MF} {vr(acc(dt, qt), 4)}, {vr(vb[dt], 4)}, {vr(S + qt*8, 4)}, {'0' if first else vr(acc(dt, qt), 4)}"
        ex = exps(0, 0) + exps(1, 0) + exps(2, 0)
        for f in range(8):
            u, sx = f >> 2, f & 3
            if f == 0: e("s_waitcnt lgkmcnt(2)")
            if f in (2, 4): e("s_waitcnt lgkmcnt(4)")
            for qt in range(4):
                r = vr(Sr(qt, u), 4)
                e(f"{MF} {r}, {vr(FB[kb[f]], 4)}, {vr(Q + (qt*4 + sx)*4, 4)}, {r if sx else '0'}")
                if f == 0 and qt < 2: e(akr(4 + qt))
                if f == 1 and qt == 0: e(f"s_add_u32 s{sI}, s{sI}, 1"); e(f"s_and_b32 s{sTMP}, s{sI}, 3")
                if f == 1 and qt == 1: e(f"s_cselect_b32 s{sDK}, s{sTMP2}, {(-3*CHUNK) & 0xffffffff:#x}")
                if f == 2 and qt == 0: e(f"v_add_u32 v{vKA}, s{sDK}, v{vKA}")
                if u == 1 and (f, qt) != (4, 0) and (qt < 3 or f == 7): e(ex.pop(0))
            if f < 2: e(akr(6 + f))
            else: emit(avr(f - 2))
        emit(exps(0, 1)); emit(cvts(0, 0)); emit(cvts(0, 1)); emit(avr(6))
        e("s_waitcnt lgkmcnt(6)")
        b0 = [apv(dt, 0) for dt in range(6)]
        b0[3] += "\ns_waitcnt lgkmcnt(2)"
        weave(b0, exps(1, 1) + cvts(1, 0) + cvts(1, 1))
        emit(avr(7))
        s0, s1, s2, s3 = (sums(qt) for qt in range(4))
        b1 = [apv(dt, 1) for dt in range(5, -1, -1)]
        b1[1] = s0[0] + "\n" + b1[1]; b1[3] = s0[1] + "\n" + b1[3]
        weave(b1, exps(2, 1) + cvts(2, 0) + cvts(2, 1))
        e(f"v_add_u32 v{vVA}, s{sDK}, v{vVA}")
        b2 = [apv(dt, 2) for dt in range(6)] + [apv(6, 0), apv(7, 0), apv(7, 1), apv(6, 1)]
        b2[0] = s1[0] + "\n" + b2[0]; b2[2] = s1[1] + "\n" + b2[2]; b2[4] = s2[0] + "\n" + b2[4]
        b2[6] = "s_waitcnt lgkmcnt(0)\n" + b2[6]
        weave(b2, exps(3, 0) + exps(3, 1) + cvts(3, 0) + cvts(3, 1))
        e(s2[1])
        e("s_barrier")
        for k, dt in enumerate((4, 5, 0, 1)):
            e(apv(dt, 3)); e(akr(k))
        e(s3[0]); e(apv(2, 3))
        e(f"s_cmp_eq_u32 s{sI}, 16")
        e(apv(3, 3)); e(s3[1])
        e(apv(6, 3)); e(apv(7, 3)); e(apv(7, 2)); e(apv(6, 2))
    e("L_Aattn:")
    e(f"s_mov_b32 s{sTMP2}, {CHUNK}")
    e("s_barrier")
    stamp("L0")
    if stamps and "L0" in stamps: e("s_waitcnt lgkmcnt(0)")
    for f in range(4): e(akr(f))
    atile(True)
    e("L_Aloop:")
    atile(False)
    e("s_cbranch_scc0 L_Aloop")
    e("s_waitcnt lgkmcnt(0)")
    e(f"v_mbcnt_lo_u32_b32 v{vLN}, -1, 0"); e(f"v_mbcnt_hi_u32_b32 v{vLN}, -1, v{vLN}")
    e(f"v_lshlrev_b32 v{vDV}, 4, v{vLN}")
    wx_setup(); w_setup("o")

    e("L_Oepi:")
    if tl:
        e(f"s_cmp_eq_u32 s{sROLE}, 0"); e("s_cbranch_scc0 L_tl0"); e("v_mov_b32 v252, v254   ; v_writelane_b32 v247"); e("L_tl0:")
    stamp("attn_done")
    lsum()
    e(f"v_min3_f32 v{vT0}, v{L}, v{L+1}, v{L+2}"); e(f"v_add_f32 v{vT1}, v{L}, v{L+1}")
    e(f"v_min_f32 v{vT0}, v{vT0}, v{L+3}"); e(f"v_add_f32 v{vT1}, v{vT1}, v{L+2}"); e(f"v_add_f32 v{vT1}, v{vT1}, v{L+3}")
    e(f"v_cmp_nle_f32 vcc, {f2u(2.0**lo_exp):#x}, v{vT0}"); e("s_cbranch_vccnz L_slow")
    e(f"v_cmp_nge_f32 vcc, {f2u(2.0**hi_exp):#x}, v{vT1}"); e("s_cbranch_vccnz L_slow")
    if force_slow: e("s_branch L_slow")
    e("L_slow_back:")
    for qt in range(4): e(f"v_rcp_f32 v{L+qt}, v{L+qt}")
    e(f"s_mul_i32 s{sTMP}, s{sW}, {CHUNK if asym else SLOT}"); e(f"v_add_u32 v{vT0}, s{sTMP}, v{vXA}")
    for s in range(4):
        for qt in range(4):
            b = acc(2*s, qt)
            sel = "op_sel_hi:[1,0]" if qt % 2 == 0 else "op_sel:[0,1]"
            for i in range(4): e(f"v_pk_mul_f32 {vr(b+2*i, 2)}, {vr(b+2*i, 2)}, {vr(L + (qt & 2), 2)} {sel}")
            emit(pack(s, qt))
            e(f"ds_write_b128 v{vT0}, {vr(b, 4)} offset:{xoff('o', 0, qt) + s*64}")
    e("s_waitcnt lgkmcnt(0)")
    e("s_barrier")
    stamp("Owritten")
    proj("o", range(30))
    e(f"s_cmp_eq_u32 s{sROLE}, 0"); e("s_cbranch_scc0 L_OA")
    ex = {30: [], 31: []}
    if early:
        seq = []
        for qt in range(4): seq += pack(0, qt) + pack(1, qt) + pstore(0, qt)
        slots = [(30, g) for g in range(4, 8)] + [(n, g) for n in (30, 31) for g in range(16) for _ in range(2) if (n, g) >= (30, 8)]
        assert len(slots) >= len(seq)
        for (n, g), x in zip(slots, seq): ex[n].append((g, x))
    proj("o", (30, 31), ex)
    stamp("Odone")
    e("s_branch L_store1" if early else "s_branch L_store0")
    e("L_OA:")
    proj("o", (30, 31))
    stamp("Odone")
    e("s_setprio 0")
    wo_srd(22)
    for n in range(3): emit(w_issue(n, "o"))
    e("s_barrier")
    e("L_store0:")
    for qt in range(4): emit(pack(0, qt) + pack(1, qt) + pstore(0, qt))
    e("L_store1:")
    for qt in range(4): emit(pack(2, qt) + pack(3, qt) + pstore(1, qt))
    stamp("issued")
    e("s_waitcnt vmcnt(14)")
    e("s_barrier")
    keep = []
    for p in range(8):
        lk = lab("kp"); keep.append(lk)
        if p < 7: e(f"s_cmp_eq_u32 s{sG}, {p}"); e(f"s_cbranch_scc1 {lk}")
    for p in range(7, -1, -1):
        e(f"{keep[p]}:")
        for f in range(2): unpack(RK + 8*f, acc(2*(2*(p & 1) + f), p >> 1))
        if p: e("s_branch L_kept")
    e("L_kept:")
    e(f"s_xor_b32 s{sTMP2}, s{sROLE}, 1")
    e(f"s_lshl_b32 s{sTMP}, s{sTMP2}, 5"); e(f"s_add_u32 s{sTMP}, s{sTMP}, s{sB}"); e(f"s_lshl_b32 s{sTMP}, s{sTMP}, 19")
    mk_srd(sP, 28, 0x80000)
    e(f"s_mul_i32 s{sRO}, s{sG}, {65536 + 2048}"); e(f"s_lshl_b32 s{sTMP}, s{sW}, 14"); e(f"s_add_u32 s{sRO}, s{sRO}, s{sTMP}")
    e(f"s_lshl_b32 s{sTMP}, s{sB}, 17"); mk_srd(sIT, 24, 0x20000)
    e(f"s_lshl_b32 s{sOO}, s{sTMP2}, 10")
    e(f"s_lshr_b32 s{sTMP}, s{sG}, 1"); e(f"s_lshl_b32 s{sTMP}, s{sTMP}, 15"); e(f"s_add_u32 s{sOO}, s{sOO}, s{sTMP}")
    e(f"s_lshl_b32 s{sTMP}, s{sW}, 8"); e(f"s_add_u32 s{sOO}, s{sOO}, s{sTMP}")
    e(f"s_and_b32 s{sTMP}, s{sG}, 1"); e(f"s_lshl_b32 s{sTMP}, s{sTMP}, 7"); e(f"s_add_u32 s{sOO}, s{sOO}, s{sTMP}")
    e(f"v_and_b32 v{vT0}, 15, v{vLN}"); e(f"v_lshlrev_b32 v{vKA}, 11, v{vT0}")
    e(f"v_bfe_u32 v{vT0}, v{vLN}, 4, 1"); e(f"v_lshl_add_u32 v{vKA}, v{vT0}, 5, v{vKA}")
    e(f"v_lshrrev_b32 v{vT0}, 5, v{vLN}"); e(f"v_lshl_add_u32 v{vKA}, v{vT0}, 4, v{vKA}")
    e(f"s_cmp_eq_u32 s{sROLE}, 0"); e("s_cbranch_scc0 L_Apub")
    flag_srd(1)
    lds_arrive(1, "L_Bwait")
    def first(done):
        e(f"buffer_atomic_add v{vT1}, off, {srd(sPF)}, s{sOFF} sc0")
        e("s_waitcnt vmcnt(0)")
        e(f"v_readfirstlane_b32 s{sTMP}, v{vT1}")
        e(f"s_cmp_ge_u32 s{sTMP}, 7"); e(f"s_cbranch_scc1 {done}")
    poll(first)
    e(f"v_mov_b32 v{vT0}, {CNT + 8}"); e(f"v_mov_b32 v{vT1}, 1")
    e(f"ds_write_b32 v{vT0}, v{vT1}")
    e("s_branch L_final")
    e("L_Bwait:")
    e(f"v_mov_b32 v{vT0}, {CNT + 8}")
    e("L_Bspin:")
    e(f"ds_read_b32 v{vT1}, v{vT0}")
    e("s_waitcnt lgkmcnt(0)")
    e(f"v_readfirstlane_b32 s{sTMP}, v{vT1}")
    e(f"s_cmp_eq_u32 s{sTMP}, 0"); e("s_cbranch_scc1 L_Bspin")
    e("s_branch L_final")
    e("L_Apub:")
    flag_srd(0)
    lds_arrive(0, "L_nosig")
    e(f"buffer_atomic_add v{vT1}, off, {srd(sPF)}, s{sOFF}")
    e("L_nosig:")
    e("s_mov_b64 exec, -1")
    stamp("pubA")
    e("s_barrier")
    e(f"s_cmp_eq_u32 s{sW}, 0"); e("s_cbranch_scc0 L_nopoll")
    poll()
    e("L_nopoll:")
    e("s_barrier")
    e("L_final:")
    e("s_mov_b64 exec, -1")
    stamp("flag")
    for k in range(7):
        e(f"s_add_u32 s{sRO}, s{sRO}, 0x10000"); e(f"s_and_b32 s{sRO}, s{sRO}, 0x7ffff")
        for f in range(2):
            e(f"buffer_load_dwordx4 {vr(RL + 8*k + 4*f, 4)}, v{vDV}, {srd(sP)}, s{sRO} offen offset:{f*1024} sc1")
    for k in range(7):
        for f in range(2):
            e(f"s_waitcnt vmcnt({(6 - k)*2 + 1 - f})")
            dst, tmp = RK + 8*f, RK + 16 + 8*f
            unpack(tmp, RL + 8*k + 4*f)
            for i in range(8): e(f"v_add_f32 v{dst+i}, v{dst+i}, v{tmp+i}")
            if k == 6:
                for i in range(4): e(f"v_cvt_pk_bf16_f32 v{dst+i}, v{dst+2*i}, v{dst+2*i+1}")
    stamp("summed")
    for f in range(2):
        dst = RK + 8*f
        e(f"v_permlane16_swap_b32 v{dst}, v{dst+2}"); e(f"v_permlane16_swap_b32 v{dst+1}, v{dst+3}")
        e(f"buffer_store_dwordx4 {vr(dst, 4)}, v{vKA}, {srd(sIT)}, s{sOO} offen offset:{f*64} sc1")
    if stamps:
        e("s_waitcnt vmcnt(0)")
        stamp("end")
        e("s_memtime s[4:5]")
        e("s_waitcnt lgkmcnt(0)")
        e("s_sub_u32 s4, s4, s100")
        e(f"s_lshl_b32 s{sTMP}, s2, 1"); e(f"s_add_u32 s{sTMP}, s{sTMP}, s{sROLE}"); e(f"s_lshl_b32 s{sTMP}, s{sTMP}, 2"); e(f"s_add_u32 s{sTMP}, s{sTMP}, s{sW}")
        e(f"s_lshl_b32 s{sTMP}, s{sTMP}, 7")
        e(f"s_add_u32 s{sPF}, s28, 0x4000000"); e(f"s_addc_u32 s{sPF+1}, s29, 0"); e(f"s_mov_b32 s{sPF+2}, 0x100000"); e(f"s_mov_b32 s{sPF+3}, 0x20000")
        for i in range(16): e(f"v_mov_b32 v{i}, s{sST+i}")
        e(f"v_mov_b32 v16, s4"); e("v_mov_b32 v17, 0"); e("v_mov_b32 v18, 0"); e("v_mov_b32 v19, 0")
        e(f"v_mov_b32 v20, s{sTMP}")
        if tl:
            e(f"v_lshl_add_u32 v21, v{vLN}, 2, v20"); e("s_mov_b32 exec_hi, 0"); e(f"s_mov_b32 s{sOFF}, 0x80000")
            e(f"buffer_store_dword v252, v21, {srd(sPF)}, s{sOFF} offen")
        e("s_mov_b64 exec, 1")
        for i in range(5): e(f"buffer_store_dwordx4 {vr(4*i, 4)}, v20, {srd(sPF)}, 0 offen offset:{16*i}")
    e("L_end:")
    e("s_endpgm")

    e("L_slow:")
    e(f"s_cmp_eq_u32 s{sROLE}, 0"); e("s_cbranch_scc1 L_slowB")
    dk_setup()
    if asym: e(f"s_mul_i32 s{sKB}, s{sW}, {CHUNK}")
    e(f"v_add_u32 v{vKA}, s{sKB}, v{vKA}"); e(f"v_add_u32 v{vVA}, s{sKB}, v{vVA}"); e(f"v_add_u32 v{vVA}, {VOFF - SLOT}, v{vVA}")
    e(f"s_add_u32 s{sKB}, s{sKB}, {XB}")
    e("L_slowB:")
    e(f"v_add_u32 v{vVA}, {(-VOFF) & 0xffffffff:#x}, v{vVA}")
    for i in range(0, 128, 2): e(f"v_mov_b64 {vr(i, 2)}, 0")
    for i in range(4): e(f"v_mov_b32 v{L+i}, 0"); e(f"v_mov_b32 v{M+i}, {f2u(-3.0e38):#x}")
    e(f"s_mov_b32 s{sROT}, 0")
    e("L_slowloop:")
    emit(k_issue())
    e("s_waitcnt vmcnt(0)")
    qk(None)
    emit(kv_issue(sV, vDV, 0, VBLK))
    for qt in range(4):
        b = S + qt*8; t = F + 2*qt
        e(f"v_max3_f32 v{t}, v{b}, v{b+1}, v{b+2}"); e(f"v_max3_f32 v{t}, v{t}, v{b+3}, v{b+4}")
        e(f"v_max3_f32 v{t}, v{t}, v{b+5}, v{b+6}"); e(f"v_max3_f32 v{t}, v{t}, v{b+7}, v{M+qt}")
        xlane("v_max_f32", [t], [vT0])
        e(f"v_sub_f32 v{t+1}, v{M+qt}, v{t}"); e(f"v_mov_b32 v{M+qt}, v{t}")
        e(f"v_exp_f32 v{t+1}, v{t+1}")
        for i in range(8): e(f"v_sub_f32 v{b+i}, v{b+i}, v{M+qt}")
        e(f"v_mul_f32 v{L+qt}, v{L+qt}, v{t+1}")
        for dt in range(8):
            for i in range(0, 4, 2): e(f"v_pk_mul_f32 {vr(acc(dt, qt)+i, 2)}, {vr(acc(dt, qt)+i, 2)}, {vr(t, 2)} op_sel:[0,1]")
        emit(exps(qt, 0)); emit(cvts(qt, 0))
    e("s_waitcnt vmcnt(0)")
    pv_phase()
    e(f"s_add_u32 s{sROT}, s{sROT}, 8192"); e(f"s_cmp_lt_u32 s{sROT}, 0x20000"); e("s_cbranch_scc1 L_slowloop")
    lsum()
    w_setup("o")
    e("s_branch L_slow_back")
    e("L_last:")

    e('.section .rodata,"a"')
    e(".p2align 6"); e(f".amdhsa_kernel {NAME}_kernel")
    for l in [".amdhsa_next_free_vgpr 256", ".amdhsa_next_free_sgpr 102", ".amdhsa_accum_offset 256", ".amdhsa_group_segment_fixed_size 0",
              ".amdhsa_kernarg_size 104", ".amdhsa_user_sgpr_count 2", ".amdhsa_user_sgpr_kernarg_segment_ptr 1", ".amdhsa_system_sgpr_workgroup_id_x 1",
              ".amdhsa_float_denorm_mode_32 3"]:
        e("  " + l)
    e(".end_amdhsa_kernel")
    n = a.pad()
    return a.text(), n

if __name__ == "__main__":
    kw = eval("dict(" + (sys.argv[2] if len(sys.argv) > 2 else "") + ")")
    txt, n = gen(**kw)
    out = sys.argv[1] if len(sys.argv) > 1 else f"cdna_kernels/{NAME}.s"
    open(out, "w").write(txt)
    print("pad states:", n, "lines:", txt.count("\n"), "LDS", LDS)
```

```python
import sys, math, struct
from asmlib import Asm

NAME = "concat_heads__gqa_block_cached__mha_block_cached__near_ridge"
KBLK = 1088; VBLK = 1056; HALF = 4352; SLOT = 8704; CHUNK = 2*SLOT
XB = 4*SLOT
VOFF = XB + 2*CHUNK
WR0 = XB + 4*CHUNK
WRING = 3*HALF
CNT = WR0 + 4*WRING
LDS = CNT + 64
WBIAS = 128

sK, sV, sWQ, sWO, sX, sP, sIT, sPF = 32, 36, 40, 44, 48, 52, 56, 60
(sROLE, sW, sG, sB, sD, sI, sROT, sOFF, sWRB, sKB, sTMP, sTMP2, sWOFF, sROTA, sIST, sDK, sHI, sOO, sRO) = range(64, 83)
sST = 84
def srd(n): return f"s[{n}:{n+3}]"
ACC = 0; Q = 128; S = 192; F = 224; L = 236; ONES = 240
vKA, vVA, vDK, vDV = 242, 243, 244, 245
vWO = 246
vWA, vXA, vIT, vLN, vT0, vT1 = 250, 251, 252, 253, 254, 255
M = 246
AF = 128; BF = 160
RK = 192; RL = 128
def vr(b, n): return f"v[{b}:{b+n-1}]"
def acc(dt, qt): return ACC + ((dt >> 1)*4 + qt)*8 + (dt & 1)*4
def f2u(x): return struct.unpack("<I", struct.pack("<f", x))[0]
MF = "v_mfma_f32_16x16x32_bf16"
GROUPS = (0,0,0,0,0,1,1,1,1,2,2,2,3,4,5,7,9,11,12,12,13,13,13,14,14,14,14,15,15,15,15,15)

def gen(groups=GROUPS, capN=8, capX=8, depth=2, slp=3, prioA=1, lo_exp=-30, hi_exp=30, rel=29, relAq=30, relAo=30, early=True, loose=(), capL=None, asym=True, fastlast=False, duty=None, capA=5,
        hs={0: "x1", 6: "x2 x3", 14: "q t", 22: "a b"},
        stamps=False, cyc=False, tl=False, force_slow=False):
    a = Asm(); e = a
    qbars = (6, 14, 22)
    VOFF = SLOT if asym else XB + 2*CHUNK
    def stamp(nm):
        if stamps and nm in stamps:
            i = stamps.index(nm); e(f"{'s_memtime' if cyc else 's_memrealtime'} s[{sST+2*i}:{sST+2*i+1}]")
    def emit(lst):
        for x in lst:
            if x: e(x)
    uid = [0]
    def lab(p):
        uid[0] += 1; return f"L_{p}{uid[0]}"
    def mk_srd(r, lo, size):
        e(f"s_add_u32 s{r}, s{lo}, s{sTMP}"); e(f"s_addc_u32 s{r+1}, s{lo+1}, 0"); e(f"s_mov_b32 s{r+2}, {size:#x}"); e(f"s_mov_b32 s{r+3}, 0x20000")

    order = [(n >> 1, n & 1) for n in range(28)] + [(14, 0), (15, 0), (14, 1), (15, 1)]
    def w_setup(kind):
        sh = 13 if kind == "q" else 10
        if kind == "q":
            e(f"v_bfe_u32 v{vT0}, v{vLN}, 3, 2"); e(f"v_lshlrev_b32 v{vWO}, {sh+3}, v{vT0}")
            e(f"v_lshrrev_b32 v{vT0}, 5, v{vLN}"); e(f"v_lshl_add_u32 v{vWO}, v{vT0}, {sh+2}, v{vWO}")
        else:
            e(f"v_lshrrev_b32 v{vT0}, 3, v{vLN}"); e(f"v_lshlrev_b32 v{vWO}, {sh+2}, v{vT0}")
        e(f"v_and_b32 v{vT0}, 7, v{vLN}"); e(f"v_lshl_add_u32 v{vWO}, v{vT0}, 4, v{vWO}")
        for r in (3, 2, 1, 0):
            e(f"v_add_u32 v{vWO+r}, {r*((1 << sh) - VBLK) + WBIAS}, v{vWO}")
    def w_issue(n, kind):
        sr, sh = (sWQ, 13) if kind == "q" else (sWO, 10)
        ks, ch = order[n]
        out = [f"s_add_u32 m0, s{sWRB}, {(n % 3)*HALF}", f"s_mov_b32 s{sWOFF}, {ks*(32 << sh) + ch*128}"]
        for r in range(4):
            out.append(f"buffer_load_dwordx4 v{vWO+r}, {srd(sr)}, s{sWOFF} offen offset:{r*VBLK} lds")
        return out
    def w_srd(r, lo):
        e(f"s_add_u32 s{r}, s{lo}, s{sTMP}"); e(f"s_addc_u32 s{r+1}, s{lo+1}, 0")
        e(f"s_sub_u32 s{r}, s{r}, {WBIAS}"); e(f"s_subb_u32 s{r+1}, s{r+1}, 0")
        e(f"s_sub_u32 s{r+2}, {0x400000 + WBIAS}, s{sTMP}"); e(f"s_mov_b32 s{r+3}, 0x20000")
    def wo_srd(lo):
        e(f"s_lshl_b32 s{sTMP}, s{sG}, 19"); e(f"s_lshl_b32 s{sTMP2}, s{sW}, 8"); e(f"s_add_u32 s{sTMP}, s{sTMP}, s{sTMP2}")
        w_srd(sWO, lo)
    def kv_issue(sr, voff, imm, blk):
        out = [f"s_add_u32 s{sOFF}, s{sROT}, 4096"]
        for j in (0, 4, 2, 6, 1, 5, 3, 7):
            out.append(f"s_add_u32 m0, s{sKB}, {imm + j*blk - (j % 4)*1024}")
            out.append(f"buffer_load_dwordx4 v{voff}, {srd(sr)}, s{sOFF if j >= 4 else sROT} offen offset:{(j % 4)*1024} nt lds")
        return out
    def capped(lst, n):
        if not n: return lst
        out = []
        for x in lst:
            if x.startswith("buffer_load"): out.append(f"s_waitcnt vmcnt({n-1})")
            out.append(x)
        return out
    def k_issue(): return kv_issue(sK, vDK, 0, KBLK)
    def v_issue(): return kv_issue(sV, vDV, VOFF, VBLK)
    def x_issue(c, flag=""):
        e(f"s_lshl_b32 s{sOFF}, s{sW}, 14"); e(f"s_add_u32 s{sOFF}, s{sOFF}, {c*256}")
        e(f"s_mul_i32 s{sTMP}, s{sW}, {HALF}")
        for j in range(4):
            e(f"s_add_u32 m0, s{sTMP}, {XB + c*CHUNK + j*64}")
            e(f"buffer_load_dwordx4 v{vT1}, {srd(sX)}, s{sOFF} offen offset:{j*1024} {flag} lds")
    def x_half(h):
        out = [f"s_lshl_b32 s{sOFF}, s{sW}, 8", f"s_add_u32 s{sOFF}, s{sOFF}, {h*32768}"]
        for j in range(8):
            if j == 4: out.append(f"s_add_u32 s{sOFF}, s{sOFF}, 16384")
            out.append(f"s_add_u32 m0, s{sKB}, {h*SLOT + (j >> 2)*HALF + (j & 3)*64}")
            out.append(f"buffer_load_dwordx4 v{vT1}, {srd(sX)}, s{sOFF} offen offset:{(j & 3)*1024} nt lds")
        return out
    def x_own():
        out = [f"s_and_b32 s{sOFF}, s{sW}, 1", f"s_lshl_b32 s{sOFF}, s{sOFF}, 7", f"s_add_u32 s{sOFF}, s{sOFF}, s{sHI}",
               f"s_lshl_b32 s{sOFF}, s{sOFF}, 8", f"s_add_u32 s{sOFF}, s{sOFF}, 512"]
        for j in range(8):
            if j == 4: out.append(f"s_add_u32 s{sOFF}, s{sOFF}, 16384")
            out.append(f"s_add_u32 m0, s{sKB}, {VOFF + (j >> 2)*HALF + (j & 3)*64}")
            out.append(f"buffer_load_dwordx4 v{vT1}, {srd(sX)}, s{sOFF} offen offset:{(j & 3)*1024} nt lds")
        return out
    def x_voff():
        e(f"v_lshrrev_b32 v{vT0}, 4, v{vLN}"); e(f"v_sub_u32 v{vT1}, 0, v{vT0}"); e(f"v_and_b32 v{vT1}, 3, v{vT1}")
        e(f"v_xor_b32 v{vT1}, v{vT1}, v{vLN}"); e(f"v_and_b32 v{vT1}, 15, v{vT1}"); e(f"v_lshlrev_b32 v{vT1}, 4, v{vT1}")
        e(f"v_lshl_add_u32 v{vT1}, v{vT0}, 12, v{vT1}")
    def x_srd(lo):
        e(f"s_lshl_b32 s{sTMP}, s{sB}, 16"); mk_srd(sX, lo, 0x10000)
    dm = 1 if duty else 0
    def xa_touch():
        e(f"s_lshl_b32 s{sTMP}, s2, 2"); e(f"s_add_u32 s{sTMP}, s{sTMP}, s{sW}"); e(f"s_lshl_b32 s{sTMP}, s{sTMP}, {11 + dm}")
        mk_srd(sPF, 4, 0x800 << dm)
        for r in range(2 << dm): e(f"buffer_load_dwordx4 {vr(S + 16 + 4*r, 4)}, v{vDV}, {srd(sPF)}, 0 offen offset:{r*1024}")
    def coop_prefetch(lo, sh, goff_sh):
        e(f"s_lshl_b32 s{sTMP}, s{sG}, {goff_sh}")
        e(f"s_add_u32 s{sPF}, s{lo}, s{sTMP}"); e(f"s_addc_u32 s{sPF+1}, s{lo+1}, 0")
        e(f"s_sub_u32 s{sPF+2}, 0x400000, s{sTMP}"); e(f"s_mov_b32 s{sPF+3}, 0x20000")
        e(f"s_lshl_b32 s{sTMP}, s{sB}, 2"); e(f"s_add_u32 s{sTMP}, s{sTMP}, s{sW}"); e(f"s_lshl_b32 s{sTMP}, s{sTMP}, {sh+2+dm}")
        for r in range(4 << dm):
            e(f"buffer_load_dwordx4 {vr(S + 4*(r % 4), 4)}, v{vDV}, {srd(sPF)}, s{sTMP} offen")
            if r < (4 << dm) - 1: e(f"s_add_u32 s{sTMP}, s{sTMP}, {1 << sh}")

    def xoff(kind, c, qt):
        return c*CHUNK + qt*HALF if (kind == "q" or asym) else (qt >> 1)*2*CHUNK + c*SLOT + (qt & 1)*HALF
    def pack(sx, qt):
        b = acc(2*sx, qt)
        return [f"v_cvt_pk_bf16_f32 v{b+i}, v{b+2*i}, v{b+2*i+1}" for i in range(4)]
    def pstore(sp, qt):
        st = [f"buffer_store_dwordx4 {vr(acc(2*sx, qt), 4)}, v{vDV}, {srd(sP)}, s{sOFF} offen offset:{sx*1024} sc1" for sx in (2*sp, 2*sp + 1)]
        l = lab("ps")
        return [f"s_mov_b32 s{sOFF}, {qt*4096}", f"s_cmp_eq_u32 s{sG}, {qt*2 + sp}", f"s_cbranch_scc1 {l}\n{st[0]}\n{st[1]}\n{l}:", ""]
    def proj(kind, steps=range(32), extra={}):
        def ra(n):
            return [f"ds_read_b64_tr_b16 {vr(AF + (n % 2)*16 + d*4 + ee*2, 2)}, v{vWA} offset:{(n % 3)*HALF + ee*512 + d*32}" for d in range(4) for ee in range(2)]
        def rb(ks, qts):
            return [f"ds_read_b128 {vr(BF + (ks % 2)*16 + qt*4, 4)}, v{vXA} offset:{xoff(kind, ks >> 2, qt) + (ks & 3)*64}" for qt in qts]
        for n in steps:
            if n == 0:
                e("s_waitcnt vmcnt(8)")
                emit(rb(0, range(4))); emit(ra(0))
                e("s_waitcnt lgkmcnt(0)")
            stamp(f"{kind}{n}")
            ks, ch = order[n]
            rd = ra(n + 1) if n < 31 else []
            if n < 28: rd = rd + rb(ks + 1, (2*ch, 2*ch + 1))
            if n == 28: rd = rd + rb(15, range(4))
            dm = w_issue(n + 3, kind) if n + 3 < 32 else []
            if n < 31: e("s_waitcnt vmcnt(4)" if n <= 29 else "s_waitcnt vmcnt(0)")
            relA = (relAq if kind == "q" else relAo) or rel
            if (kind == "q" and n in qbars) or n == rel == relA: e("s_barrier")
            elif n in (rel, relA):
                l1 = lab("nb"); e(f"s_cmp_eq_u32 s{sROLE}, {int(n == relA)}"); e(f"s_cbranch_scc0 {l1}"); e("s_barrier"); e(f"{l1}:")
            gaps = [[] for _ in range(16)]
            for i, x in enumerate(rd): gaps[i].append(x)
            if dm:
                gaps[2].append(dm[0]); gaps[3].append(dm[1])
                for i in range(4): gaps[(4, 6, 8, 12)[i]].append(dm[2 + i])
            for g, x in extra.get(n, []): gaps[g].append(x)
            k = 0
            for d in range(4):
                for qt in (range(3, -1, -1) if d % 2 else range(4)):
                    r = vr(acc(4*ch + d, qt), 4)
                    e(f"{MF} {r}, {vr(AF + (n % 2)*16 + d*4, 4)}, {vr(BF + (ks % 2)*16 + qt*4, 4)}, {r if ks else '0'}")
                    emit(gaps[k]); k += 1
            if n < 31: e("s_waitcnt lgkmcnt(0)")

    def Sr(qt, u): return S + qt*8 + u*4
    def exps(qt, u): return [f"v_exp_f32 v{Sr(qt, u)+i}, v{Sr(qt, u)+i}" for i in range(4)]
    def cvts(qt, u): return [f"v_cvt_pk_bf16_f32 v{S+qt*8+2*u+i}, v{Sr(qt, u)+2*i}, v{Sr(qt, u)+2*i+1}" for i in range(2)]
    def kr(f): return f"ds_read_b128 {vr(F + (f % 3)*4, 4)}, v{vKA} offset:{(f >> 2)*512 + (f & 3)*64}"
    vbuf = [F, F + 4, F + 8, S + 4, S + 12, S + 20, S + 28, F]
    def vrd(dt): return [f"ds_read_b64_tr_b16 {vr(vbuf[dt] + 2*u, 2)}, v{vVA} offset:{u*512 + dt*32}" for u in range(2)]
    def sums(qt): return [f"v_mfma_f32_4x4x4_16b_bf16 {vr(L, 4)}, {vr(ONES, 2)}, {vr(S + qt*8 + 2*h, 2)}, {vr(L, 4)} cbsz:2 abid:{qt}" for h in range(2)]
    def pv(dt, qt): return f"{MF} {vr(acc(dt, qt), 4)}, {vr(vbuf[dt], 4)}, {vr(S + qt*8, 4)}, {vr(acc(dt, qt), 4)}"
    def qk(fill):
        for f in range(3): e(kr(f))
        m = 0
        for f in range(8):
            u, s = f >> 2, f & 3
            e(f"s_waitcnt lgkmcnt({min(2, 7 - f)})")
            for qt in range(4):
                r = vr(Sr(qt, u), 4)
                e(f"{MF} {r}, {vr(F + (f % 3)*4, 4)}, {vr(Q + (qt*4 + s)*4, 4)}, {r if s else '0'}")
                if u == 1:
                    if m >= 3 and fill: e(fill.pop(0))
                    m += 1
            if f + 3 < 8: e(kr(f + 3))
    def pv_phase():
        pre = [exps(qt, 1) + cvts(qt, 1) for qt in range(4)]
        for dt in range(3): emit(vrd(dt))
        emit(pre[0]); emit(vrd(3))
        for qt in range(4):
            nxt = (pre[qt + 1] + vrd(4 + qt)) if qt < 3 else []
            per = math.ceil(len(nxt) / 4)
            sm = sums(qt)
            for dt in range(3):
                if qt == 0: e(f"s_waitcnt lgkmcnt({6 - 2*dt})")
                e(pv(dt, qt)); emit(nxt[dt*per:(dt+1)*per])
                if dt == 0: e(sm[0])
            e(sm[1]); emit(nxt[3*per:])
        emit(vrd(7))
        for dt in range(3, 8):
            e(f"s_waitcnt lgkmcnt({2*(7 - dt)})")
            for qt in (range(3, -1, -1) if dt % 2 else range(4)): e(pv(dt, qt))
    def xlane(op, regs, tmps):
        for sw in ("32", "16"):
            for r, t in zip(regs, tmps): e(f"v_mov_b32 v{t}, v{r}")
            for r, t in zip(regs, tmps): e(f"v_permlane{sw}_swap_b32 v{r}, v{t}")
            for r, t in zip(regs, tmps): e(f"{op} v{r}, v{r}, v{t}")
    def lsum(): xlane("v_add_f32", range(L, L + 4), range(F, F + 4))

    def flag_srd(branch):
        e(f"s_add_u32 s{sPF}, s28, 0x2000000"); e(f"s_addc_u32 s{sPF+1}, s29, 0"); e(f"s_mov_b32 s{sPF+2}, 0x8000"); e(f"s_mov_b32 s{sPF+3}, 0x20000")
        e(f"s_mul_i32 s{sOFF}, s{sB}, 768"); e(f"s_add_u32 s{sOFF}, s{sOFF}, {branch*256}")
    def dbg_srd():
        e(f"s_mov_b32 s{sPF}, s26"); e(f"s_mov_b32 s{sPF+1}, s27"); e(f"s_mov_b32 s{sPF+2}, 256"); e(f"s_mov_b32 s{sPF+3}, 0x20000")
        e(f"s_lshl_b32 s{sOFF}, s{sB}, 3")
    def poll(first=None, tmp=vT0):
        l0, l1 = lab("pl"), lab("pl")
        e("s_mov_b64 exec, 1")
        if first: first(l1)
        e(f"s_mov_b32 s{sTMP2}, 0x40000")
        e(f"{l0}:")
        e(f"buffer_load_dword v{tmp}, off, {srd(sPF)}, s{sOFF} sc1")
        e("s_waitcnt vmcnt(0)")
        e(f"v_readfirstlane_b32 s{sTMP}, v{tmp}")
        e(f"s_cmp_eq_u32 s{sTMP}, 8"); e(f"s_cbranch_scc1 {l1}")
        e(f"s_sleep {slp}")
        e(f"s_sub_u32 s{sTMP2}, s{sTMP2}, 1"); e(f"s_cmp_lg_u32 s{sTMP2}, 0"); e(f"s_cbranch_scc1 {l0}")
        e(f"{l1}:")
        e("s_mov_b64 exec, -1")
    def lds_arrive(word, notlast):
        e(f"v_mov_b32 v{vT0}, {CNT + 4*word}"); e(f"v_mov_b32 v{vT1}, 1")
        e("s_mov_b64 exec, 1")
        e("s_waitcnt vmcnt(0)")
        stamp("drained")
        e(f"ds_add_rtn_u32 v{vT0}, v{vT0}, v{vT1}")
        e("s_waitcnt lgkmcnt(0)")
        e(f"v_readfirstlane_b32 s{sTMP}, v{vT0}")
        e(f"s_cmp_eq_u32 s{sTMP}, 3"); e(f"s_cbranch_scc0 {notlast}")
    def unpack(dst, src):
        for i in range(4):
            e(f"v_lshlrev_b32 v{dst+2*i}, 16, v{src+i}"); e(f"v_and_b32 v{dst+2*i+1}, 0xffff0000, v{src+i}")

    if stamps: e(f"; stamps: {stamps}")
    e(f"; @launch grid=(256,1,1) block=(512,1,1) lds={LDS}")
    e('.amdgcn_target "amdgcn-amd-amdhsa--gfx950"')
    e(".text"); e(f".globl {NAME}_kernel"); e(".p2align 8"); e(f".type {NAME}_kernel,@function")
    e(f"{NAME}_kernel:")
    e("s_cmp_ge_u32 s2, 256"); e("s_cbranch_scc1 L_end")
    e("s_load_dwordx16 s[4:19], s[0:1], 0"); e("s_load_dwordx8 s[20:27], s[0:1], 64"); e("s_load_dwordx2 s[28:29], s[0:1], 96")
    if stamps:
        for i in range(16): e(f"s_mov_b32 s{sST+i}, 0")
        e("s_memtime s[100:101]")
    stamp("start")
    e("s_getpc_b64 s[30:31]"); e("L_pc:")
    e("v_lshlrev_b32 v2, 3, v0"); e("v_mov_b32 v3, s31")
    e("v_add_co_u32 v4, vcc, s30, v2"); e("s_lshr_b32 s3, s2, 4"); e("s_add_u32 s3, s3, 1"); e("v_addc_co_u32 v5, vcc, 0, v3, vcc")
    e("s_mov_b32 exec_lo, 0x10001"); e("s_mov_b32 exec_hi, exec_lo")
    e("global_load_dword v8, v[4:5], off")
    e("s_mov_b64 exec, -1")
    e("v_lshl_add_u32 v2, s3, 12, v2"); e("v_min_u32 v2, L_last-L_pc-4, v2")
    e("v_add_co_u32 v6, vcc, s30, v2"); e("s_bitcmp1_b32 s2, 3"); e("s_mov_b32 s3, 0x10001"); e("v_addc_co_u32 v7, vcc, 0, v3, vcc")
    e("s_cselect_b32 exec_lo, 0, s3"); e("s_cselect_b32 exec_hi, s3, 0")
    e("global_load_dword v9, v[6:7], off")
    e("s_mov_b64 exec, -1")
    e(f"v_lshrrev_b32 v1, 6, v0"); e(f"v_and_b32 v{vLN}, 63, v0"); e(f"v_readfirstlane_b32 s{sTMP}, v1")
    e(f"s_and_b32 s{sG}, s2, 7"); e(f"s_lshr_b32 s{sB}, s2, 3")
    e(f"s_and_b32 s{sW}, s{sTMP}, 3"); e(f"s_lshr_b32 s{sROLE}, s{sTMP}, 2"); e(f"s_lshr_b32 s{sHI}, s{sW}, 1")
    e(f"s_mul_i32 s{sWRB}, s{sW}, {WRING}"); e(f"s_add_u32 s{sWRB}, s{sWRB}, {WR0}")
    e(f"v_lshlrev_b32 v{vDV}, 4, v{vLN}")
    w_setup("q")
    x_voff()
    e("s_waitcnt lgkmcnt(0)")
    e(f"s_cmp_eq_u32 s{sROLE}, 0")
    e(f"s_cselect_b32 s{sWQ}, s20, s10"); e(f"s_cselect_b32 s{sWQ+1}, s21, s11")
    e(f"s_lshl_b32 s{sTMP}, s{sG}, 2"); e(f"s_add_u32 s{sTMP}, s{sTMP}, s{sW}"); e(f"s_lshl_b32 s{sTMP}, s{sTMP}, 8")
    w_srd(sWQ, sWQ)
    e(f"s_cmp_eq_u32 s{sROLE}, 0"); e("s_cbranch_scc1 L_first_B")
    if prioA: e(f"s_setprio {prioA}")
    x_srd(14)
    if duty:
        e(f"s_cmp_lt_u32 s{sB}, 16"); e("s_cbranch_scc0 L_nod0")
        coop_prefetch(20, 13, 10)
        e("L_nod0:")
        x_issue(0)
    else:
        x_issue(0); coop_prefetch(20, 13, 10)
    e("s_branch L_common")
    e("L_first_B:")
    for n in range(3): emit(w_issue(n, "q"))
    x_srd(4)
    e("L_common:")
    tab = [groups[b * len(groups) // 32] for b in range(32)]
    assert all(0 <= d <= 15 for d in tab)
    wd = [sum(tab[8*i + j] << (4*j) for j in range(8)) for i in range(4)]
    e(f"s_bitcmp0_b32 s{sB}, 3")
    e(f"s_mov_b32 s{sTMP}, {wd[1]:#x}"); e(f"s_cselect_b32 s{sTMP}, {wd[0]:#x}, s{sTMP}")
    e(f"s_mov_b32 s{sTMP2}, {wd[3]:#x}"); e(f"s_cselect_b32 s{sTMP2}, {wd[2]:#x}, s{sTMP2}")
    e(f"s_bitcmp0_b32 s{sB}, 4"); e(f"s_cselect_b32 s{sTMP}, s{sTMP}, s{sTMP2}")
    e(f"s_and_b32 s{sTMP2}, s{sB}, 7"); e(f"s_lshl_b32 s{sTMP2}, s{sTMP2}, 2")
    e(f"s_lshr_b32 s{sTMP}, s{sTMP}, s{sTMP2}"); e(f"s_and_b32 s{sD}, s{sTMP}, 15")
    if asym:
        e(f"s_lshl_b32 s{sTMP}, s{sHI}, 1"); e(f"s_add_u32 s{sTMP}, s{sTMP}, s{sW}"); e(f"s_mul_i32 s{sKB}, s{sTMP}, {CHUNK}")
        e(f"s_cmp_eq_u32 s{sHI}, 0"); e(f"s_cselect_b32 s{sOO}, 17, s{sD}")
    else: e(f"s_mul_i32 s{sKB}, s{sW}, {SLOT}")
    def dk_setup():
        e(f"v_bfe_u32 v{vT0}, v{vLN}, 4, 1"); e(f"v_lshlrev_b32 v{vT0}, 4, v{vT0}"); e(f"v_xor_b32 v{vDK}, v{vDV}, v{vT0}")
    dk_setup()
    t0, t1 = F, F + 1
    e(f"v_and_b32 v{t0}, 7, v{vLN}"); e(f"v_mul_u32_u24 v{vKA}, {KBLK}, v{t0}")
    e(f"v_bfe_u32 v{t0}, v{vLN}, 3, 1"); e(f"v_lshl_add_u32 v{vKA}, v{t0}, 8, v{vKA}")
    e(f"v_lshrrev_b32 v{t1}, 5, v{vLN}"); e(f"v_xor_b32 v{t0}, v{t0}, v{t1}"); e(f"v_lshl_add_u32 v{vKA}, v{t0}, 4, v{vKA}")
    e(f"v_bfe_u32 v{t0}, v{vLN}, 4, 1"); e(f"v_lshl_add_u32 v{vKA}, v{t0}, 5, v{vKA}")
    e(f"v_bfe_u32 v{t0}, v{vLN}, 2, 3"); e(f"v_mul_u32_u24 v{vVA}, {VBLK}, v{t0}")
    e(f"v_lshl_add_u32 v{vVA}, v{t1}, 8, v{vVA}")
    e(f"v_and_b32 v{t0}, 3, v{vLN}"); e(f"v_lshl_add_u32 v{vVA}, v{t0}, 3, v{vVA}")
    def wx_setup():
        e(f"v_and_b32 v{t0}, 3, v{vLN}")
        e(f"v_bfe_u32 v{t1}, v{vLN}, 2, 2"); e(f"v_mul_u32_u24 v{vWA}, {VBLK}, v{t1}")
        e(f"v_lshl_add_u32 v{vWA}, v{t0}, 3, v{vWA}")
        e(f"v_lshrrev_b32 v{t0+2}, 4, v{vLN}"); e(f"v_lshl_add_u32 v{vWA}, v{t0+2}, 7, v{vWA}"); e(f"v_add_u32 v{vWA}, s{sWRB}, v{vWA}")
        e(f"v_mul_u32_u24 v{vXA}, {KBLK}, v{t0}"); e(f"v_lshl_add_u32 v{vXA}, v{t1}, 8, v{vXA}")
        e(f"v_sub_u32 v{t0+3}, 0, v{t1}"); e(f"v_and_b32 v{t0+3}, 3, v{t0+3}"); e(f"v_xor_b32 v{t0+3}, v{t0+3}, v{t0+2}")
        e(f"v_lshl_add_u32 v{vXA}, v{t0+3}, 4, v{vXA}"); e(f"v_add_u32 v{vXA}, {XB}, v{vXA}")
    wx_setup()
    e(f"v_cmp_eq_u32 vcc, v{t0}, v{t1}"); e(f"v_mov_b32 v{t0+2}, 0x3f803f80")
    for i in range(4): e(f"v_mov_b32 v{L+i}, 0")
    e(f"v_cndmask_b32 v{ONES}, 0, v{t0+2}, vcc"); e(f"v_mov_b32 v{ONES+1}, v{ONES}")
    e(f"s_lshl_b32 s{sTMP}, s2, 2"); e(f"s_add_u32 s{sTMP2}, s{sTMP}, s{sW}")
    e(f"s_and_b32 s{sROT}, s{sTMP2}, 15"); e(f"s_lshl_b32 s{sROT}, s{sROT}, 13")
    e(f"s_lshl_b32 s{sTMP}, s{sTMP2}, 17")
    mk_srd(sK, 16, 0x20000); mk_srd(sV, 18, 0x20000)
    e(f"s_xor_b32 s{sTMP}, s{sROLE}, 1"); e(f"s_lshl_b32 s{sTMP}, s{sTMP}, 10"); e(f"s_add_u32 s{sTMP}, s{sTMP}, s{sTMP2}"); e(f"s_lshl_b32 s{sTMP}, s{sTMP}, 14")
    mk_srd(sP, 28, 0x4000)
    wo_srd(12)
    e(f"s_bitcmp0_b32 s{sW}, 0")
    e(f"s_cselect_b32 s{sIT}, s6, s8"); e(f"s_cselect_b32 s{sIT+1}, s7, s9"); e(f"s_cselect_b32 s{sIST}, {KBLK-1024}, {VBLK-1024}")
    e(f"s_cselect_b64 vcc, -1, 0"); e(f"s_cselect_b32 s{sDK}, 0, {SLOT}")
    e(f"v_cndmask_b32 v{vIT}, v{vDV}, v{vDK}, vcc")
    e(f"s_lshl_b32 s{sTMP}, s2, 17"); mk_srd(sIT, sIT, 0x20000)
    e(f"s_and_b32 s{sROTA}, s2, 15"); e(f"s_lshl_b32 s{sROTA}, s{sROTA}, 1"); e(f"s_add_u32 s{sROTA}, s{sROTA}, s{sHI}"); e(f"s_lshl_b32 s{sROTA}, s{sROTA}, 12")
    e(f"s_add_u32 s{sTMP}, s{sIST}, 1024"); e(f"s_mul_i32 s{sTMP}, s{sTMP}, s{sHI}"); e(f"s_lshl_b32 s{sTMP}, s{sTMP}, 2"); e(f"s_add_u32 s{sDK}, s{sDK}, s{sTMP}")
    e(f"s_cmp_eq_u32 s{sROLE}, 0"); e("s_cbranch_scc1 L_Binit")

    e(f"v_add_u32 v{vKA}, {XB}, v{vKA}"); e(f"v_add_u32 v{vVA}, {XB + SLOT}, v{vVA}")
    e(f"v_mov_b32 v{t0}, {CNT}"); e(f"ds_write_b128 v{t0}, {vr(L, 4)}")
    e("s_waitcnt lgkmcnt(0)")
    def counter_init(slot):
        ln = lab("ni")
        e(f"s_or_b32 s{sTMP}, s{sG}, s{sW}"); e(f"s_cmp_eq_u32 s{sTMP}, 0"); e(f"s_cbranch_scc0 {ln}")
        e("s_mov_b64 exec, 1")
        if slot == 0:
            flag_srd(0)
            e(f"buffer_store_dword v{L}, off, {srd(sPF)}, s{sOFF} sc1"); e(f"buffer_store_dword v{L}, off, {srd(sPF)}, s{sOFF} offset:256 sc1")
        else:
            e("s_waitcnt vmcnt(0)")
            dbg_srd()
            e(f"v_mov_b32 v{vT0}, 8"); e(f"buffer_store_dword v{vT0}, off, {srd(sPF)}, s{sOFF} sc1")
        e("s_mov_b64 exec, -1")
        e(f"{ln}:")
    def helper(sch):
        q = ["x0"]*4 + ([] if duty else ["w"]*4)
        due = {0: sch.get("p0", "x0"), 6: "x1", 14: "x2", 22: "x3"}
        for slot, nxt in zip((-1, 0) + qbars, (0,) + qbars + (rel,)):
            if slot in (0, 6): counter_init(slot)
            for act in sch.get(slot, "").split():
                if act[0] == "x": x_issue(int(act[1])); q += [act]*4
                elif act == "q": coop_prefetch(10, 13, 10); q += [act]*(4 << dm)
                elif act == "a": coop_prefetch(12, 10, 19); q += [act]*(4 << dm)
                elif act == "b": coop_prefetch(22, 10, 19); q += [act]*(4 << dm)
                elif act == "t": xa_touch(); q += [act]*(2 << dm)
                elif act == "k": emit(k_issue()); q += [act]*8
            if nxt in due:
                last = max(i for i, x in enumerate(q) if x == due[nxt])
                e(f"s_waitcnt vmcnt({len(q) - 1 - last})")
            e("s_barrier")
        return q
    if duty:
        e(f"s_cmp_lt_u32 s{sB}, 16"); e("s_cbranch_scc0 L_nod1")
        helper(duty[0]); e("s_branch L_nod2")
        e("L_nod1:"); q = helper(duty[1]); e("L_nod2:")
    else: q = helper(hs)
    x_srd(4)
    if asym:
        assert "k" not in q
        e(f"s_cmp_eq_u32 s{sOO}, 0"); e("s_cbranch_scc0 L_hv")
        emit(x_half(0)); emit(x_half(1)); e("s_branch L_hx")
        e("L_hv:")
        emit(k_issue())
    else:
        if "k" not in q: emit(k_issue())
        e(f"s_cmp_eq_u32 s{sD}, 0"); e("s_cbranch_scc0 L_hv")
        emit(x_own()); e("s_branch L_hx")
        e("L_hv:")
    emit(v_issue())
    e("L_hx:")
    x_issue(0, "nt")
    e("s_waitcnt vmcnt(4)"); e("s_barrier")
    x_issue(1, "nt")
    e(f"s_lshl_b32 s{sTMP}, s2, 17")
    mk_srd(sK, 6, 0x20000); mk_srd(sV, 8, 0x20000)
    for n in range(3): emit(w_issue(n, "q"))
    e("s_waitcnt vmcnt(12)")
    e("s_branch L_Qstart")
    e("L_Binit:")
    e(f"v_add_u32 v{vKA}, s{sKB}, v{vKA}"); e(f"v_add_u32 v{vVA}, s{sKB}, v{vVA}"); e(f"v_add_u32 v{vVA}, {VOFF}, v{vVA}")

    e("L_Qstart:")
    e("s_barrier")
    stamp("P0")
    proj("q")
    c = f2u(math.log2(math.e) / math.sqrt(128.0))
    e(f"v_mov_b32 v{vT0}, {c:#x}"); e(f"v_mov_b32 v{vT1}, {c:#x}")
    pend = []
    def swaps():
        for pq in pend[-1:]: e(f"v_permlane16_swap_b32 v{pq}, v{pq+2}"); e(f"v_permlane16_swap_b32 v{pq+1}, v{pq+3}")
    for s in range(4):
        for qt in range(4):
            b = acc(2*s, qt); qq = Q + (qt*4 + s)*4
            for i in range(4): e(f"v_pk_mul_f32 {vr(b+2*i, 2)}, {vr(b+2*i, 2)}, {vr(vT0, 2)}")
            swaps()
            for i in range(4): e(f"v_cvt_pk_bf16_f32 v{qq+i}, v{b+2*i}, v{b+2*i+1}")
            pend.append(qq)
    e(f"s_mov_b32 s{sI}, 0"); e(f"s_cmp_eq_u32 s{sROLE}, 0")
    swaps()
    stamp("Qdone")
    e("s_cbranch_scc0 L_Aattn")

    for i in range(0, 128, 2): e(f"v_mov_b64 {vr(i, 2)}, 0")
    w_setup("o")
    x_voff()
    e("s_barrier")
    e(f"s_cmp_eq_u32 s{sD}, 0"); e("s_cbranch_scc1 L_Bpause")
    e("L_Bgo:")
    e(f"s_cmp_eq_u32 s{sI}, 15"); e("s_cbranch_scc0 L_noE0"); e("s_barrier"); e("L_noE0:")
    e("s_waitcnt vmcnt(8)")
    if tl:
        e("s_memrealtime s[98:99]"); e("s_memtime s[96:97]"); e("s_waitcnt lgkmcnt(0)"); e(f"s_mov_b32 m0, s{sI}"); e("s_nop 0"); e(f"v_writelane_b32 v254, s98, m0")
        e(f"s_add_u32 m0, s{sI}, 16"); e("s_nop 0"); e(f"v_writelane_b32 v254, s96, m0")
    fill = []
    for qt in range(4): fill += exps(qt, 0)
    for qt in range(4): fill += cvts(qt, 0)
    qk(fill)
    if fastlast: e(f"s_cmp_eq_u32 s{sI}, 15"); e("s_cbranch_scc1 L_Blast")
    left = [x for x in fill if x.startswith("v_exp")]
    emit(fill)
    e(f"s_add_u32 s{sROT}, s{sROT}, 8192"); e(f"s_and_b32 s{sROT}, s{sROT}, 0x1ffff")
    e(f"s_add_u32 s{sI}, s{sI}, 1")
    if not fastlast: e(f"s_cmp_eq_u32 s{sI}, 16"); e("s_cbranch_scc1 L_Blast")
    lm = sum(1 << d for d in loose)
    if asym: e(f"s_cmp_eq_u32 s{sI}, s{sOO}"); e("s_cbranch_scc1 L_Bx0")
    if lm: e(f"s_bitcmp1_b32 {lm:#x}, s{sD}"); e("s_cbranch_scc1 L_lk")
    emit(capped(k_issue(), capN))
    e("L_lkb:")
    e("s_waitcnt vmcnt(8)")
    e("L_Bpv:")
    pv_phase()
    if not fastlast: e(f"s_cmp_eq_u32 s{sI}, 16"); e("s_cbranch_scc1 L_Oepi")
    e(f"s_cmp_eq_u32 s{sI}, s{sD}"); e("s_cbranch_scc1 L_Bx")
    if lm: e(f"s_bitcmp1_b32 {lm:#x}, s{sD}"); e("s_cbranch_scc1 L_lv")
    emit(capped(v_issue(), capN))
    e("s_branch L_Bgo")
    if lm:
        e("L_lk:"); emit(capped(k_issue(), capL)); e("s_branch L_lkb")
        e("L_lv:"); emit(capped(v_issue(), capL)); e("s_branch L_Bgo")
    e("L_Blast:")
    def range_check():
        e(f"v_min3_f32 v{vT0}, v{L}, v{L+1}, v{L+2}"); e(f"v_add_f32 v{vT1}, v{L}, v{L+1}")
        e(f"v_min_f32 v{vT0}, v{vT0}, v{L+3}"); e(f"v_add_f32 v{vT1}, v{vT1}, v{L+2}"); e(f"v_add_f32 v{vT1}, v{vT1}, v{L+3}")
        e(f"v_cmp_nle_f32 vcc, {f2u(2.0**lo_exp):#x}, v{vT0}"); e("s_cbranch_vccnz L_slow")
        e(f"v_cmp_nge_f32 vcc, {f2u(2.0**hi_exp):#x}, v{vT1}"); e("s_cbranch_vccnz L_slow")
        if force_slow: e("s_branch L_slow")
    def recip():
        for qt in range(4): e(f"v_rcp_f32 v{L+qt}, v{L+qt}")
        e(f"s_mul_i32 s{sTMP}, s{sW}, {CHUNK if asym else SLOT}"); e(f"v_add_u32 v{vT0}, s{sTMP}, v{vXA}")
    def scale(b, qt):
        sel = "op_sel_hi:[1,0]" if qt % 2 == 0 else "op_sel:[0,1]"
        return [f"v_pk_mul_f32 {vr(b+2*i, 2)}, {vr(b+2*i, 2)}, {vr(L + (qt & 2), 2)} {sel}" for i in range(4)]
    def owr(s, qt): return f"ds_write_b128 v{vT0}, {vr(acc(2*s, qt), 4)} offset:{xoff('o', 0, qt) + s*64}"
    if fastlast:
        if tl: e("v_mov_b32 v252, v254   ; v_writelane_b32 v247")
        emit(left)
        for qt in range(4): emit(exps(qt, 1))
        for i in range(8):
            for qt in range(4): e(f"v_add_f32 v{L+qt}, v{L+qt}, v{S+qt*8+i}")
        lsum(); range_check(); recip()
        for qt in range(4): emit(scale(S + qt*8, qt))
        for qt in range(4): emit(cvts(qt, 0) + cvts(qt, 1))
        for s in range(3):
            for qt in range(4): emit(scale(acc(2*s, qt), qt))
        e("s_waitcnt vmcnt(0)")
        rd = [f"ds_read_b64_tr_b16 {vr(Q + 4*dt + 2*u, 2)}, v{vVA} offset:{u*512 + dt*32}" for dt in range(8) for u in range(2)]
        emit(rd[:8])
        for qt in range(4): emit(scale(acc(6, qt), qt)); emit(rd[8 + 2*qt:10 + 2*qt])
        e("s_waitcnt lgkmcnt(0)")
        stamp("attn_done")
        pendo = []
        for s in range(4):
            mf = [f"{MF} {vr(acc(dt, qt), 4)}, {vr(Q + 4*dt, 4)}, {vr(S + qt*8, 4)}, {vr(acc(dt, qt), 4)}" for qt in range(4) for dt in ((2*s, 2*s + 1) if qt % 2 == 0 else (2*s + 1, 2*s))]
            for i, m in enumerate(mf):
                e(m); emit(pendo[len(pendo)*i//8:len(pendo)*(i + 1)//8])
            pendo = []
            for qt in range(4): pendo += pack(s, qt) + [owr(s, qt)]
        emit(pendo)
        e("s_branch L_Owr")
    else:
        e("s_waitcnt vmcnt(0)"); e("s_branch L_Bpv")
    if asym:
        e("L_Bx0:"); emit(capped(x_half(0), capX)); e("s_branch L_lkb")
        e("L_Bv:"); emit(capped(v_issue(), capN)); e("s_branch L_Bpause")
    e("L_Bx:")
    if asym:
        e(f"s_cmp_eq_u32 s{sHI}, 0"); e("s_cbranch_scc1 L_Bv")
        emit(capped(x_half(1), capX))
    else: emit(capped(x_own(), capX))
    e("L_Bpause:")
    e("s_barrier")
    e(f"s_cmp_eq_u32 s{sW}, 0"); e("s_cbranch_scc0 L_nochk")
    dbg_srd(); poll(tmp=F)
    e("L_nochk:")
    for n in qbars:
        if n == 14: e("s_waitcnt vmcnt(0)")
        e("s_barrier")
    e("s_barrier")
    def half_item(t):
        e(f"s_add_u32 m0, s{sDK}, {XB + (t % 4)*CHUNK}")
        for j in range(4):
            if j: e(f"s_add_u32 m0, m0, s{sIST}")
            e(f"buffer_load_dwordx4 v{vIT}, {srd(sIT)}, s{sROTA} offen offset:{j*1024} nt lds")
        e(f"s_add_u32 s{sROTA}, s{sROTA}, 8192"); e(f"s_and_b32 s{sROTA}, s{sROTA}, 0x1ffff")
    half_item(0); half_item(1); issued = 2
    for t in range(16):
        e(f"s_waitcnt vmcnt({4*(issued - t - 1)})"); e("s_barrier")
        while issued < min(16, t + depth + 1):
            half_item(issued); issued += 1
    for n in range(3): emit(w_issue(n, "o"))
    wo_srd(22)
    e("s_barrier"); e("s_waitcnt vmcnt(0)"); e("s_barrier"); e("s_barrier")
    if asym:
        e(f"s_cmp_eq_u32 s{sHI}, 0"); e("s_cbranch_scc1 L_Bgo")
        emit(k_issue())
    emit(v_issue())
    e("s_branch L_Bgo")

    FB = [F, F + 4, F + 8, 244, 248, 252]
    kb = [0, 1, 2, 3, 4, 5, 0, 1]
    vb = [FB[2], FB[3], FB[4], FB[5], FB[0], FB[1], S + 4, S + 12]
    def akr(f): return f"ds_read_b128 {vr(FB[kb[f]], 4)}, v{vKA} offset:{(f >> 2)*512 + (f & 3)*64}"
    def avr(dt): return [f"ds_read_b64_tr_b16 {vr(vb[dt] + 2*u, 2)}, v{vVA} offset:{u*512 + dt*32}" for u in range(2)]
    def weave(mf, fill):
        cost = [2 if x.startswith("v_exp") else 1 for x in fill]
        tot = sum(cost); cum = 0; k = 0
        for i, m in enumerate(mf):
            e(m)
            while k < len(fill) and (cum + cost[k]) * len(mf) <= (i + 1) * tot + len(mf) // 2:
                e(fill[k]); cum += cost[k]; k += 1
        emit(fill[k:])
    def atile(first):
        def apv(dt, qt): return f"{MF} {vr(acc(dt, qt), 4)}, {vr(vb[dt], 4)}, {vr(S + qt*8, 4)}, {'0' if first else vr(acc(dt, qt), 4)}"
        ex = exps(0, 0) + exps(1, 0) + exps(2, 0)
        for f in range(8):
            u, sx = f >> 2, f & 3
            if f == 0: e("s_waitcnt lgkmcnt(2)")
            if f in (2, 4): e("s_waitcnt lgkmcnt(4)")
            for qt in range(4):
                r = vr(Sr(qt, u), 4)
                e(f"{MF} {r}, {vr(FB[kb[f]], 4)}, {vr(Q + (qt*4 + sx)*4, 4)}, {r if sx else '0'}")
                if f == 0 and qt < 2: e(akr(4 + qt))
                if f == 1 and qt == 0: e(f"s_add_u32 s{sI}, s{sI}, 1"); e(f"s_and_b32 s{sTMP}, s{sI}, 3")
                if f == 1 and qt == 1: e(f"s_cselect_b32 s{sDK}, s{sTMP2}, {(-3*CHUNK) & 0xffffffff:#x}")
                if f == 2 and qt == 0: e(f"v_add_u32 v{vKA}, s{sDK}, v{vKA}")
                if u == 1 and (f, qt) != (4, 0) and (qt < 3 or f == 7): e(ex.pop(0))
            if f < 2: e(akr(6 + f))
            else: emit(avr(f - 2))
        emit(exps(0, 1)); emit(cvts(0, 0)); emit(cvts(0, 1)); emit(avr(6))
        e("s_waitcnt lgkmcnt(6)")
        b0 = [apv(dt, 0) for dt in range(6)]
        b0[3] += "\ns_waitcnt lgkmcnt(2)"
        weave(b0, exps(1, 1) + cvts(1, 0) + cvts(1, 1))
        emit(avr(7))
        s0, s1, s2, s3 = (sums(qt) for qt in range(4))
        b1 = [apv(dt, 1) for dt in range(5, -1, -1)]
        b1[1] = s0[0] + "\n" + b1[1]; b1[3] = s0[1] + "\n" + b1[3]
        weave(b1, exps(2, 1) + cvts(2, 0) + cvts(2, 1))
        e(f"v_add_u32 v{vVA}, s{sDK}, v{vVA}")
        b2 = [apv(dt, 2) for dt in range(6)] + [apv(6, 0), apv(7, 0), apv(7, 1), apv(6, 1)]
        b2[0] = s1[0] + "\n" + b2[0]; b2[2] = s1[1] + "\n" + b2[2]; b2[4] = s2[0] + "\n" + b2[4]
        b2[6] = "s_waitcnt lgkmcnt(0)\n" + b2[6]
        weave(b2, exps(3, 0) + exps(3, 1) + cvts(3, 0) + cvts(3, 1))
        e(s2[1])
        e("s_barrier")
        for k, dt in enumerate((4, 5, 0, 1)):
            e(apv(dt, 3)); e(akr(k))
        e(s3[0]); e(apv(2, 3))
        e(f"s_cmp_eq_u32 s{sI}, 16")
        e(apv(3, 3)); e(s3[1])
        e(apv(6, 3)); e(apv(7, 3)); e(apv(7, 2)); e(apv(6, 2))
    e("L_Aattn:")
    e(f"s_mov_b32 s{sTMP2}, {CHUNK}")
    e("s_barrier")
    stamp("L0")
    if stamps and "L0" in stamps: e("s_waitcnt lgkmcnt(0)")
    for f in range(4): e(akr(f))
    atile(True)
    e("L_Aloop:")
    atile(False)
    e("s_cbranch_scc0 L_Aloop")
    e("s_waitcnt lgkmcnt(0)")
    e(f"v_mbcnt_lo_u32_b32 v{vLN}, -1, 0"); e(f"v_mbcnt_hi_u32_b32 v{vLN}, -1, v{vLN}")
    e(f"v_lshlrev_b32 v{vDV}, 4, v{vLN}")
    wx_setup(); w_setup("o")

    e("L_Oepi:")
    if tl and not fastlast:
        e(f"s_cmp_eq_u32 s{sROLE}, 0"); e("s_cbranch_scc0 L_tl0"); e("v_mov_b32 v252, v254   ; v_writelane_b32 v247"); e("L_tl0:")
    stamp("attn_done")
    lsum()
    range_check()
    e("L_slow_back:")
    recip()
    for s in range(4):
        for qt in range(4):
            emit(scale(acc(2*s, qt), qt)); emit(pack(s, qt)); e(owr(s, qt))
    e("L_Owr:")
    e("s_waitcnt lgkmcnt(0)")
    e("s_barrier")
    stamp("Owritten")
    proj("o", range(30))
    e(f"s_cmp_eq_u32 s{sROLE}, 0"); e("s_cbranch_scc0 L_OA")
    ex = {30: [], 31: []}
    if early:
        seq = []
        for qt in range(4): seq += pack(0, qt) + pack(1, qt) + pstore(0, qt)
        slots = [(30, g) for g in range(4, 8)] + [(n, g) for n in (30, 31) for g in range(16) for _ in range(2) if (n, g) >= (30, 8)]
        assert len(slots) >= len(seq)
        for (n, g), x in zip(slots, seq): ex[n].append((g, x))
    proj("o", (30, 31), ex)
    stamp("Odone")
    e("s_branch L_store1" if early else "s_branch L_store0")
    e("L_OA:")
    proj("o", (30, 31))
    stamp("Odone")
    e("s_setprio 0")
    wo_srd(22)
    for n in range(3): emit(w_issue(n, "o"))
    e("s_barrier")
    e("L_store0:")
    for qt in range(4): emit(pack(0, qt) + pack(1, qt) + pstore(0, qt))
    e("L_store1:")
    for qt in range(4): emit(pack(2, qt) + pack(3, qt) + pstore(1, qt))
    stamp("issued")
    e("s_waitcnt vmcnt(14)")
    e("s_barrier")
    keep = []
    for p in range(8):
        lk = lab("kp"); keep.append(lk)
        if p < 7: e(f"s_cmp_eq_u32 s{sG}, {p}"); e(f"s_cbranch_scc1 {lk}")
    for p in range(7, -1, -1):
        e(f"{keep[p]}:")
        for f in range(2): unpack(RK + 8*f, acc(2*(2*(p & 1) + f), p >> 1))
        if p: e("s_branch L_kept")
    e("L_kept:")
    e(f"s_xor_b32 s{sTMP2}, s{sROLE}, 1")
    e(f"s_lshl_b32 s{sTMP}, s{sTMP2}, 5"); e(f"s_add_u32 s{sTMP}, s{sTMP}, s{sB}"); e(f"s_lshl_b32 s{sTMP}, s{sTMP}, 19")
    mk_srd(sP, 28, 0x80000)
    e(f"s_mul_i32 s{sRO}, s{sG}, {65536 + 2048}"); e(f"s_lshl_b32 s{sTMP}, s{sW}, 14"); e(f"s_add_u32 s{sRO}, s{sRO}, s{sTMP}")
    e(f"s_lshl_b32 s{sTMP}, s{sB}, 17"); mk_srd(sIT, 24, 0x20000)
    e(f"s_lshl_b32 s{sOO}, s{sTMP2}, 10")
    e(f"s_lshr_b32 s{sTMP}, s{sG}, 1"); e(f"s_lshl_b32 s{sTMP}, s{sTMP}, 15"); e(f"s_add_u32 s{sOO}, s{sOO}, s{sTMP}")
    e(f"s_lshl_b32 s{sTMP}, s{sW}, 8"); e(f"s_add_u32 s{sOO}, s{sOO}, s{sTMP}")
    e(f"s_and_b32 s{sTMP}, s{sG}, 1"); e(f"s_lshl_b32 s{sTMP}, s{sTMP}, 7"); e(f"s_add_u32 s{sOO}, s{sOO}, s{sTMP}")
    e(f"v_and_b32 v{vT0}, 15, v{vLN}"); e(f"v_lshlrev_b32 v{vKA}, 11, v{vT0}")
    e(f"v_bfe_u32 v{vT0}, v{vLN}, 4, 1"); e(f"v_lshl_add_u32 v{vKA}, v{vT0}, 5, v{vKA}")
    e(f"v_lshrrev_b32 v{vT0}, 5, v{vLN}"); e(f"v_lshl_add_u32 v{vKA}, v{vT0}, 4, v{vKA}")
    e(f"s_cmp_eq_u32 s{sROLE}, 0"); e("s_cbranch_scc0 L_Apub")
    flag_srd(1)
    lds_arrive(1, "L_Bwait")
    def first(done):
        e(f"buffer_atomic_add v{vT1}, off, {srd(sPF)}, s{sOFF} sc0")
        e("s_waitcnt vmcnt(0)")
        e(f"v_readfirstlane_b32 s{sTMP}, v{vT1}")
        e(f"s_cmp_ge_u32 s{sTMP}, 7"); e(f"s_cbranch_scc1 {done}")
    poll(first)
    e(f"v_mov_b32 v{vT0}, {CNT + 8}"); e(f"v_mov_b32 v{vT1}, 1")
    e(f"ds_write_b32 v{vT0}, v{vT1}")
    e("s_branch L_final")
    e("L_Bwait:")
    e(f"v_mov_b32 v{vT0}, {CNT + 8}")
    e("L_Bspin:")
    e(f"ds_read_b32 v{vT1}, v{vT0}")
    e("s_waitcnt lgkmcnt(0)")
    e(f"v_readfirstlane_b32 s{sTMP}, v{vT1}")
    e(f"s_cmp_eq_u32 s{sTMP}, 0"); e("s_cbranch_scc1 L_Bspin")
    e("s_branch L_final")
    e("L_Apub:")
    flag_srd(0)
    lds_arrive(0, "L_nosig")
    e(f"buffer_atomic_add v{vT1}, off, {srd(sPF)}, s{sOFF}")
    e("L_nosig:")
    e("s_mov_b64 exec, -1")
    stamp("pubA")
    e("s_barrier")
    e(f"s_cmp_eq_u32 s{sW}, 0"); e("s_cbranch_scc0 L_nopoll")
    poll()
    e("L_nopoll:")
    e("s_barrier")
    rl = []
    for k in range(7):
        rl += [f"s_add_u32 s{sRO}, s{sRO}, 0x10000", f"s_and_b32 s{sRO}, s{sRO}, 0x7ffff"]
        rl += [f"buffer_load_dwordx4 {vr(RL + 8*k + 4*f, 4)}, v{vDV}, {srd(sP)}, s{sRO} offen offset:{f*1024} sc1" for f in range(2)]
    if capA: emit(capped(rl, capA)); e("s_branch L_sum")
    e("L_final:")
    e("s_mov_b64 exec, -1")
    stamp("flag")
    emit(rl)
    e("L_sum:")
    for k in range(7):
        for f in range(2):
            e(f"s_waitcnt vmcnt({(6 - k)*2 + 1 - f})")
            dst, tmp = RK + 8*f, RK + 16 + 8*f
            unpack(tmp, RL + 8*k + 4*f)
            for i in range(8): e(f"v_add_f32 v{dst+i}, v{dst+i}, v{tmp+i}")
            if k == 6:
                for i in range(4): e(f"v_cvt_pk_bf16_f32 v{dst+i}, v{dst+2*i}, v{dst+2*i+1}")
    stamp("summed")
    for f in range(2):
        dst = RK + 8*f
        e(f"v_permlane16_swap_b32 v{dst}, v{dst+2}"); e(f"v_permlane16_swap_b32 v{dst+1}, v{dst+3}")
        e(f"buffer_store_dwordx4 {vr(dst, 4)}, v{vKA}, {srd(sIT)}, s{sOO} offen offset:{f*64} sc1")
    if stamps:
        e("s_waitcnt vmcnt(0)")
        stamp("end")
        e("s_memtime s[4:5]")
        e("s_waitcnt lgkmcnt(0)")
        e("s_sub_u32 s4, s4, s100")
        e(f"s_lshl_b32 s{sTMP}, s2, 1"); e(f"s_add_u32 s{sTMP}, s{sTMP}, s{sROLE}"); e(f"s_lshl_b32 s{sTMP}, s{sTMP}, 2"); e(f"s_add_u32 s{sTMP}, s{sTMP}, s{sW}")
        e(f"s_lshl_b32 s{sTMP}, s{sTMP}, 7")
        e(f"s_add_u32 s{sPF}, s28, 0x4000000"); e(f"s_addc_u32 s{sPF+1}, s29, 0"); e(f"s_mov_b32 s{sPF+2}, 0x100000"); e(f"s_mov_b32 s{sPF+3}, 0x20000")
        for i in range(16): e(f"v_mov_b32 v{i}, s{sST+i}")
        e(f"v_mov_b32 v16, s4"); e("v_mov_b32 v17, 0"); e("v_mov_b32 v18, 0"); e("v_mov_b32 v19, 0")
        e(f"v_mov_b32 v20, s{sTMP}")
        if tl:
            e(f"v_lshl_add_u32 v21, v{vLN}, 2, v20"); e("s_mov_b32 exec_hi, 0"); e(f"s_mov_b32 s{sOFF}, 0x80000")
            e(f"buffer_store_dword v252, v21, {srd(sPF)}, s{sOFF} offen")
        e("s_mov_b64 exec, 1")
        for i in range(5): e(f"buffer_store_dwordx4 {vr(4*i, 4)}, v20, {srd(sPF)}, 0 offen offset:{16*i}")
    e("L_end:")
    e("s_endpgm")

    e("L_slow:")
    e(f"s_cmp_eq_u32 s{sROLE}, 0"); e("s_cbranch_scc1 L_slowB")
    dk_setup()
    if asym: e(f"s_mul_i32 s{sKB}, s{sW}, {CHUNK}")
    e(f"v_add_u32 v{vKA}, s{sKB}, v{vKA}"); e(f"v_add_u32 v{vVA}, s{sKB}, v{vVA}"); e(f"v_add_u32 v{vVA}, {VOFF - SLOT}, v{vVA}")
    e(f"s_add_u32 s{sKB}, s{sKB}, {XB}")
    e("L_slowB:")
    e(f"v_add_u32 v{vVA}, {(-VOFF) & 0xffffffff:#x}, v{vVA}")
    for i in range(0, 128, 2): e(f"v_mov_b64 {vr(i, 2)}, 0")
    for i in range(4): e(f"v_mov_b32 v{L+i}, 0"); e(f"v_mov_b32 v{M+i}, {f2u(-3.0e38):#x}")
    e(f"s_mov_b32 s{sROT}, 0")
    e("L_slowloop:")
    emit(k_issue())
    e("s_waitcnt vmcnt(0)")
    qk(None)
    emit(kv_issue(sV, vDV, 0, VBLK))
    for qt in range(4):
        b = S + qt*8; t = F + 2*qt
        e(f"v_max3_f32 v{t}, v{b}, v{b+1}, v{b+2}"); e(f"v_max3_f32 v{t}, v{t}, v{b+3}, v{b+4}")
        e(f"v_max3_f32 v{t}, v{t}, v{b+5}, v{b+6}"); e(f"v_max3_f32 v{t}, v{t}, v{b+7}, v{M+qt}")
        xlane("v_max_f32", [t], [vT0])
        e(f"v_sub_f32 v{t+1}, v{M+qt}, v{t}"); e(f"v_mov_b32 v{M+qt}, v{t}")
        e(f"v_exp_f32 v{t+1}, v{t+1}")
        for i in range(8): e(f"v_sub_f32 v{b+i}, v{b+i}, v{M+qt}")
        e(f"v_mul_f32 v{L+qt}, v{L+qt}, v{t+1}")
        for dt in range(8):
            for i in range(0, 4, 2): e(f"v_pk_mul_f32 {vr(acc(dt, qt)+i, 2)}, {vr(acc(dt, qt)+i, 2)}, {vr(t, 2)} op_sel:[0,1]")
        emit(exps(qt, 0)); emit(cvts(qt, 0))
    e("s_waitcnt vmcnt(0)")
    pv_phase()
    e(f"s_add_u32 s{sROT}, s{sROT}, 8192"); e(f"s_cmp_lt_u32 s{sROT}, 0x20000"); e("s_cbranch_scc1 L_slowloop")
    lsum()
    w_setup("o")
    e("s_branch L_slow_back")
    e("L_last:")

    e('.section .rodata,"a"')
    e(".p2align 6"); e(f".amdhsa_kernel {NAME}_kernel")
    for l in [".amdhsa_next_free_vgpr 256", ".amdhsa_next_free_sgpr 102", ".amdhsa_accum_offset 256", ".amdhsa_group_segment_fixed_size 0",
              ".amdhsa_kernarg_size 104", ".amdhsa_user_sgpr_count 2", ".amdhsa_user_sgpr_kernarg_segment_ptr 1", ".amdhsa_system_sgpr_workgroup_id_x 1",
              ".amdhsa_float_denorm_mode_32 3"]:
        e("  " + l)
    e(".end_amdhsa_kernel")
    n = a.pad()
    return a.text(), n

if __name__ == "__main__":
    kw = eval("dict(" + (sys.argv[2] if len(sys.argv) > 2 else "") + ")")
    txt, n = gen(**kw)
    out = sys.argv[1] if len(sys.argv) > 1 else f"cdna_kernels/{NAME}.s"
    open(out, "w").write(txt)
    print("pad states:", n, "lines:", txt.count("\n"), "LDS", LDS)
```

```python
import sys, math, struct
from asmlib import Asm

NAME = "concat_heads__gqa_block_cached__mha_block_cached__near_ridge"
KBLK = 1088; VBLK = 1056; HALF = 4352; SLOT = 8704; CHUNK = 2*SLOT
XB = 4*SLOT
VOFF = XB + 2*CHUNK
WR0 = XB + 4*CHUNK
WRING = 3*HALF
CNT = WR0 + 4*WRING
LDS = CNT + 64
WBIAS = 128

sK, sV, sWQ, sWO, sX, sP, sIT, sPF = 32, 36, 40, 44, 48, 52, 56, 60
(sROLE, sW, sG, sB, sD, sI, sROT, sOFF, sWRB, sKB, sTMP, sTMP2, sWOFF, sROTA, sIST, sDK, sHI, sOO, sRO) = range(64, 83)
sST = 84
def srd(n): return f"s[{n}:{n+3}]"
ACC = 0; Q = 128; S = 192; F = 224; L = 236; ONES = 240
vKA, vVA, vDK, vDV = 242, 243, 244, 245
vWO = 246
vWA, vXA, vIT, vLN, vT0, vT1 = 250, 251, 252, 253, 254, 255
M = 246
AF = 128; BF = 160
RK = 192; RL = 128
def vr(b, n): return f"v[{b}:{b+n-1}]"
def acc(dt, qt): return ACC + ((dt >> 1)*4 + qt)*8 + (dt & 1)*4
def f2u(x): return struct.unpack("<I", struct.pack("<f", x))[0]
MF = "v_mfma_f32_16x16x32_bf16"
GROUPS = (0,0,0,0,0,1,1,1,1,2,2,3,4,5,6,8,9,11,12,12,13,13,13,14,14,14,14,15,15,15,15,15)

def gen(groups=GROUPS, capN=8, capX=8, depth=2, slp=3, prioA=1, lo_exp=-30, hi_exp=30, rel=29, relAq=30, relAo=30, early=True, loose=(), capL=None, asym=True, fastlast=False, duty=None, capA=5, nopf=False, shift={14: (9, 5, 5), 22: (12, 0, 5)},
        hs={0: "x1", 6: "x2 x3", 14: "q t", 22: "a b"},
        stamps=False, cyc=False, tl=False, force_slow=False):
    a = Asm(); e = a
    qbars = (6, 14, 22)
    VOFF = SLOT if asym else XB + 2*CHUNK
    def stamp(nm):
        if stamps and nm in stamps:
            i = stamps.index(nm); e(f"{'s_memtime' if cyc else 's_memrealtime'} s[{sST+2*i}:{sST+2*i+1}]")
    def emit(lst):
        for x in lst:
            if x: e(x)
    uid = [0]
    def lab(p):
        uid[0] += 1; return f"L_{p}{uid[0]}"
    def mk_srd(r, lo, size):
        e(f"s_add_u32 s{r}, s{lo}, s{sTMP}"); e(f"s_addc_u32 s{r+1}, s{lo+1}, 0"); e(f"s_mov_b32 s{r+2}, {size:#x}"); e(f"s_mov_b32 s{r+3}, 0x20000")

    order = [(n >> 1, n & 1) for n in range(28)] + [(14, 0), (15, 0), (14, 1), (15, 1)]
    def w_setup(kind):
        sh = 13 if kind == "q" else 10
        if kind == "q":
            e(f"v_bfe_u32 v{vT0}, v{vLN}, 3, 2"); e(f"v_lshlrev_b32 v{vWO}, {sh+3}, v{vT0}")
            e(f"v_lshrrev_b32 v{vT0}, 5, v{vLN}"); e(f"v_lshl_add_u32 v{vWO}, v{vT0}, {sh+2}, v{vWO}")
        else:
            e(f"v_lshrrev_b32 v{vT0}, 3, v{vLN}"); e(f"v_lshlrev_b32 v{vWO}, {sh+2}, v{vT0}")
        e(f"v_and_b32 v{vT0}, 7, v{vLN}"); e(f"v_lshl_add_u32 v{vWO}, v{vT0}, 4, v{vWO}")
        for r in (3, 2, 1, 0):
            e(f"v_add_u32 v{vWO+r}, {r*((1 << sh) - VBLK) + WBIAS}, v{vWO}")
    def w_issue(n, kind):
        sr, sh = (sWQ, 13) if kind == "q" else (sWO, 10)
        ks, ch = order[n]
        out = [f"s_add_u32 m0, s{sWRB}, {(n % 3)*HALF}", f"s_mov_b32 s{sWOFF}, {ks*(32 << sh) + ch*128}"]
        for r in range(4):
            out.append(f"buffer_load_dwordx4 v{vWO+r}, {srd(sr)}, s{sWOFF} offen offset:{r*VBLK} lds")
        return out
    def w_srd(r, lo):
        e(f"s_add_u32 s{r}, s{lo}, s{sTMP}"); e(f"s_addc_u32 s{r+1}, s{lo+1}, 0")
        e(f"s_sub_u32 s{r}, s{r}, {WBIAS}"); e(f"s_subb_u32 s{r+1}, s{r+1}, 0")
        e(f"s_sub_u32 s{r+2}, {0x400000 + WBIAS}, s{sTMP}"); e(f"s_mov_b32 s{r+3}, 0x20000")
    def wo_srd(lo):
        e(f"s_lshl_b32 s{sTMP}, s{sG}, 19"); e(f"s_lshl_b32 s{sTMP2}, s{sW}, 8"); e(f"s_add_u32 s{sTMP}, s{sTMP}, s{sTMP2}")
        w_srd(sWO, lo)
    def kv_issue(sr, voff, imm, blk):
        out = [f"s_add_u32 s{sOFF}, s{sROT}, 4096"]
        for j in (0, 4, 2, 6, 1, 5, 3, 7):
            out.append(f"s_add_u32 m0, s{sKB}, {imm + j*blk - (j % 4)*1024}")
            out.append(f"buffer_load_dwordx4 v{voff}, {srd(sr)}, s{sOFF if j >= 4 else sROT} offen offset:{(j % 4)*1024} nt lds")
        return out
    def capped(lst, n):
        if not n: return lst
        out = []
        for x in lst:
            if x.startswith("buffer_load"): out.append(f"s_waitcnt vmcnt({n-1})")
            out.append(x)
        return out
    def k_issue(): return kv_issue(sK, vDK, 0, KBLK)
    def v_issue(): return kv_issue(sV, vDV, VOFF, VBLK)
    def x_issue(c, flag=""):
        e(f"s_lshl_b32 s{sOFF}, s{sW}, 14"); e(f"s_add_u32 s{sOFF}, s{sOFF}, {c*256}")
        e(f"s_mul_i32 s{sTMP}, s{sW}, {HALF}")
        for j in range(4):
            e(f"s_add_u32 m0, s{sTMP}, {XB + c*CHUNK + j*64}")
            e(f"buffer_load_dwordx4 v{vT1}, {srd(sX)}, s{sOFF} offen offset:{j*1024} {flag} lds")
    def x_half(h):
        out = [f"s_lshl_b32 s{sOFF}, s{sW}, 8", f"s_add_u32 s{sOFF}, s{sOFF}, {h*32768}"]
        for j in range(8):
            if j == 4: out.append(f"s_add_u32 s{sOFF}, s{sOFF}, 16384")
            out.append(f"s_add_u32 m0, s{sKB}, {h*SLOT + (j >> 2)*HALF + (j & 3)*64}")
            out.append(f"buffer_load_dwordx4 v{vT1}, {srd(sX)}, s{sOFF} offen offset:{(j & 3)*1024} nt lds")
        return out
    def x_own():
        out = [f"s_and_b32 s{sOFF}, s{sW}, 1", f"s_lshl_b32 s{sOFF}, s{sOFF}, 7", f"s_add_u32 s{sOFF}, s{sOFF}, s{sHI}",
               f"s_lshl_b32 s{sOFF}, s{sOFF}, 8", f"s_add_u32 s{sOFF}, s{sOFF}, 512"]
        for j in range(8):
            if j == 4: out.append(f"s_add_u32 s{sOFF}, s{sOFF}, 16384")
            out.append(f"s_add_u32 m0, s{sKB}, {VOFF + (j >> 2)*HALF + (j & 3)*64}")
            out.append(f"buffer_load_dwordx4 v{vT1}, {srd(sX)}, s{sOFF} offen offset:{(j & 3)*1024} nt lds")
        return out
    def x_voff():
        e(f"v_lshrrev_b32 v{vT0}, 4, v{vLN}"); e(f"v_sub_u32 v{vT1}, 0, v{vT0}"); e(f"v_and_b32 v{vT1}, 3, v{vT1}")
        e(f"v_xor_b32 v{vT1}, v{vT1}, v{vLN}"); e(f"v_and_b32 v{vT1}, 15, v{vT1}"); e(f"v_lshlrev_b32 v{vT1}, 4, v{vT1}")
        e(f"v_lshl_add_u32 v{vT1}, v{vT0}, 12, v{vT1}")
    def x_srd(lo):
        e(f"s_lshl_b32 s{sTMP}, s{sB}, 16"); mk_srd(sX, lo, 0x10000)
    dm = 1 if duty else 0
    def xa_touch(sb=sB):
        e(f"s_lshl_b32 s{sTMP}, s{sb}, 3"); e(f"s_add_u32 s{sTMP}, s{sTMP}, s{sG}")
        e(f"s_lshl_b32 s{sTMP}, s{sTMP}, 2"); e(f"s_add_u32 s{sTMP}, s{sTMP}, s{sW}"); e(f"s_lshl_b32 s{sTMP}, s{sTMP}, {11 + dm}")
        mk_srd(sPF, 4, 0x800 << dm)
        for r in range(2 << dm): e(f"buffer_load_dwordx4 {vr(S + 16 + 4*r, 4)}, v{vDV}, {srd(sPF)}, 0 offen offset:{r*1024}")
    def coop_prefetch(lo, sh, goff_sh, sb=sB):
        e(f"s_lshl_b32 s{sTMP}, s{sG}, {goff_sh}")
        e(f"s_add_u32 s{sPF}, s{lo}, s{sTMP}"); e(f"s_addc_u32 s{sPF+1}, s{lo+1}, 0")
        e(f"s_sub_u32 s{sPF+2}, 0x400000, s{sTMP}"); e(f"s_mov_b32 s{sPF+3}, 0x20000")
        e(f"s_lshl_b32 s{sTMP}, s{sb}, 2"); e(f"s_add_u32 s{sTMP}, s{sTMP}, s{sW}"); e(f"s_lshl_b32 s{sTMP}, s{sTMP}, {sh+2+dm}")
        for r in range(4 << dm):
            e(f"buffer_load_dwordx4 {vr(S + 4*(r % 4), 4)}, v{vDV}, {srd(sPF)}, s{sTMP} offen")
            if r < (4 << dm) - 1: e(f"s_add_u32 s{sTMP}, s{sTMP}, {1 << sh}")

    def xoff(kind, c, qt):
        return c*CHUNK + qt*HALF if (kind == "q" or asym) else (qt >> 1)*2*CHUNK + c*SLOT + (qt & 1)*HALF
    def pack(sx, qt):
        b = acc(2*sx, qt)
        return [f"v_cvt_pk_bf16_f32 v{b+i}, v{b+2*i}, v{b+2*i+1}" for i in range(4)]
    def pstore(sp, qt):
        st = [f"buffer_store_dwordx4 {vr(acc(2*sx, qt), 4)}, v{vDV}, {srd(sP)}, s{sOFF} offen offset:{sx*1024} sc1" for sx in (2*sp, 2*sp + 1)]
        l = lab("ps")
        return [f"s_mov_b32 s{sOFF}, {qt*4096}", f"s_cmp_eq_u32 s{sG}, {qt*2 + sp}", f"s_cbranch_scc1 {l}\n{st[0]}\n{st[1]}\n{l}:", ""]
    def proj(kind, steps=range(32), extra={}):
        def ra(n):
            return [f"ds_read_b64_tr_b16 {vr(AF + (n % 2)*16 + d*4 + ee*2, 2)}, v{vWA} offset:{(n % 3)*HALF + ee*512 + d*32}" for d in range(4) for ee in range(2)]
        def rb(ks, qts):
            return [f"ds_read_b128 {vr(BF + (ks % 2)*16 + qt*4, 4)}, v{vXA} offset:{xoff(kind, ks >> 2, qt) + (ks & 3)*64}" for qt in qts]
        for n in steps:
            if n == 0:
                e("s_waitcnt vmcnt(8)")
                emit(rb(0, range(4))); emit(ra(0))
                e("s_waitcnt lgkmcnt(0)")
            stamp(f"{kind}{n}")
            ks, ch = order[n]
            rd = ra(n + 1) if n < 31 else []
            if n < 28: rd = rd + rb(ks + 1, (2*ch, 2*ch + 1))
            if n == 28: rd = rd + rb(15, range(4))
            dm = w_issue(n + 3, kind) if n + 3 < 32 else []
            if n < 31: e("s_waitcnt vmcnt(4)" if n <= 29 else "s_waitcnt vmcnt(0)")
            relA = (relAq if kind == "q" else relAo) or rel
            if (kind == "q" and n in qbars) or n == rel == relA: e("s_barrier")
            elif n in (rel, relA):
                l1 = lab("nb"); e(f"s_cmp_eq_u32 s{sROLE}, {int(n == relA)}"); e(f"s_cbranch_scc0 {l1}"); e("s_barrier"); e(f"{l1}:")
            gaps = [[] for _ in range(16)]
            for i, x in enumerate(rd): gaps[i].append(x)
            if dm:
                gaps[2].append(dm[0]); gaps[3].append(dm[1])
                for i in range(4): gaps[(4, 6, 8, 12)[i]].append(dm[2 + i])
            for g, x in extra.get(n, []): gaps[g].append(x)
            k = 0
            for d in range(4):
                for qt in (range(3, -1, -1) if d % 2 else range(4)):
                    r = vr(acc(4*ch + d, qt), 4)
                    e(f"{MF} {r}, {vr(AF + (n % 2)*16 + d*4, 4)}, {vr(BF + (ks % 2)*16 + qt*4, 4)}, {r if ks else '0'}")
                    emit(gaps[k]); k += 1
            if n < 31: e("s_waitcnt lgkmcnt(0)")

    def Sr(qt, u): return S + qt*8 + u*4
    def exps(qt, u): return [f"v_exp_f32 v{Sr(qt, u)+i}, v{Sr(qt, u)+i}" for i in range(4)]
    def cvts(qt, u): return [f"v_cvt_pk_bf16_f32 v{S+qt*8+2*u+i}, v{Sr(qt, u)+2*i}, v{Sr(qt, u)+2*i+1}" for i in range(2)]
    def kr(f): return f"ds_read_b128 {vr(F + (f % 3)*4, 4)}, v{vKA} offset:{(f >> 2)*512 + (f & 3)*64}"
    vbuf = [F, F + 4, F + 8, S + 4, S + 12, S + 20, S + 28, F]
    def vrd(dt): return [f"ds_read_b64_tr_b16 {vr(vbuf[dt] + 2*u, 2)}, v{vVA} offset:{u*512 + dt*32}" for u in range(2)]
    def sums(qt): return [f"v_mfma_f32_4x4x4_16b_bf16 {vr(L, 4)}, {vr(ONES, 2)}, {vr(S + qt*8 + 2*h, 2)}, {vr(L, 4)} cbsz:2 abid:{qt}" for h in range(2)]
    def pv(dt, qt): return f"{MF} {vr(acc(dt, qt), 4)}, {vr(vbuf[dt], 4)}, {vr(S + qt*8, 4)}, {vr(acc(dt, qt), 4)}"
    def qk(fill):
        for f in range(3): e(kr(f))
        m = 0
        for f in range(8):
            u, s = f >> 2, f & 3
            e(f"s_waitcnt lgkmcnt({min(2, 7 - f)})")
            for qt in range(4):
                r = vr(Sr(qt, u), 4)
                e(f"{MF} {r}, {vr(F + (f % 3)*4, 4)}, {vr(Q + (qt*4 + s)*4, 4)}, {r if s else '0'}")
                if u == 1:
                    if m >= 3 and fill: e(fill.pop(0))
                    m += 1
            if f + 3 < 8: e(kr(f + 3))
    def pv_phase():
        pre = [exps(qt, 1) + cvts(qt, 1) for qt in range(4)]
        for dt in range(3): emit(vrd(dt))
        emit(pre[0]); emit(vrd(3))
        for qt in range(4):
            nxt = (pre[qt + 1] + vrd(4 + qt)) if qt < 3 else []
            per = math.ceil(len(nxt) / 4)
            sm = sums(qt)
            for dt in range(3):
                if qt == 0: e(f"s_waitcnt lgkmcnt({6 - 2*dt})")
                e(pv(dt, qt)); emit(nxt[dt*per:(dt+1)*per])
                if dt == 0: e(sm[0])
            e(sm[1]); emit(nxt[3*per:])
        emit(vrd(7))
        for dt in range(3, 8):
            e(f"s_waitcnt lgkmcnt({2*(7 - dt)})")
            for qt in (range(3, -1, -1) if dt % 2 else range(4)): e(pv(dt, qt))
    def xlane(op, regs, tmps):
        for sw in ("32", "16"):
            for r, t in zip(regs, tmps): e(f"v_mov_b32 v{t}, v{r}")
            for r, t in zip(regs, tmps): e(f"v_permlane{sw}_swap_b32 v{r}, v{t}")
            for r, t in zip(regs, tmps): e(f"{op} v{r}, v{r}, v{t}")
    def lsum(): xlane("v_add_f32", range(L, L + 4), range(F, F + 4))

    def flag_srd(branch):
        e(f"s_add_u32 s{sPF}, s28, 0x2000000"); e(f"s_addc_u32 s{sPF+1}, s29, 0"); e(f"s_mov_b32 s{sPF+2}, 0x8000"); e(f"s_mov_b32 s{sPF+3}, 0x20000")
        e(f"s_mul_i32 s{sOFF}, s{sB}, 768"); e(f"s_add_u32 s{sOFF}, s{sOFF}, {branch*256}")
    def dbg_srd():
        e(f"s_mov_b32 s{sPF}, s26"); e(f"s_mov_b32 s{sPF+1}, s27"); e(f"s_mov_b32 s{sPF+2}, 256"); e(f"s_mov_b32 s{sPF+3}, 0x20000")
        e(f"s_lshl_b32 s{sOFF}, s{sB}, 3")
    def poll(first=None, tmp=vT0):
        l0, l1 = lab("pl"), lab("pl")
        e("s_mov_b64 exec, 1")
        if first: first(l1)
        e(f"s_mov_b32 s{sTMP2}, 0x40000")
        e(f"{l0}:")
        e(f"buffer_load_dword v{tmp}, off, {srd(sPF)}, s{sOFF} sc1")
        e("s_waitcnt vmcnt(0)")
        e(f"v_readfirstlane_b32 s{sTMP}, v{tmp}")
        e(f"s_cmp_eq_u32 s{sTMP}, 8"); e(f"s_cbranch_scc1 {l1}")
        e(f"s_sleep {slp}")
        e(f"s_sub_u32 s{sTMP2}, s{sTMP2}, 1"); e(f"s_cmp_lg_u32 s{sTMP2}, 0"); e(f"s_cbranch_scc1 {l0}")
        e(f"{l1}:")
        e("s_mov_b64 exec, -1")
    def lds_arrive(word, notlast):
        e(f"v_mov_b32 v{vT0}, {CNT + 4*word}"); e(f"v_mov_b32 v{vT1}, 1")
        e("s_mov_b64 exec, 1")
        e("s_waitcnt vmcnt(0)")
        stamp("drained")
        e(f"ds_add_rtn_u32 v{vT0}, v{vT0}, v{vT1}")
        e("s_waitcnt lgkmcnt(0)")
        e(f"v_readfirstlane_b32 s{sTMP}, v{vT0}")
        e(f"s_cmp_eq_u32 s{sTMP}, 3"); e(f"s_cbranch_scc0 {notlast}")
    def unpack(dst, src):
        for i in range(4):
            e(f"v_lshlrev_b32 v{dst+2*i}, 16, v{src+i}"); e(f"v_and_b32 v{dst+2*i+1}, 0xffff0000, v{src+i}")

    if stamps: e(f"; stamps: {stamps}")
    e(f"; @launch grid=(256,1,1) block=(512,1,1) lds={LDS}")
    e('.amdgcn_target "amdgcn-amd-amdhsa--gfx950"')
    e(".text"); e(f".globl {NAME}_kernel"); e(".p2align 8"); e(f".type {NAME}_kernel,@function")
    e(f"{NAME}_kernel:")
    e("s_cmp_ge_u32 s2, 256"); e("s_cbranch_scc1 L_end")
    e("s_load_dwordx16 s[4:19], s[0:1], 0"); e("s_load_dwordx8 s[20:27], s[0:1], 64"); e("s_load_dwordx2 s[28:29], s[0:1], 96")
    if stamps:
        for i in range(16): e(f"s_mov_b32 s{sST+i}, 0")
        e("s_memtime s[100:101]")
    stamp("start")
    e("s_getpc_b64 s[30:31]"); e("L_pc:")
    e("v_lshlrev_b32 v2, 3, v0"); e("v_mov_b32 v3, s31")
    e("v_add_co_u32 v4, vcc, s30, v2"); e("s_lshr_b32 s3, s2, 4"); e("s_add_u32 s3, s3, 1"); e("v_addc_co_u32 v5, vcc, 0, v3, vcc")
    e("s_mov_b32 exec_lo, 0x10001"); e("s_mov_b32 exec_hi, exec_lo")
    e("global_load_dword v8, v[4:5], off")
    e("s_mov_b64 exec, -1")
    e("v_lshl_add_u32 v2, s3, 12, v2"); e("v_min_u32 v2, L_last-L_pc-4, v2")
    e("v_add_co_u32 v6, vcc, s30, v2"); e("s_bitcmp1_b32 s2, 3"); e("s_mov_b32 s3, 0x10001"); e("v_addc_co_u32 v7, vcc, 0, v3, vcc")
    e("s_cselect_b32 exec_lo, 0, s3"); e("s_cselect_b32 exec_hi, s3, 0")
    if not nopf: e("global_load_dword v9, v[6:7], off")
    e("s_mov_b64 exec, -1")
    e(f"v_lshrrev_b32 v1, 6, v0"); e(f"v_and_b32 v{vLN}, 63, v0"); e(f"v_readfirstlane_b32 s{sTMP}, v1")
    e(f"s_and_b32 s{sG}, s2, 7"); e(f"s_lshr_b32 s{sB}, s2, 3")
    e(f"s_and_b32 s{sW}, s{sTMP}, 3"); e(f"s_lshr_b32 s{sROLE}, s{sTMP}, 2"); e(f"s_lshr_b32 s{sHI}, s{sW}, 1")
    e(f"s_mul_i32 s{sWRB}, s{sW}, {WRING}"); e(f"s_add_u32 s{sWRB}, s{sWRB}, {WR0}")
    e(f"v_lshlrev_b32 v{vDV}, 4, v{vLN}")
    w_setup("q")
    x_voff()
    e("s_waitcnt lgkmcnt(0)")
    e(f"s_cmp_eq_u32 s{sROLE}, 0")
    e(f"s_cselect_b32 s{sWQ}, s20, s10"); e(f"s_cselect_b32 s{sWQ+1}, s21, s11")
    e(f"s_lshl_b32 s{sTMP}, s{sG}, 2"); e(f"s_add_u32 s{sTMP}, s{sTMP}, s{sW}"); e(f"s_lshl_b32 s{sTMP}, s{sTMP}, 8")
    w_srd(sWQ, sWQ)
    e(f"s_cmp_eq_u32 s{sROLE}, 0"); e("s_cbranch_scc1 L_first_B")
    if prioA: e(f"s_setprio {prioA}")
    x_srd(14)
    if duty:
        e(f"s_cmp_lt_u32 s{sB}, 16"); e("s_cbranch_scc0 L_nod0")
        coop_prefetch(20, 13, 10)
        e("L_nod0:")
        x_issue(0)
    else:
        x_issue(0); coop_prefetch(20, 13, 10)
    e("s_branch L_common")
    e("L_first_B:")
    for n in range(3): emit(w_issue(n, "q"))
    x_srd(4)
    e("L_common:")
    tab = [groups[b * len(groups) // 32] for b in range(32)]
    assert all(0 <= d <= 15 for d in tab)
    wd = [sum(tab[8*i + j] << (4*j) for j in range(8)) for i in range(4)]
    e(f"s_bitcmp0_b32 s{sB}, 3")
    e(f"s_mov_b32 s{sTMP}, {wd[1]:#x}"); e(f"s_cselect_b32 s{sTMP}, {wd[0]:#x}, s{sTMP}")
    e(f"s_mov_b32 s{sTMP2}, {wd[3]:#x}"); e(f"s_cselect_b32 s{sTMP2}, {wd[2]:#x}, s{sTMP2}")
    e(f"s_bitcmp0_b32 s{sB}, 4"); e(f"s_cselect_b32 s{sTMP}, s{sTMP}, s{sTMP2}")
    e(f"s_and_b32 s{sTMP2}, s{sB}, 7"); e(f"s_lshl_b32 s{sTMP2}, s{sTMP2}, 2")
    e(f"s_lshr_b32 s{sTMP}, s{sTMP}, s{sTMP2}"); e(f"s_and_b32 s{sD}, s{sTMP}, 15")
    if asym:
        e(f"s_lshl_b32 s{sTMP}, s{sHI}, 1"); e(f"s_add_u32 s{sTMP}, s{sTMP}, s{sW}"); e(f"s_mul_i32 s{sKB}, s{sTMP}, {CHUNK}")
        e(f"s_cmp_eq_u32 s{sHI}, 0"); e(f"s_cselect_b32 s{sOO}, 17, s{sD}")
    else: e(f"s_mul_i32 s{sKB}, s{sW}, {SLOT}")
    def dk_setup():
        e(f"v_bfe_u32 v{vT0}, v{vLN}, 4, 1"); e(f"v_lshlrev_b32 v{vT0}, 4, v{vT0}"); e(f"v_xor_b32 v{vDK}, v{vDV}, v{vT0}")
    dk_setup()
    t0, t1 = F, F + 1
    e(f"v_and_b32 v{t0}, 7, v{vLN}"); e(f"v_mul_u32_u24 v{vKA}, {KBLK}, v{t0}")
    e(f"v_bfe_u32 v{t0}, v{vLN}, 3, 1"); e(f"v_lshl_add_u32 v{vKA}, v{t0}, 8, v{vKA}")
    e(f"v_lshrrev_b32 v{t1}, 5, v{vLN}"); e(f"v_xor_b32 v{t0}, v{t0}, v{t1}"); e(f"v_lshl_add_u32 v{vKA}, v{t0}, 4, v{vKA}")
    e(f"v_bfe_u32 v{t0}, v{vLN}, 4, 1"); e(f"v_lshl_add_u32 v{vKA}, v{t0}, 5, v{vKA}")
    e(f"v_bfe_u32 v{t0}, v{vLN}, 2, 3"); e(f"v_mul_u32_u24 v{vVA}, {VBLK}, v{t0}")
    e(f"v_lshl_add_u32 v{vVA}, v{t1}, 8, v{vVA}")
    e(f"v_and_b32 v{t0}, 3, v{vLN}"); e(f"v_lshl_add_u32 v{vVA}, v{t0}, 3, v{vVA}")
    def wx_setup():
        e(f"v_and_b32 v{t0}, 3, v{vLN}")
        e(f"v_bfe_u32 v{t1}, v{vLN}, 2, 2"); e(f"v_mul_u32_u24 v{vWA}, {VBLK}, v{t1}")
        e(f"v_lshl_add_u32 v{vWA}, v{t0}, 3, v{vWA}")
        e(f"v_lshrrev_b32 v{t0+2}, 4, v{vLN}"); e(f"v_lshl_add_u32 v{vWA}, v{t0+2}, 7, v{vWA}"); e(f"v_add_u32 v{vWA}, s{sWRB}, v{vWA}")
        e(f"v_mul_u32_u24 v{vXA}, {KBLK}, v{t0}"); e(f"v_lshl_add_u32 v{vXA}, v{t1}, 8, v{vXA}")
        e(f"v_sub_u32 v{t0+3}, 0, v{t1}"); e(f"v_and_b32 v{t0+3}, 3, v{t0+3}"); e(f"v_xor_b32 v{t0+3}, v{t0+3}, v{t0+2}")
        e(f"v_lshl_add_u32 v{vXA}, v{t0+3}, 4, v{vXA}"); e(f"v_add_u32 v{vXA}, {XB}, v{vXA}")
    wx_setup()
    e(f"v_cmp_eq_u32 vcc, v{t0}, v{t1}"); e(f"v_mov_b32 v{t0+2}, 0x3f803f80")
    for i in range(4): e(f"v_mov_b32 v{L+i}, 0")
    e(f"v_cndmask_b32 v{ONES}, 0, v{t0+2}, vcc"); e(f"v_mov_b32 v{ONES+1}, v{ONES}")
    e(f"s_lshl_b32 s{sTMP}, s2, 2"); e(f"s_add_u32 s{sTMP2}, s{sTMP}, s{sW}")
    e(f"s_and_b32 s{sROT}, s{sTMP2}, 15"); e(f"s_lshl_b32 s{sROT}, s{sROT}, 13")
    e(f"s_lshl_b32 s{sTMP}, s{sTMP2}, 17")
    mk_srd(sK, 16, 0x20000); mk_srd(sV, 18, 0x20000)
    e(f"s_xor_b32 s{sTMP}, s{sROLE}, 1"); e(f"s_lshl_b32 s{sTMP}, s{sTMP}, 10"); e(f"s_add_u32 s{sTMP}, s{sTMP}, s{sTMP2}"); e(f"s_lshl_b32 s{sTMP}, s{sTMP}, 14")
    mk_srd(sP, 28, 0x4000)
    wo_srd(12)
    e(f"s_bitcmp0_b32 s{sW}, 0")
    e(f"s_cselect_b32 s{sIT}, s6, s8"); e(f"s_cselect_b32 s{sIT+1}, s7, s9"); e(f"s_cselect_b32 s{sIST}, {KBLK-1024}, {VBLK-1024}")
    e(f"s_cselect_b64 vcc, -1, 0"); e(f"s_cselect_b32 s{sDK}, 0, {SLOT}")
    e(f"v_cndmask_b32 v{vIT}, v{vDV}, v{vDK}, vcc")
    e(f"s_lshl_b32 s{sTMP}, s2, 17"); mk_srd(sIT, sIT, 0x20000)
    e(f"s_and_b32 s{sROTA}, s2, 15"); e(f"s_lshl_b32 s{sROTA}, s{sROTA}, 1"); e(f"s_add_u32 s{sROTA}, s{sROTA}, s{sHI}"); e(f"s_lshl_b32 s{sROTA}, s{sROTA}, 12")
    e(f"s_add_u32 s{sTMP}, s{sIST}, 1024"); e(f"s_mul_i32 s{sTMP}, s{sTMP}, s{sHI}"); e(f"s_lshl_b32 s{sTMP}, s{sTMP}, 2"); e(f"s_add_u32 s{sDK}, s{sDK}, s{sTMP}")
    e(f"s_cmp_eq_u32 s{sROLE}, 0"); e("s_cbranch_scc1 L_Binit")

    e(f"v_add_u32 v{vKA}, {XB}, v{vKA}"); e(f"v_add_u32 v{vVA}, {XB + SLOT}, v{vVA}")
    e(f"v_mov_b32 v{t0}, {CNT}"); e(f"ds_write_b128 v{t0}, {vr(L, 4)}")
    e("s_waitcnt lgkmcnt(0)")
    def counter_init(slot):
        ln = lab("ni")
        e(f"s_or_b32 s{sTMP}, s{sG}, s{sW}"); e(f"s_cmp_eq_u32 s{sTMP}, 0"); e(f"s_cbranch_scc0 {ln}")
        e("s_mov_b64 exec, 1")
        if slot == 0:
            flag_srd(0)
            e(f"buffer_store_dword v{L}, off, {srd(sPF)}, s{sOFF} sc1"); e(f"buffer_store_dword v{L}, off, {srd(sPF)}, s{sOFF} offset:256 sc1")
        else:
            e("s_waitcnt vmcnt(0)")
            dbg_srd()
            e(f"v_mov_b32 v{vT0}, 8"); e(f"buffer_store_dword v{vT0}, off, {srd(sPF)}, s{sOFF} sc1")
        e("s_mov_b64 exec, -1")
        e(f"{ln}:")
    def helper(sch):
        q = ["x0"]*4 + ([] if duty else ["w"]*4)
        due = {0: sch.get("p0", "x0"), 6: "x1", 14: "x3" if shift else "x2", 22: "x3"}
        for slot, nxt in zip((-1, 0) + qbars, (0,) + qbars + (rel,)):
            if slot in (0, 6): counter_init(slot)
            if shift and slot >= 14:
                sp = shift[slot] if isinstance(shift, dict) else shift
                if len(sp) == 3:
                    lo, n0, n1 = sp; giv = list(range(lo, lo + n0 + n1)); tak = list(range(n0)) + list(range(32 - n1, 32))
                else: giv, tak = map(list, sp)
                assert len(giv) == len(tak) <= 12 and not set(giv) & set(tak) and tak == sorted(tak)
                def shares(sb):
                    for act in sch.get(slot, "").split():
                        if act == "t": xa_touch(sb)
                        else: coop_prefetch(*{"q": (10, 13, 10), "a": (12, 10, 19), "b": (22, 10, 19)}[act], sb)
                ls = lab("sh")
                gm, tm = sum(1 << x for x in giv), sum(1 << x for x in tak)
                tabv = sum(x << (5*k) for k, x in enumerate(giv))
                e(f"s_bitcmp1_b32 {gm:#x}, s{sB}"); e(f"s_cbranch_scc1 {ls}")
                shares(sB)
                e(f"s_bitcmp1_b32 {tm:#x}, s{sB}"); e(f"s_cbranch_scc0 {ls}")
                e(f"s_bfm_b32 s{sRO}, s{sB}, 0"); e(f"s_and_b32 s{sRO}, s{sRO}, {tm:#x}"); e(f"s_bcnt1_i32_b32 s{sRO}, s{sRO}"); e(f"s_mul_i32 s{sRO}, s{sRO}, 5")
                e(f"s_mov_b32 s{sTMP}, {tabv & 0xffffffff:#x}"); e(f"s_mov_b32 s{sTMP2}, {tabv >> 32:#x}")
                e(f"s_lshr_b64 s[{sTMP}:{sTMP2}], s[{sTMP}:{sTMP2}], s{sRO}"); e(f"s_and_b32 s{sRO}, s{sTMP}, 31")
                shares(sRO)
                e(f"{ls}:")
                e("s_barrier"); continue
            for act in sch.get(slot, "").split():
                if act[0] == "x": x_issue(int(act[1])); q += [act]*4
                elif act == "q": coop_prefetch(10, 13, 10); q += [act]*(4 << dm)
                elif act == "a": coop_prefetch(12, 10, 19); q += [act]*(4 << dm)
                elif act == "b": coop_prefetch(22, 10, 19); q += [act]*(4 << dm)
                elif act == "t": xa_touch(); q += [act]*(2 << dm)
                elif act == "k": emit(k_issue()); q += [act]*8
                elif act == "c":
                    e(f"s_lshl_b32 s{sTMP}, s{sB}, 2"); e(f"s_add_u32 s{sTMP}, s{sTMP}, s{sW}"); e(f"s_lshl_b32 s{sTMP}, s{sTMP}, 7")
                    e(f"v_lshl_add_u32 v2, v{vLN}, 14, s{sTMP}"); e("v_min_u32 v2, L_last-L_pc-4, v2")
                    e("v_add_co_u32 v2, vcc, s30, v2"); e("v_mov_b32 v3, s31"); e("s_nop 0"); e("v_addc_co_u32 v3, vcc, 0, v3, vcc")
                    e("s_mov_b64 exec, 7"); e("global_load_dword v4, v[2:3], off"); e("s_mov_b64 exec, -1"); q += [act]
            if nxt in due:
                last = max(i for i, x in enumerate(q) if x == due[nxt])
                e(f"s_waitcnt vmcnt({len(q) - 1 - last})")
            e("s_barrier")
        return q
    if duty:
        e(f"s_cmp_lt_u32 s{sB}, 16"); e("s_cbranch_scc0 L_nod1")
        helper(duty[0]); e("s_branch L_nod2")
        e("L_nod1:"); q = helper(duty[1]); e("L_nod2:")
    else: q = helper(hs)
    x_srd(4)
    if asym:
        assert "k" not in q
        e(f"s_cmp_eq_u32 s{sOO}, 0"); e("s_cbranch_scc0 L_hv")
        emit(x_half(0)); emit(x_half(1)); e("s_branch L_hx")
        e("L_hv:")
        emit(k_issue())
    else:
        if "k" not in q: emit(k_issue())
        e(f"s_cmp_eq_u32 s{sD}, 0"); e("s_cbranch_scc0 L_hv")
        emit(x_own()); e("s_branch L_hx")
        e("L_hv:")
    emit(v_issue())
    e("L_hx:")
    x_issue(0, "nt")
    e("s_waitcnt vmcnt(4)"); e("s_barrier")
    x_issue(1, "nt")
    e(f"s_lshl_b32 s{sTMP}, s2, 17")
    mk_srd(sK, 6, 0x20000); mk_srd(sV, 8, 0x20000)
    for n in range(3): emit(w_issue(n, "q"))
    e("s_waitcnt vmcnt(12)")
    e("s_branch L_Qstart")
    e("L_Binit:")
    e(f"v_add_u32 v{vKA}, s{sKB}, v{vKA}"); e(f"v_add_u32 v{vVA}, s{sKB}, v{vVA}"); e(f"v_add_u32 v{vVA}, {VOFF}, v{vVA}")

    e("L_Qstart:")
    e("s_barrier")
    stamp("P0")
    proj("q")
    c = f2u(math.log2(math.e) / math.sqrt(128.0))
    e(f"v_mov_b32 v{vT0}, {c:#x}"); e(f"v_mov_b32 v{vT1}, {c:#x}")
    pend = []
    def swaps():
        for pq in pend[-1:]: e(f"v_permlane16_swap_b32 v{pq}, v{pq+2}"); e(f"v_permlane16_swap_b32 v{pq+1}, v{pq+3}")
    for s in range(4):
        for qt in range(4):
            b = acc(2*s, qt); qq = Q + (qt*4 + s)*4
            for i in range(4): e(f"v_pk_mul_f32 {vr(b+2*i, 2)}, {vr(b+2*i, 2)}, {vr(vT0, 2)}")
            swaps()
            for i in range(4): e(f"v_cvt_pk_bf16_f32 v{qq+i}, v{b+2*i}, v{b+2*i+1}")
            pend.append(qq)
    e(f"s_mov_b32 s{sI}, 0"); e(f"s_cmp_eq_u32 s{sROLE}, 0")
    swaps()
    stamp("Qdone")
    e("s_cbranch_scc0 L_Aattn")

    for i in range(0, 128, 2): e(f"v_mov_b64 {vr(i, 2)}, 0")
    w_setup("o")
    x_voff()
    e("s_barrier")
    e(f"s_cmp_eq_u32 s{sD}, 0"); e("s_cbranch_scc1 L_Bpause")
    e("L_Bgo:")
    e(f"s_cmp_eq_u32 s{sI}, 15"); e("s_cbranch_scc0 L_noE0"); e("s_barrier"); e("L_noE0:")
    e("s_waitcnt vmcnt(8)")
    if tl:
        e("s_memrealtime s[98:99]"); e("s_memtime s[96:97]"); e("s_waitcnt lgkmcnt(0)"); e(f"s_mov_b32 m0, s{sI}"); e("s_nop 0"); e(f"v_writelane_b32 v254, s98, m0")
        e(f"s_add_u32 m0, s{sI}, 16"); e("s_nop 0"); e(f"v_writelane_b32 v254, s96, m0")
    fill = []
    for qt in range(4): fill += exps(qt, 0)
    for qt in range(4): fill += cvts(qt, 0)
    qk(fill)
    if fastlast: e(f"s_cmp_eq_u32 s{sI}, 15"); e("s_cbranch_scc1 L_Blast")
    left = [x for x in fill if x.startswith("v_exp")]
    emit(fill)
    e(f"s_add_u32 s{sROT}, s{sROT}, 8192"); e(f"s_and_b32 s{sROT}, s{sROT}, 0x1ffff")
    e(f"s_add_u32 s{sI}, s{sI}, 1")
    if not fastlast: e(f"s_cmp_eq_u32 s{sI}, 16"); e("s_cbranch_scc1 L_Blast")
    lm = sum(1 << d for d in loose)
    if asym: e(f"s_cmp_eq_u32 s{sI}, s{sOO}"); e("s_cbranch_scc1 L_Bx0")
    if lm: e(f"s_bitcmp1_b32 {lm:#x}, s{sD}"); e("s_cbranch_scc1 L_lk")
    emit(capped(k_issue(), capN))
    e("L_lkb:")
    e("s_waitcnt vmcnt(8)")
    e("L_Bpv:")
    pv_phase()
    if not fastlast: e(f"s_cmp_eq_u32 s{sI}, 16"); e("s_cbranch_scc1 L_Oepi")
    e(f"s_cmp_eq_u32 s{sI}, s{sD}"); e("s_cbranch_scc1 L_Bx")
    if lm: e(f"s_bitcmp1_b32 {lm:#x}, s{sD}"); e("s_cbranch_scc1 L_lv")
    emit(capped(v_issue(), capN))
    e("s_branch L_Bgo")
    if lm:
        e("L_lk:"); emit(capped(k_issue(), capL)); e("s_branch L_lkb")
        e("L_lv:"); emit(capped(v_issue(), capL)); e("s_branch L_Bgo")
    e("L_Blast:")
    def range_check():
        e(f"v_min3_f32 v{vT0}, v{L}, v{L+1}, v{L+2}"); e(f"v_add_f32 v{vT1}, v{L}, v{L+1}")
        e(f"v_min_f32 v{vT0}, v{vT0}, v{L+3}"); e(f"v_add_f32 v{vT1}, v{vT1}, v{L+2}"); e(f"v_add_f32 v{vT1}, v{vT1}, v{L+3}")
        e(f"v_cmp_nle_f32 vcc, {f2u(2.0**lo_exp):#x}, v{vT0}"); e("s_cbranch_vccnz L_slow")
        e(f"v_cmp_nge_f32 vcc, {f2u(2.0**hi_exp):#x}, v{vT1}"); e("s_cbranch_vccnz L_slow")
        if force_slow: e("s_branch L_slow")
    def recip():
        for qt in range(4): e(f"v_rcp_f32 v{L+qt}, v{L+qt}")
        e(f"s_mul_i32 s{sTMP}, s{sW}, {CHUNK if asym else SLOT}"); e(f"v_add_u32 v{vT0}, s{sTMP}, v{vXA}")
    def scale(b, qt):
        sel = "op_sel_hi:[1,0]" if qt % 2 == 0 else "op_sel:[0,1]"
        return [f"v_pk_mul_f32 {vr(b+2*i, 2)}, {vr(b+2*i, 2)}, {vr(L + (qt & 2), 2)} {sel}" for i in range(4)]
    def owr(s, qt): return f"ds_write_b128 v{vT0}, {vr(acc(2*s, qt), 4)} offset:{xoff('o', 0, qt) + s*64}"
    if fastlast:
        if tl: e("v_mov_b32 v252, v254   ; v_writelane_b32 v247")
        emit(left)
        for qt in range(4): emit(exps(qt, 1))
        for i in range(8):
            for qt in range(4): e(f"v_add_f32 v{L+qt}, v{L+qt}, v{S+qt*8+i}")
        lsum(); range_check(); recip()
        for qt in range(4): emit(scale(S + qt*8, qt))
        for qt in range(4): emit(cvts(qt, 0) + cvts(qt, 1))
        for s in range(3):
            for qt in range(4): emit(scale(acc(2*s, qt), qt))
        e("s_waitcnt vmcnt(0)")
        rd = [f"ds_read_b64_tr_b16 {vr(Q + 4*dt + 2*u, 2)}, v{vVA} offset:{u*512 + dt*32}" for dt in range(8) for u in range(2)]
        emit(rd[:8])
        for qt in range(4): emit(scale(acc(6, qt), qt)); emit(rd[8 + 2*qt:10 + 2*qt])
        e("s_waitcnt lgkmcnt(0)")
        stamp("attn_done")
        pendo = []
        for s in range(4):
            mf = [f"{MF} {vr(acc(dt, qt), 4)}, {vr(Q + 4*dt, 4)}, {vr(S + qt*8, 4)}, {vr(acc(dt, qt), 4)}" for qt in range(4) for dt in ((2*s, 2*s + 1) if qt % 2 == 0 else (2*s + 1, 2*s))]
            for i, m in enumerate(mf):
                e(m); emit(pendo[len(pendo)*i//8:len(pendo)*(i + 1)//8])
            pendo = []
            for qt in range(4): pendo += pack(s, qt) + [owr(s, qt)]
        emit(pendo)
        e("s_branch L_Owr")
    else:
        e("s_waitcnt vmcnt(0)"); e("s_branch L_Bpv")
    if asym:
        e("L_Bx0:"); emit(capped(x_half(0), capX)); e("s_branch L_lkb")
        e("L_Bv:"); emit(capped(v_issue(), capN)); e("s_branch L_Bpause")
    e("L_Bx:")
    if asym:
        e(f"s_cmp_eq_u32 s{sHI}, 0"); e("s_cbranch_scc1 L_Bv")
        emit(capped(x_half(1), capX))
    else: emit(capped(x_own(), capX))
    e("L_Bpause:")
    e("s_barrier")
    e(f"s_cmp_eq_u32 s{sW}, 0"); e("s_cbranch_scc0 L_nochk")
    dbg_srd(); poll(tmp=F)
    e("L_nochk:")
    for n in qbars:
        if n == 14: e("s_waitcnt vmcnt(0)")
        e("s_barrier")
    e("s_barrier")
    def half_item(t):
        e(f"s_add_u32 m0, s{sDK}, {XB + (t % 4)*CHUNK}")
        for j in range(4):
            if j: e(f"s_add_u32 m0, m0, s{sIST}")
            e(f"buffer_load_dwordx4 v{vIT}, {srd(sIT)}, s{sROTA} offen offset:{j*1024} nt lds")
        e(f"s_add_u32 s{sROTA}, s{sROTA}, 8192"); e(f"s_and_b32 s{sROTA}, s{sROTA}, 0x1ffff")
    half_item(0); half_item(1); issued = 2
    for t in range(16):
        e(f"s_waitcnt vmcnt({4*(issued - t - 1)})"); e("s_barrier")
        while issued < min(16, t + depth + 1):
            half_item(issued); issued += 1
    for n in range(3): emit(w_issue(n, "o"))
    wo_srd(22)
    e("s_barrier"); e("s_waitcnt vmcnt(0)"); e("s_barrier"); e("s_barrier")
    if asym:
        e(f"s_cmp_eq_u32 s{sHI}, 0"); e("s_cbranch_scc1 L_Bgo")
        emit(k_issue())
    emit(v_issue())
    e("s_branch L_Bgo")

    FB = [F, F + 4, F + 8, 244, 248, 252]
    kb = [0, 1, 2, 3, 4, 5, 0, 1]
    vb = [FB[2], FB[3], FB[4], FB[5], FB[0], FB[1], S + 4, S + 12]
    def akr(f): return f"ds_read_b128 {vr(FB[kb[f]], 4)}, v{vKA} offset:{(f >> 2)*512 + (f & 3)*64}"
    def avr(dt): return [f"ds_read_b64_tr_b16 {vr(vb[dt] + 2*u, 2)}, v{vVA} offset:{u*512 + dt*32}" for u in range(2)]
    def weave(mf, fill):
        cost = [2 if x.startswith("v_exp") else 1 for x in fill]
        tot = sum(cost); cum = 0; k = 0
        for i, m in enumerate(mf):
            e(m)
            while k < len(fill) and (cum + cost[k]) * len(mf) <= (i + 1) * tot + len(mf) // 2:
                e(fill[k]); cum += cost[k]; k += 1
        emit(fill[k:])
    def atile(first):
        def apv(dt, qt): return f"{MF} {vr(acc(dt, qt), 4)}, {vr(vb[dt], 4)}, {vr(S + qt*8, 4)}, {'0' if first else vr(acc(dt, qt), 4)}"
        ex = exps(0, 0) + exps(1, 0) + exps(2, 0)
        for f in range(8):
            u, sx = f >> 2, f & 3
            if f == 0: e("s_waitcnt lgkmcnt(2)")
            if f in (2, 4): e("s_waitcnt lgkmcnt(4)")
            for qt in range(4):
                r = vr(Sr(qt, u), 4)
                e(f"{MF} {r}, {vr(FB[kb[f]], 4)}, {vr(Q + (qt*4 + sx)*4, 4)}, {r if sx else '0'}")
                if f == 0 and qt < 2: e(akr(4 + qt))
                if f == 1 and qt == 0: e(f"s_add_u32 s{sI}, s{sI}, 1"); e(f"s_and_b32 s{sTMP}, s{sI}, 3")
                if f == 1 and qt == 1: e(f"s_cselect_b32 s{sDK}, s{sTMP2}, {(-3*CHUNK) & 0xffffffff:#x}")
                if f == 2 and qt == 0: e(f"v_add_u32 v{vKA}, s{sDK}, v{vKA}")
                if u == 1 and (f, qt) != (4, 0) and (qt < 3 or f == 7): e(ex.pop(0))
            if f < 2: e(akr(6 + f))
            else: emit(avr(f - 2))
        emit(exps(0, 1)); emit(cvts(0, 0)); emit(cvts(0, 1)); emit(avr(6))
        e("s_waitcnt lgkmcnt(6)")
        b0 = [apv(dt, 0) for dt in range(6)]
        b0[3] += "\ns_waitcnt lgkmcnt(2)"
        weave(b0, exps(1, 1) + cvts(1, 0) + cvts(1, 1))
        emit(avr(7))
        s0, s1, s2, s3 = (sums(qt) for qt in range(4))
        b1 = [apv(dt, 1) for dt in range(5, -1, -1)]
        b1[1] = s0[0] + "\n" + b1[1]; b1[3] = s0[1] + "\n" + b1[3]
        weave(b1, exps(2, 1) + cvts(2, 0) + cvts(2, 1))
        e(f"v_add_u32 v{vVA}, s{sDK}, v{vVA}")
        b2 = [apv(dt, 2) for dt in range(6)] + [apv(6, 0), apv(7, 0), apv(7, 1), apv(6, 1)]
        b2[0] = s1[0] + "\n" + b2[0]; b2[2] = s1[1] + "\n" + b2[2]; b2[4] = s2[0] + "\n" + b2[4]
        b2[6] = "s_waitcnt lgkmcnt(0)\n" + b2[6]
        weave(b2, exps(3, 0) + exps(3, 1) + cvts(3, 0) + cvts(3, 1))
        e(s2[1])
        e("s_barrier")
        for k, dt in enumerate((4, 5, 0, 1)):
            e(apv(dt, 3)); e(akr(k))
        e(s3[0]); e(apv(2, 3))
        e(f"s_cmp_eq_u32 s{sI}, 16")
        e(apv(3, 3)); e(s3[1])
        e(apv(6, 3)); e(apv(7, 3)); e(apv(7, 2)); e(apv(6, 2))
    e("L_Aattn:")
    e(f"s_mov_b32 s{sTMP2}, {CHUNK}")
    e("s_barrier")
    stamp("L0")
    if stamps and "L0" in stamps: e("s_waitcnt lgkmcnt(0)")
    for f in range(4): e(akr(f))
    atile(True)
    e("L_Aloop:")
    atile(False)
    e("s_cbranch_scc0 L_Aloop")
    e("s_waitcnt lgkmcnt(0)")
    e(f"v_mbcnt_lo_u32_b32 v{vLN}, -1, 0"); e(f"v_mbcnt_hi_u32_b32 v{vLN}, -1, v{vLN}")
    e(f"v_lshlrev_b32 v{vDV}, 4, v{vLN}")
    wx_setup(); w_setup("o")

    e("L_Oepi:")
    if tl and not fastlast:
        e(f"s_cmp_eq_u32 s{sROLE}, 0"); e("s_cbranch_scc0 L_tl0"); e("v_mov_b32 v252, v254   ; v_writelane_b32 v247"); e("L_tl0:")
    stamp("attn_done")
    lsum()
    range_check()
    e("L_slow_back:")
    recip()
    for s in range(4):
        for qt in range(4):
            emit(scale(acc(2*s, qt), qt)); emit(pack(s, qt)); e(owr(s, qt))
    e("L_Owr:")
    e("s_waitcnt lgkmcnt(0)")
    e("s_barrier")
    stamp("Owritten")
    proj("o", range(30))
    e(f"s_cmp_eq_u32 s{sROLE}, 0"); e("s_cbranch_scc0 L_OA")
    ex = {30: [], 31: []}
    if early:
        seq = []
        for qt in range(4): seq += pack(0, qt) + pack(1, qt) + pstore(0, qt)
        slots = [(30, g) for g in range(4, 8)] + [(n, g) for n in (30, 31) for g in range(16) for _ in range(2) if (n, g) >= (30, 8)]
        assert len(slots) >= len(seq)
        for (n, g), x in zip(slots, seq): ex[n].append((g, x))
    proj("o", (30, 31), ex)
    stamp("Odone")
    e("s_branch L_store1" if early else "s_branch L_store0")
    e("L_OA:")
    proj("o", (30, 31))
    stamp("Odone")
    e("s_setprio 0")
    wo_srd(22)
    for n in range(3): emit(w_issue(n, "o"))
    e("s_barrier")
    e("L_store0:")
    for qt in range(4): emit(pack(0, qt) + pack(1, qt) + pstore(0, qt))
    e("L_store1:")
    for qt in range(4): emit(pack(2, qt) + pack(3, qt) + pstore(1, qt))
    stamp("issued")
    e("s_waitcnt vmcnt(14)")
    e("s_barrier")
    keep = []
    for p in range(8):
        lk = lab("kp"); keep.append(lk)
        if p < 7: e(f"s_cmp_eq_u32 s{sG}, {p}"); e(f"s_cbranch_scc1 {lk}")
    for p in range(7, -1, -1):
        e(f"{keep[p]}:")
        for f in range(2): unpack(RK + 8*f, acc(2*(2*(p & 1) + f), p >> 1))
        if p: e("s_branch L_kept")
    e("L_kept:")
    e(f"s_xor_b32 s{sTMP2}, s{sROLE}, 1")
    e(f"s_lshl_b32 s{sTMP}, s{sTMP2}, 5"); e(f"s_add_u32 s{sTMP}, s{sTMP}, s{sB}"); e(f"s_lshl_b32 s{sTMP}, s{sTMP}, 19")
    mk_srd(sP, 28, 0x80000)
    e(f"s_mul_i32 s{sRO}, s{sG}, {65536 + 2048}"); e(f"s_lshl_b32 s{sTMP}, s{sW}, 14"); e(f"s_add_u32 s{sRO}, s{sRO}, s{sTMP}")
    e(f"s_lshl_b32 s{sTMP}, s{sB}, 17"); mk_srd(sIT, 24, 0x20000)
    e(f"s_lshl_b32 s{sOO}, s{sTMP2}, 10")
    e(f"s_lshr_b32 s{sTMP}, s{sG}, 1"); e(f"s_lshl_b32 s{sTMP}, s{sTMP}, 15"); e(f"s_add_u32 s{sOO}, s{sOO}, s{sTMP}")
    e(f"s_lshl_b32 s{sTMP}, s{sW}, 8"); e(f"s_add_u32 s{sOO}, s{sOO}, s{sTMP}")
    e(f"s_and_b32 s{sTMP}, s{sG}, 1"); e(f"s_lshl_b32 s{sTMP}, s{sTMP}, 7"); e(f"s_add_u32 s{sOO}, s{sOO}, s{sTMP}")
    e(f"v_and_b32 v{vT0}, 15, v{vLN}"); e(f"v_lshlrev_b32 v{vKA}, 11, v{vT0}")
    e(f"v_bfe_u32 v{vT0}, v{vLN}, 4, 1"); e(f"v_lshl_add_u32 v{vKA}, v{vT0}, 5, v{vKA}")
    e(f"v_lshrrev_b32 v{vT0}, 5, v{vLN}"); e(f"v_lshl_add_u32 v{vKA}, v{vT0}, 4, v{vKA}")
    e(f"s_cmp_eq_u32 s{sROLE}, 0"); e("s_cbranch_scc0 L_Apub")
    flag_srd(1)
    lds_arrive(1, "L_Bwait")
    def first(done):
        e(f"buffer_atomic_add v{vT1}, off, {srd(sPF)}, s{sOFF} sc0")
        e("s_waitcnt vmcnt(0)")
        e(f"v_readfirstlane_b32 s{sTMP}, v{vT1}")
        e(f"s_cmp_ge_u32 s{sTMP}, 7"); e(f"s_cbranch_scc1 {done}")
    poll(first)
    e(f"v_mov_b32 v{vT0}, {CNT + 8}"); e(f"v_mov_b32 v{vT1}, 1")
    e(f"ds_write_b32 v{vT0}, v{vT1}")
    e("s_branch L_final")
    e("L_Bwait:")
    e(f"v_mov_b32 v{vT0}, {CNT + 8}")
    e("L_Bspin:")
    e(f"ds_read_b32 v{vT1}, v{vT0}")
    e("s_waitcnt lgkmcnt(0)")
    e(f"v_readfirstlane_b32 s{sTMP}, v{vT1}")
    e(f"s_cmp_eq_u32 s{sTMP}, 0"); e("s_cbranch_scc1 L_Bspin")
    e("s_branch L_final")
    e("L_Apub:")
    flag_srd(0)
    lds_arrive(0, "L_nosig")
    e(f"buffer_atomic_add v{vT1}, off, {srd(sPF)}, s{sOFF}")
    e("L_nosig:")
    e("s_mov_b64 exec, -1")
    stamp("pubA")
    e("s_barrier")
    e(f"s_cmp_eq_u32 s{sW}, 0"); e("s_cbranch_scc0 L_nopoll")
    poll()
    e("L_nopoll:")
    e("s_barrier")
    rl = []
    for k in range(7):
        rl += [f"s_add_u32 s{sRO}, s{sRO}, 0x10000", f"s_and_b32 s{sRO}, s{sRO}, 0x7ffff"]
        rl += [f"buffer_load_dwordx4 {vr(RL + 8*k + 4*f, 4)}, v{vDV}, {srd(sP)}, s{sRO} offen offset:{f*1024} sc1" for f in range(2)]
    if capA: emit(capped(rl, capA)); e("s_branch L_sum")
    e("L_final:")
    e("s_mov_b64 exec, -1")
    stamp("flag")
    emit(rl)
    e("L_sum:")
    for k in range(7):
        for f in range(2):
            e(f"s_waitcnt vmcnt({(6 - k)*2 + 1 - f})")
            dst, tmp = RK + 8*f, RK + 16 + 8*f
            unpack(tmp, RL + 8*k + 4*f)
            for i in range(8): e(f"v_add_f32 v{dst+i}, v{dst+i}, v{tmp+i}")
            if k == 6:
                for i in range(4): e(f"v_cvt_pk_bf16_f32 v{dst+i}, v{dst+2*i}, v{dst+2*i+1}")
    stamp("summed")
    for f in range(2):
        dst = RK + 8*f
        e(f"v_permlane16_swap_b32 v{dst}, v{dst+2}"); e(f"v_permlane16_swap_b32 v{dst+1}, v{dst+3}")
        e(f"buffer_store_dwordx4 {vr(dst, 4)}, v{vKA}, {srd(sIT)}, s{sOO} offen offset:{f*64} sc1")
    if stamps:
        e("s_waitcnt vmcnt(0)")
        stamp("end")
        e("s_memtime s[4:5]")
        e("s_waitcnt lgkmcnt(0)")
        e("s_sub_u32 s4, s4, s100")
        e(f"s_lshl_b32 s{sTMP}, s2, 1"); e(f"s_add_u32 s{sTMP}, s{sTMP}, s{sROLE}"); e(f"s_lshl_b32 s{sTMP}, s{sTMP}, 2"); e(f"s_add_u32 s{sTMP}, s{sTMP}, s{sW}")
        e(f"s_lshl_b32 s{sTMP}, s{sTMP}, 7")
        e(f"s_add_u32 s{sPF}, s28, 0x4000000"); e(f"s_addc_u32 s{sPF+1}, s29, 0"); e(f"s_mov_b32 s{sPF+2}, 0x100000"); e(f"s_mov_b32 s{sPF+3}, 0x20000")
        for i in range(16): e(f"v_mov_b32 v{i}, s{sST+i}")
        e(f"v_mov_b32 v16, s4"); e("v_mov_b32 v17, 0"); e("v_mov_b32 v18, 0"); e("v_mov_b32 v19, 0")
        e(f"v_mov_b32 v20, s{sTMP}")
        if tl:
            e(f"v_lshl_add_u32 v21, v{vLN}, 2, v20"); e("s_mov_b32 exec_hi, 0"); e(f"s_mov_b32 s{sOFF}, 0x80000")
            e(f"buffer_store_dword v252, v21, {srd(sPF)}, s{sOFF} offen")
        e("s_mov_b64 exec, 1")
        for i in range(5): e(f"buffer_store_dwordx4 {vr(4*i, 4)}, v20, {srd(sPF)}, 0 offen offset:{16*i}")
    e("L_end:")
    e("s_endpgm")

    e("L_slow:")
    e(f"s_cmp_eq_u32 s{sROLE}, 0"); e("s_cbranch_scc1 L_slowB")
    dk_setup()
    if asym: e(f"s_mul_i32 s{sKB}, s{sW}, {CHUNK}")
    e(f"v_add_u32 v{vKA}, s{sKB}, v{vKA}"); e(f"v_add_u32 v{vVA}, s{sKB}, v{vVA}"); e(f"v_add_u32 v{vVA}, {VOFF - SLOT}, v{vVA}")
    e(f"s_add_u32 s{sKB}, s{sKB}, {XB}")
    e("L_slowB:")
    e(f"v_add_u32 v{vVA}, {(-VOFF) & 0xffffffff:#x}, v{vVA}")
    for i in range(0, 128, 2): e(f"v_mov_b64 {vr(i, 2)}, 0")
    for i in range(4): e(f"v_mov_b32 v{L+i}, 0"); e(f"v_mov_b32 v{M+i}, {f2u(-3.0e38):#x}")
    e(f"s_mov_b32 s{sROT}, 0")
    e("L_slowloop:")
    emit(k_issue())
    e("s_waitcnt vmcnt(0)")
    qk(None)
    emit(kv_issue(sV, vDV, 0, VBLK))
    for qt in range(4):
        b = S + qt*8; t = F + 2*qt
        e(f"v_max3_f32 v{t}, v{b}, v{b+1}, v{b+2}"); e(f"v_max3_f32 v{t}, v{t}, v{b+3}, v{b+4}")
        e(f"v_max3_f32 v{t}, v{t}, v{b+5}, v{b+6}"); e(f"v_max3_f32 v{t}, v{t}, v{b+7}, v{M+qt}")
        xlane("v_max_f32", [t], [vT0])
        e(f"v_sub_f32 v{t+1}, v{M+qt}, v{t}"); e(f"v_mov_b32 v{M+qt}, v{t}")
        e(f"v_exp_f32 v{t+1}, v{t+1}")
        for i in range(8): e(f"v_sub_f32 v{b+i}, v{b+i}, v{M+qt}")
        e(f"v_mul_f32 v{L+qt}, v{L+qt}, v{t+1}")
        for dt in range(8):
            for i in range(0, 4, 2): e(f"v_pk_mul_f32 {vr(acc(dt, qt)+i, 2)}, {vr(acc(dt, qt)+i, 2)}, {vr(t, 2)} op_sel:[0,1]")
        emit(exps(qt, 0)); emit(cvts(qt, 0))
    e("s_waitcnt vmcnt(0)")
    pv_phase()
    e(f"s_add_u32 s{sROT}, s{sROT}, 8192"); e(f"s_cmp_lt_u32 s{sROT}, 0x20000"); e("s_cbranch_scc1 L_slowloop")
    lsum()
    w_setup("o")
    e("s_branch L_slow_back")
    e("L_last:")

    e('.section .rodata,"a"')
    e(".p2align 6"); e(f".amdhsa_kernel {NAME}_kernel")
    for l in [".amdhsa_next_free_vgpr 256", ".amdhsa_next_free_sgpr 102", ".amdhsa_accum_offset 256", ".amdhsa_group_segment_fixed_size 0",
              ".amdhsa_kernarg_size 104", ".amdhsa_user_sgpr_count 2", ".amdhsa_user_sgpr_kernarg_segment_ptr 1", ".amdhsa_system_sgpr_workgroup_id_x 1",
              ".amdhsa_float_denorm_mode_32 3"]:
        e("  " + l)
    e(".end_amdhsa_kernel")
    n = a.pad()
    return a.text(), n

if __name__ == "__main__":
    kw = eval("dict(" + (sys.argv[2] if len(sys.argv) > 2 else "") + ")")
    txt, n = gen(**kw)
    out = sys.argv[1] if len(sys.argv) > 1 else f"cdna_kernels/{NAME}.s"
    open(out, "w").write(txt)
    print("pad states:", n, "lines:", txt.count("\n"), "LDS", LDS)
```

```python
import sys, math, struct
from asmlib import Asm

NAME = "concat_heads__gqa_block_cached__mha_block_cached__near_ridge"
KBLK = 1088; VBLK = 1056; HALF = 4352; SLOT = 8704; CHUNK = 2*SLOT
XB = 4*SLOT
VOFF = XB + 2*CHUNK
WR0 = XB + 4*CHUNK
WRING = 3*HALF
CNT = WR0 + 4*WRING
LDS = CNT + 64
WBIAS = 128

sK, sV, sWQ, sWO, sX, sP, sIT, sPF = 32, 36, 40, 44, 48, 52, 56, 60
(sROLE, sW, sG, sB, sD, sI, sROT, sOFF, sWRB, sKB, sTMP, sTMP2, sWOFF, sROTA, sIST, sDK, sHI, sOO, sRO) = range(64, 83)
sST = 84
def srd(n): return f"s[{n}:{n+3}]"
ACC = 0; Q = 128; S = 192; F = 224; L = 236; ONES = 240
vKA, vVA, vDK, vDV = 242, 243, 244, 245
vWO = 246
vWA, vXA, vIT, vLN, vT0, vT1 = 250, 251, 252, 253, 254, 255
M = 246
AF = 128; BF = 160
RK = 192; RL = 128
def vr(b, n): return f"v[{b}:{b+n-1}]"
def acc(dt, qt): return ACC + ((dt >> 1)*4 + qt)*8 + (dt & 1)*4
def f2u(x): return struct.unpack("<I", struct.pack("<f", x))[0]
MF = "v_mfma_f32_16x16x32_bf16"
GROUPS = (0,0,0,0,0,1,1,1,1,2,2,3,4,5,6,8,9,11,12,12,13,13,13,14,14,14,14,15,15,15,15,15)

def gen(groups=GROUPS, capN=8, capX=8, depth=2, slp=3, prioA=1, lo_exp=-30, hi_exp=30, rel=29, relAq=30, relAo=31, early=True, loose=(), capL=None, asym=True, fastlast=False, duty=None, capA=5, nopf=False, pubd=(), prioP=0, publ=(), chainQ=False, chainO=True, relBo=29, shift={14: (9, 5, 5), 22: (12, 0, 5)},
        hs={0: "x1", 6: "x2 x3", 14: "q t", 22: "a b"},
        stamps=False, cyc=False, tl=False, force_slow=False):
    a = Asm(); e = a
    qbars = (6, 14, 22)
    VOFF = SLOT if asym else XB + 2*CHUNK
    def stamp(nm):
        if stamps and nm in stamps:
            i = stamps.index(nm); e(f"{'s_memtime' if cyc else 's_memrealtime'} s[{sST+2*i}:{sST+2*i+1}]")
    def emit(lst):
        for x in lst:
            if x: e(x)
    uid = [0]
    def lab(p):
        uid[0] += 1; return f"L_{p}{uid[0]}"
    def mk_srd(r, lo, size):
        e(f"s_add_u32 s{r}, s{lo}, s{sTMP}"); e(f"s_addc_u32 s{r+1}, s{lo+1}, 0"); e(f"s_mov_b32 s{r+2}, {size:#x}"); e(f"s_mov_b32 s{r+3}, 0x20000")

    order = [(n >> 1, n & 1) for n in range(28)] + [(14, 0), (15, 0), (14, 1), (15, 1)]
    def w_setup(kind):
        sh = 13 if kind == "q" else 10
        if kind == "q":
            e(f"v_bfe_u32 v{vT0}, v{vLN}, 3, 2"); e(f"v_lshlrev_b32 v{vWO}, {sh+3}, v{vT0}")
            e(f"v_lshrrev_b32 v{vT0}, 5, v{vLN}"); e(f"v_lshl_add_u32 v{vWO}, v{vT0}, {sh+2}, v{vWO}")
        else:
            e(f"v_lshrrev_b32 v{vT0}, 3, v{vLN}"); e(f"v_lshlrev_b32 v{vWO}, {sh+2}, v{vT0}")
        e(f"v_and_b32 v{vT0}, 7, v{vLN}"); e(f"v_lshl_add_u32 v{vWO}, v{vT0}, 4, v{vWO}")
        for r in (3, 2, 1, 0):
            e(f"v_add_u32 v{vWO+r}, {r*((1 << sh) - VBLK) + WBIAS}, v{vWO}")
    def w_issue(n, kind, sr=None):
        sr, sh = (sr or sWQ, 13) if kind == "q" else (sr or sWO, 10)
        ks, ch = order[n]
        out = [f"s_add_u32 m0, s{sWRB}, {(n % 3)*HALF}", f"s_mov_b32 s{sWOFF}, {ks*(32 << sh) + ch*128}"]
        for r in range(4):
            out.append(f"buffer_load_dwordx4 v{vWO+r}, {srd(sr)}, s{sWOFF} offen offset:{r*VBLK} lds")
        return out
    def w_srd(r, lo):
        e(f"s_add_u32 s{r}, s{lo}, s{sTMP}"); e(f"s_addc_u32 s{r+1}, s{lo+1}, 0")
        e(f"s_sub_u32 s{r}, s{r}, {WBIAS}"); e(f"s_subb_u32 s{r+1}, s{r+1}, 0")
        e(f"s_sub_u32 s{r+2}, {0x400000 + WBIAS}, s{sTMP}"); e(f"s_mov_b32 s{r+3}, 0x20000")
    def wo_srd(lo, r=sWO):
        e(f"s_lshl_b32 s{sTMP}, s{sG}, 19"); e(f"s_lshl_b32 s{sTMP2}, s{sW}, 8"); e(f"s_add_u32 s{sTMP}, s{sTMP}, s{sTMP2}")
        w_srd(r, lo)
    def kv_issue(sr, voff, imm, blk):
        out = [f"s_add_u32 s{sOFF}, s{sROT}, 4096"]
        for j in (0, 4, 2, 6, 1, 5, 3, 7):
            out.append(f"s_add_u32 m0, s{sKB}, {imm + j*blk - (j % 4)*1024}")
            out.append(f"buffer_load_dwordx4 v{voff}, {srd(sr)}, s{sOFF if j >= 4 else sROT} offen offset:{(j % 4)*1024} nt lds")
        return out
    def capped(lst, n):
        if not n: return lst
        out = []
        for x in lst:
            if x.startswith("buffer_load"): out.append(f"s_waitcnt vmcnt({n-1})")
            out.append(x)
        return out
    def k_issue(): return kv_issue(sK, vDK, 0, KBLK)
    def v_issue(): return kv_issue(sV, vDV, VOFF, VBLK)
    def x_issue(c, flag=""):
        e(f"s_lshl_b32 s{sOFF}, s{sW}, 14"); e(f"s_add_u32 s{sOFF}, s{sOFF}, {c*256}")
        e(f"s_mul_i32 s{sTMP}, s{sW}, {HALF}")
        for j in range(4):
            e(f"s_add_u32 m0, s{sTMP}, {XB + c*CHUNK + j*64}")
            e(f"buffer_load_dwordx4 v{vT1}, {srd(sX)}, s{sOFF} offen offset:{j*1024} {flag} lds")
    def x_half(h):
        out = [f"s_lshl_b32 s{sOFF}, s{sW}, 8", f"s_add_u32 s{sOFF}, s{sOFF}, {h*32768}"]
        for j in range(8):
            if j == 4: out.append(f"s_add_u32 s{sOFF}, s{sOFF}, 16384")
            out.append(f"s_add_u32 m0, s{sKB}, {h*SLOT + (j >> 2)*HALF + (j & 3)*64}")
            out.append(f"buffer_load_dwordx4 v{vT1}, {srd(sX)}, s{sOFF} offen offset:{(j & 3)*1024} nt lds")
        return out
    def x_own():
        out = [f"s_and_b32 s{sOFF}, s{sW}, 1", f"s_lshl_b32 s{sOFF}, s{sOFF}, 7", f"s_add_u32 s{sOFF}, s{sOFF}, s{sHI}",
               f"s_lshl_b32 s{sOFF}, s{sOFF}, 8", f"s_add_u32 s{sOFF}, s{sOFF}, 512"]
        for j in range(8):
            if j == 4: out.append(f"s_add_u32 s{sOFF}, s{sOFF}, 16384")
            out.append(f"s_add_u32 m0, s{sKB}, {VOFF + (j >> 2)*HALF + (j & 3)*64}")
            out.append(f"buffer_load_dwordx4 v{vT1}, {srd(sX)}, s{sOFF} offen offset:{(j & 3)*1024} nt lds")
        return out
    def x_voff():
        e(f"v_lshrrev_b32 v{vT0}, 4, v{vLN}"); e(f"v_sub_u32 v{vT1}, 0, v{vT0}"); e(f"v_and_b32 v{vT1}, 3, v{vT1}")
        e(f"v_xor_b32 v{vT1}, v{vT1}, v{vLN}"); e(f"v_and_b32 v{vT1}, 15, v{vT1}"); e(f"v_lshlrev_b32 v{vT1}, 4, v{vT1}")
        e(f"v_lshl_add_u32 v{vT1}, v{vT0}, 12, v{vT1}")
    def x_srd(lo):
        e(f"s_lshl_b32 s{sTMP}, s{sB}, 16"); mk_srd(sX, lo, 0x10000)
    dm = 1 if duty else 0
    def xa_touch(sb=sB):
        e(f"s_lshl_b32 s{sTMP}, s{sb}, 3"); e(f"s_add_u32 s{sTMP}, s{sTMP}, s{sG}")
        e(f"s_lshl_b32 s{sTMP}, s{sTMP}, 2"); e(f"s_add_u32 s{sTMP}, s{sTMP}, s{sW}"); e(f"s_lshl_b32 s{sTMP}, s{sTMP}, {11 + dm}")
        mk_srd(sPF, 4, 0x800 << dm)
        for r in range(2 << dm): e(f"buffer_load_dwordx4 {vr(S + 16 + 4*r, 4)}, v{vDV}, {srd(sPF)}, 0 offen offset:{r*1024}")
    def coop_prefetch(lo, sh, goff_sh, sb=sB):
        e(f"s_lshl_b32 s{sTMP}, s{sG}, {goff_sh}")
        e(f"s_add_u32 s{sPF}, s{lo}, s{sTMP}"); e(f"s_addc_u32 s{sPF+1}, s{lo+1}, 0")
        e(f"s_sub_u32 s{sPF+2}, 0x400000, s{sTMP}"); e(f"s_mov_b32 s{sPF+3}, 0x20000")
        e(f"s_lshl_b32 s{sTMP}, s{sb}, 2"); e(f"s_add_u32 s{sTMP}, s{sTMP}, s{sW}"); e(f"s_lshl_b32 s{sTMP}, s{sTMP}, {sh+2+dm}")
        for r in range(4 << dm):
            e(f"buffer_load_dwordx4 {vr(S + 4*(r % 4), 4)}, v{vDV}, {srd(sPF)}, s{sTMP} offen")
            if r < (4 << dm) - 1: e(f"s_add_u32 s{sTMP}, s{sTMP}, {1 << sh}")

    def xoff(kind, c, qt):
        return c*CHUNK + qt*HALF if (kind == "q" or asym) else (qt >> 1)*2*CHUNK + c*SLOT + (qt & 1)*HALF
    def pack(sx, qt):
        b = acc(2*sx, qt)
        return [f"v_cvt_pk_bf16_f32 v{b+i}, v{b+2*i}, v{b+2*i+1}" for i in range(4)]
    def pstore(sp, qt):
        st = [f"buffer_store_dwordx4 {vr(acc(2*sx, qt), 4)}, v{vDV}, {srd(sP)}, s{sOFF} offen offset:{sx*1024} sc1" for sx in (2*sp, 2*sp + 1)]
        l = lab("ps")
        return [f"s_mov_b32 s{sOFF}, {qt*4096}", f"s_cmp_eq_u32 s{sG}, {qt*2 + sp}", f"s_cbranch_scc1 {l}\n{st[0]}\n{st[1]}\n{l}:", ""]
    def proj(kind, steps=range(32), extra={}, role=None, chain=False):
        def ra(n):
            return [f"ds_read_b64_tr_b16 {vr(AF + (n % 2)*16 + d*4 + ee*2, 2)}, v{vWA} offset:{(n % 3)*HALF + ee*512 + d*32}" for d in range(4) for ee in range(2)]
        def rb(ks, qts):
            return [f"ds_read_b128 {vr(BF + (ks % 2)*16 + qt*4, 4)}, v{vXA} offset:{xoff(kind, ks >> 2, qt) + (ks & 3)*64}" for qt in qts]
        for n in steps:
            if n == 0:
                e("s_waitcnt vmcnt(8)")
                emit(rb(0, range(4))); emit(ra(0))
                e("s_waitcnt lgkmcnt(0)")
            stamp(f"{kind}{n}")
            ks, ch = order[n]
            rd = ra(n + 1) if n < 31 else []
            if n < 28: rd = rd + rb(ks + 1, (2*ch, 2*ch + 1))
            if n == 28: rd = rd + rb(15, range(4))
            dm = w_issue(n + 3, kind) if n + 3 < 32 else []
            if chain and n >= 29: dm = w_issue(n % 3, kind, sPF)
            if n < 31: e("s_waitcnt vmcnt(4)" if (n <= 29 or chain) else "s_waitcnt vmcnt(0)")
            relA = (relAq if kind == "q" else relAo) or rel
            if role is not None:
                if n == (relA if role else (rel if kind == "q" else relBo)): e("s_barrier")
            elif (kind == "q" and n in qbars) or n == rel == relA: e("s_barrier")
            elif n in (rel, relA):
                l1 = lab("nb"); e(f"s_cmp_eq_u32 s{sROLE}, {int(n == relA)}"); e(f"s_cbranch_scc0 {l1}"); e("s_barrier"); e(f"{l1}:")
            gaps = [[] for _ in range(16)]
            for i, x in enumerate(rd): gaps[i].append(x)
            if dm:
                gaps[2].append(dm[0]); gaps[3].append(dm[1])
                for i in range(4): gaps[(4, 6, 8, 12)[i]].append(dm[2 + i])
            for g, x in extra.get(n, []): gaps[g].append(x)
            k = 0
            for d in range(4):
                for qt in (range(3, -1, -1) if d % 2 else range(4)):
                    r = vr(acc(4*ch + d, qt), 4)
                    e(f"{MF} {r}, {vr(AF + (n % 2)*16 + d*4, 4)}, {vr(BF + (ks % 2)*16 + qt*4, 4)}, {r if ks else '0'}")
                    emit(gaps[k]); k += 1
            if n < 31: e("s_waitcnt lgkmcnt(0)")

    def Sr(qt, u): return S + qt*8 + u*4
    def exps(qt, u): return [f"v_exp_f32 v{Sr(qt, u)+i}, v{Sr(qt, u)+i}" for i in range(4)]
    def cvts(qt, u): return [f"v_cvt_pk_bf16_f32 v{S+qt*8+2*u+i}, v{Sr(qt, u)+2*i}, v{Sr(qt, u)+2*i+1}" for i in range(2)]
    def kr(f): return f"ds_read_b128 {vr(F + (f % 3)*4, 4)}, v{vKA} offset:{(f >> 2)*512 + (f & 3)*64}"
    vbuf = [F, F + 4, F + 8, S + 4, S + 12, S + 20, S + 28, F]
    def vrd(dt): return [f"ds_read_b64_tr_b16 {vr(vbuf[dt] + 2*u, 2)}, v{vVA} offset:{u*512 + dt*32}" for u in range(2)]
    def sums(qt): return [f"v_mfma_f32_4x4x4_16b_bf16 {vr(L, 4)}, {vr(ONES, 2)}, {vr(S + qt*8 + 2*h, 2)}, {vr(L, 4)} cbsz:2 abid:{qt}" for h in range(2)]
    def pv(dt, qt): return f"{MF} {vr(acc(dt, qt), 4)}, {vr(vbuf[dt], 4)}, {vr(S + qt*8, 4)}, {vr(acc(dt, qt), 4)}"
    def qk(fill):
        for f in range(3): e(kr(f))
        m = 0
        for f in range(8):
            u, s = f >> 2, f & 3
            e(f"s_waitcnt lgkmcnt({min(2, 7 - f)})")
            for qt in range(4):
                r = vr(Sr(qt, u), 4)
                e(f"{MF} {r}, {vr(F + (f % 3)*4, 4)}, {vr(Q + (qt*4 + s)*4, 4)}, {r if s else '0'}")
                if u == 1:
                    if m >= 3 and fill: e(fill.pop(0))
                    m += 1
            if f + 3 < 8: e(kr(f + 3))
    def pv_phase():
        pre = [exps(qt, 1) + cvts(qt, 1) for qt in range(4)]
        for dt in range(3): emit(vrd(dt))
        emit(pre[0]); emit(vrd(3))
        for qt in range(4):
            nxt = (pre[qt + 1] + vrd(4 + qt)) if qt < 3 else []
            per = math.ceil(len(nxt) / 4)
            sm = sums(qt)
            for dt in range(3):
                if qt == 0: e(f"s_waitcnt lgkmcnt({6 - 2*dt})")
                e(pv(dt, qt)); emit(nxt[dt*per:(dt+1)*per])
                if dt == 0: e(sm[0])
            e(sm[1]); emit(nxt[3*per:])
        emit(vrd(7))
        for dt in range(3, 8):
            e(f"s_waitcnt lgkmcnt({2*(7 - dt)})")
            for qt in (range(3, -1, -1) if dt % 2 else range(4)): e(pv(dt, qt))
    def xlane(op, regs, tmps):
        for sw in ("32", "16"):
            for r, t in zip(regs, tmps): e(f"v_mov_b32 v{t}, v{r}")
            for r, t in zip(regs, tmps): e(f"v_permlane{sw}_swap_b32 v{r}, v{t}")
            for r, t in zip(regs, tmps): e(f"{op} v{r}, v{r}, v{t}")
    def lsum(): xlane("v_add_f32", range(L, L + 4), range(F, F + 4))

    def flag_srd(branch):
        e(f"s_add_u32 s{sPF}, s28, 0x2000000"); e(f"s_addc_u32 s{sPF+1}, s29, 0"); e(f"s_mov_b32 s{sPF+2}, 0x8000"); e(f"s_mov_b32 s{sPF+3}, 0x20000")
        e(f"s_mul_i32 s{sOFF}, s{sB}, 768"); e(f"s_add_u32 s{sOFF}, s{sOFF}, {branch*256}")
    def dbg_srd():
        e(f"s_mov_b32 s{sPF}, s26"); e(f"s_mov_b32 s{sPF+1}, s27"); e(f"s_mov_b32 s{sPF+2}, 256"); e(f"s_mov_b32 s{sPF+3}, 0x20000")
        e(f"s_lshl_b32 s{sOFF}, s{sB}, 3")
    def poll(first=None, tmp=vT0):
        l0, l1 = lab("pl"), lab("pl")
        e("s_mov_b64 exec, 1")
        if first: first(l1)
        e(f"s_mov_b32 s{sTMP2}, 0x40000")
        e(f"{l0}:")
        e(f"buffer_load_dword v{tmp}, off, {srd(sPF)}, s{sOFF} sc1")
        e("s_waitcnt vmcnt(0)")
        e(f"v_readfirstlane_b32 s{sTMP}, v{tmp}")
        e(f"s_cmp_eq_u32 s{sTMP}, 8"); e(f"s_cbranch_scc1 {l1}")
        e(f"s_sleep {slp}")
        e(f"s_sub_u32 s{sTMP2}, s{sTMP2}, 1"); e(f"s_cmp_lg_u32 s{sTMP2}, 0"); e(f"s_cbranch_scc1 {l0}")
        e(f"{l1}:")
        e("s_mov_b64 exec, -1")
    def lds_arrive(word, notlast):
        e(f"v_mov_b32 v{vT0}, {CNT + 4*word}"); e(f"v_mov_b32 v{vT1}, 1")
        e("s_mov_b64 exec, 1")
        e("s_waitcnt vmcnt(0)")
        stamp("drained")
        e(f"ds_add_rtn_u32 v{vT0}, v{vT0}, v{vT1}")
        e("s_waitcnt lgkmcnt(0)")
        e(f"v_readfirstlane_b32 s{sTMP}, v{vT0}")
        e(f"s_cmp_eq_u32 s{sTMP}, 3"); e(f"s_cbranch_scc0 {notlast}")
    def unpack(dst, src):
        for i in range(4):
            e(f"v_lshlrev_b32 v{dst+2*i}, 16, v{src+i}"); e(f"v_and_b32 v{dst+2*i+1}, 0xffff0000, v{src+i}")

    if stamps: e(f"; stamps: {stamps}")
    for l in """out = concat(GQA(A), MHA(B)), each branch = softmax(x Wq K^T / sqrt(128)) V Wo, fused in one kernel.
Kernarg: A_x A_k A_v A_wq A_wo B_x B_k B_v B_wq B_wo out debug ws (8 bytes each).
Workgroup = (batch b = id>>3, head group g = id&7): waves 0-3 own B's heads 4g..4g+3, waves 4-7 A's.
Phases per workgroup: Q_B | attention B ... [Q_A | attention A | O_A at a batch-dependent tile] ... | O_B | reduce.
The wave set that is not computing issues the LDS loads for the other one.
Softmax: exp2 of the unshifted scores; every row sum is range-checked and the head is redone with the
true running max (L_slow) when a sum leaves [2^-30, 2^30].
The eight workgroups of a batch exchange bf16 partial sums of the output projection through ws
(write-through stores, counters zeroed in this launch, announced through debug).""".split("\n"): e("; " + l)
    e(f"; @launch grid=(256,1,1) block=(512,1,1) lds={LDS}")
    e('.amdgcn_target "amdgcn-amd-amdhsa--gfx950"')
    e(".text"); e(f".globl {NAME}_kernel"); e(".p2align 8"); e(f".type {NAME}_kernel,@function")
    e(f"{NAME}_kernel:")
    e("s_cmp_ge_u32 s2, 256"); e("s_cbranch_scc1 L_end")
    e("s_load_dwordx16 s[4:19], s[0:1], 0"); e("s_load_dwordx8 s[20:27], s[0:1], 64"); e("s_load_dwordx2 s[28:29], s[0:1], 96")
    if stamps:
        for i in range(16): e(f"s_mov_b32 s{sST+i}, 0")
        e("s_memtime s[100:101]")
    stamp("start")
    e("s_getpc_b64 s[30:31]"); e("L_pc:")
    e("v_lshlrev_b32 v2, 3, v0"); e("v_mov_b32 v3, s31")
    e("v_add_co_u32 v4, vcc, s30, v2"); e("s_lshr_b32 s3, s2, 4"); e("s_add_u32 s3, s3, 1"); e("v_addc_co_u32 v5, vcc, 0, v3, vcc")
    e("s_mov_b32 exec_lo, 0x10001"); e("s_mov_b32 exec_hi, exec_lo")
    e("global_load_dword v8, v[4:5], off")
    e("s_mov_b64 exec, -1")
    e("v_lshl_add_u32 v2, s3, 12, v2"); e("v_min_u32 v2, L_last-L_pc-4, v2")
    e("v_add_co_u32 v6, vcc, s30, v2"); e("s_bitcmp1_b32 s2, 3"); e("s_mov_b32 s3, 0x10001"); e("v_addc_co_u32 v7, vcc, 0, v3, vcc")
    e("s_cselect_b32 exec_lo, 0, s3"); e("s_cselect_b32 exec_hi, s3, 0")
    if not nopf: e("global_load_dword v9, v[6:7], off")
    e("s_mov_b64 exec, -1")
    e(f"v_lshrrev_b32 v1, 6, v0"); e(f"v_and_b32 v{vLN}, 63, v0"); e(f"v_readfirstlane_b32 s{sTMP}, v1")
    e(f"s_and_b32 s{sG}, s2, 7"); e(f"s_lshr_b32 s{sB}, s2, 3")
    e(f"s_and_b32 s{sW}, s{sTMP}, 3"); e(f"s_lshr_b32 s{sROLE}, s{sTMP}, 2"); e(f"s_lshr_b32 s{sHI}, s{sW}, 1")
    e(f"s_mul_i32 s{sWRB}, s{sW}, {WRING}"); e(f"s_add_u32 s{sWRB}, s{sWRB}, {WR0}")
    e(f"v_lshlrev_b32 v{vDV}, 4, v{vLN}")
    w_setup("q")
    x_voff()
    e("s_waitcnt lgkmcnt(0)")
    e(f"s_cmp_eq_u32 s{sROLE}, 0")
    e(f"s_cselect_b32 s{sWQ}, s20, s10"); e(f"s_cselect_b32 s{sWQ+1}, s21, s11")
    e(f"s_lshl_b32 s{sTMP}, s{sG}, 2"); e(f"s_add_u32 s{sTMP}, s{sTMP}, s{sW}"); e(f"s_lshl_b32 s{sTMP}, s{sTMP}, 8")
    w_srd(sWQ, sWQ)
    e(f"s_cmp_eq_u32 s{sROLE}, 0"); e("s_cbranch_scc1 L_first_B")
    if prioA: e(f"s_setprio {prioA}")
    x_srd(14)
    if duty:
        e(f"s_cmp_lt_u32 s{sB}, 16"); e("s_cbranch_scc0 L_nod0")
        coop_prefetch(20, 13, 10)
        e("L_nod0:")
        x_issue(0)
    else:
        x_issue(0); coop_prefetch(20, 13, 10)
    e("s_branch L_common")
    e("L_first_B:")
    for n in range(3): emit(w_issue(n, "q"))
    x_srd(4)
    e("L_common:")
    tab = [groups[b * len(groups) // 32] for b in range(32)]
    assert all(0 <= d <= 15 for d in tab)
    wd = [sum(tab[8*i + j] << (4*j) for j in range(8)) for i in range(4)]
    e(f"s_bitcmp0_b32 s{sB}, 3")
    e(f"s_mov_b32 s{sTMP}, {wd[1]:#x}"); e(f"s_cselect_b32 s{sTMP}, {wd[0]:#x}, s{sTMP}")
    e(f"s_mov_b32 s{sTMP2}, {wd[3]:#x}"); e(f"s_cselect_b32 s{sTMP2}, {wd[2]:#x}, s{sTMP2}")
    e(f"s_bitcmp0_b32 s{sB}, 4"); e(f"s_cselect_b32 s{sTMP}, s{sTMP}, s{sTMP2}")
    e(f"s_and_b32 s{sTMP2}, s{sB}, 7"); e(f"s_lshl_b32 s{sTMP2}, s{sTMP2}, 2")
    e(f"s_lshr_b32 s{sTMP}, s{sTMP}, s{sTMP2}"); e(f"s_and_b32 s{sD}, s{sTMP}, 15")
    if asym:
        e(f"s_lshl_b32 s{sTMP}, s{sHI}, 1"); e(f"s_add_u32 s{sTMP}, s{sTMP}, s{sW}"); e(f"s_mul_i32 s{sKB}, s{sTMP}, {CHUNK}")
        e(f"s_cmp_eq_u32 s{sHI}, 0"); e(f"s_cselect_b32 s{sOO}, 17, s{sD}")
    else: e(f"s_mul_i32 s{sKB}, s{sW}, {SLOT}")
    def dk_setup():
        e(f"v_bfe_u32 v{vT0}, v{vLN}, 4, 1"); e(f"v_lshlrev_b32 v{vT0}, 4, v{vT0}"); e(f"v_xor_b32 v{vDK}, v{vDV}, v{vT0}")
    dk_setup()
    t0, t1 = F, F + 1
    e(f"v_and_b32 v{t0}, 7, v{vLN}"); e(f"v_mul_u32_u24 v{vKA}, {KBLK}, v{t0}")
    e(f"v_bfe_u32 v{t0}, v{vLN}, 3, 1"); e(f"v_lshl_add_u32 v{vKA}, v{t0}, 8, v{vKA}")
    e(f"v_lshrrev_b32 v{t1}, 5, v{vLN}"); e(f"v_xor_b32 v{t0}, v{t0}, v{t1}"); e(f"v_lshl_add_u32 v{vKA}, v{t0}, 4, v{vKA}")
    e(f"v_bfe_u32 v{t0}, v{vLN}, 4, 1"); e(f"v_lshl_add_u32 v{vKA}, v{t0}, 5, v{vKA}")
    e(f"v_bfe_u32 v{t0}, v{vLN}, 2, 3"); e(f"v_mul_u32_u24 v{vVA}, {VBLK}, v{t0}")
    e(f"v_lshl_add_u32 v{vVA}, v{t1}, 8, v{vVA}")
    e(f"v_and_b32 v{t0}, 3, v{vLN}"); e(f"v_lshl_add_u32 v{vVA}, v{t0}, 3, v{vVA}")
    def wx_setup():
        e(f"v_and_b32 v{t0}, 3, v{vLN}")
        e(f"v_bfe_u32 v{t1}, v{vLN}, 2, 2"); e(f"v_mul_u32_u24 v{vWA}, {VBLK}, v{t1}")
        e(f"v_lshl_add_u32 v{vWA}, v{t0}, 3, v{vWA}")
        e(f"v_lshrrev_b32 v{t0+2}, 4, v{vLN}"); e(f"v_lshl_add_u32 v{vWA}, v{t0+2}, 7, v{vWA}"); e(f"v_add_u32 v{vWA}, s{sWRB}, v{vWA}")
        e(f"v_mul_u32_u24 v{vXA}, {KBLK}, v{t0}"); e(f"v_lshl_add_u32 v{vXA}, v{t1}, 8, v{vXA}")
        e(f"v_sub_u32 v{t0+3}, 0, v{t1}"); e(f"v_and_b32 v{t0+3}, 3, v{t0+3}"); e(f"v_xor_b32 v{t0+3}, v{t0+3}, v{t0+2}")
        e(f"v_lshl_add_u32 v{vXA}, v{t0+3}, 4, v{vXA}"); e(f"v_add_u32 v{vXA}, {XB}, v{vXA}")
    wx_setup()
    e(f"v_cmp_eq_u32 vcc, v{t0}, v{t1}"); e(f"v_mov_b32 v{t0+2}, 0x3f803f80")
    for i in range(4): e(f"v_mov_b32 v{L+i}, 0")
    e(f"v_cndmask_b32 v{ONES}, 0, v{t0+2}, vcc"); e(f"v_mov_b32 v{ONES+1}, v{ONES}")
    e(f"s_lshl_b32 s{sTMP}, s2, 2"); e(f"s_add_u32 s{sTMP2}, s{sTMP}, s{sW}")
    e(f"s_and_b32 s{sROT}, s{sTMP2}, 15"); e(f"s_lshl_b32 s{sROT}, s{sROT}, 13")
    e(f"s_lshl_b32 s{sTMP}, s{sTMP2}, 17")
    mk_srd(sK, 16, 0x20000); mk_srd(sV, 18, 0x20000)
    e(f"s_xor_b32 s{sTMP}, s{sROLE}, 1"); e(f"s_lshl_b32 s{sTMP}, s{sTMP}, 10"); e(f"s_add_u32 s{sTMP}, s{sTMP}, s{sTMP2}"); e(f"s_lshl_b32 s{sTMP}, s{sTMP}, 14")
    mk_srd(sP, 28, 0x4000)
    wo_srd(12)
    e(f"s_bitcmp0_b32 s{sW}, 0")
    e(f"s_cselect_b32 s{sIT}, s6, s8"); e(f"s_cselect_b32 s{sIT+1}, s7, s9"); e(f"s_cselect_b32 s{sIST}, {KBLK-1024}, {VBLK-1024}")
    e(f"s_cselect_b64 vcc, -1, 0"); e(f"s_cselect_b32 s{sDK}, 0, {SLOT}")
    e(f"v_cndmask_b32 v{vIT}, v{vDV}, v{vDK}, vcc")
    e(f"s_lshl_b32 s{sTMP}, s2, 17"); mk_srd(sIT, sIT, 0x20000)
    e(f"s_and_b32 s{sROTA}, s2, 15"); e(f"s_lshl_b32 s{sROTA}, s{sROTA}, 1"); e(f"s_add_u32 s{sROTA}, s{sROTA}, s{sHI}"); e(f"s_lshl_b32 s{sROTA}, s{sROTA}, 12")
    e(f"s_add_u32 s{sTMP}, s{sIST}, 1024"); e(f"s_mul_i32 s{sTMP}, s{sTMP}, s{sHI}"); e(f"s_lshl_b32 s{sTMP}, s{sTMP}, 2"); e(f"s_add_u32 s{sDK}, s{sDK}, s{sTMP}")
    e(f"s_cmp_eq_u32 s{sROLE}, 0"); e("s_cbranch_scc1 L_Binit")

    e(f"v_add_u32 v{vKA}, {XB}, v{vKA}"); e(f"v_add_u32 v{vVA}, {XB + SLOT}, v{vVA}")
    e(f"v_mov_b32 v{t0}, {CNT}"); e(f"ds_write_b128 v{t0}, {vr(L, 4)}")
    e("s_waitcnt lgkmcnt(0)")
    def counter_init(slot):
        ln = lab("ni")
        e(f"s_or_b32 s{sTMP}, s{sG}, s{sW}"); e(f"s_cmp_eq_u32 s{sTMP}, 0"); e(f"s_cbranch_scc0 {ln}")
        e("s_mov_b64 exec, 1")
        if slot == 0:
            flag_srd(0)
            e(f"buffer_store_dword v{L}, off, {srd(sPF)}, s{sOFF} sc1"); e(f"buffer_store_dword v{L}, off, {srd(sPF)}, s{sOFF} offset:256 sc1")
        else:
            e("s_waitcnt vmcnt(0)")
            dbg_srd()
            e(f"v_mov_b32 v{vT0}, 8"); e(f"buffer_store_dword v{vT0}, off, {srd(sPF)}, s{sOFF} sc1")
        e("s_mov_b64 exec, -1")
        e(f"{ln}:")
    def helper(sch):
        q = ["x0"]*4 + ([] if duty else ["w"]*4)
        due = {0: sch.get("p0", "x0"), 6: "x1", 14: "x3" if shift else "x2", 22: "x3"}
        for slot, nxt in zip((-1, 0) + qbars, (0,) + qbars + (rel,)):
            if slot in (0, 6): counter_init(slot)
            if shift and slot >= 14:
                sp = shift[slot] if isinstance(shift, dict) else shift
                if len(sp) == 3:
                    lo, n0, n1 = sp; giv = list(range(lo, lo + n0 + n1)); tak = list(range(n0)) + list(range(32 - n1, 32))
                else: giv, tak = map(list, sp)
                assert len(giv) == len(tak) <= 12 and not set(giv) & set(tak) and tak == sorted(tak)
                def shares(sb):
                    for act in sch.get(slot, "").split():
                        if act == "t": xa_touch(sb)
                        else: coop_prefetch(*{"q": (10, 13, 10), "a": (12, 10, 19), "b": (22, 10, 19)}[act], sb)
                ls = lab("sh")
                gm, tm = sum(1 << x for x in giv), sum(1 << x for x in tak)
                tabv = sum(x << (5*k) for k, x in enumerate(giv))
                e(f"s_bitcmp1_b32 {gm:#x}, s{sB}"); e(f"s_cbranch_scc1 {ls}")
                shares(sB)
                e(f"s_bitcmp1_b32 {tm:#x}, s{sB}"); e(f"s_cbranch_scc0 {ls}")
                e(f"s_bfm_b32 s{sRO}, s{sB}, 0"); e(f"s_and_b32 s{sRO}, s{sRO}, {tm:#x}"); e(f"s_bcnt1_i32_b32 s{sRO}, s{sRO}"); e(f"s_mul_i32 s{sRO}, s{sRO}, 5")
                e(f"s_mov_b32 s{sTMP}, {tabv & 0xffffffff:#x}"); e(f"s_mov_b32 s{sTMP2}, {tabv >> 32:#x}")
                e(f"s_lshr_b64 s[{sTMP}:{sTMP2}], s[{sTMP}:{sTMP2}], s{sRO}"); e(f"s_and_b32 s{sRO}, s{sTMP}, 31")
                shares(sRO)
                e(f"{ls}:")
                e("s_barrier"); continue
            for act in sch.get(slot, "").split():
                if act[0] == "x": x_issue(int(act[1])); q += [act]*4
                elif act == "q": coop_prefetch(10, 13, 10); q += [act]*(4 << dm)
                elif act == "a": coop_prefetch(12, 10, 19); q += [act]*(4 << dm)
                elif act == "b": coop_prefetch(22, 10, 19); q += [act]*(4 << dm)
                elif act == "t": xa_touch(); q += [act]*(2 << dm)
                elif act == "k": emit(k_issue()); q += [act]*8
                elif act == "c":
                    e(f"s_lshl_b32 s{sTMP}, s{sB}, 2"); e(f"s_add_u32 s{sTMP}, s{sTMP}, s{sW}"); e(f"s_lshl_b32 s{sTMP}, s{sTMP}, 7")
                    e(f"v_lshl_add_u32 v2, v{vLN}, 14, s{sTMP}"); e("v_min_u32 v2, L_last-L_pc-4, v2")
                    e("v_add_co_u32 v2, vcc, s30, v2"); e("v_mov_b32 v3, s31"); e("s_nop 0"); e("v_addc_co_u32 v3, vcc, 0, v3, vcc")
                    e("s_mov_b64 exec, 7"); e("global_load_dword v4, v[2:3], off"); e("s_mov_b64 exec, -1"); q += [act]
            if nxt in due:
                last = max(i for i, x in enumerate(q) if x == due[nxt])
                e(f"s_waitcnt vmcnt({len(q) - 1 - last})")
            e("s_barrier")
        return q
    if duty:
        e(f"s_cmp_lt_u32 s{sB}, 16"); e("s_cbranch_scc0 L_nod1")
        helper(duty[0]); e("s_branch L_nod2")
        e("L_nod1:"); q = helper(duty[1]); e("L_nod2:")
    else: q = helper(hs)
    x_srd(4)
    if asym:
        assert "k" not in q
        e(f"s_cmp_eq_u32 s{sOO}, 0"); e("s_cbranch_scc0 L_hv")
        emit(x_half(0)); emit(x_half(1)); e("s_branch L_hx")
        e("L_hv:")
        emit(k_issue())
    else:
        if "k" not in q: emit(k_issue())
        e(f"s_cmp_eq_u32 s{sD}, 0"); e("s_cbranch_scc0 L_hv")
        emit(x_own()); e("s_branch L_hx")
        e("L_hv:")
    emit(v_issue())
    e("L_hx:")
    x_issue(0, "nt")
    e("s_waitcnt vmcnt(4)"); e("s_barrier")
    x_issue(1, "nt")
    e(f"s_lshl_b32 s{sTMP}, s2, 17")
    mk_srd(sK, 6, 0x20000); mk_srd(sV, 8, 0x20000)
    if chainQ: e("s_waitcnt vmcnt(0)")
    else:
        for n in range(3): emit(w_issue(n, "q"))
        e("s_waitcnt vmcnt(12)")
    wo_srd(22, sPF)
    e("s_branch L_Qstart")
    e("L_Binit:")
    e(f"s_lshl_b32 s{sTMP}, s{sG}, 2"); e(f"s_add_u32 s{sTMP}, s{sTMP}, s{sW}"); e(f"s_lshl_b32 s{sTMP}, s{sTMP}, 8")
    w_srd(sPF, 10)
    e(f"v_add_u32 v{vKA}, s{sKB}, v{vKA}"); e(f"v_add_u32 v{vVA}, s{sKB}, v{vVA}"); e(f"v_add_u32 v{vVA}, {VOFF}, v{vVA}")

    e("L_Qstart:")
    e("s_barrier")
    stamp("P0")
    proj("q", range(29))
    e(f"s_cmp_eq_u32 s{sROLE}, 0"); e("s_cbranch_scc0 L_QA")
    proj("q", (29, 30, 31), role=0, chain=chainQ)
    e("s_branch L_Qepi")
    e("L_QA:")
    proj("q", (29, 30, 31), role=1)
    e("L_Qepi:")
    c = f2u(math.log2(math.e) / math.sqrt(128.0))
    e(f"v_mov_b32 v{vT0}, {c:#x}"); e(f"v_mov_b32 v{vT1}, {c:#x}")
    pend = []
    def swaps():
        for pq in pend[-1:]: e(f"v_permlane16_swap_b32 v{pq}, v{pq+2}"); e(f"v_permlane16_swap_b32 v{pq+1}, v{pq+3}")
    for s in range(4):
        for qt in range(4):
            b = acc(2*s, qt); qq = Q + (qt*4 + s)*4
            for i in range(4): e(f"v_pk_mul_f32 {vr(b+2*i, 2)}, {vr(b+2*i, 2)}, {vr(vT0, 2)}")
            swaps()
            for i in range(4): e(f"v_cvt_pk_bf16_f32 v{qq+i}, v{b+2*i}, v{b+2*i+1}")
            pend.append(qq)
    e(f"s_mov_b32 s{sI}, 0"); e(f"s_cmp_eq_u32 s{sROLE}, 0")
    swaps()
    stamp("Qdone")
    e("s_cbranch_scc0 L_Aattn")

    for i in range(0, 128, 2): e(f"v_mov_b64 {vr(i, 2)}, 0")
    w_setup("o")
    x_voff()
    e("s_waitcnt vmcnt(0)")
    e("s_barrier")
    e(f"s_cmp_eq_u32 s{sD}, 0"); e("s_cbranch_scc1 L_Bpause")
    e("L_Bgo:")
    e(f"s_cmp_eq_u32 s{sI}, 15"); e("s_cbranch_scc0 L_noE0"); e("s_barrier"); e("L_noE0:")
    e("s_waitcnt vmcnt(8)")
    if tl:
        e("s_memrealtime s[98:99]"); e("s_memtime s[96:97]"); e("s_waitcnt lgkmcnt(0)"); e(f"s_mov_b32 m0, s{sI}"); e("s_nop 0"); e(f"v_writelane_b32 v254, s98, m0")
        e(f"s_add_u32 m0, s{sI}, 16"); e("s_nop 0"); e(f"v_writelane_b32 v254, s96, m0")
    fill = []
    for qt in range(4): fill += exps(qt, 0)
    for qt in range(4): fill += cvts(qt, 0)
    qk(fill)
    if fastlast: e(f"s_cmp_eq_u32 s{sI}, 15"); e("s_cbranch_scc1 L_Blast")
    left = [x for x in fill if x.startswith("v_exp")]
    emit(fill)
    e(f"s_add_u32 s{sROT}, s{sROT}, 8192"); e(f"s_and_b32 s{sROT}, s{sROT}, 0x1ffff")
    e(f"s_add_u32 s{sI}, s{sI}, 1")
    if not fastlast: e(f"s_cmp_eq_u32 s{sI}, 16"); e("s_cbranch_scc1 L_Blast")
    lm = sum(1 << d for d in loose)
    if asym: e(f"s_cmp_eq_u32 s{sI}, s{sOO}"); e("s_cbranch_scc1 L_Bx0")
    if lm: e(f"s_bitcmp1_b32 {lm:#x}, s{sD}"); e("s_cbranch_scc1 L_lk")
    emit(capped(k_issue(), capN))
    e("L_lkb:")
    e("s_waitcnt vmcnt(8)")
    e("L_Bpv:")
    pv_phase()
    if not fastlast: e(f"s_cmp_eq_u32 s{sI}, 16"); e("s_cbranch_scc1 L_Oepi")
    e(f"s_cmp_eq_u32 s{sI}, s{sD}"); e("s_cbranch_scc1 L_Bx")
    if lm: e(f"s_bitcmp1_b32 {lm:#x}, s{sD}"); e("s_cbranch_scc1 L_lv")
    emit(capped(v_issue(), capN))
    e("s_branch L_Bgo")
    if lm:
        e("L_lk:"); emit(capped(k_issue(), capL)); e("s_branch L_lkb")
        e("L_lv:"); emit(capped(v_issue(), capL)); e("s_branch L_Bgo")
    e("L_Blast:")
    def range_check():
        e(f"v_min3_f32 v{vT0}, v{L}, v{L+1}, v{L+2}"); e(f"v_add_f32 v{vT1}, v{L}, v{L+1}")
        e(f"v_min_f32 v{vT0}, v{vT0}, v{L+3}"); e(f"v_add_f32 v{vT1}, v{vT1}, v{L+2}"); e(f"v_add_f32 v{vT1}, v{vT1}, v{L+3}")
        e(f"v_cmp_nle_f32 vcc, {f2u(2.0**lo_exp):#x}, v{vT0}"); e("s_cbranch_vccnz L_slow")
        e(f"v_cmp_nge_f32 vcc, {f2u(2.0**hi_exp):#x}, v{vT1}"); e("s_cbranch_vccnz L_slow")
        if force_slow: e("s_branch L_slow")
    def recip():
        for qt in range(4): e(f"v_rcp_f32 v{L+qt}, v{L+qt}")
        e(f"s_mul_i32 s{sTMP}, s{sW}, {CHUNK if asym else SLOT}"); e(f"v_add_u32 v{vT0}, s{sTMP}, v{vXA}")
    def scale(b, qt):
        sel = "op_sel_hi:[1,0]" if qt % 2 == 0 else "op_sel:[0,1]"
        return [f"v_pk_mul_f32 {vr(b+2*i, 2)}, {vr(b+2*i, 2)}, {vr(L + (qt & 2), 2)} {sel}" for i in range(4)]
    def owr(s, qt): return f"ds_write_b128 v{vT0}, {vr(acc(2*s, qt), 4)} offset:{xoff('o', 0, qt) + s*64}"
    if fastlast:
        if tl: e("v_mov_b32 v252, v254   ; v_writelane_b32 v247")
        emit(left)
        for qt in range(4): emit(exps(qt, 1))
        for i in range(8):
            for qt in range(4): e(f"v_add_f32 v{L+qt}, v{L+qt}, v{S+qt*8+i}")
        lsum(); range_check(); recip()
        for qt in range(4): emit(scale(S + qt*8, qt))
        for qt in range(4): emit(cvts(qt, 0) + cvts(qt, 1))
        for s in range(3):
            for qt in range(4): emit(scale(acc(2*s, qt), qt))
        e("s_waitcnt vmcnt(0)")
        rd = [f"ds_read_b64_tr_b16 {vr(Q + 4*dt + 2*u, 2)}, v{vVA} offset:{u*512 + dt*32}" for dt in range(8) for u in range(2)]
        emit(rd[:8])
        for qt in range(4): emit(scale(acc(6, qt), qt)); emit(rd[8 + 2*qt:10 + 2*qt])
        e("s_waitcnt lgkmcnt(0)")
        stamp("attn_done")
        pendo = []
        for s in range(4):
            mf = [f"{MF} {vr(acc(dt, qt), 4)}, {vr(Q + 4*dt, 4)}, {vr(S + qt*8, 4)}, {vr(acc(dt, qt), 4)}" for qt in range(4) for dt in ((2*s, 2*s + 1) if qt % 2 == 0 else (2*s + 1, 2*s))]
            for i, m in enumerate(mf):
                e(m); emit(pendo[len(pendo)*i//8:len(pendo)*(i + 1)//8])
            pendo = []
            for qt in range(4): pendo += pack(s, qt) + [owr(s, qt)]
        emit(pendo)
        e("s_branch L_Owr")
    else:
        e("s_waitcnt vmcnt(0)"); e("s_branch L_Bpv")
    if asym:
        e("L_Bx0:"); emit(capped(x_half(0), capX)); e("s_branch L_lkb")
        e("L_Bv:"); emit(capped(v_issue(), capN)); e("s_branch L_Bpause")
    e("L_Bx:")
    if asym:
        e(f"s_cmp_eq_u32 s{sHI}, 0"); e("s_cbranch_scc1 L_Bv")
        emit(capped(x_half(1), capX))
    else: emit(capped(x_own(), capX))
    e("L_Bpause:")
    e("s_barrier")
    e(f"s_cmp_eq_u32 s{sW}, 0"); e("s_cbranch_scc0 L_nochk")
    dbg_srd(); poll(tmp=F)
    e("L_nochk:")
    for n in qbars:
        if n == 14: e("s_waitcnt vmcnt(0)")
        e("s_barrier")
    e("s_barrier")
    def half_item(t):
        e(f"s_add_u32 m0, s{sDK}, {XB + (t % 4)*CHUNK}")
        for j in range(4):
            if j: e(f"s_add_u32 m0, m0, s{sIST}")
            e(f"buffer_load_dwordx4 v{vIT}, {srd(sIT)}, s{sROTA} offen offset:{j*1024} nt lds")
        e(f"s_add_u32 s{sROTA}, s{sROTA}, 8192"); e(f"s_and_b32 s{sROTA}, s{sROTA}, 0x1ffff")
    half_item(0); half_item(1); issued = 2
    for t in range(16):
        e(f"s_waitcnt vmcnt({4*(issued - t - 1)})"); e("s_barrier")
        while issued < min(16, t + depth + 1):
            half_item(issued); issued += 1
    for n in range(3): emit(w_issue(n, "o"))
    wo_srd(22)
    e("s_barrier"); e("s_waitcnt vmcnt(0)"); e("s_barrier"); e("s_barrier")
    if asym:
        e(f"s_cmp_eq_u32 s{sHI}, 0"); e("s_cbranch_scc1 L_Bgo")
        emit(k_issue())
    emit(v_issue())
    e("s_branch L_Bgo")

    FB = [F, F + 4, F + 8, 244, 248, 252]
    kb = [0, 1, 2, 3, 4, 5, 0, 1]
    vb = [FB[2], FB[3], FB[4], FB[5], FB[0], FB[1], S + 4, S + 12]
    def akr(f): return f"ds_read_b128 {vr(FB[kb[f]], 4)}, v{vKA} offset:{(f >> 2)*512 + (f & 3)*64}"
    def avr(dt): return [f"ds_read_b64_tr_b16 {vr(vb[dt] + 2*u, 2)}, v{vVA} offset:{u*512 + dt*32}" for u in range(2)]
    def weave(mf, fill):
        cost = [2 if x.startswith("v_exp") else 1 for x in fill]
        tot = sum(cost); cum = 0; k = 0
        for i, m in enumerate(mf):
            e(m)
            while k < len(fill) and (cum + cost[k]) * len(mf) <= (i + 1) * tot + len(mf) // 2:
                e(fill[k]); cum += cost[k]; k += 1
        emit(fill[k:])
    def atile(first):
        def apv(dt, qt): return f"{MF} {vr(acc(dt, qt), 4)}, {vr(vb[dt], 4)}, {vr(S + qt*8, 4)}, {'0' if first else vr(acc(dt, qt), 4)}"
        ex = exps(0, 0) + exps(1, 0) + exps(2, 0)
        for f in range(8):
            u, sx = f >> 2, f & 3
            if f == 0: e("s_waitcnt lgkmcnt(2)")
            if f in (2, 4): e("s_waitcnt lgkmcnt(4)")
            for qt in range(4):
                r = vr(Sr(qt, u), 4)
                e(f"{MF} {r}, {vr(FB[kb[f]], 4)}, {vr(Q + (qt*4 + sx)*4, 4)}, {r if sx else '0'}")
                if f == 0 and qt < 2: e(akr(4 + qt))
                if f == 1 and qt == 0: e(f"s_add_u32 s{sI}, s{sI}, 1"); e(f"s_and_b32 s{sTMP}, s{sI}, 3")
                if f == 1 and qt == 1: e(f"s_cselect_b32 s{sDK}, s{sTMP2}, {(-3*CHUNK) & 0xffffffff:#x}")
                if f == 2 and qt == 0: e(f"v_add_u32 v{vKA}, s{sDK}, v{vKA}")
                if u == 1 and (f, qt) != (4, 0) and (qt < 3 or f == 7): e(ex.pop(0))
            if f < 2: e(akr(6 + f))
            else: emit(avr(f - 2))
        emit(exps(0, 1)); emit(cvts(0, 0)); emit(cvts(0, 1)); emit(avr(6))
        e("s_waitcnt lgkmcnt(6)")
        b0 = [apv(dt, 0) for dt in range(6)]
        b0[3] += "\ns_waitcnt lgkmcnt(2)"
        weave(b0, exps(1, 1) + cvts(1, 0) + cvts(1, 1))
        emit(avr(7))
        s0, s1, s2, s3 = (sums(qt) for qt in range(4))
        b1 = [apv(dt, 1) for dt in range(5, -1, -1)]
        b1[1] = s0[0] + "\n" + b1[1]; b1[3] = s0[1] + "\n" + b1[3]
        weave(b1, exps(2, 1) + cvts(2, 0) + cvts(2, 1))
        e(f"v_add_u32 v{vVA}, s{sDK}, v{vVA}")
        b2 = [apv(dt, 2) for dt in range(6)] + [apv(6, 0), apv(7, 0), apv(7, 1), apv(6, 1)]
        b2[0] = s1[0] + "\n" + b2[0]; b2[2] = s1[1] + "\n" + b2[2]; b2[4] = s2[0] + "\n" + b2[4]
        b2[6] = "s_waitcnt lgkmcnt(0)\n" + b2[6]
        weave(b2, exps(3, 0) + exps(3, 1) + cvts(3, 0) + cvts(3, 1))
        e(s2[1])
        e("s_barrier")
        for k, dt in enumerate((4, 5, 0, 1)):
            e(apv(dt, 3)); e(akr(k))
        e(s3[0]); e(apv(2, 3))
        e(f"s_cmp_eq_u32 s{sI}, 16")
        e(apv(3, 3)); e(s3[1])
        e(apv(6, 3)); e(apv(7, 3)); e(apv(7, 2)); e(apv(6, 2))
    e("L_Aattn:")
    e(f"s_mov_b32 s{sTMP2}, {CHUNK}")
    e("s_barrier")
    stamp("L0")
    if stamps and "L0" in stamps: e("s_waitcnt lgkmcnt(0)")
    for f in range(4): e(akr(f))
    atile(True)
    e("L_Aloop:")
    atile(False)
    e("s_cbranch_scc0 L_Aloop")
    e("s_waitcnt lgkmcnt(0)")
    e(f"v_mbcnt_lo_u32_b32 v{vLN}, -1, 0"); e(f"v_mbcnt_hi_u32_b32 v{vLN}, -1, v{vLN}")
    e(f"v_lshlrev_b32 v{vDV}, 4, v{vLN}")
    wx_setup(); w_setup("o")

    e("L_Oepi:")
    if tl and not fastlast:
        e(f"s_cmp_eq_u32 s{sROLE}, 0"); e("s_cbranch_scc0 L_tl0"); e("v_mov_b32 v252, v254   ; v_writelane_b32 v247"); e("L_tl0:")
    stamp("attn_done")
    lsum()
    range_check()
    e("L_slow_back:")
    recip()
    for s in range(4):
        for qt in range(4):
            emit(scale(acc(2*s, qt), qt)); emit(pack(s, qt)); e(owr(s, qt))
    e("L_Owr:")
    e("s_waitcnt lgkmcnt(0)")
    e("s_barrier")
    stamp("Owritten")
    proj("o", range(29))
    e(f"s_cmp_eq_u32 s{sROLE}, 0"); e("s_cbranch_scc0 L_OA")
    ex = {30: [], 31: []}
    if early:
        seq = []
        for qt in range(4): seq += pack(0, qt) + pack(1, qt) + pstore(0, qt)
        slots = [(30, g) for g in range(4, 8)] + [(n, g) for n in (30, 31) for g in range(16) for _ in range(2) if (n, g) >= (30, 8)]
        assert len(slots) >= len(seq)
        for (n, g), x in zip(slots, seq): ex[n].append((g, x))
    proj("o", (29, 30, 31), ex, role=0)
    stamp("Odone")
    e("s_branch L_store1" if early else "s_branch L_store0")
    e("L_OA:")
    proj("o", (29, 30, 31), role=1, chain=chainO)
    stamp("Odone")
    e(f"s_setprio {prioP}")
    if not chainO:
        for n in range(3): emit(w_issue(n, "o", sPF))
    pm = sum(1 << d for d in pubd)
    if pm: e(f"s_bitcmp1_b32 {pm:#x}, s{sD}"); e("s_cbranch_scc1 L_store0")
    e("s_barrier")
    pl = sum(1 << d for d in publ)
    if pl: e(f"s_bitcmp1_b32 {pl:#x}, s{sD}"); e("s_cbranch_scc0 L_store0"); e("s_waitcnt vmcnt(0)"); e("s_barrier")
    e("L_store0:")
    for qt in range(4): emit(pack(0, qt) + pack(1, qt) + pstore(0, qt))
    e("L_store1:")
    for qt in range(4): emit(pack(2, qt) + pack(3, qt) + pstore(1, qt))
    stamp("issued")
    if pm:
        e(f"s_lshr_b32 s{sTMP}, {pm:#x}, s{sD}"); e(f"s_and_b32 s{sTMP}, s{sTMP}, s{sROLE}"); e("s_cbranch_scc0 L_nolate"); e("s_barrier"); e("L_nolate:")
    if prioP: e("s_setprio 0")
    e("s_waitcnt vmcnt(14)")
    if pl: e(f"s_lshr_b32 s{sTMP}, {pl:#x}, s{sD}"); e(f"s_and_b32 s{sTMP}, s{sTMP}, s{sROLE}"); e("s_cbranch_scc1 L_passed")
    e("s_barrier")
    e("L_passed:")
    keep = []
    for p in range(8):
        lk = lab("kp"); keep.append(lk)
        if p < 7: e(f"s_cmp_eq_u32 s{sG}, {p}"); e(f"s_cbranch_scc1 {lk}")
    for p in range(7, -1, -1):
        e(f"{keep[p]}:")
        for f in range(2): unpack(RK + 8*f, acc(2*(2*(p & 1) + f), p >> 1))
        if p: e("s_branch L_kept")
    e("L_kept:")
    e(f"s_xor_b32 s{sTMP2}, s{sROLE}, 1")
    e(f"s_lshl_b32 s{sTMP}, s{sTMP2}, 5"); e(f"s_add_u32 s{sTMP}, s{sTMP}, s{sB}"); e(f"s_lshl_b32 s{sTMP}, s{sTMP}, 19")
    mk_srd(sP, 28, 0x80000)
    e(f"s_mul_i32 s{sRO}, s{sG}, {65536 + 2048}"); e(f"s_lshl_b32 s{sTMP}, s{sW}, 14"); e(f"s_add_u32 s{sRO}, s{sRO}, s{sTMP}")
    e(f"s_lshl_b32 s{sTMP}, s{sB}, 17"); mk_srd(sIT, 24, 0x20000)
    e(f"s_lshl_b32 s{sOO}, s{sTMP2}, 10")
    e(f"s_lshr_b32 s{sTMP}, s{sG}, 1"); e(f"s_lshl_b32 s{sTMP}, s{sTMP}, 15"); e(f"s_add_u32 s{sOO}, s{sOO}, s{sTMP}")
    e(f"s_lshl_b32 s{sTMP}, s{sW}, 8"); e(f"s_add_u32 s{sOO}, s{sOO}, s{sTMP}")
    e(f"s_and_b32 s{sTMP}, s{sG}, 1"); e(f"s_lshl_b32 s{sTMP}, s{sTMP}, 7"); e(f"s_add_u32 s{sOO}, s{sOO}, s{sTMP}")
    e(f"v_and_b32 v{vT0}, 15, v{vLN}"); e(f"v_lshlrev_b32 v{vKA}, 11, v{vT0}")
    e(f"v_bfe_u32 v{vT0}, v{vLN}, 4, 1"); e(f"v_lshl_add_u32 v{vKA}, v{vT0}, 5, v{vKA}")
    e(f"v_lshrrev_b32 v{vT0}, 5, v{vLN}"); e(f"v_lshl_add_u32 v{vKA}, v{vT0}, 4, v{vKA}")
    e(f"s_cmp_eq_u32 s{sROLE}, 0"); e("s_cbranch_scc0 L_Apub")
    flag_srd(1)
    lds_arrive(1, "L_Bwait")
    def first(done):
        e(f"buffer_atomic_add v{vT1}, off, {srd(sPF)}, s{sOFF} sc0")
        e("s_waitcnt vmcnt(0)")
        e(f"v_readfirstlane_b32 s{sTMP}, v{vT1}")
        e(f"s_cmp_ge_u32 s{sTMP}, 7"); e(f"s_cbranch_scc1 {done}")
    poll(first)
    e(f"v_mov_b32 v{vT0}, {CNT + 8}"); e(f"v_mov_b32 v{vT1}, 1")
    e(f"ds_write_b32 v{vT0}, v{vT1}")
    e("s_branch L_final")
    e("L_Bwait:")
    e(f"v_mov_b32 v{vT0}, {CNT + 8}")
    e("L_Bspin:")
    e(f"ds_read_b32 v{vT1}, v{vT0}")
    e("s_waitcnt lgkmcnt(0)")
    e(f"v_readfirstlane_b32 s{sTMP}, v{vT1}")
    e(f"s_cmp_eq_u32 s{sTMP}, 0"); e("s_cbranch_scc1 L_Bspin")
    e("s_branch L_final")
    e("L_Apub:")
    flag_srd(0)
    lds_arrive(0, "L_nosig")
    e(f"buffer_atomic_add v{vT1}, off, {srd(sPF)}, s{sOFF}")
    e("L_nosig:")
    e("s_mov_b64 exec, -1")
    stamp("pubA")
    e("s_barrier")
    e(f"s_cmp_eq_u32 s{sW}, 0"); e("s_cbranch_scc0 L_nopoll")
    poll()
    e("L_nopoll:")
    e("s_barrier")
    rl = []
    for k in range(7):
        rl += [f"s_add_u32 s{sRO}, s{sRO}, 0x10000", f"s_and_b32 s{sRO}, s{sRO}, 0x7ffff"]
        rl += [f"buffer_load_dwordx4 {vr(RL + 8*k + 4*f, 4)}, v{vDV}, {srd(sP)}, s{sRO} offen offset:{f*1024} sc1" for f in range(2)]
    if capA: emit(capped(rl, capA)); e("s_branch L_sum")
    e("L_final:")
    e("s_mov_b64 exec, -1")
    stamp("flag")
    emit(rl)
    e("L_sum:")
    for k in range(7):
        for f in range(2):
            e(f"s_waitcnt vmcnt({(6 - k)*2 + 1 - f})")
            dst, tmp = RK + 8*f, RK + 16 + 8*f
            unpack(tmp, RL + 8*k + 4*f)
            for i in range(8): e(f"v_add_f32 v{dst+i}, v{dst+i}, v{tmp+i}")
            if k == 6:
                for i in range(4): e(f"v_cvt_pk_bf16_f32 v{dst+i}, v{dst+2*i}, v{dst+2*i+1}")
    stamp("summed")
    for f in range(2):
        dst = RK + 8*f
        e(f"v_permlane16_swap_b32 v{dst}, v{dst+2}"); e(f"v_permlane16_swap_b32 v{dst+1}, v{dst+3}")
        e(f"buffer_store_dwordx4 {vr(dst, 4)}, v{vKA}, {srd(sIT)}, s{sOO} offen offset:{f*64} sc1")
    if stamps:
        e("s_waitcnt vmcnt(0)")
        stamp("end")
        e("s_memtime s[4:5]")
        e("s_waitcnt lgkmcnt(0)")
        e("s_sub_u32 s4, s4, s100")
        e(f"s_lshl_b32 s{sTMP}, s2, 1"); e(f"s_add_u32 s{sTMP}, s{sTMP}, s{sROLE}"); e(f"s_lshl_b32 s{sTMP}, s{sTMP}, 2"); e(f"s_add_u32 s{sTMP}, s{sTMP}, s{sW}")
        e(f"s_lshl_b32 s{sTMP}, s{sTMP}, 7")
        e(f"s_add_u32 s{sPF}, s28, 0x4000000"); e(f"s_addc_u32 s{sPF+1}, s29, 0"); e(f"s_mov_b32 s{sPF+2}, 0x100000"); e(f"s_mov_b32 s{sPF+3}, 0x20000")
        for i in range(16): e(f"v_mov_b32 v{i}, s{sST+i}")
        e(f"v_mov_b32 v16, s4"); e("v_mov_b32 v17, 0"); e("v_mov_b32 v18, 0"); e("v_mov_b32 v19, 0")
        e(f"v_mov_b32 v20, s{sTMP}")
        if tl:
            e(f"v_lshl_add_u32 v21, v{vLN}, 2, v20"); e("s_mov_b32 exec_hi, 0"); e(f"s_mov_b32 s{sOFF}, 0x80000")
            e(f"buffer_store_dword v252, v21, {srd(sPF)}, s{sOFF} offen")
        e("s_mov_b64 exec, 1")
        for i in range(5): e(f"buffer_store_dwordx4 {vr(4*i, 4)}, v20, {srd(sPF)}, 0 offen offset:{16*i}")
    e("L_end:")
    e("s_endpgm")

    e("L_slow:")
    e(f"s_cmp_eq_u32 s{sROLE}, 0"); e("s_cbranch_scc1 L_slowB")
    dk_setup()
    if asym: e(f"s_mul_i32 s{sKB}, s{sW}, {CHUNK}")
    e(f"v_add_u32 v{vKA}, s{sKB}, v{vKA}"); e(f"v_add_u32 v{vVA}, s{sKB}, v{vVA}"); e(f"v_add_u32 v{vVA}, {VOFF - SLOT}, v{vVA}")
    e(f"s_add_u32 s{sKB}, s{sKB}, {XB}")
    e("L_slowB:")
    e(f"v_add_u32 v{vVA}, {(-VOFF) & 0xffffffff:#x}, v{vVA}")
    for i in range(0, 128, 2): e(f"v_mov_b64 {vr(i, 2)}, 0")
    for i in range(4): e(f"v_mov_b32 v{L+i}, 0"); e(f"v_mov_b32 v{M+i}, {f2u(-3.0e38):#x}")
    e(f"s_mov_b32 s{sROT}, 0")
    e("L_slowloop:")
    emit(k_issue())
    e("s_waitcnt vmcnt(0)")
    qk(None)
    emit(kv_issue(sV, vDV, 0, VBLK))
    for qt in range(4):
        b = S + qt*8; t = F + 2*qt
        e(f"v_max3_f32 v{t}, v{b}, v{b+1}, v{b+2}"); e(f"v_max3_f32 v{t}, v{t}, v{b+3}, v{b+4}")
        e(f"v_max3_f32 v{t}, v{t}, v{b+5}, v{b+6}"); e(f"v_max3_f32 v{t}, v{t}, v{b+7}, v{M+qt}")
        xlane("v_max_f32", [t], [vT0])
        e(f"v_sub_f32 v{t+1}, v{M+qt}, v{t}"); e(f"v_mov_b32 v{M+qt}, v{t}")
        e(f"v_exp_f32 v{t+1}, v{t+1}")
        for i in range(8): e(f"v_sub_f32 v{b+i}, v{b+i}, v{M+qt}")
        e(f"v_mul_f32 v{L+qt}, v{L+qt}, v{t+1}")
        for dt in range(8):
            for i in range(0, 4, 2): e(f"v_pk_mul_f32 {vr(acc(dt, qt)+i, 2)}, {vr(acc(dt, qt)+i, 2)}, {vr(t, 2)} op_sel:[0,1]")
        emit(exps(qt, 0)); emit(cvts(qt, 0))
    e("s_waitcnt vmcnt(0)")
    pv_phase()
    e(f"s_add_u32 s{sROT}, s{sROT}, 8192"); e(f"s_cmp_lt_u32 s{sROT}, 0x20000"); e("s_cbranch_scc1 L_slowloop")
    lsum()
    w_setup("o")
    e("s_branch L_slow_back")
    e("L_last:")

    e('.section .rodata,"a"')
    e(".p2align 6"); e(f".amdhsa_kernel {NAME}_kernel")
    for l in [".amdhsa_next_free_vgpr 256", ".amdhsa_next_free_sgpr 102", ".amdhsa_accum_offset 256", ".amdhsa_group_segment_fixed_size 0",
              ".amdhsa_kernarg_size 104", ".amdhsa_user_sgpr_count 2", ".amdhsa_user_sgpr_kernarg_segment_ptr 1", ".amdhsa_system_sgpr_workgroup_id_x 1",
              ".amdhsa_float_denorm_mode_32 3"]:
        e("  " + l)
    e(".end_amdhsa_kernel")
    n = a.pad()
    return a.text(), n

if __name__ == "__main__":
    kw = eval("dict(" + (sys.argv[2] if len(sys.argv) > 2 else "") + ")")
    txt, n = gen(**kw)
    out = sys.argv[1] if len(sys.argv) > 1 else f"cdna_kernels/{NAME}.s"
    open(out, "w").write(txt)
    print("pad states:", n, "lines:", txt.count("\n"), "LDS", LDS)
```

```python
import sys, math, struct
from asmlib import Asm

NAME = "concat_heads__gqa_block_cached__mha_block_cached__near_ridge"
KBLK = 1088; VBLK = 1056; HALF = 4352; SLOT = 8704; CHUNK = 2*SLOT
XB = 4*SLOT
VOFF = XB + 2*CHUNK
WR0 = XB + 4*CHUNK
WRING = 3*HALF
CNT = WR0 + 4*WRING
LDS = CNT + 64
WBIAS = 128

sK, sV, sWQ, sWO, sX, sP, sIT, sPF = 32, 36, 40, 44, 48, 52, 56, 60
(sROLE, sW, sG, sB, sD, sI, sROT, sOFF, sWRB, sKB, sTMP, sTMP2, sWOFF, sROTA, sIST, sDK, sHI, sOO, sRO, sRQ) = range(64, 84)
sST = 84
def srd(n): return f"s[{n}:{n+3}]"
ACC = 0; Q = 128; S = 192; F = 224; L = 236; ONES = 240
vKA, vVA, vDK, vDV = 242, 243, 244, 245
vWO = 246
vWA, vXA, vIT, vLN, vT0, vT1 = 250, 251, 252, 253, 254, 255
M = 246
AF = 128; BF = 160
RK = 192; RL = 128
def vr(b, n): return f"v[{b}:{b+n-1}]"
def acc(dt, qt): return ACC + ((dt >> 1)*4 + qt)*8 + (dt & 1)*4
def f2u(x): return struct.unpack("<I", struct.pack("<f", x))[0]
MF = "v_mfma_f32_16x16x32_bf16"
GROUPS = (0,0,0,0,0,1,1,1,2,2,3,3,4,5,6,8,9,11,11,12,12,13,13,14,14,14,15,15,15,15,15,15)

def gen(groups=GROUPS, capN=8, capX=8, depth=2, slp=3, prioA=1, lo_exp=-30, hi_exp=30, rel=29, relAq=30, relAo=31, early=True, loose=(), capL=None, asym=True, fastlast=False, duty=None, capA=5, nopf=False, pubd=(), prioP=0, publ=(), chainQ=False, chainO=True, relBo=29, xbf='', first='x w', wpre=3, rotq='g', shift={14: (12, 0, 6), 22: (10, 0, 6)},
        hs={0: "x1", 6: "x2 x3", 14: "q t", 22: "a b"},
        stamps=False, cyc=False, tl=False, force_slow=False):
    a = Asm(); e = a
    qbars = (6, 14, 22)
    VOFF = SLOT if asym else XB + 2*CHUNK
    def stamp(nm):
        if stamps and nm in stamps:
            i = stamps.index(nm); e(f"{'s_memtime' if cyc else 's_memrealtime'} s[{sST+2*i}:{sST+2*i+1}]")
    def emit(lst):
        for x in lst:
            if x: e(x)
    uid = [0]
    def lab(p):
        uid[0] += 1; return f"L_{p}{uid[0]}"
    def mk_srd(r, lo, size):
        e(f"s_add_u32 s{r}, s{lo}, s{sTMP}"); e(f"s_addc_u32 s{r+1}, s{lo+1}, 0"); e(f"s_mov_b32 s{r+2}, {size:#x}"); e(f"s_mov_b32 s{r+3}, 0x20000")

    order = [(n >> 1, n & 1) for n in range(28)] + [(14, 0), (15, 0), (14, 1), (15, 1)]
    def w_setup(kind):
        sh = 13 if kind == "q" else 10
        if kind == "q":
            e(f"v_bfe_u32 v{vT0}, v{vLN}, 3, 2"); e(f"v_lshlrev_b32 v{vWO}, {sh+3}, v{vT0}")
            e(f"v_lshrrev_b32 v{vT0}, 5, v{vLN}"); e(f"v_lshl_add_u32 v{vWO}, v{vT0}, {sh+2}, v{vWO}")
        else:
            e(f"v_lshrrev_b32 v{vT0}, 3, v{vLN}"); e(f"v_lshlrev_b32 v{vWO}, {sh+2}, v{vT0}")
        e(f"v_and_b32 v{vT0}, 7, v{vLN}"); e(f"v_lshl_add_u32 v{vWO}, v{vT0}, 4, v{vWO}")
        for r in (3, 2, 1, 0):
            e(f"v_add_u32 v{vWO+r}, {r*((1 << sh) - VBLK) + WBIAS}, v{vWO}")
    def w_issue(n, kind, sr=None):
        sr, sh = (sr or sWQ, 13) if kind == "q" else (sr or sWO, 10)
        ks, ch = order[n]
        out = [f"s_add_u32 m0, s{sWRB}, {(n % 3)*HALF}", f"s_mov_b32 s{sWOFF}, {ks*(32 << sh) + ch*128}"]
        if rotq and kind == "q": out[1] = f"s_xor_b32 s{sWOFF}, s{sRQ}, {ks*(32 << sh) + ch*128}"
        for r in range(4):
            out.append(f"buffer_load_dwordx4 v{vWO+r}, {srd(sr)}, s{sWOFF} offen offset:{r*VBLK} lds")
        return out
    def w_srd(r, lo):
        e(f"s_add_u32 s{r}, s{lo}, s{sTMP}"); e(f"s_addc_u32 s{r+1}, s{lo+1}, 0")
        e(f"s_sub_u32 s{r}, s{r}, {WBIAS}"); e(f"s_subb_u32 s{r+1}, s{r+1}, 0")
        e(f"s_sub_u32 s{r+2}, {0x400000 + WBIAS}, s{sTMP}"); e(f"s_mov_b32 s{r+3}, 0x20000")
    def wo_srd(lo, r=sWO):
        e(f"s_lshl_b32 s{sTMP}, s{sG}, 19"); e(f"s_lshl_b32 s{sTMP2}, s{sW}, 8"); e(f"s_add_u32 s{sTMP}, s{sTMP}, s{sTMP2}")
        w_srd(r, lo)
    def kv_issue(sr, voff, imm, blk):
        out = [f"s_add_u32 s{sOFF}, s{sROT}, 4096"]
        for j in (0, 4, 2, 6, 1, 5, 3, 7):
            out.append(f"s_add_u32 m0, s{sKB}, {imm + j*blk - (j % 4)*1024}")
            out.append(f"buffer_load_dwordx4 v{voff}, {srd(sr)}, s{sOFF if j >= 4 else sROT} offen offset:{(j % 4)*1024} nt lds")
        return out
    def capped(lst, n):
        if not n: return lst
        out = []
        for x in lst:
            if x.startswith("buffer_load"): out.append(f"s_waitcnt vmcnt({n-1})")
            out.append(x)
        return out
    def k_issue(): return kv_issue(sK, vDK, 0, KBLK)
    def v_issue(): return kv_issue(sV, vDV, VOFF, VBLK)
    def xrot():
        return [f"s_lshr_b32 s{sTMP}, s{sRQ}, 12", f"s_xor_b32 s{sOFF}, s{sOFF}, s{sTMP}"] if rotq else []
    def x_issue(c, flag=""):
        e(f"s_lshl_b32 s{sOFF}, s{sW}, 14"); e(f"s_add_u32 s{sOFF}, s{sOFF}, {c*256}")
        emit(xrot())
        e(f"s_mul_i32 s{sTMP}, s{sW}, {HALF}")
        for j in range(4):
            e(f"s_add_u32 m0, s{sTMP}, {XB + c*CHUNK + j*64}")
            e(f"buffer_load_dwordx4 v{vT1}, {srd(sX)}, s{sOFF} offen offset:{j*1024} {flag} lds")
    def x_half(h):
        out = [f"s_lshl_b32 s{sOFF}, s{sW}, 8", f"s_add_u32 s{sOFF}, s{sOFF}, {h*32768}"] + xrot()
        for j in range(8):
            if j == 4: out.append(f"s_add_u32 s{sOFF}, s{sOFF}, 16384")
            out.append(f"s_add_u32 m0, s{sKB}, {h*SLOT + (j >> 2)*HALF + (j & 3)*64}")
            out.append(f"buffer_load_dwordx4 v{vT1}, {srd(sX)}, s{sOFF} offen offset:{(j & 3)*1024} nt lds")
        return out
    def x_own():
        out = [f"s_and_b32 s{sOFF}, s{sW}, 1", f"s_lshl_b32 s{sOFF}, s{sOFF}, 7", f"s_add_u32 s{sOFF}, s{sOFF}, s{sHI}",
               f"s_lshl_b32 s{sOFF}, s{sOFF}, 8", f"s_add_u32 s{sOFF}, s{sOFF}, 512"]
        for j in range(8):
            if j == 4: out.append(f"s_add_u32 s{sOFF}, s{sOFF}, 16384")
            out.append(f"s_add_u32 m0, s{sKB}, {VOFF + (j >> 2)*HALF + (j & 3)*64}")
            out.append(f"buffer_load_dwordx4 v{vT1}, {srd(sX)}, s{sOFF} offen offset:{(j & 3)*1024} nt lds")
        return out
    def x_voff():
        e(f"v_lshrrev_b32 v{vT0}, 4, v{vLN}"); e(f"v_sub_u32 v{vT1}, 0, v{vT0}"); e(f"v_and_b32 v{vT1}, 3, v{vT1}")
        e(f"v_xor_b32 v{vT1}, v{vT1}, v{vLN}"); e(f"v_and_b32 v{vT1}, 15, v{vT1}"); e(f"v_lshlrev_b32 v{vT1}, 4, v{vT1}")
        e(f"v_lshl_add_u32 v{vT1}, v{vT0}, 12, v{vT1}")
    def x_srd(lo):
        e(f"s_lshl_b32 s{sTMP}, s{sB}, 16"); mk_srd(sX, lo, 0x10000)
    dm = 1 if duty else 0
    def xa_touch(sb=sB, lo=4):
        e(f"s_lshl_b32 s{sTMP}, s{sb}, 3"); e(f"s_add_u32 s{sTMP}, s{sTMP}, s{sG}")
        e(f"s_lshl_b32 s{sTMP}, s{sTMP}, 2"); e(f"s_add_u32 s{sTMP}, s{sTMP}, s{sW}"); e(f"s_lshl_b32 s{sTMP}, s{sTMP}, {11 + dm}")
        mk_srd(sPF, lo, 0x800 << dm)
        for r in range(2 << dm): e(f"buffer_load_dwordx4 {vr(S + 16 + 4*r, 4)}, v{vDV}, {srd(sPF)}, 0 offen offset:{r*1024}")
    def coop_prefetch(lo, sh, goff_sh, sb=sB):
        e(f"s_lshl_b32 s{sTMP}, s{sG}, {goff_sh}")
        e(f"s_add_u32 s{sPF}, s{lo}, s{sTMP}"); e(f"s_addc_u32 s{sPF+1}, s{lo+1}, 0")
        e(f"s_sub_u32 s{sPF+2}, 0x400000, s{sTMP}"); e(f"s_mov_b32 s{sPF+3}, 0x20000")
        e(f"s_lshl_b32 s{sTMP}, s{sb}, 2"); e(f"s_add_u32 s{sTMP}, s{sTMP}, s{sW}"); e(f"s_lshl_b32 s{sTMP}, s{sTMP}, {sh+2+dm}")
        for r in range(4 << dm):
            e(f"buffer_load_dwordx4 {vr(S + 4*(r % 4), 4)}, v{vDV}, {srd(sPF)}, s{sTMP} offen")
            if r < (4 << dm) - 1: e(f"s_add_u32 s{sTMP}, s{sTMP}, {1 << sh}")

    def xoff(kind, c, qt):
        return c*CHUNK + qt*HALF if (kind == "q" or asym) else (qt >> 1)*2*CHUNK + c*SLOT + (qt & 1)*HALF
    def pack(sx, qt):
        b = acc(2*sx, qt)
        return [f"v_cvt_pk_bf16_f32 v{b+i}, v{b+2*i}, v{b+2*i+1}" for i in range(4)]
    def pstore(sp, qt):
        st = [f"buffer_store_dwordx4 {vr(acc(2*sx, qt), 4)}, v{vDV}, {srd(sP)}, s{sOFF} offen offset:{sx*1024} sc1" for sx in (2*sp, 2*sp + 1)]
        l = lab("ps")
        return [f"s_mov_b32 s{sOFF}, {qt*4096}", f"s_cmp_eq_u32 s{sG}, {qt*2 + sp}", f"s_cbranch_scc1 {l}\n{st[0]}\n{st[1]}\n{l}:", ""]
    def proj(kind, steps=range(32), extra={}, role=None, chain=False):
        def ra(n):
            return [f"ds_read_b64_tr_b16 {vr(AF + (n % 2)*16 + d*4 + ee*2, 2)}, v{vWA} offset:{(n % 3)*HALF + ee*512 + d*32}" for d in range(4) for ee in range(2)]
        def rb(ks, qts):
            return [f"ds_read_b128 {vr(BF + (ks % 2)*16 + qt*4, 4)}, v{vXA} offset:{xoff(kind, ks >> 2, qt) + (ks & 3)*64}" for qt in qts]
        for n in steps:
            if n == 0:
                e("s_waitcnt vmcnt(8)")
                emit(rb(0, range(4))); emit(ra(0))
                e("s_waitcnt lgkmcnt(0)")
            stamp(f"{kind}{n}")
            ks, ch = order[n]
            rd = ra(n + 1) if n < 31 else []
            if n < 28: rd = rd + rb(ks + 1, (2*ch, 2*ch + 1))
            if n == 28: rd = rd + rb(15, range(4))
            dm = w_issue(n + 3, kind) if n + 3 < 32 else []
            if chain and n >= 29: dm = w_issue(n % 3, kind, sPF)
            if n < 31: e("s_waitcnt vmcnt(4)" if (n <= 29 or chain) else "s_waitcnt vmcnt(0)")
            relA = (relAq if kind == "q" else relAo) or rel
            if role is not None:
                if n == (relA if role else (rel if kind == "q" else relBo)): e("s_barrier")
            elif (kind == "q" and n in qbars) or n == rel == relA: e("s_barrier")
            elif n in (rel, relA):
                l1 = lab("nb"); e(f"s_cmp_eq_u32 s{sROLE}, {int(n == relA)}"); e(f"s_cbranch_scc0 {l1}"); e("s_barrier"); e(f"{l1}:")
            gaps = [[] for _ in range(16)]
            for i, x in enumerate(rd): gaps[i].append(x)
            if dm:
                gaps[2].append(dm[0]); gaps[3].append(dm[1])
                for i in range(4): gaps[(4, 6, 8, 12)[i]].append(dm[2 + i])
            for g, x in extra.get(n, []): gaps[g].append(x)
            k = 0
            for d in range(4):
                for qt in (range(3, -1, -1) if d % 2 else range(4)):
                    r = vr(acc(4*ch + d, qt), 4)
                    e(f"{MF} {r}, {vr(AF + (n % 2)*16 + d*4, 4)}, {vr(BF + (ks % 2)*16 + qt*4, 4)}, {r if ks else '0'}")
                    emit(gaps[k]); k += 1
            if n < 31: e("s_waitcnt lgkmcnt(0)")

    def Sr(qt, u): return S + qt*8 + u*4
    def exps(qt, u): return [f"v_exp_f32 v{Sr(qt, u)+i}, v{Sr(qt, u)+i}" for i in range(4)]
    def cvts(qt, u): return [f"v_cvt_pk_bf16_f32 v{S+qt*8+2*u+i}, v{Sr(qt, u)+2*i}, v{Sr(qt, u)+2*i+1}" for i in range(2)]
    def kr(f): return f"ds_read_b128 {vr(F + (f % 3)*4, 4)}, v{vKA} offset:{(f >> 2)*512 + (f & 3)*64}"
    vbuf = [F, F + 4, F + 8, S + 4, S + 12, S + 20, S + 28, F]
    def vrd(dt): return [f"ds_read_b64_tr_b16 {vr(vbuf[dt] + 2*u, 2)}, v{vVA} offset:{u*512 + dt*32}" for u in range(2)]
    def sums(qt): return [f"v_mfma_f32_4x4x4_16b_bf16 {vr(L, 4)}, {vr(ONES, 2)}, {vr(S + qt*8 + 2*h, 2)}, {vr(L, 4)} cbsz:2 abid:{qt}" for h in range(2)]
    def pv(dt, qt): return f"{MF} {vr(acc(dt, qt), 4)}, {vr(vbuf[dt], 4)}, {vr(S + qt*8, 4)}, {vr(acc(dt, qt), 4)}"
    def qk(fill):
        for f in range(3): e(kr(f))
        m = 0
        for f in range(8):
            u, s = f >> 2, f & 3
            e(f"s_waitcnt lgkmcnt({min(2, 7 - f)})")
            for qt in range(4):
                r = vr(Sr(qt, u), 4)
                e(f"{MF} {r}, {vr(F + (f % 3)*4, 4)}, {vr(Q + (qt*4 + s)*4, 4)}, {r if s else '0'}")
                if u == 1:
                    if m >= 3 and fill: e(fill.pop(0))
                    m += 1
            if f + 3 < 8: e(kr(f + 3))
    def pv_phase():
        pre = [exps(qt, 1) + cvts(qt, 1) for qt in range(4)]
        for dt in range(3): emit(vrd(dt))
        emit(pre[0]); emit(vrd(3))
        for qt in range(4):
            nxt = (pre[qt + 1] + vrd(4 + qt)) if qt < 3 else []
            per = math.ceil(len(nxt) / 4)
            sm = sums(qt)
            for dt in range(3):
                if qt == 0: e(f"s_waitcnt lgkmcnt({6 - 2*dt})")
                e(pv(dt, qt)); emit(nxt[dt*per:(dt+1)*per])
                if dt == 0: e(sm[0])
            e(sm[1]); emit(nxt[3*per:])
        emit(vrd(7))
        for dt in range(3, 8):
            e(f"s_waitcnt lgkmcnt({2*(7 - dt)})")
            for qt in (range(3, -1, -1) if dt % 2 else range(4)): e(pv(dt, qt))
    def xlane(op, regs, tmps):
        for sw in ("32", "16"):
            for r, t in zip(regs, tmps): e(f"v_mov_b32 v{t}, v{r}")
            for r, t in zip(regs, tmps): e(f"v_permlane{sw}_swap_b32 v{r}, v{t}")
            for r, t in zip(regs, tmps): e(f"{op} v{r}, v{r}, v{t}")
    def lsum(): xlane("v_add_f32", range(L, L + 4), range(F, F + 4))

    def flag_srd(branch):
        e(f"s_add_u32 s{sPF}, s28, 0x2000000"); e(f"s_addc_u32 s{sPF+1}, s29, 0"); e(f"s_mov_b32 s{sPF+2}, 0x8000"); e(f"s_mov_b32 s{sPF+3}, 0x20000")
        e(f"s_mul_i32 s{sOFF}, s{sB}, 768"); e(f"s_add_u32 s{sOFF}, s{sOFF}, {branch*256}")
    def dbg_srd():
        e(f"s_mov_b32 s{sPF}, s26"); e(f"s_mov_b32 s{sPF+1}, s27"); e(f"s_mov_b32 s{sPF+2}, 256"); e(f"s_mov_b32 s{sPF+3}, 0x20000")
        e(f"s_lshl_b32 s{sOFF}, s{sB}, 3")
    def poll(first=None, tmp=vT0):
        l0, l1 = lab("pl"), lab("pl")
        e("s_mov_b64 exec, 1")
        if first: first(l1)
        e(f"s_mov_b32 s{sTMP2}, 0x40000")
        e(f"{l0}:")
        e(f"buffer_load_dword v{tmp}, off, {srd(sPF)}, s{sOFF} sc1")
        e("s_waitcnt vmcnt(0)")
        e(f"v_readfirstlane_b32 s{sTMP}, v{tmp}")
        e(f"s_cmp_eq_u32 s{sTMP}, 8"); e(f"s_cbranch_scc1 {l1}")
        e(f"s_sleep {slp}")
        e(f"s_sub_u32 s{sTMP2}, s{sTMP2}, 1"); e(f"s_cmp_lg_u32 s{sTMP2}, 0"); e(f"s_cbranch_scc1 {l0}")
        e(f"{l1}:")
        e("s_mov_b64 exec, -1")
    def lds_arrive(word, notlast):
        e(f"v_mov_b32 v{vT0}, {CNT + 4*word}"); e(f"v_mov_b32 v{vT1}, 1")
        e("s_mov_b64 exec, 1")
        e("s_waitcnt vmcnt(0)")
        stamp("drained")
        e(f"ds_add_rtn_u32 v{vT0}, v{vT0}, v{vT1}")
        e("s_waitcnt lgkmcnt(0)")
        e(f"v_readfirstlane_b32 s{sTMP}, v{vT0}")
        e(f"s_cmp_eq_u32 s{sTMP}, 3"); e(f"s_cbranch_scc0 {notlast}")
    def unpack(dst, src):
        for i in range(4):
            e(f"v_lshlrev_b32 v{dst+2*i}, 16, v{src+i}"); e(f"v_and_b32 v{dst+2*i+1}, 0xffff0000, v{src+i}")

    if stamps: e(f"; stamps: {stamps}")
    for l in """out = concat(GQA(A), MHA(B)), each branch = softmax(x Wq K^T / sqrt(128)) V Wo, fused in one kernel.
Kernarg: A_x A_k A_v A_wq A_wo B_x B_k B_v B_wq B_wo out debug ws (8 bytes each).
Workgroup = (batch b = id>>3, head group g = id&7): waves 0-3 own B's heads 4g..4g+3, waves 4-7 A's.
Phases per workgroup: Q_B | attention B ... [Q_A | attention A | O_A at a batch-dependent tile] ... | O_B | reduce.
The wave set that is not computing issues the LDS loads for the other one.
Softmax: exp2 of the unshifted scores; every row sum is range-checked and the head is redone with the
true running max (L_slow) when a sum leaves [2^-30, 2^30].
The eight workgroups of a batch exchange bf16 partial sums of the output projection through ws
(write-through stores, counters zeroed in this launch, announced through debug).""".split("\n"): e("; " + l)
    e(f"; @launch grid=(256,1,1) block=(512,1,1) lds={LDS}")
    e('.amdgcn_target "amdgcn-amd-amdhsa--gfx950"')
    e(".text"); e(f".globl {NAME}_kernel"); e(".p2align 8"); e(f".type {NAME}_kernel,@function")
    e(f"{NAME}_kernel:")
    e("s_cmp_ge_u32 s2, 256"); e("s_cbranch_scc1 L_end")
    e("s_load_dwordx16 s[4:19], s[0:1], 0"); e("s_load_dwordx8 s[20:27], s[0:1], 64"); e("s_load_dwordx2 s[28:29], s[0:1], 96")
    if stamps:
        for i in range(16): e(f"s_mov_b32 s{sST+i}, 0")
        e("s_memtime s[100:101]")
    stamp("start")
    e("s_getpc_b64 s[30:31]"); e("L_pc:")
    e("v_lshlrev_b32 v2, 3, v0"); e("v_mov_b32 v3, s31")
    e("v_add_co_u32 v4, vcc, s30, v2"); e("s_lshr_b32 s3, s2, 4"); e("s_add_u32 s3, s3, 1"); e("v_addc_co_u32 v5, vcc, 0, v3, vcc")
    e("s_mov_b32 exec_lo, 0x10001"); e("s_mov_b32 exec_hi, exec_lo")
    e("global_load_dword v8, v[4:5], off")
    e("s_mov_b64 exec, -1")
    e("v_lshl_add_u32 v2, s3, 12, v2"); e("v_min_u32 v2, L_last-L_pc-4, v2")
    e("v_add_co_u32 v6, vcc, s30, v2"); e("s_bitcmp1_b32 s2, 3"); e("s_mov_b32 s3, 0x10001"); e("v_addc_co_u32 v7, vcc, 0, v3, vcc")
    e("s_cselect_b32 exec_lo, 0, s3"); e("s_cselect_b32 exec_hi, s3, 0")
    if not nopf: e("global_load_dword v9, v[6:7], off")
    e("s_mov_b64 exec, -1")
    e(f"v_lshrrev_b32 v1, 6, v0"); e(f"v_and_b32 v{vLN}, 63, v0"); e(f"v_readfirstlane_b32 s{sTMP}, v1")
    e(f"s_and_b32 s{sG}, s2, 7"); e(f"s_lshr_b32 s{sB}, s2, 3")
    e(f"s_and_b32 s{sW}, s{sTMP}, 3"); e(f"s_lshr_b32 s{sROLE}, s{sTMP}, 2"); e(f"s_lshr_b32 s{sHI}, s{sW}, 1")
    e(f"s_mul_i32 s{sWRB}, s{sW}, {WRING}"); e(f"s_add_u32 s{sWRB}, s{sWRB}, {WR0}")
    if rotq:
        assert asym
        if rotq == "g": e(f"s_and_b32 s{sRQ}, s{sG}, 3")
        elif rotq == "b": e(f"s_and_b32 s{sRQ}, s{sB}, 3")
        else: e(f"s_add_u32 s{sRQ}, s{sG}, s{sB}"); e(f"s_and_b32 s{sRQ}, s{sRQ}, 3")
        e(f"s_lshl_b32 s{sRQ}, s{sRQ}, 20")
    e(f"v_lshlrev_b32 v{vDV}, 4, v{vLN}")
    w_setup("q")
    x_voff()
    e("s_waitcnt lgkmcnt(0)")
    e(f"s_cmp_eq_u32 s{sROLE}, 0")
    e(f"s_cselect_b32 s{sWQ}, s20, s10"); e(f"s_cselect_b32 s{sWQ+1}, s21, s11")
    e(f"s_lshl_b32 s{sTMP}, s{sG}, 2"); e(f"s_add_u32 s{sTMP}, s{sTMP}, s{sW}"); e(f"s_lshl_b32 s{sTMP}, s{sTMP}, 8")
    w_srd(sWQ, sWQ)
    e(f"s_cmp_eq_u32 s{sROLE}, 0"); e("s_cbranch_scc1 L_first_B")
    if prioA: e(f"s_setprio {prioA}")
    x_srd(14)
    if duty:
        e(f"s_cmp_lt_u32 s{sB}, 16"); e("s_cbranch_scc0 L_nod0")
        coop_prefetch(20, 13, 10)
        e("L_nod0:")
        x_issue(0)
    else:
        q0 = []
        for act in first.split():
            if act == "x": x_issue(0); q0 += ["x0"]*4
            elif act == "w": coop_prefetch(20, 13, 10); q0 += ["w"]*4
            elif act == "u": xa_touch(lo=14); q0 += ["u"]*2
    e("s_branch L_common")
    e("L_first_B:")
    for n in range(wpre): emit(w_issue(n, "q"))
    x_srd(4)
    e("L_common:")
    tab = [groups[b * len(groups) // 32] for b in range(32)]
    assert all(0 <= d <= 15 for d in tab)
    wd = [sum(tab[8*i + j] << (4*j) for j in range(8)) for i in range(4)]
    e(f"s_bitcmp0_b32 s{sB}, 3")
    e(f"s_mov_b32 s{sTMP}, {wd[1]:#x}"); e(f"s_cselect_b32 s{sTMP}, {wd[0]:#x}, s{sTMP}")
    e(f"s_mov_b32 s{sTMP2}, {wd[3]:#x}"); e(f"s_cselect_b32 s{sTMP2}, {wd[2]:#x}, s{sTMP2}")
    e(f"s_bitcmp0_b32 s{sB}, 4"); e(f"s_cselect_b32 s{sTMP}, s{sTMP}, s{sTMP2}")
    e(f"s_and_b32 s{sTMP2}, s{sB}, 7"); e(f"s_lshl_b32 s{sTMP2}, s{sTMP2}, 2")
    e(f"s_lshr_b32 s{sTMP}, s{sTMP}, s{sTMP2}"); e(f"s_and_b32 s{sD}, s{sTMP}, 15")
    if asym:
        e(f"s_lshl_b32 s{sTMP}, s{sHI}, 1"); e(f"s_add_u32 s{sTMP}, s{sTMP}, s{sW}"); e(f"s_mul_i32 s{sKB}, s{sTMP}, {CHUNK}")
        e(f"s_cmp_eq_u32 s{sHI}, 0"); e(f"s_cselect_b32 s{sOO}, 17, s{sD}")
    else: e(f"s_mul_i32 s{sKB}, s{sW}, {SLOT}")
    def dk_setup():
        e(f"v_bfe_u32 v{vT0}, v{vLN}, 4, 1"); e(f"v_lshlrev_b32 v{vT0}, 4, v{vT0}"); e(f"v_xor_b32 v{vDK}, v{vDV}, v{vT0}")
    dk_setup()
    t0, t1 = F, F + 1
    e(f"v_and_b32 v{t0}, 7, v{vLN}"); e(f"v_mul_u32_u24 v{vKA}, {KBLK}, v{t0}")
    e(f"v_bfe_u32 v{t0}, v{vLN}, 3, 1"); e(f"v_lshl_add_u32 v{vKA}, v{t0}, 8, v{vKA}")
    e(f"v_lshrrev_b32 v{t1}, 5, v{vLN}"); e(f"v_xor_b32 v{t0}, v{t0}, v{t1}"); e(f"v_lshl_add_u32 v{vKA}, v{t0}, 4, v{vKA}")
    e(f"v_bfe_u32 v{t0}, v{vLN}, 4, 1"); e(f"v_lshl_add_u32 v{vKA}, v{t0}, 5, v{vKA}")
    e(f"v_bfe_u32 v{t0}, v{vLN}, 2, 3"); e(f"v_mul_u32_u24 v{vVA}, {VBLK}, v{t0}")
    e(f"v_lshl_add_u32 v{vVA}, v{t1}, 8, v{vVA}")
    e(f"v_and_b32 v{t0}, 3, v{vLN}"); e(f"v_lshl_add_u32 v{vVA}, v{t0}, 3, v{vVA}")
    def wx_setup():
        e(f"v_and_b32 v{t0}, 3, v{vLN}")
        e(f"v_bfe_u32 v{t1}, v{vLN}, 2, 2"); e(f"v_mul_u32_u24 v{vWA}, {VBLK}, v{t1}")
        e(f"v_lshl_add_u32 v{vWA}, v{t0}, 3, v{vWA}")
        e(f"v_lshrrev_b32 v{t0+2}, 4, v{vLN}"); e(f"v_lshl_add_u32 v{vWA}, v{t0+2}, 7, v{vWA}"); e(f"v_add_u32 v{vWA}, s{sWRB}, v{vWA}")
        e(f"v_mul_u32_u24 v{vXA}, {KBLK}, v{t0}"); e(f"v_lshl_add_u32 v{vXA}, v{t1}, 8, v{vXA}")
        e(f"v_sub_u32 v{t0+3}, 0, v{t1}"); e(f"v_and_b32 v{t0+3}, 3, v{t0+3}"); e(f"v_xor_b32 v{t0+3}, v{t0+3}, v{t0+2}")
        e(f"v_lshl_add_u32 v{vXA}, v{t0+3}, 4, v{vXA}"); e(f"v_add_u32 v{vXA}, {XB}, v{vXA}")
    wx_setup()
    e(f"v_cmp_eq_u32 vcc, v{t0}, v{t1}"); e(f"v_mov_b32 v{t0+2}, 0x3f803f80")
    for i in range(4): e(f"v_mov_b32 v{L+i}, 0")
    e(f"v_cndmask_b32 v{ONES}, 0, v{t0+2}, vcc"); e(f"v_mov_b32 v{ONES+1}, v{ONES}")
    e(f"s_lshl_b32 s{sTMP}, s2, 2"); e(f"s_add_u32 s{sTMP2}, s{sTMP}, s{sW}")
    e(f"s_and_b32 s{sROT}, s{sTMP2}, 15"); e(f"s_lshl_b32 s{sROT}, s{sROT}, 13")
    e(f"s_lshl_b32 s{sTMP}, s{sTMP2}, 17")
    mk_srd(sK, 16, 0x20000); mk_srd(sV, 18, 0x20000)
    e(f"s_xor_b32 s{sTMP}, s{sROLE}, 1"); e(f"s_lshl_b32 s{sTMP}, s{sTMP}, 10"); e(f"s_add_u32 s{sTMP}, s{sTMP}, s{sTMP2}"); e(f"s_lshl_b32 s{sTMP}, s{sTMP}, 14")
    mk_srd(sP, 28, 0x4000)
    wo_srd(12)
    e(f"s_bitcmp0_b32 s{sW}, 0")
    e(f"s_cselect_b32 s{sIT}, s6, s8"); e(f"s_cselect_b32 s{sIT+1}, s7, s9"); e(f"s_cselect_b32 s{sIST}, {KBLK-1024}, {VBLK-1024}")
    e(f"s_cselect_b64 vcc, -1, 0"); e(f"s_cselect_b32 s{sDK}, 0, {SLOT}")
    e(f"v_cndmask_b32 v{vIT}, v{vDV}, v{vDK}, vcc")
    e(f"s_lshl_b32 s{sTMP}, s2, 17"); mk_srd(sIT, sIT, 0x20000)
    e(f"s_and_b32 s{sROTA}, s2, 15"); e(f"s_lshl_b32 s{sROTA}, s{sROTA}, 1"); e(f"s_add_u32 s{sROTA}, s{sROTA}, s{sHI}"); e(f"s_lshl_b32 s{sROTA}, s{sROTA}, 12")
    e(f"s_add_u32 s{sTMP}, s{sIST}, 1024"); e(f"s_mul_i32 s{sTMP}, s{sTMP}, s{sHI}"); e(f"s_lshl_b32 s{sTMP}, s{sTMP}, 2"); e(f"s_add_u32 s{sDK}, s{sDK}, s{sTMP}")
    e(f"s_cmp_eq_u32 s{sROLE}, 0"); e("s_cbranch_scc1 L_Binit")

    e(f"v_add_u32 v{vKA}, {XB}, v{vKA}"); e(f"v_add_u32 v{vVA}, {XB + SLOT}, v{vVA}")
    e(f"v_mov_b32 v{t0}, {CNT}"); e(f"ds_write_b128 v{t0}, {vr(L, 4)}")
    e("s_waitcnt lgkmcnt(0)")
    def counter_init(slot):
        ln = lab("ni")
        e(f"s_or_b32 s{sTMP}, s{sG}, s{sW}"); e(f"s_cmp_eq_u32 s{sTMP}, 0"); e(f"s_cbranch_scc0 {ln}")
        e("s_mov_b64 exec, 1")
        if slot == 0:
            flag_srd(0)
            e(f"buffer_store_dword v{L}, off, {srd(sPF)}, s{sOFF} sc1"); e(f"buffer_store_dword v{L}, off, {srd(sPF)}, s{sOFF} offset:256 sc1")
        else:
            e("s_waitcnt vmcnt(0)")
            dbg_srd()
            e(f"v_mov_b32 v{vT0}, 8"); e(f"buffer_store_dword v{vT0}, off, {srd(sPF)}, s{sOFF} sc1")
        e("s_mov_b64 exec, -1")
        e(f"{ln}:")
    def helper(sch):
        q = ["x0"]*4 if duty else list(q0)
        due = {0: sch.get("p0", "x0"), 6: "x1", 14: "x3" if shift else "x2", 22: "x3"}
        for slot, nxt in zip((-1, 0) + qbars, (0,) + qbars + (rel,)):
            if slot in (0, 6): counter_init(slot)
            if shift and slot >= 14:
                sp = shift[slot] if isinstance(shift, dict) else shift
                if len(sp) == 3:
                    lo, n0, n1 = sp; giv = list(range(lo, lo + n0 + n1)); tak = list(range(n0)) + list(range(32 - n1, 32))
                else: giv, tak = map(list, sp)
                assert len(giv) == len(tak) <= 12 and not set(giv) & set(tak) and tak == sorted(tak)
                def shares(sb):
                    for act in sch.get(slot, "").split():
                        if act == "t": xa_touch(sb)
                        else: coop_prefetch(*{"q": (10, 13, 10), "a": (12, 10, 19), "b": (22, 10, 19)}[act], sb)
                ls = lab("sh")
                gm, tm = sum(1 << x for x in giv), sum(1 << x for x in tak)
                tabv = sum(x << (5*k) for k, x in enumerate(giv))
                e(f"s_bitcmp1_b32 {gm:#x}, s{sB}"); e(f"s_cbranch_scc1 {ls}")
                shares(sB)
                e(f"s_bitcmp1_b32 {tm:#x}, s{sB}"); e(f"s_cbranch_scc0 {ls}")
                e(f"s_bfm_b32 s{sRO}, s{sB}, 0"); e(f"s_and_b32 s{sRO}, s{sRO}, {tm:#x}"); e(f"s_bcnt1_i32_b32 s{sRO}, s{sRO}"); e(f"s_mul_i32 s{sRO}, s{sRO}, 5")
                e(f"s_mov_b32 s{sTMP}, {tabv & 0xffffffff:#x}"); e(f"s_mov_b32 s{sTMP2}, {tabv >> 32:#x}")
                e(f"s_lshr_b64 s[{sTMP}:{sTMP2}], s[{sTMP}:{sTMP2}], s{sRO}"); e(f"s_and_b32 s{sRO}, s{sTMP}, 31")
                shares(sRO)
                e(f"{ls}:")
                e("s_barrier"); continue
            for act in sch.get(slot, "").split():
                if act[0] == "x": x_issue(int(act[1]), xbf); q += [act]*4
                elif act == "u": xa_touch(lo=14); q += [act]*2
                elif act == "v":
                    e(f"s_lshl_b32 s{sTMP}, s{sG}, 2"); e(f"s_add_u32 s{sTMP}, s{sTMP}, s{sW}"); e(f"s_lshl_b32 s{sTMP}, s{sTMP}, 11")
                    e(f"v_and_b32 v2, 512, v{vDV}"); e(f"v_add_u32 v2, v2, v{vDV}")
                    e(f"buffer_load_dwordx4 {vr(S + 16, 4)}, v2, {srd(sX)}, s{sTMP} offen offset:512"); q += [act]
                elif act == "q": coop_prefetch(10, 13, 10); q += [act]*(4 << dm)
                elif act == "a": coop_prefetch(12, 10, 19); q += [act]*(4 << dm)
                elif act == "b": coop_prefetch(22, 10, 19); q += [act]*(4 << dm)
                elif act == "t": xa_touch(); q += [act]*(2 << dm)
                elif act == "k": emit(k_issue()); q += [act]*8
                elif act == "c":
                    e(f"s_lshl_b32 s{sTMP}, s{sB}, 2"); e(f"s_add_u32 s{sTMP}, s{sTMP}, s{sW}"); e(f"s_lshl_b32 s{sTMP}, s{sTMP}, 7")
                    e(f"v_lshl_add_u32 v2, v{vLN}, 14, s{sTMP}"); e("v_min_u32 v2, L_last-L_pc-4, v2")
                    e("v_add_co_u32 v2, vcc, s30, v2"); e("v_mov_b32 v3, s31"); e("s_nop 0"); e("v_addc_co_u32 v3, vcc, 0, v3, vcc")
                    e("s_mov_b64 exec, 7"); e("global_load_dword v4, v[2:3], off"); e("s_mov_b64 exec, -1"); q += [act]
            if nxt in due:
                last = max(i for i, x in enumerate(q) if x == due[nxt])
                e(f"s_waitcnt vmcnt({len(q) - 1 - last})")
            e("s_barrier")
        return q
    if duty:
        e(f"s_cmp_lt_u32 s{sB}, 16"); e("s_cbranch_scc0 L_nod1")
        helper(duty[0]); e("s_branch L_nod2")
        e("L_nod1:"); q = helper(duty[1]); e("L_nod2:")
    else: q = helper(hs)
    x_srd(4)
    if asym:
        assert "k" not in q
        e(f"s_cmp_eq_u32 s{sOO}, 0"); e("s_cbranch_scc0 L_hv")
        emit(x_half(0)); emit(x_half(1)); e("s_branch L_hx")
        e("L_hv:")
        emit(k_issue())
    else:
        if "k" not in q: emit(k_issue())
        e(f"s_cmp_eq_u32 s{sD}, 0"); e("s_cbranch_scc0 L_hv")
        emit(x_own()); e("s_branch L_hx")
        e("L_hv:")
    emit(v_issue())
    e("L_hx:")
    x_issue(0, "nt")
    e("s_waitcnt vmcnt(4)"); e("s_barrier")
    x_issue(1, "nt")
    e(f"s_lshl_b32 s{sTMP}, s2, 17")
    mk_srd(sK, 6, 0x20000); mk_srd(sV, 8, 0x20000)
    if chainQ: e("s_waitcnt vmcnt(0)")
    else:
        for n in range(3): emit(w_issue(n, "q"))
        e("s_waitcnt vmcnt(12)")
    wo_srd(22, sPF)
    e("s_branch L_Qstart")
    e("L_Binit:")
    for n in range(wpre, 3): emit(w_issue(n, "q"))
    e(f"s_lshl_b32 s{sTMP}, s{sG}, 2"); e(f"s_add_u32 s{sTMP}, s{sTMP}, s{sW}"); e(f"s_lshl_b32 s{sTMP}, s{sTMP}, 8")
    w_srd(sPF, 10)
    e(f"v_add_u32 v{vKA}, s{sKB}, v{vKA}"); e(f"v_add_u32 v{vVA}, s{sKB}, v{vVA}"); e(f"v_add_u32 v{vVA}, {VOFF}, v{vVA}")

    e("L_Qstart:")
    e("s_barrier")
    stamp("P0")
    proj("q", range(29))
    e(f"s_cmp_eq_u32 s{sROLE}, 0"); e("s_cbranch_scc0 L_QA")
    proj("q", (29, 30, 31), role=0, chain=chainQ)
    e("s_branch L_Qepi")
    e("L_QA:")
    proj("q", (29, 30, 31), role=1)
    e("L_Qepi:")
    c = f2u(math.log2(math.e) / math.sqrt(128.0))
    e(f"v_mov_b32 v{vT0}, {c:#x}"); e(f"v_mov_b32 v{vT1}, {c:#x}")
    pend = []
    def swaps():
        for pq in pend[-1:]: e(f"v_permlane16_swap_b32 v{pq}, v{pq+2}"); e(f"v_permlane16_swap_b32 v{pq+1}, v{pq+3}")
    for s in range(4):
        for qt in range(4):
            b = acc(2*s, qt); qq = Q + (qt*4 + s)*4
            for i in range(4): e(f"v_pk_mul_f32 {vr(b+2*i, 2)}, {vr(b+2*i, 2)}, {vr(vT0, 2)}")
            swaps()
            for i in range(4): e(f"v_cvt_pk_bf16_f32 v{qq+i}, v{b+2*i}, v{b+2*i+1}")
            pend.append(qq)
    e(f"s_mov_b32 s{sI}, 0"); e(f"s_cmp_eq_u32 s{sROLE}, 0")
    swaps()
    stamp("Qdone")
    e("s_cbranch_scc0 L_Aattn")

    for i in range(0, 128, 2): e(f"v_mov_b64 {vr(i, 2)}, 0")
    w_setup("o")
    x_voff()
    e("s_waitcnt vmcnt(0)")
    e("s_barrier")
    e(f"s_cmp_eq_u32 s{sD}, 0"); e("s_cbranch_scc1 L_Bpause")
    e("L_Bgo:")
    e(f"s_cmp_eq_u32 s{sI}, 15"); e("s_cbranch_scc0 L_noE0"); e("s_barrier"); e("L_noE0:")
    e("s_waitcnt vmcnt(8)")
    if tl:
        e("s_memrealtime s[98:99]"); e("s_memtime s[96:97]"); e("s_waitcnt lgkmcnt(0)"); e(f"s_mov_b32 m0, s{sI}"); e("s_nop 0"); e(f"v_writelane_b32 v254, s98, m0")
        e(f"s_add_u32 m0, s{sI}, 16"); e("s_nop 0"); e(f"v_writelane_b32 v254, s96, m0")
    fill = []
    for qt in range(4): fill += exps(qt, 0)
    for qt in range(4): fill += cvts(qt, 0)
    qk(fill)
    if fastlast: e(f"s_cmp_eq_u32 s{sI}, 15"); e("s_cbranch_scc1 L_Blast")
    left = [x for x in fill if x.startswith("v_exp")]
    emit(fill)
    e(f"s_add_u32 s{sROT}, s{sROT}, 8192"); e(f"s_and_b32 s{sROT}, s{sROT}, 0x1ffff")
    e(f"s_add_u32 s{sI}, s{sI}, 1")
    if not fastlast: e(f"s_cmp_eq_u32 s{sI}, 16"); e("s_cbranch_scc1 L_Blast")
    lm = sum(1 << d for d in loose)
    if asym: e(f"s_cmp_eq_u32 s{sI}, s{sOO}"); e("s_cbranch_scc1 L_Bx0")
    if lm: e(f"s_bitcmp1_b32 {lm:#x}, s{sD}"); e("s_cbranch_scc1 L_lk")
    emit(capped(k_issue(), capN))
    e("L_lkb:")
    e("s_waitcnt vmcnt(8)")
    e("L_Bpv:")
    pv_phase()
    if not fastlast: e(f"s_cmp_eq_u32 s{sI}, 16"); e("s_cbranch_scc1 L_Oepi")
    e(f"s_cmp_eq_u32 s{sI}, s{sD}"); e("s_cbranch_scc1 L_Bx")
    if lm: e(f"s_bitcmp1_b32 {lm:#x}, s{sD}"); e("s_cbranch_scc1 L_lv")
    emit(capped(v_issue(), capN))
    e("s_branch L_Bgo")
    if lm:
        e("L_lk:"); emit(capped(k_issue(), capL)); e("s_branch L_lkb")
        e("L_lv:"); emit(capped(v_issue(), capL)); e("s_branch L_Bgo")
    e("L_Blast:")
    def range_check():
        e(f"v_min3_f32 v{vT0}, v{L}, v{L+1}, v{L+2}"); e(f"v_add_f32 v{vT1}, v{L}, v{L+1}")
        e(f"v_min_f32 v{vT0}, v{vT0}, v{L+3}"); e(f"v_add_f32 v{vT1}, v{vT1}, v{L+2}"); e(f"v_add_f32 v{vT1}, v{vT1}, v{L+3}")
        e(f"v_cmp_nle_f32 vcc, {f2u(2.0**lo_exp):#x}, v{vT0}"); e("s_cbranch_vccnz L_slow")
        e(f"v_cmp_nge_f32 vcc, {f2u(2.0**hi_exp):#x}, v{vT1}"); e("s_cbranch_vccnz L_slow")
        if force_slow: e("s_branch L_slow")
    def recip():
        for qt in range(4): e(f"v_rcp_f32 v{L+qt}, v{L+qt}")
        e(f"s_mul_i32 s{sTMP}, s{sW}, {CHUNK if asym else SLOT}"); e(f"v_add_u32 v{vT0}, s{sTMP}, v{vXA}")
    def scale(b, qt):
        sel = "op_sel_hi:[1,0]" if qt % 2 == 0 else "op_sel:[0,1]"
        return [f"v_pk_mul_f32 {vr(b+2*i, 2)}, {vr(b+2*i, 2)}, {vr(L + (qt & 2), 2)} {sel}" for i in range(4)]
    def owr(s, qt): return f"ds_write_b128 v{vT0}, {vr(acc(2*s, qt), 4)} offset:{xoff('o', 0, qt) + s*64}"
    if fastlast:
        if tl: e("v_mov_b32 v252, v254   ; v_writelane_b32 v247")
        emit(left)
        for qt in range(4): emit(exps(qt, 1))
        for i in range(8):
            for qt in range(4): e(f"v_add_f32 v{L+qt}, v{L+qt}, v{S+qt*8+i}")
        lsum(); range_check(); recip()
        for qt in range(4): emit(scale(S + qt*8, qt))
        for qt in range(4): emit(cvts(qt, 0) + cvts(qt, 1))
        for s in range(3):
            for qt in range(4): emit(scale(acc(2*s, qt), qt))
        e("s_waitcnt vmcnt(0)")
        rd = [f"ds_read_b64_tr_b16 {vr(Q + 4*dt + 2*u, 2)}, v{vVA} offset:{u*512 + dt*32}" for dt in range(8) for u in range(2)]
        emit(rd[:8])
        for qt in range(4): emit(scale(acc(6, qt), qt)); emit(rd[8 + 2*qt:10 + 2*qt])
        e("s_waitcnt lgkmcnt(0)")
        stamp("attn_done")
        pendo = []
        for s in range(4):
            mf = [f"{MF} {vr(acc(dt, qt), 4)}, {vr(Q + 4*dt, 4)}, {vr(S + qt*8, 4)}, {vr(acc(dt, qt), 4)}" for qt in range(4) for dt in ((2*s, 2*s + 1) if qt % 2 == 0 else (2*s + 1, 2*s))]
            for i, m in enumerate(mf):
                e(m); emit(pendo[len(pendo)*i//8:len(pendo)*(i + 1)//8])
            pendo = []
            for qt in range(4): pendo += pack(s, qt) + [owr(s, qt)]
        emit(pendo)
        e("s_branch L_Owr")
    else:
        e("s_waitcnt vmcnt(0)"); e("s_branch L_Bpv")
    if asym:
        e("L_Bx0:"); emit(capped(x_half(0), capX)); e("s_branch L_lkb")
        e("L_Bv:"); emit(capped(v_issue(), capN)); e("s_branch L_Bpause")
    e("L_Bx:")
    if asym:
        e(f"s_cmp_eq_u32 s{sHI}, 0"); e("s_cbranch_scc1 L_Bv")
        emit(capped(x_half(1), capX))
    else: emit(capped(x_own(), capX))
    e("L_Bpause:")
    e("s_barrier")
    e(f"s_cmp_eq_u32 s{sW}, 0"); e("s_cbranch_scc0 L_nochk")
    dbg_srd(); poll(tmp=F)
    e("L_nochk:")
    for n in qbars:
        if n == 14: e("s_waitcnt vmcnt(0)")
        e("s_barrier")
    e("s_barrier")
    def half_item(t):
        e(f"s_add_u32 m0, s{sDK}, {XB + (t % 4)*CHUNK}")
        for j in range(4):
            if j: e(f"s_add_u32 m0, m0, s{sIST}")
            e(f"buffer_load_dwordx4 v{vIT}, {srd(sIT)}, s{sROTA} offen offset:{j*1024} nt lds")
        e(f"s_add_u32 s{sROTA}, s{sROTA}, 8192"); e(f"s_and_b32 s{sROTA}, s{sROTA}, 0x1ffff")
    half_item(0); half_item(1); issued = 2
    for t in range(16):
        e(f"s_waitcnt vmcnt({4*(issued - t - 1)})"); e("s_barrier")
        while issued < min(16, t + depth + 1):
            half_item(issued); issued += 1
    for n in range(3): emit(w_issue(n, "o"))
    wo_srd(22)
    e("s_barrier"); e("s_waitcnt vmcnt(0)"); e("s_barrier"); e("s_barrier")
    if asym:
        e(f"s_cmp_eq_u32 s{sHI}, 0"); e("s_cbranch_scc1 L_Bgo")
        emit(k_issue())
    emit(v_issue())
    e("s_branch L_Bgo")

    FB = [F, F + 4, F + 8, 244, 248, 252]
    kb = [0, 1, 2, 3, 4, 5, 0, 1]
    vb = [FB[2], FB[3], FB[4], FB[5], FB[0], FB[1], S + 4, S + 12]
    def akr(f): return f"ds_read_b128 {vr(FB[kb[f]], 4)}, v{vKA} offset:{(f >> 2)*512 + (f & 3)*64}"
    def avr(dt): return [f"ds_read_b64_tr_b16 {vr(vb[dt] + 2*u, 2)}, v{vVA} offset:{u*512 + dt*32}" for u in range(2)]
    def weave(mf, fill):
        cost = [2 if x.startswith("v_exp") else 1 for x in fill]
        tot = sum(cost); cum = 0; k = 0
        for i, m in enumerate(mf):
            e(m)
            while k < len(fill) and (cum + cost[k]) * len(mf) <= (i + 1) * tot + len(mf) // 2:
                e(fill[k]); cum += cost[k]; k += 1
        emit(fill[k:])
    def atile(first):
        def apv(dt, qt): return f"{MF} {vr(acc(dt, qt), 4)}, {vr(vb[dt], 4)}, {vr(S + qt*8, 4)}, {'0' if first else vr(acc(dt, qt), 4)}"
        ex = exps(0, 0) + exps(1, 0) + exps(2, 0)
        for f in range(8):
            u, sx = f >> 2, f & 3
            if f == 0: e("s_waitcnt lgkmcnt(2)")
            if f in (2, 4): e("s_waitcnt lgkmcnt(4)")
            for qt in range(4):
                r = vr(Sr(qt, u), 4)
                e(f"{MF} {r}, {vr(FB[kb[f]], 4)}, {vr(Q + (qt*4 + sx)*4, 4)}, {r if sx else '0'}")
                if f == 0 and qt < 2: e(akr(4 + qt))
                if f == 1 and qt == 0: e(f"s_add_u32 s{sI}, s{sI}, 1"); e(f"s_and_b32 s{sTMP}, s{sI}, 3")
                if f == 1 and qt == 1: e(f"s_cselect_b32 s{sDK}, s{sTMP2}, {(-3*CHUNK) & 0xffffffff:#x}")
                if f == 2 and qt == 0: e(f"v_add_u32 v{vKA}, s{sDK}, v{vKA}")
                if u == 1 and (f, qt) != (4, 0) and (qt < 3 or f == 7): e(ex.pop(0))
            if f < 2: e(akr(6 + f))
            else: emit(avr(f - 2))
        emit(exps(0, 1)); emit(cvts(0, 0)); emit(cvts(0, 1)); emit(avr(6))
        e("s_waitcnt lgkmcnt(6)")
        b0 = [apv(dt, 0) for dt in range(6)]
        b0[3] += "\ns_waitcnt lgkmcnt(2)"
        weave(b0, exps(1, 1) + cvts(1, 0) + cvts(1, 1))
        emit(avr(7))
        s0, s1, s2, s3 = (sums(qt) for qt in range(4))
        b1 = [apv(dt, 1) for dt in range(5, -1, -1)]
        b1[1] = s0[0] + "\n" + b1[1]; b1[3] = s0[1] + "\n" + b1[3]
        weave(b1, exps(2, 1) + cvts(2, 0) + cvts(2, 1))
        e(f"v_add_u32 v{vVA}, s{sDK}, v{vVA}")
        b2 = [apv(dt, 2) for dt in range(6)] + [apv(6, 0), apv(7, 0), apv(7, 1), apv(6, 1)]
        b2[0] = s1[0] + "\n" + b2[0]; b2[2] = s1[1] + "\n" + b2[2]; b2[4] = s2[0] + "\n" + b2[4]
        b2[6] = "s_waitcnt lgkmcnt(0)\n" + b2[6]
        weave(b2, exps(3, 0) + exps(3, 1) + cvts(3, 0) + cvts(3, 1))
        e(s2[1])
        e("s_barrier")
        for k, dt in enumerate((4, 5, 0, 1)):
            e(apv(dt, 3)); e(akr(k))
        e(s3[0]); e(apv(2, 3))
        e(f"s_cmp_eq_u32 s{sI}, 16")
        e(apv(3, 3)); e(s3[1])
        e(apv(6, 3)); e(apv(7, 3)); e(apv(7, 2)); e(apv(6, 2))
    e("L_Aattn:")
    e(f"s_mov_b32 s{sTMP2}, {CHUNK}")
    e("s_barrier")
    stamp("L0")
    if stamps and "L0" in stamps: e("s_waitcnt lgkmcnt(0)")
    for f in range(4): e(akr(f))
    atile(True)
    e("L_Aloop:")
    atile(False)
    e("s_cbranch_scc0 L_Aloop")
    e("s_waitcnt lgkmcnt(0)")
    e(f"v_mbcnt_lo_u32_b32 v{vLN}, -1, 0"); e(f"v_mbcnt_hi_u32_b32 v{vLN}, -1, v{vLN}")
    e(f"v_lshlrev_b32 v{vDV}, 4, v{vLN}")
    wx_setup(); w_setup("o")

    e("L_Oepi:")
    if tl and not fastlast:
        e(f"s_cmp_eq_u32 s{sROLE}, 0"); e("s_cbranch_scc0 L_tl0"); e("v_mov_b32 v252, v254   ; v_writelane_b32 v247"); e("L_tl0:")
    stamp("attn_done")
    lsum()
    range_check()
    e("L_slow_back:")
    recip()
    for s in range(4):
        for qt in range(4):
            emit(scale(acc(2*s, qt), qt)); emit(pack(s, qt)); e(owr(s, qt))
    e("L_Owr:")
    e("s_waitcnt lgkmcnt(0)")
    e("s_barrier")
    stamp("Owritten")
    proj("o", range(29))
    e(f"s_cmp_eq_u32 s{sROLE}, 0"); e("s_cbranch_scc0 L_OA")
    ex = {30: [], 31: []}
    if early:
        seq = []
        for qt in range(4): seq += pack(0, qt) + pack(1, qt) + pstore(0, qt)
        slots = [(30, g) for g in range(4, 8)] + [(n, g) for n in (30, 31) for g in range(16) for _ in range(2) if (n, g) >= (30, 8)]
        assert len(slots) >= len(seq)
        for (n, g), x in zip(slots, seq): ex[n].append((g, x))
    proj("o", (29, 30, 31), ex, role=0)
    stamp("Odone")
    e("s_branch L_store1" if early else "s_branch L_store0")
    e("L_OA:")
    proj("o", (29, 30, 31), role=1, chain=chainO)
    stamp("Odone")
    e(f"s_setprio {prioP}")
    if not chainO:
        for n in range(3): emit(w_issue(n, "o", sPF))
    pm = sum(1 << d for d in pubd)
    if pm: e(f"s_bitcmp1_b32 {pm:#x}, s{sD}"); e("s_cbranch_scc1 L_store0")
    e("s_barrier")
    pl = sum(1 << d for d in publ)
    if pl: e(f"s_bitcmp1_b32 {pl:#x}, s{sD}"); e("s_cbranch_scc0 L_store0"); e("s_waitcnt vmcnt(0)"); e("s_barrier")
    e("L_store0:")
    for qt in range(4): emit(pack(0, qt) + pack(1, qt) + pstore(0, qt))
    e("L_store1:")
    for qt in range(4): emit(pack(2, qt) + pack(3, qt) + pstore(1, qt))
    stamp("issued")
    if pm:
        e(f"s_lshr_b32 s{sTMP}, {pm:#x}, s{sD}"); e(f"s_and_b32 s{sTMP}, s{sTMP}, s{sROLE}"); e("s_cbranch_scc0 L_nolate"); e("s_barrier"); e("L_nolate:")
    if prioP: e("s_setprio 0")
    e("s_waitcnt vmcnt(14)")
    if pl: e(f"s_lshr_b32 s{sTMP}, {pl:#x}, s{sD}"); e(f"s_and_b32 s{sTMP}, s{sTMP}, s{sROLE}"); e("s_cbranch_scc1 L_passed")
    e("s_barrier")
    e("L_passed:")
    keep = []
    for p in range(8):
        lk = lab("kp"); keep.append(lk)
        if p < 7: e(f"s_cmp_eq_u32 s{sG}, {p}"); e(f"s_cbranch_scc1 {lk}")
    for p in range(7, -1, -1):
        e(f"{keep[p]}:")
        for f in range(2): unpack(RK + 8*f, acc(2*(2*(p & 1) + f), p >> 1))
        if p: e("s_branch L_kept")
    e("L_kept:")
    e(f"s_xor_b32 s{sTMP2}, s{sROLE}, 1")
    e(f"s_lshl_b32 s{sTMP}, s{sTMP2}, 5"); e(f"s_add_u32 s{sTMP}, s{sTMP}, s{sB}"); e(f"s_lshl_b32 s{sTMP}, s{sTMP}, 19")
    mk_srd(sP, 28, 0x80000)
    e(f"s_mul_i32 s{sRO}, s{sG}, {65536 + 2048}"); e(f"s_lshl_b32 s{sTMP}, s{sW}, 14"); e(f"s_add_u32 s{sRO}, s{sRO}, s{sTMP}")
    e(f"s_lshl_b32 s{sTMP}, s{sB}, 17"); mk_srd(sIT, 24, 0x20000)
    e(f"s_lshl_b32 s{sOO}, s{sTMP2}, 10")
    e(f"s_lshr_b32 s{sTMP}, s{sG}, 1"); e(f"s_lshl_b32 s{sTMP}, s{sTMP}, 15"); e(f"s_add_u32 s{sOO}, s{sOO}, s{sTMP}")
    e(f"s_lshl_b32 s{sTMP}, s{sW}, 8"); e(f"s_add_u32 s{sOO}, s{sOO}, s{sTMP}")
    e(f"s_and_b32 s{sTMP}, s{sG}, 1"); e(f"s_lshl_b32 s{sTMP}, s{sTMP}, 7"); e(f"s_add_u32 s{sOO}, s{sOO}, s{sTMP}")
    e(f"v_and_b32 v{vT0}, 15, v{vLN}"); e(f"v_lshlrev_b32 v{vKA}, 11, v{vT0}")
    e(f"v_bfe_u32 v{vT0}, v{vLN}, 4, 1"); e(f"v_lshl_add_u32 v{vKA}, v{vT0}, 5, v{vKA}")
    e(f"v_lshrrev_b32 v{vT0}, 5, v{vLN}"); e(f"v_lshl_add_u32 v{vKA}, v{vT0}, 4, v{vKA}")
    e(f"s_cmp_eq_u32 s{sROLE}, 0"); e("s_cbranch_scc0 L_Apub")
    flag_srd(1)
    lds_arrive(1, "L_Bwait")
    def first_add(done):
        e(f"buffer_atomic_add v{vT1}, off, {srd(sPF)}, s{sOFF} sc0")
        e("s_waitcnt vmcnt(0)")
        e(f"v_readfirstlane_b32 s{sTMP}, v{vT1}")
        e(f"s_cmp_ge_u32 s{sTMP}, 7"); e(f"s_cbranch_scc1 {done}")
    poll(first_add)
    e(f"v_mov_b32 v{vT0}, {CNT + 8}"); e(f"v_mov_b32 v{vT1}, 1")
    e(f"ds_write_b32 v{vT0}, v{vT1}")
    e("s_branch L_final")
    e("L_Bwait:")
    e(f"v_mov_b32 v{vT0}, {CNT + 8}")
    e("L_Bspin:")
    e(f"ds_read_b32 v{vT1}, v{vT0}")
    e("s_waitcnt lgkmcnt(0)")
    e(f"v_readfirstlane_b32 s{sTMP}, v{vT1}")
    e(f"s_cmp_eq_u32 s{sTMP}, 0"); e("s_cbranch_scc1 L_Bspin")
    e("s_branch L_final")
    e("L_Apub:")
    flag_srd(0)
    lds_arrive(0, "L_nosig")
    e(f"buffer_atomic_add v{vT1}, off, {srd(sPF)}, s{sOFF}")
    e("L_nosig:")
    e("s_mov_b64 exec, -1")
    stamp("pubA")
    e("s_barrier")
    e(f"s_cmp_eq_u32 s{sW}, 0"); e("s_cbranch_scc0 L_nopoll")
    poll()
    e("L_nopoll:")
    e("s_barrier")
    rl = []
    for k in range(7):
        rl += [f"s_add_u32 s{sRO}, s{sRO}, 0x10000", f"s_and_b32 s{sRO}, s{sRO}, 0x7ffff"]
        rl += [f"buffer_load_dwordx4 {vr(RL + 8*k + 4*f, 4)}, v{vDV}, {srd(sP)}, s{sRO} offen offset:{f*1024} sc1" for f in range(2)]
    if capA: emit(capped(rl, capA)); e("s_branch L_sum")
    e("L_final:")
    e("s_mov_b64 exec, -1")
    stamp("flag")
    emit(rl)
    e("L_sum:")
    for k in range(7):
        for f in range(2):
            e(f"s_waitcnt vmcnt({(6 - k)*2 + 1 - f})")
            dst, tmp = RK + 8*f, RK + 16 + 8*f
            unpack(tmp, RL + 8*k + 4*f)
            for i in range(8): e(f"v_add_f32 v{dst+i}, v{dst+i}, v{tmp+i}")
            if k == 6:
                for i in range(4): e(f"v_cvt_pk_bf16_f32 v{dst+i}, v{dst+2*i}, v{dst+2*i+1}")
    stamp("summed")
    for f in range(2):
        dst = RK + 8*f
        e(f"v_permlane16_swap_b32 v{dst}, v{dst+2}"); e(f"v_permlane16_swap_b32 v{dst+1}, v{dst+3}")
        e(f"buffer_store_dwordx4 {vr(dst, 4)}, v{vKA}, {srd(sIT)}, s{sOO} offen offset:{f*64} sc1")
    if stamps:
        e("s_waitcnt vmcnt(0)")
        stamp("end")
        e("s_memtime s[4:5]")
        e("s_waitcnt lgkmcnt(0)")
        e("s_sub_u32 s4, s4, s100")
        e(f"s_lshl_b32 s{sTMP}, s2, 1"); e(f"s_add_u32 s{sTMP}, s{sTMP}, s{sROLE}"); e(f"s_lshl_b32 s{sTMP}, s{sTMP}, 2"); e(f"s_add_u32 s{sTMP}, s{sTMP}, s{sW}")
        e(f"s_lshl_b32 s{sTMP}, s{sTMP}, 7")
        e(f"s_add_u32 s{sPF}, s28, 0x4000000"); e(f"s_addc_u32 s{sPF+1}, s29, 0"); e(f"s_mov_b32 s{sPF+2}, 0x100000"); e(f"s_mov_b32 s{sPF+3}, 0x20000")
        for i in range(16): e(f"v_mov_b32 v{i}, s{sST+i}")
        e(f"v_mov_b32 v16, s4"); e("v_mov_b32 v17, 0"); e("v_mov_b32 v18, 0"); e("v_mov_b32 v19, 0")
        e(f"v_mov_b32 v20, s{sTMP}")
        if tl:
            e(f"v_lshl_add_u32 v21, v{vLN}, 2, v20"); e("s_mov_b32 exec_hi, 0"); e(f"s_mov_b32 s{sOFF}, 0x80000")
            e(f"buffer_store_dword v252, v21, {srd(sPF)}, s{sOFF} offen")
        e("s_mov_b64 exec, 1")
        for i in range(5): e(f"buffer_store_dwordx4 {vr(4*i, 4)}, v20, {srd(sPF)}, 0 offen offset:{16*i}")
    e("L_end:")
    e("s_endpgm")

    e("L_slow:")
    e(f"s_cmp_eq_u32 s{sROLE}, 0"); e("s_cbranch_scc1 L_slowB")
    dk_setup()
    if asym: e(f"s_mul_i32 s{sKB}, s{sW}, {CHUNK}")
    e(f"v_add_u32 v{vKA}, s{sKB}, v{vKA}"); e(f"v_add_u32 v{vVA}, s{sKB}, v{vVA}"); e(f"v_add_u32 v{vVA}, {VOFF - SLOT}, v{vVA}")
    e(f"s_add_u32 s{sKB}, s{sKB}, {XB}")
    e("L_slowB:")
    e(f"v_add_u32 v{vVA}, {(-VOFF) & 0xffffffff:#x}, v{vVA}")
    for i in range(0, 128, 2): e(f"v_mov_b64 {vr(i, 2)}, 0")
    for i in range(4): e(f"v_mov_b32 v{L+i}, 0"); e(f"v_mov_b32 v{M+i}, {f2u(-3.0e38):#x}")
    e(f"s_mov_b32 s{sROT}, 0")
    e("L_slowloop:")
    emit(k_issue())
    e("s_waitcnt vmcnt(0)")
    qk(None)
    emit(kv_issue(sV, vDV, 0, VBLK))
    for qt in range(4):
        b = S + qt*8; t = F + 2*qt
        e(f"v_max3_f32 v{t}, v{b}, v{b+1}, v{b+2}"); e(f"v_max3_f32 v{t}, v{t}, v{b+3}, v{b+4}")
        e(f"v_max3_f32 v{t}, v{t}, v{b+5}, v{b+6}"); e(f"v_max3_f32 v{t}, v{t}, v{b+7}, v{M+qt}")
        xlane("v_max_f32", [t], [vT0])
        e(f"v_sub_f32 v{t+1}, v{M+qt}, v{t}"); e(f"v_mov_b32 v{M+qt}, v{t}")
        e(f"v_exp_f32 v{t+1}, v{t+1}")
        for i in range(8): e(f"v_sub_f32 v{b+i}, v{b+i}, v{M+qt}")
        e(f"v_mul_f32 v{L+qt}, v{L+qt}, v{t+1}")
        for dt in range(8):
            for i in range(0, 4, 2): e(f"v_pk_mul_f32 {vr(acc(dt, qt)+i, 2)}, {vr(acc(dt, qt)+i, 2)}, {vr(t, 2)} op_sel:[0,1]")
        emit(exps(qt, 0)); emit(cvts(qt, 0))
    e("s_waitcnt vmcnt(0)")
    pv_phase()
    e(f"s_add_u32 s{sROT}, s{sROT}, 8192"); e(f"s_cmp_lt_u32 s{sROT}, 0x20000"); e("s_cbranch_scc1 L_slowloop")
    lsum()
    w_setup("o")
    e("s_branch L_slow_back")
    e("L_last:")

    e('.section .rodata,"a"')
    e(".p2align 6"); e(f".amdhsa_kernel {NAME}_kernel")
    for l in [".amdhsa_next_free_vgpr 256", ".amdhsa_next_free_sgpr 102", ".amdhsa_accum_offset 256", ".amdhsa_group_segment_fixed_size 0",
              ".amdhsa_kernarg_size 104", ".amdhsa_user_sgpr_count 2", ".amdhsa_user_sgpr_kernarg_segment_ptr 1", ".amdhsa_system_sgpr_workgroup_id_x 1",
              ".amdhsa_float_denorm_mode_32 3"]:
        e("  " + l)
    e(".end_amdhsa_kernel")
    n = a.pad()
    return a.text(), n

if __name__ == "__main__":
    kw = eval("dict(" + (sys.argv[2] if len(sys.argv) > 2 else "") + ")")
    txt, n = gen(**kw)
    out = sys.argv[1] if len(sys.argv) > 1 else f"cdna_kernels/{NAME}.s"
    open(out, "w").write(txt)
    print("pad states:", n, "lines:", txt.count("\n"), "LDS", LDS)
```

```python
import sys, math, struct
from asmlib import Asm

NAME = "concat_heads__gqa_block_cached__mha_block_cached__near_ridge"
KBLK = 1088; VBLK = 1056; HALF = 4352; SLOT = 8704; CHUNK = 2*SLOT
XB = 4*SLOT
VOFF = XB + 2*CHUNK
WR0 = XB + 4*CHUNK
WRING = 3*HALF
CNT = WR0 + 4*WRING
LDS = CNT + 64
WBIAS = 128

sK, sV, sWQ, sWO, sX, sP, sIT, sPF = 32, 36, 40, 44, 48, 52, 56, 60
(sROLE, sW, sG, sB, sD, sI, sROT, sOFF, sWRB, sKB, sTMP, sTMP2, sWOFF, sROTA, sIST, sDK, sHI, sOO, sRO, sRQ) = range(64, 84)
sST = 84
def srd(n): return f"s[{n}:{n+3}]"
ACC = 0; Q = 128; S = 192; F = 224; L = 236; ONES = 240
vKA, vVA, vDK, vDV = 242, 243, 244, 245
vWO = 246
vWA, vXA, vIT, vLN, vT0, vT1 = 250, 251, 252, 253, 254, 255
M = 246
AF = 128; BF = 160
RK = 192; RL = 128
def vr(b, n): return f"v[{b}:{b+n-1}]"
def acc(dt, qt): return ACC + ((dt >> 1)*4 + qt)*8 + (dt & 1)*4
def f2u(x): return struct.unpack("<I", struct.pack("<f", x))[0]
MF = "v_mfma_f32_16x16x32_bf16"
GROUPS = (0,0,0,0,0,1,1,1,2,2,3,3,4,5,6,8,9,11,11,12,12,13,13,14,14,14,15,15,15,15,15,15)

def gen(groups=GROUPS, capN=8, capX=8, depth=2, slp=3, prioA=1, lo_exp=-30, hi_exp=30, rel=29, relAq=30, relAo=31, early=True, loose=(), capL=None, asym=True, fastlast=True, duty=None, capA=5, nopf=False, pubd=(), prioP=0, publ=(), chainQ=False, chainO=True, relBo=29, xbf='', first='x w', wpre=3, rotq='g', cmaj=True, ibr=False, fullrow=False, shift={14: (12, 0, 6), 22: (10, 0, 6)},
        hs={0: "x1", 6: "x2 x3", 14: "q t", 22: "a b"},
        stamps=False, cyc=False, tl=False, force_slow=False):
    a = Asm(); e = a
    qbars = (6, 14, 22)
    VOFF = SLOT if asym else XB + 2*CHUNK
    def stamp(nm):
        if stamps and nm in stamps:
            i = stamps.index(nm); e(f"{'s_memtime' if cyc else 's_memrealtime'} s[{sST+2*i}:{sST+2*i+1}]")
    def emit(lst):
        for x in lst:
            if x: e(x)
    uid = [0]
    def lab(p):
        uid[0] += 1; return f"L_{p}{uid[0]}"
    def mk_srd(r, lo, size):
        e(f"s_add_u32 s{r}, s{lo}, s{sTMP}"); e(f"s_addc_u32 s{r+1}, s{lo+1}, 0"); e(f"s_mov_b32 s{r+2}, {size:#x}"); e(f"s_mov_b32 s{r+3}, 0x20000")

    order = [(n >> 1, n & 1) for n in range(28)] + [(14, 0), (15, 0), (14, 1), (15, 1)]
    def w_setup(kind):
        sh = 13 if kind == "q" else 10
        if kind == "q":
            e(f"v_bfe_u32 v{vT0}, v{vLN}, 3, 2"); e(f"v_lshlrev_b32 v{vWO}, {sh+3}, v{vT0}")
            e(f"v_lshrrev_b32 v{vT0}, 5, v{vLN}"); e(f"v_lshl_add_u32 v{vWO}, v{vT0}, {sh+2}, v{vWO}")
        else:
            e(f"v_lshrrev_b32 v{vT0}, 3, v{vLN}"); e(f"v_lshlrev_b32 v{vWO}, {sh+2}, v{vT0}")
        e(f"v_and_b32 v{vT0}, 7, v{vLN}"); e(f"v_lshl_add_u32 v{vWO}, v{vT0}, 4, v{vWO}")
        for r in (3, 2, 1, 0):
            e(f"v_add_u32 v{vWO+r}, {r*((1 << sh) - VBLK) + WBIAS}, v{vWO}")
    def w_issue(n, kind, sr=None):
        sr, sh = (sr or sWQ, 13) if kind == "q" else (sr or sWO, 10)
        ks, ch = order[n]
        out = [f"s_add_u32 m0, s{sWRB}, {(n % 3)*HALF}", f"s_mov_b32 s{sWOFF}, {ks*(32 << sh) + ch*128}"]
        if rotq and kind == "q": out[1] = f"s_xor_b32 s{sWOFF}, s{sRQ}, {ks*(32 << sh) + ch*128}"
        for r in range(4):
            out.append(f"buffer_load_dwordx4 v{vWO+r}, {srd(sr)}, s{sWOFF} offen offset:{r*VBLK} lds")
        return out
    def w_srd(r, lo):
        e(f"s_add_u32 s{r}, s{lo}, s{sTMP}"); e(f"s_addc_u32 s{r+1}, s{lo+1}, 0")
        e(f"s_sub_u32 s{r}, s{r}, {WBIAS}"); e(f"s_subb_u32 s{r+1}, s{r+1}, 0")
        e(f"s_sub_u32 s{r+2}, {0x400000 + WBIAS}, s{sTMP}"); e(f"s_mov_b32 s{r+3}, 0x20000")
    def wo_srd(lo, r=sWO):
        e(f"s_lshl_b32 s{sTMP}, s{sG}, 19"); e(f"s_lshl_b32 s{sTMP2}, s{sW}, 8"); e(f"s_add_u32 s{sTMP}, s{sTMP}, s{sTMP2}")
        w_srd(r, lo)
    def kv_issue(sr, voff, imm, blk):
        out = [f"s_add_u32 s{sOFF}, s{sROT}, 4096"]
        for j in (0, 4, 2, 6, 1, 5, 3, 7):
            out.append(f"s_add_u32 m0, s{sKB}, {imm + j*blk - (j % 4)*1024}")
            out.append(f"buffer_load_dwordx4 v{voff}, {srd(sr)}, s{sOFF if j >= 4 else sROT} offen offset:{(j % 4)*1024} nt lds")
        return out
    def capped(lst, n):
        if not n: return lst
        out = []
        for x in lst:
            if x.startswith("buffer_load"): out.append(f"s_waitcnt vmcnt({n-1})")
            out.append(x)
        return out
    def k_issue(): return kv_issue(sK, vDK, 0, KBLK)
    def v_issue(): return kv_issue(sV, vDV, VOFF, VBLK)
    def xrot():
        return [f"s_lshr_b32 s{sTMP}, s{sRQ}, 12", f"s_xor_b32 s{sOFF}, s{sOFF}, s{sTMP}"] if rotq else []
    def x_issue(c, flag=""):
        e(f"s_lshl_b32 s{sOFF}, s{sW}, 14"); e(f"s_add_u32 s{sOFF}, s{sOFF}, {c*256}")
        emit(xrot())
        e(f"s_mul_i32 s{sTMP}, s{sW}, {HALF}")
        for j in range(4):
            e(f"s_add_u32 m0, s{sTMP}, {XB + c*CHUNK + j*64}")
            e(f"buffer_load_dwordx4 v{vT1}, {srd(sX)}, s{sOFF} offen offset:{j*1024} {flag} lds")
    def x_half(h):
        out = [f"s_lshl_b32 s{sOFF}, s{sW}, 8", f"s_add_u32 s{sOFF}, s{sOFF}, {h*32768}"] + xrot()
        for j in range(8):
            if j == 4: out.append(f"s_add_u32 s{sOFF}, s{sOFF}, 16384")
            out.append(f"s_add_u32 m0, s{sKB}, {h*SLOT + (j >> 2)*HALF + (j & 3)*64}")
            out.append(f"buffer_load_dwordx4 v{vT1}, {srd(sX)}, s{sOFF} offen offset:{(j & 3)*1024} nt lds")
        return out
    def x_own():
        out = [f"s_and_b32 s{sOFF}, s{sW}, 1", f"s_lshl_b32 s{sOFF}, s{sOFF}, 7", f"s_add_u32 s{sOFF}, s{sOFF}, s{sHI}",
               f"s_lshl_b32 s{sOFF}, s{sOFF}, 8", f"s_add_u32 s{sOFF}, s{sOFF}, 512"]
        for j in range(8):
            if j == 4: out.append(f"s_add_u32 s{sOFF}, s{sOFF}, 16384")
            out.append(f"s_add_u32 m0, s{sKB}, {VOFF + (j >> 2)*HALF + (j & 3)*64}")
            out.append(f"buffer_load_dwordx4 v{vT1}, {srd(sX)}, s{sOFF} offen offset:{(j & 3)*1024} nt lds")
        return out
    def x_voff():
        e(f"v_lshrrev_b32 v{vT0}, 4, v{vLN}"); e(f"v_sub_u32 v{vT1}, 0, v{vT0}"); e(f"v_and_b32 v{vT1}, 3, v{vT1}")
        e(f"v_xor_b32 v{vT1}, v{vT1}, v{vLN}"); e(f"v_and_b32 v{vT1}, 15, v{vT1}"); e(f"v_lshlrev_b32 v{vT1}, 4, v{vT1}")
        e(f"v_lshl_add_u32 v{vT1}, v{vT0}, 12, v{vT1}")
    def x_srd(lo):
        e(f"s_lshl_b32 s{sTMP}, s{sB}, 16"); mk_srd(sX, lo, 0x10000)
    dm = 1 if duty else 0
    def xa_touch(sb=sB, lo=4):
        e(f"s_lshl_b32 s{sTMP}, s{sb}, 3"); e(f"s_add_u32 s{sTMP}, s{sTMP}, s{sG}")
        e(f"s_lshl_b32 s{sTMP}, s{sTMP}, 2"); e(f"s_add_u32 s{sTMP}, s{sTMP}, s{sW}"); e(f"s_lshl_b32 s{sTMP}, s{sTMP}, {11 + dm}")
        mk_srd(sPF, lo, 0x800 << dm)
        for r in range(2 << dm): e(f"buffer_load_dwordx4 {vr(S + 16 + 4*r, 4)}, v{vDV}, {srd(sPF)}, 0 offen offset:{r*1024}")
    def coop_prefetch(lo, sh, goff_sh, sb=sB):
        e(f"s_lshl_b32 s{sTMP}, s{sG}, {goff_sh}")
        e(f"s_add_u32 s{sPF}, s{lo}, s{sTMP}"); e(f"s_addc_u32 s{sPF+1}, s{lo+1}, 0")
        e(f"s_sub_u32 s{sPF+2}, 0x400000, s{sTMP}"); e(f"s_mov_b32 s{sPF+3}, 0x20000")
        e(f"s_lshl_b32 s{sTMP}, s{sb}, 2"); e(f"s_add_u32 s{sTMP}, s{sTMP}, s{sW}"); e(f"s_lshl_b32 s{sTMP}, s{sTMP}, {sh+2+dm}")
        for r in range(4 << dm):
            e(f"buffer_load_dwordx4 {vr(S + 4*(r % 4), 4)}, v{vDV}, {srd(sPF)}, s{sTMP} offen")
            if r < (4 << dm) - 1: e(f"s_add_u32 s{sTMP}, s{sTMP}, {1 << sh}")

    def xoff(kind, c, qt):
        return c*CHUNK + qt*HALF if (kind == "q" or asym) else (qt >> 1)*2*CHUNK + c*SLOT + (qt & 1)*HALF
    def pack(sx, qt):
        b = acc(2*sx, qt)
        return [f"v_cvt_pk_bf16_f32 v{b+i}, v{b+2*i}, v{b+2*i+1}" for i in range(4)]
    def pstore(sp, qt):
        st = [f"buffer_store_dwordx4 {vr(acc(2*sx, qt), 4)}, v{vDV}, {srd(sP)}, s{sOFF} offen offset:{(sx & 1 if cmaj else sx)*1024} sc1" for sx in (2*sp, 2*sp + 1)]
        l = lab("ps")
        return [f"s_mov_b32 s{sOFF}, {(qt*2 + sp)*65536 if cmaj else qt*4096}", f"s_cmp_eq_u32 s{sG}, {qt*2 + sp}", f"s_cbranch_scc1 {l}\n{st[0]}\n{st[1]}\n{l}:", ""]
    def proj(kind, steps=range(32), extra={}, role=None, chain=False):
        def ra(n):
            return [f"ds_read_b64_tr_b16 {vr(AF + (n % 2)*16 + d*4 + ee*2, 2)}, v{vWA} offset:{(n % 3)*HALF + ee*512 + d*32}" for d in range(4) for ee in range(2)]
        def rb(ks, qts):
            return [f"ds_read_b128 {vr(BF + (ks % 2)*16 + qt*4, 4)}, v{vXA} offset:{xoff(kind, ks >> 2, qt) + (ks & 3)*64}" for qt in qts]
        for n in steps:
            if n == 0:
                e("s_waitcnt vmcnt(8)")
                emit(rb(0, range(4))); emit(ra(0))
                e("s_waitcnt lgkmcnt(0)")
            stamp(f"{kind}{n}")
            ks, ch = order[n]
            rd = ra(n + 1) if n < 31 else []
            if n < 28: rd = rd + rb(ks + 1, (2*ch, 2*ch + 1))
            if n == 28: rd = rd + rb(15, range(4))
            dm = w_issue(n + 3, kind) if n + 3 < 32 else []
            if chain and n >= 29: dm = w_issue(n % 3, kind, sPF)
            if n < 31: e("s_waitcnt vmcnt(4)" if (n <= 29 or chain) else "s_waitcnt vmcnt(0)")
            relA = (relAq if kind == "q" else relAo) or rel
            if role is not None:
                if n == (relA if role else (rel if kind == "q" else relBo)): e("s_barrier")
            elif (kind == "q" and n in qbars) or n == rel == relA: e("s_barrier")
            elif n in (rel, relA):
                l1 = lab("nb"); e(f"s_cmp_eq_u32 s{sROLE}, {int(n == relA)}"); e(f"s_cbranch_scc0 {l1}"); e("s_barrier"); e(f"{l1}:")
            gaps = [[] for _ in range(16)]
            for i, x in enumerate(rd): gaps[i].append(x)
            if dm:
                gaps[2].append(dm[0]); gaps[3].append(dm[1])
                for i in range(4): gaps[(4, 6, 8, 12)[i]].append(dm[2 + i])
            for g, x in extra.get(n, []): gaps[g].append(x)
            k = 0
            for d in range(4):
                for qt in (range(3, -1, -1) if d % 2 else range(4)):
                    r = vr(acc(4*ch + d, qt), 4)
                    e(f"{MF} {r}, {vr(AF + (n % 2)*16 + d*4, 4)}, {vr(BF + (ks % 2)*16 + qt*4, 4)}, {r if ks else '0'}")
                    emit(gaps[k]); k += 1
            if n < 31: e("s_waitcnt lgkmcnt(0)")

    def Sr(qt, u): return S + qt*8 + u*4
    def exps(qt, u): return [f"v_exp_f32 v{Sr(qt, u)+i}, v{Sr(qt, u)+i}" for i in range(4)]
    def cvts(qt, u): return [f"v_cvt_pk_bf16_f32 v{S+qt*8+2*u+i}, v{Sr(qt, u)+2*i}, v{Sr(qt, u)+2*i+1}" for i in range(2)]
    def kr(f): return f"ds_read_b128 {vr(F + (f % 3)*4, 4)}, v{vKA} offset:{(f >> 2)*512 + (f & 3)*64}"
    vbuf = [F, F + 4, F + 8, S + 4, S + 12, S + 20, S + 28, F]
    def vrd(dt): return [f"ds_read_b64_tr_b16 {vr(vbuf[dt] + 2*u, 2)}, v{vVA} offset:{u*512 + dt*32}" for u in range(2)]
    def sums(qt): return [f"v_mfma_f32_4x4x4_16b_bf16 {vr(L, 4)}, {vr(ONES, 2)}, {vr(S + qt*8 + 2*h, 2)}, {vr(L, 4)} cbsz:2 abid:{qt}" for h in range(2)]
    def pv(dt, qt): return f"{MF} {vr(acc(dt, qt), 4)}, {vr(vbuf[dt], 4)}, {vr(S + qt*8, 4)}, {vr(acc(dt, qt), 4)}"
    def qk(fill):
        for f in range(3): e(kr(f))
        m = 0
        for f in range(8):
            u, s = f >> 2, f & 3
            e(f"s_waitcnt lgkmcnt({min(2, 7 - f)})")
            for qt in range(4):
                r = vr(Sr(qt, u), 4)
                e(f"{MF} {r}, {vr(F + (f % 3)*4, 4)}, {vr(Q + (qt*4 + s)*4, 4)}, {r if s else '0'}")
                if u == 1:
                    if m >= 3 and fill: e(fill.pop(0))
                    m += 1
            if f + 3 < 8: e(kr(f + 3))
    def pv_phase():
        pre = [exps(qt, 1) + cvts(qt, 1) for qt in range(4)]
        for dt in range(3): emit(vrd(dt))
        emit(pre[0]); emit(vrd(3))
        for qt in range(4):
            nxt = (pre[qt + 1] + vrd(4 + qt)) if qt < 3 else []
            per = math.ceil(len(nxt) / 4)
            sm = sums(qt)
            for dt in range(3):
                if qt == 0: e(f"s_waitcnt lgkmcnt({6 - 2*dt})")
                e(pv(dt, qt)); emit(nxt[dt*per:(dt+1)*per])
                if dt == 0: e(sm[0])
            e(sm[1]); emit(nxt[3*per:])
        emit(vrd(7))
        for dt in range(3, 8):
            e(f"s_waitcnt lgkmcnt({2*(7 - dt)})")
            for qt in (range(3, -1, -1) if dt % 2 else range(4)): e(pv(dt, qt))
    def xlane(op, regs, tmps):
        for sw in ("32", "16"):
            for r, t in zip(regs, tmps): e(f"v_mov_b32 v{t}, v{r}")
            for r, t in zip(regs, tmps): e(f"v_permlane{sw}_swap_b32 v{r}, v{t}")
            for r, t in zip(regs, tmps): e(f"{op} v{r}, v{r}, v{t}")
    def lsum(): xlane("v_add_f32", range(L, L + 4), range(F, F + 4))

    def flag_srd(branch):
        e(f"s_add_u32 s{sPF}, s28, 0x2000000"); e(f"s_addc_u32 s{sPF+1}, s29, 0"); e(f"s_mov_b32 s{sPF+2}, 0x8000"); e(f"s_mov_b32 s{sPF+3}, 0x20000")
        e(f"s_mul_i32 s{sOFF}, s{sB}, 768"); e(f"s_add_u32 s{sOFF}, s{sOFF}, {branch*256}")
    def dbg_srd():
        e(f"s_mov_b32 s{sPF}, s26"); e(f"s_mov_b32 s{sPF+1}, s27"); e(f"s_mov_b32 s{sPF+2}, 256"); e(f"s_mov_b32 s{sPF+3}, 0x20000")
        e(f"s_lshl_b32 s{sOFF}, s{sB}, 3")
    def poll(first=None, tmp=vT0):
        l0, l1 = lab("pl"), lab("pl")
        e("s_mov_b64 exec, 1")
        if first: first(l1)
        e(f"s_mov_b32 s{sTMP2}, 0x40000")
        e(f"{l0}:")
        e(f"buffer_load_dword v{tmp}, off, {srd(sPF)}, s{sOFF} sc1")
        e("s_waitcnt vmcnt(0)")
        e(f"v_readfirstlane_b32 s{sTMP}, v{tmp}")
        e(f"s_cmp_eq_u32 s{sTMP}, 8"); e(f"s_cbranch_scc1 {l1}")
        e(f"s_sleep {slp}")
        e(f"s_sub_u32 s{sTMP2}, s{sTMP2}, 1"); e(f"s_cmp_lg_u32 s{sTMP2}, 0"); e(f"s_cbranch_scc1 {l0}")
        e(f"{l1}:")
        e("s_mov_b64 exec, -1")
    def lds_arrive(word, notlast):
        e(f"v_mov_b32 v{vT0}, {CNT + 4*word}"); e(f"v_mov_b32 v{vT1}, 1")
        e("s_mov_b64 exec, 1")
        e("s_waitcnt vmcnt(0)")
        stamp("drained")
        e(f"ds_add_rtn_u32 v{vT0}, v{vT0}, v{vT1}")
        e("s_waitcnt lgkmcnt(0)")
        e(f"v_readfirstlane_b32 s{sTMP}, v{vT0}")
        e(f"s_cmp_eq_u32 s{sTMP}, 3"); e(f"s_cbranch_scc0 {notlast}")
    def unpack(dst, src):
        for i in range(4):
            e(f"v_lshlrev_b32 v{dst+2*i}, 16, v{src+i}"); e(f"v_and_b32 v{dst+2*i+1}, 0xffff0000, v{src+i}")

    if stamps: e(f"; stamps: {stamps}")
    for l in """out = concat(GQA(A), MHA(B)), each branch = softmax(x Wq K^T / sqrt(128)) V Wo, fused in one kernel.
Kernarg: A_x A_k A_v A_wq A_wo B_x B_k B_v B_wq B_wo out debug ws (8 bytes each).
Workgroup = (batch b = id>>3, head group g = id&7): waves 0-3 own B's heads 4g..4g+3, waves 4-7 A's.
Phases per workgroup: Q_B | attention B ... [Q_A | attention A | O_A at a batch-dependent tile] ... | O_B | reduce.
The wave set that is not computing issues the LDS loads for the other one.
Softmax: exp2 of the unshifted scores; every row sum is range-checked and the head is redone with the
true running max (L_slow) when a sum leaves [2^-30, 2^30].
The eight workgroups of a batch exchange bf16 partial sums of the output projection through ws
(write-through stores, counters zeroed in this launch, announced through debug).""".split("\n"): e("; " + l)
    e(f"; @launch grid=(256,1,1) block=(512,1,1) lds={LDS}")
    e('.amdgcn_target "amdgcn-amd-amdhsa--gfx950"')
    e(".text"); e(f".globl {NAME}_kernel"); e(".p2align 8"); e(f".type {NAME}_kernel,@function")
    e(f"{NAME}_kernel:")
    e("s_cmp_ge_u32 s2, 256"); e("s_cbranch_scc1 L_end")
    e("s_load_dwordx16 s[4:19], s[0:1], 0"); e("s_load_dwordx8 s[20:27], s[0:1], 64"); e("s_load_dwordx2 s[28:29], s[0:1], 96")
    if stamps:
        for i in range(16): e(f"s_mov_b32 s{sST+i}, 0")
        e("s_memtime s[100:101]")
    stamp("start")
    e("s_getpc_b64 s[30:31]"); e("L_pc:")
    e("v_lshlrev_b32 v2, 3, v0"); e("v_mov_b32 v3, s31")
    e("v_add_co_u32 v4, vcc, s30, v2"); e("s_lshr_b32 s3, s2, 4"); e("s_add_u32 s3, s3, 1"); e("v_addc_co_u32 v5, vcc, 0, v3, vcc")
    e("s_mov_b32 exec_lo, 0x10001"); e("s_mov_b32 exec_hi, exec_lo")
    e("global_load_dword v8, v[4:5], off")
    e("s_mov_b64 exec, -1")
    e("v_lshl_add_u32 v2, s3, 12, v2"); e("v_min_u32 v2, L_last-L_pc-4, v2")
    e("v_add_co_u32 v6, vcc, s30, v2"); e("s_bitcmp1_b32 s2, 3"); e("s_mov_b32 s3, 0x10001"); e("v_addc_co_u32 v7, vcc, 0, v3, vcc")
    e("s_cselect_b32 exec_lo, 0, s3"); e("s_cselect_b32 exec_hi, s3, 0")
    if not nopf: e("global_load_dword v9, v[6:7], off")
    e("s_mov_b64 exec, -1")
    e(f"v_lshrrev_b32 v1, 6, v0"); e(f"v_and_b32 v{vLN}, 63, v0"); e(f"v_readfirstlane_b32 s{sTMP}, v1")
    e(f"s_and_b32 s{sG}, s2, 7"); e(f"s_lshr_b32 s{sB}, s2, 3")
    e(f"s_and_b32 s{sW}, s{sTMP}, 3"); e(f"s_lshr_b32 s{sROLE}, s{sTMP}, 2"); e(f"s_lshr_b32 s{sHI}, s{sW}, 1")
    e(f"s_mul_i32 s{sWRB}, s{sW}, {WRING}"); e(f"s_add_u32 s{sWRB}, s{sWRB}, {WR0}")
    if rotq:
        assert asym
        if rotq == "g": e(f"s_and_b32 s{sRQ}, s{sG}, 3")
        elif rotq == "b": e(f"s_and_b32 s{sRQ}, s{sB}, 3")
        else: e(f"s_add_u32 s{sRQ}, s{sG}, s{sB}"); e(f"s_and_b32 s{sRQ}, s{sRQ}, 3")
        e(f"s_lshl_b32 s{sRQ}, s{sRQ}, 20")
    e(f"v_lshlrev_b32 v{vDV}, 4, v{vLN}")
    w_setup("q")
    x_voff()
    e("s_waitcnt lgkmcnt(0)")
    e(f"s_cmp_eq_u32 s{sROLE}, 0")
    e(f"s_cselect_b32 s{sWQ}, s20, s10"); e(f"s_cselect_b32 s{sWQ+1}, s21, s11")
    e(f"s_lshl_b32 s{sTMP}, s{sG}, 2"); e(f"s_add_u32 s{sTMP}, s{sTMP}, s{sW}"); e(f"s_lshl_b32 s{sTMP}, s{sTMP}, 8")
    w_srd(sWQ, sWQ)
    e(f"s_cmp_eq_u32 s{sROLE}, 0"); e("s_cbranch_scc1 L_first_B")
    if prioA: e(f"s_setprio {prioA}")
    x_srd(14)
    if duty:
        e(f"s_cmp_lt_u32 s{sB}, 16"); e("s_cbranch_scc0 L_nod0")
        coop_prefetch(20, 13, 10)
        e("L_nod0:")
        x_issue(0)
    else:
        q0 = []
        for act in first.split():
            if act == "x": x_issue(0); q0 += ["x0"]*4
            elif act == "w": coop_prefetch(20, 13, 10); q0 += ["w"]*4
            elif act == "u": xa_touch(lo=14); q0 += ["u"]*2
    e("s_branch L_common")
    e("L_first_B:")
    for n in range(wpre): emit(w_issue(n, "q"))
    x_srd(4)
    e("L_common:")
    tab = [groups[b * len(groups) // 32] for b in range(32)]
    assert all(0 <= d <= 15 for d in tab)
    wd = [sum(tab[8*i + j] << (4*j) for j in range(8)) for i in range(4)]
    e(f"s_bitcmp0_b32 s{sB}, 3")
    e(f"s_mov_b32 s{sTMP}, {wd[1]:#x}"); e(f"s_cselect_b32 s{sTMP}, {wd[0]:#x}, s{sTMP}")
    e(f"s_mov_b32 s{sTMP2}, {wd[3]:#x}"); e(f"s_cselect_b32 s{sTMP2}, {wd[2]:#x}, s{sTMP2}")
    e(f"s_bitcmp0_b32 s{sB}, 4"); e(f"s_cselect_b32 s{sTMP}, s{sTMP}, s{sTMP2}")
    e(f"s_and_b32 s{sTMP2}, s{sB}, 7"); e(f"s_lshl_b32 s{sTMP2}, s{sTMP2}, 2")
    e(f"s_lshr_b32 s{sTMP}, s{sTMP}, s{sTMP2}"); e(f"s_and_b32 s{sD}, s{sTMP}, 15")
    if asym:
        e(f"s_lshl_b32 s{sTMP}, s{sHI}, 1"); e(f"s_add_u32 s{sTMP}, s{sTMP}, s{sW}"); e(f"s_mul_i32 s{sKB}, s{sTMP}, {CHUNK}")
        e(f"s_cmp_eq_u32 s{sHI}, 0"); e(f"s_cselect_b32 s{sOO}, 17, s{sD}")
    else: e(f"s_mul_i32 s{sKB}, s{sW}, {SLOT}")
    def dk_setup():
        e(f"v_bfe_u32 v{vT0}, v{vLN}, 4, 1"); e(f"v_lshlrev_b32 v{vT0}, 4, v{vT0}"); e(f"v_xor_b32 v{vDK}, v{vDV}, v{vT0}")
    dk_setup()
    t0, t1 = F, F + 1
    e(f"v_and_b32 v{t0}, 7, v{vLN}"); e(f"v_mul_u32_u24 v{vKA}, {KBLK}, v{t0}")
    e(f"v_bfe_u32 v{t0}, v{vLN}, 3, 1"); e(f"v_lshl_add_u32 v{vKA}, v{t0}, 8, v{vKA}")
    e(f"v_lshrrev_b32 v{t1}, 5, v{vLN}"); e(f"v_xor_b32 v{t0}, v{t0}, v{t1}"); e(f"v_lshl_add_u32 v{vKA}, v{t0}, 4, v{vKA}")
    e(f"v_bfe_u32 v{t0}, v{vLN}, 4, 1"); e(f"v_lshl_add_u32 v{vKA}, v{t0}, 5, v{vKA}")
    e(f"v_bfe_u32 v{t0}, v{vLN}, 2, 3"); e(f"v_mul_u32_u24 v{vVA}, {VBLK}, v{t0}")
    e(f"v_lshl_add_u32 v{vVA}, v{t1}, 8, v{vVA}")
    e(f"v_and_b32 v{t0}, 3, v{vLN}"); e(f"v_lshl_add_u32 v{vVA}, v{t0}, 3, v{vVA}")
    def wx_setup():
        e(f"v_and_b32 v{t0}, 3, v{vLN}")
        e(f"v_bfe_u32 v{t1}, v{vLN}, 2, 2"); e(f"v_mul_u32_u24 v{vWA}, {VBLK}, v{t1}")
        e(f"v_lshl_add_u32 v{vWA}, v{t0}, 3, v{vWA}")
        e(f"v_lshrrev_b32 v{t0+2}, 4, v{vLN}"); e(f"v_lshl_add_u32 v{vWA}, v{t0+2}, 7, v{vWA}"); e(f"v_add_u32 v{vWA}, s{sWRB}, v{vWA}")
        e(f"v_mul_u32_u24 v{vXA}, {KBLK}, v{t0}"); e(f"v_lshl_add_u32 v{vXA}, v{t1}, 8, v{vXA}")
        e(f"v_sub_u32 v{t0+3}, 0, v{t1}"); e(f"v_and_b32 v{t0+3}, 3, v{t0+3}"); e(f"v_xor_b32 v{t0+3}, v{t0+3}, v{t0+2}")
        e(f"v_lshl_add_u32 v{vXA}, v{t0+3}, 4, v{vXA}"); e(f"v_add_u32 v{vXA}, {XB}, v{vXA}")
    wx_setup()
    e(f"v_cmp_eq_u32 vcc, v{t0}, v{t1}"); e(f"v_mov_b32 v{t0+2}, 0x3f803f80")
    for i in range(4): e(f"v_mov_b32 v{L+i}, 0")
    e(f"v_cndmask_b32 v{ONES}, 0, v{t0+2}, vcc"); e(f"v_mov_b32 v{ONES+1}, v{ONES}")
    e(f"s_lshl_b32 s{sTMP}, s2, 2"); e(f"s_add_u32 s{sTMP2}, s{sTMP}, s{sW}")
    e(f"s_and_b32 s{sROT}, s{sTMP2}, 15"); e(f"s_lshl_b32 s{sROT}, s{sROT}, 13")
    e(f"s_lshl_b32 s{sTMP}, s{sTMP2}, 17")
    mk_srd(sK, 16, 0x20000); mk_srd(sV, 18, 0x20000)
    if cmaj:
        e(f"s_xor_b32 s{sTMP}, s{sROLE}, 1"); e(f"s_lshl_b32 s{sTMP}, s{sTMP}, 5"); e(f"s_add_u32 s{sTMP}, s{sTMP}, s{sB}"); e(f"s_lshl_b32 s{sTMP}, s{sTMP}, 8")
        e(f"s_and_b32 s{sTMP2}, s{sTMP2}, 31"); e(f"s_add_u32 s{sTMP}, s{sTMP}, s{sTMP2}"); e(f"s_lshl_b32 s{sTMP}, s{sTMP}, 11")
        mk_srd(sP, 28, 0x70800)
    else:
        e(f"s_xor_b32 s{sTMP}, s{sROLE}, 1"); e(f"s_lshl_b32 s{sTMP}, s{sTMP}, 10"); e(f"s_add_u32 s{sTMP}, s{sTMP}, s{sTMP2}"); e(f"s_lshl_b32 s{sTMP}, s{sTMP}, 14")
        mk_srd(sP, 28, 0x4000)
    wo_srd(12)
    e(f"s_bitcmp0_b32 s{sW}, 0")
    e(f"s_cselect_b32 s{sIT}, s6, s8"); e(f"s_cselect_b32 s{sIT+1}, s7, s9"); e(f"s_cselect_b32 s{sIST}, {KBLK-1024}, {VBLK-1024}")
    e(f"s_cselect_b64 vcc, -1, 0"); e(f"s_cselect_b32 s{sDK}, 0, {SLOT}")
    e(f"v_cndmask_b32 v{vIT}, v{vDV}, v{vDK}, vcc")
    e(f"s_lshl_b32 s{sTMP}, s2, 17"); mk_srd(sIT, sIT, 0x20000)
    e(f"s_and_b32 s{sROTA}, s2, 15"); e(f"s_lshl_b32 s{sROTA}, s{sROTA}, 1"); e(f"s_add_u32 s{sROTA}, s{sROTA}, s{sHI}"); e(f"s_lshl_b32 s{sROTA}, s{sROTA}, 12")
    e(f"s_add_u32 s{sTMP}, s{sIST}, 1024"); e(f"s_mul_i32 s{sTMP}, s{sTMP}, s{sHI}"); e(f"s_lshl_b32 s{sTMP}, s{sTMP}, 2"); e(f"s_add_u32 s{sDK}, s{sDK}, s{sTMP}")
    e(f"s_cmp_eq_u32 s{sROLE}, 0"); e("s_cbranch_scc1 L_Binit")

    e(f"v_add_u32 v{vKA}, {XB}, v{vKA}"); e(f"v_add_u32 v{vVA}, {XB + SLOT}, v{vVA}")
    e(f"v_mov_b32 v{t0}, {CNT}"); e(f"ds_write_b128 v{t0}, {vr(L, 4)}")
    e("s_waitcnt lgkmcnt(0)")
    def counter_init(slot):
        ln = lab("ni")
        e(f"s_or_b32 s{sTMP}, s{sG}, s{sW}"); e(f"s_cmp_eq_u32 s{sTMP}, 0"); e(f"s_cbranch_scc0 {ln}")
        e("s_mov_b64 exec, 1")
        if slot == 0:
            flag_srd(0)
            e(f"buffer_store_dword v{L}, off, {srd(sPF)}, s{sOFF} sc1"); e(f"buffer_store_dword v{L}, off, {srd(sPF)}, s{sOFF} offset:256 sc1")
        else:
            e("s_waitcnt vmcnt(0)")
            dbg_srd()
            e(f"v_mov_b32 v{vT0}, 8"); e(f"buffer_store_dword v{vT0}, off, {srd(sPF)}, s{sOFF} sc1")
        e("s_mov_b64 exec, -1")
        e(f"{ln}:")
    def helper(sch):
        q = ["x0"]*4 if duty else list(q0)
        due = {0: sch.get("p0", "x0"), 6: "x1", 14: "x3" if shift else "x2", 22: "x3"}
        for slot, nxt in zip((-1, 0) + qbars, (0,) + qbars + (rel,)):
            if slot in (0, 6): counter_init(slot)
            if shift and slot >= 14:
                sp = shift[slot] if isinstance(shift, dict) else shift
                if len(sp) == 3:
                    lo, n0, n1 = sp; giv = list(range(lo, lo + n0 + n1)); tak = list(range(n0)) + list(range(32 - n1, 32))
                else: giv, tak = map(list, sp)
                assert len(giv) == len(tak) <= 12 and not set(giv) & set(tak) and tak == sorted(tak)
                def shares(sb):
                    for act in sch.get(slot, "").split():
                        if act == "t": xa_touch(sb)
                        else: coop_prefetch(*{"q": (10, 13, 10), "a": (12, 10, 19), "b": (22, 10, 19)}[act], sb)
                ls = lab("sh")
                gm, tm = sum(1 << x for x in giv), sum(1 << x for x in tak)
                tabv = sum(x << (5*k) for k, x in enumerate(giv))
                e(f"s_bitcmp1_b32 {gm:#x}, s{sB}"); e(f"s_cbranch_scc1 {ls}")
                shares(sB)
                e(f"s_bitcmp1_b32 {tm:#x}, s{sB}"); e(f"s_cbranch_scc0 {ls}")
                e(f"s_bfm_b32 s{sRO}, s{sB}, 0"); e(f"s_and_b32 s{sRO}, s{sRO}, {tm:#x}"); e(f"s_bcnt1_i32_b32 s{sRO}, s{sRO}"); e(f"s_mul_i32 s{sRO}, s{sRO}, 5")
                e(f"s_mov_b32 s{sTMP}, {tabv & 0xffffffff:#x}"); e(f"s_mov_b32 s{sTMP2}, {tabv >> 32:#x}")
                e(f"s_lshr_b64 s[{sTMP}:{sTMP2}], s[{sTMP}:{sTMP2}], s{sRO}"); e(f"s_and_b32 s{sRO}, s{sTMP}, 31")
                shares(sRO)
                e(f"{ls}:")
                e("s_barrier"); continue
            for act in sch.get(slot, "").split():
                if act[0] == "x": x_issue(int(act[1]), xbf); q += [act]*4
                elif act == "u": xa_touch(lo=14); q += [act]*2
                elif act == "v":
                    e(f"s_lshl_b32 s{sTMP}, s{sG}, 2"); e(f"s_add_u32 s{sTMP}, s{sTMP}, s{sW}"); e(f"s_lshl_b32 s{sTMP}, s{sTMP}, 11")
                    e(f"v_and_b32 v2, 512, v{vDV}"); e(f"v_add_u32 v2, v2, v{vDV}")
                    e(f"buffer_load_dwordx4 {vr(S + 16, 4)}, v2, {srd(sX)}, s{sTMP} offen offset:512"); q += [act]
                elif act == "q": coop_prefetch(10, 13, 10); q += [act]*(4 << dm)
                elif act == "a": coop_prefetch(12, 10, 19); q += [act]*(4 << dm)
                elif act == "b": coop_prefetch(22, 10, 19); q += [act]*(4 << dm)
                elif act == "t": xa_touch(); q += [act]*(2 << dm)
                elif act == "k": emit(k_issue()); q += [act]*8
                elif act == "c":
                    e(f"s_lshl_b32 s{sTMP}, s{sB}, 2"); e(f"s_add_u32 s{sTMP}, s{sTMP}, s{sW}"); e(f"s_lshl_b32 s{sTMP}, s{sTMP}, 7")
                    e(f"v_lshl_add_u32 v2, v{vLN}, 14, s{sTMP}"); e("v_min_u32 v2, L_last-L_pc-4, v2")
                    e("v_add_co_u32 v2, vcc, s30, v2"); e("v_mov_b32 v3, s31"); e("s_nop 0"); e("v_addc_co_u32 v3, vcc, 0, v3, vcc")
                    e("s_mov_b64 exec, 7"); e("global_load_dword v4, v[2:3], off"); e("s_mov_b64 exec, -1"); q += [act]
            if nxt in due:
                last = max(i for i, x in enumerate(q) if x == due[nxt])
                e(f"s_waitcnt vmcnt({len(q) - 1 - last})")
            e("s_barrier")
        return q
    if duty:
        e(f"s_cmp_lt_u32 s{sB}, 16"); e("s_cbranch_scc0 L_nod1")
        helper(duty[0]); e("s_branch L_nod2")
        e("L_nod1:"); q = helper(duty[1]); e("L_nod2:")
    else: q = helper(hs)
    x_srd(4)
    if asym:
        assert "k" not in q
        e(f"s_cmp_eq_u32 s{sOO}, 0"); e("s_cbranch_scc0 L_hv")
        emit(x_half(0)); emit(x_half(1)); e("s_branch L_hx")
        e("L_hv:")
        emit(k_issue())
    else:
        if "k" not in q: emit(k_issue())
        e(f"s_cmp_eq_u32 s{sD}, 0"); e("s_cbranch_scc0 L_hv")
        emit(x_own()); e("s_branch L_hx")
        e("L_hv:")
    emit(v_issue())
    e("L_hx:")
    x_issue(0, "nt")
    e("s_waitcnt vmcnt(4)"); e("s_barrier")
    x_issue(1, "nt")
    e(f"s_lshl_b32 s{sTMP}, s2, 17")
    mk_srd(sK, 6, 0x20000); mk_srd(sV, 8, 0x20000)
    if chainQ: e("s_waitcnt vmcnt(0)")
    else:
        for n in range(3): emit(w_issue(n, "q"))
        e("s_waitcnt vmcnt(12)")
    wo_srd(22, sPF)
    e("s_branch L_Qstart")
    e("L_Binit:")
    for n in range(wpre, 3): emit(w_issue(n, "q"))
    e(f"s_lshl_b32 s{sTMP}, s{sG}, 2"); e(f"s_add_u32 s{sTMP}, s{sTMP}, s{sW}"); e(f"s_lshl_b32 s{sTMP}, s{sTMP}, 8")
    w_srd(sPF, 10)
    e(f"v_add_u32 v{vKA}, s{sKB}, v{vKA}"); e(f"v_add_u32 v{vVA}, s{sKB}, v{vVA}"); e(f"v_add_u32 v{vVA}, {VOFF}, v{vVA}")

    e("L_Qstart:")
    e("s_barrier")
    stamp("P0")
    proj("q", range(29))
    e(f"s_cmp_eq_u32 s{sROLE}, 0"); e("s_cbranch_scc0 L_QA")
    proj("q", (29, 30, 31), role=0, chain=chainQ)
    e("s_branch L_Qepi")
    e("L_QA:")
    proj("q", (29, 30, 31), role=1)
    e("L_Qepi:")
    c = f2u(math.log2(math.e) / math.sqrt(128.0))
    e(f"v_mov_b32 v{vT0}, {c:#x}"); e(f"v_mov_b32 v{vT1}, {c:#x}")
    pend = []
    def swaps():
        for pq in pend[-1:]: e(f"v_permlane16_swap_b32 v{pq}, v{pq+2}"); e(f"v_permlane16_swap_b32 v{pq+1}, v{pq+3}")
    for s in range(4):
        for qt in range(4):
            b = acc(2*s, qt); qq = Q + (qt*4 + s)*4
            for i in range(4): e(f"v_pk_mul_f32 {vr(b+2*i, 2)}, {vr(b+2*i, 2)}, {vr(vT0, 2)}")
            swaps()
            for i in range(4): e(f"v_cvt_pk_bf16_f32 v{qq+i}, v{b+2*i}, v{b+2*i+1}")
            pend.append(qq)
    e(f"s_mov_b32 s{sI}, 0"); e(f"s_cmp_eq_u32 s{sROLE}, 0")
    swaps()
    stamp("Qdone")
    e("s_cbranch_scc0 L_Aattn")

    for i in range(0, 128, 2): e(f"v_mov_b64 {vr(i, 2)}, 0")
    w_setup("o")
    x_voff()
    e("s_waitcnt vmcnt(0)")
    e("s_barrier")
    e(f"s_cmp_eq_u32 s{sD}, 0"); e("s_cbranch_scc1 L_Bpause")
    e("L_Bgo:")
    e(f"s_cmp_eq_u32 s{sI}, 15"); e("s_cbranch_scc0 L_noE0"); e("s_barrier"); e("L_noE0:")
    e("s_waitcnt vmcnt(8)")
    if tl:
        e("s_memrealtime s[98:99]"); e("s_memtime s[96:97]"); e("s_waitcnt lgkmcnt(0)"); e(f"s_mov_b32 m0, s{sI}"); e("s_nop 0"); e(f"v_writelane_b32 v254, s98, m0")
        e(f"s_add_u32 m0, s{sI}, 16"); e("s_nop 0"); e(f"v_writelane_b32 v254, s96, m0")
    fill = []
    for qt in range(4): fill += exps(qt, 0)
    for qt in range(4): fill += cvts(qt, 0)
    qk(fill)
    if fastlast: e(f"s_cmp_eq_u32 s{sI}, 15"); e("s_cbranch_scc1 L_Blast")
    left = [x for x in fill if x.startswith("v_exp")]
    emit(fill)
    e(f"s_add_u32 s{sROT}, s{sROT}, 8192"); e(f"s_and_b32 s{sROT}, s{sROT}, 0x1ffff")
    e(f"s_add_u32 s{sI}, s{sI}, 1")
    if not fastlast: e(f"s_cmp_eq_u32 s{sI}, 16"); e("s_cbranch_scc1 L_Blast")
    lm = sum(1 << d for d in loose)
    if asym: e(f"s_cmp_eq_u32 s{sI}, s{sOO}"); e("s_cbranch_scc1 L_Bx0")
    if lm: e(f"s_bitcmp1_b32 {lm:#x}, s{sD}"); e("s_cbranch_scc1 L_lk")
    emit(capped(k_issue(), capN))
    e("L_lkb:")
    e("s_waitcnt vmcnt(8)")
    e("L_Bpv:")
    pv_phase()
    if not fastlast: e(f"s_cmp_eq_u32 s{sI}, 16"); e("s_cbranch_scc1 L_Oepi")
    e(f"s_cmp_eq_u32 s{sI}, s{sD}"); e("s_cbranch_scc1 L_Bx")
    if lm: e(f"s_bitcmp1_b32 {lm:#x}, s{sD}"); e("s_cbranch_scc1 L_lv")
    emit(capped(v_issue(), capN))
    e("s_branch L_Bgo")
    if lm:
        e("L_lk:"); emit(capped(k_issue(), capL)); e("s_branch L_lkb")
        e("L_lv:"); emit(capped(v_issue(), capL)); e("s_branch L_Bgo")
    e("L_Blast:")
    def range_check():
        e(f"v_min3_f32 v{vT0}, v{L}, v{L+1}, v{L+2}"); e(f"v_add_f32 v{vT1}, v{L}, v{L+1}")
        e(f"v_min_f32 v{vT0}, v{vT0}, v{L+3}"); e(f"v_add_f32 v{vT1}, v{vT1}, v{L+2}"); e(f"v_add_f32 v{vT1}, v{vT1}, v{L+3}")
        e(f"v_cmp_nle_f32 vcc, {f2u(2.0**lo_exp):#x}, v{vT0}"); e("s_cbranch_vccnz L_slow")
        e(f"v_cmp_nge_f32 vcc, {f2u(2.0**hi_exp):#x}, v{vT1}"); e("s_cbranch_vccnz L_slow")
        if force_slow: e("s_branch L_slow")
    def recip():
        for qt in range(4): e(f"v_rcp_f32 v{L+qt}, v{L+qt}")
        e(f"s_mul_i32 s{sTMP}, s{sW}, {CHUNK if asym else SLOT}"); e(f"v_add_u32 v{vT0}, s{sTMP}, v{vXA}")
    def scale(b, qt):
        sel = "op_sel_hi:[1,0]" if qt % 2 == 0 else "op_sel:[0,1]"
        return [f"v_pk_mul_f32 {vr(b+2*i, 2)}, {vr(b+2*i, 2)}, {vr(L + (qt & 2), 2)} {sel}" for i in range(4)]
    def owr(s, qt): return f"ds_write_b128 v{vT0}, {vr(acc(2*s, qt), 4)} offset:{xoff('o', 0, qt) + s*64}"
    if fastlast:
        if tl: e("v_mov_b32 v252, v254   ; v_writelane_b32 v247")
        emit(left)
        for qt in range(4): emit(exps(qt, 1))
        for i in range(8):
            for qt in range(4): e(f"v_add_f32 v{L+qt}, v{L+qt}, v{S+qt*8+i}")
        lsum(); range_check(); recip()
        for qt in range(4): emit(scale(S + qt*8, qt))
        for qt in range(4): emit(cvts(qt, 0) + cvts(qt, 1))
        for s in range(3):
            for qt in range(4): emit(scale(acc(2*s, qt), qt))
        e("s_waitcnt vmcnt(0)")
        rd = [f"ds_read_b64_tr_b16 {vr(Q + 4*dt + 2*u, 2)}, v{vVA} offset:{u*512 + dt*32}" for dt in range(8) for u in range(2)]
        emit(rd[:8])
        for qt in range(4): emit(scale(acc(6, qt), qt)); emit(rd[8 + 2*qt:10 + 2*qt])
        e("s_waitcnt lgkmcnt(0)")
        stamp("attn_done")
        pendo = []
        for s in range(4):
            mf = [f"{MF} {vr(acc(dt, qt), 4)}, {vr(Q + 4*dt, 4)}, {vr(S + qt*8, 4)}, {vr(acc(dt, qt), 4)}" for qt in range(4) for dt in ((2*s, 2*s + 1) if qt % 2 == 0 else (2*s + 1, 2*s))]
            for i, m in enumerate(mf):
                e(m); emit(pendo[len(pendo)*i//8:len(pendo)*(i + 1)//8])
            pendo = []
            for qt in range(4): pendo += pack(s, qt) + [owr(s, qt)]
        emit(pendo)
        e("s_branch L_Owr")
    else:
        e("s_waitcnt vmcnt(0)"); e("s_branch L_Bpv")
    if asym:
        e("L_Bx0:"); emit(capped(x_half(0), capX)); e("s_branch L_lkb")
        e("L_Bv:"); emit(capped(v_issue(), capN)); e("s_branch L_Bpause")
    e("L_Bx:")
    if asym:
        e(f"s_cmp_eq_u32 s{sHI}, 0"); e("s_cbranch_scc1 L_Bv")
        emit(capped(x_half(1), capX))
    else: emit(capped(x_own(), capX))
    e("L_Bpause:")
    e("s_barrier")
    e(f"s_cmp_eq_u32 s{sW}, 0"); e("s_cbranch_scc0 L_nochk")
    dbg_srd(); poll(tmp=F)
    e("L_nochk:")
    for n in qbars:
        if n == 14: e("s_waitcnt vmcnt(0)")
        e("s_barrier")
    e("s_barrier")
    def half_item(t):
        e(f"s_add_u32 m0, s{sDK}, {XB + (t % 4)*CHUNK}")
        prev = 0
        for j in ((0, 2, 1, 3) if ibr else range(4)):
            for _ in range(abs(j - prev)): e(f"s_{'add' if j > prev else 'sub'}_u32 m0, m0, s{sIST}")
            prev = j
            e(f"buffer_load_dwordx4 v{vIT}, {srd(sIT)}, s{sROTA} offen offset:{j*1024} nt lds")
        e(f"s_add_u32 s{sROTA}, s{sROTA}, 8192"); e(f"s_and_b32 s{sROTA}, s{sROTA}, 0x1ffff")
    half_item(0); half_item(1); issued = 2
    for t in range(16):
        e(f"s_waitcnt vmcnt({4*(issued - t - 1)})"); e("s_barrier")
        while issued < min(16, t + depth + 1):
            half_item(issued); issued += 1
    for n in range(3): emit(w_issue(n, "o"))
    wo_srd(22)
    e("s_barrier"); e("s_waitcnt vmcnt(0)"); e("s_barrier"); e("s_barrier")
    if asym:
        e(f"s_cmp_eq_u32 s{sHI}, 0"); e("s_cbranch_scc1 L_Bgo")
        emit(k_issue())
    emit(v_issue())
    e("s_branch L_Bgo")

    FB = [F, F + 4, F + 8, 244, 248, 252]
    kb = [0, 1, 2, 3, 4, 5, 0, 1]
    vb = [FB[2], FB[3], FB[4], FB[5], FB[0], FB[1], S + 4, S + 12]
    def akr(f): return f"ds_read_b128 {vr(FB[kb[f]], 4)}, v{vKA} offset:{(f >> 2)*512 + (f & 3)*64}"
    def avr(dt): return [f"ds_read_b64_tr_b16 {vr(vb[dt] + 2*u, 2)}, v{vVA} offset:{u*512 + dt*32}" for u in range(2)]
    def weave(mf, fill):
        cost = [2 if x.startswith("v_exp") else 1 for x in fill]
        tot = sum(cost); cum = 0; k = 0
        for i, m in enumerate(mf):
            e(m)
            while k < len(fill) and (cum + cost[k]) * len(mf) <= (i + 1) * tot + len(mf) // 2:
                e(fill[k]); cum += cost[k]; k += 1
        emit(fill[k:])
    def atile(first):
        def apv(dt, qt): return f"{MF} {vr(acc(dt, qt), 4)}, {vr(vb[dt], 4)}, {vr(S + qt*8, 4)}, {'0' if first else vr(acc(dt, qt), 4)}"
        ex = exps(0, 0) + exps(1, 0) + exps(2, 0)
        for f in range(8):
            u, sx = f >> 2, f & 3
            if f == 0: e("s_waitcnt lgkmcnt(2)")
            if f in (2, 4): e("s_waitcnt lgkmcnt(4)")
            for qt in range(4):
                r = vr(Sr(qt, u), 4)
                e(f"{MF} {r}, {vr(FB[kb[f]], 4)}, {vr(Q + (qt*4 + sx)*4, 4)}, {r if sx else '0'}")
                if f == 0 and qt < 2: e(akr(4 + qt))
                if f == 1 and qt == 0: e(f"s_add_u32 s{sI}, s{sI}, 1"); e(f"s_and_b32 s{sTMP}, s{sI}, 3")
                if f == 1 and qt == 1: e(f"s_cselect_b32 s{sDK}, s{sTMP2}, {(-3*CHUNK) & 0xffffffff:#x}")
                if f == 2 and qt == 0: e(f"v_add_u32 v{vKA}, s{sDK}, v{vKA}")
                if u == 1 and (f, qt) != (4, 0) and (qt < 3 or f == 7): e(ex.pop(0))
            if f < 2: e(akr(6 + f))
            else: emit(avr(f - 2))
        emit(exps(0, 1)); emit(cvts(0, 0)); emit(cvts(0, 1)); emit(avr(6))
        e("s_waitcnt lgkmcnt(6)")
        b0 = [apv(dt, 0) for dt in range(6)]
        b0[3] += "\ns_waitcnt lgkmcnt(2)"
        weave(b0, exps(1, 1) + cvts(1, 0) + cvts(1, 1))
        emit(avr(7))
        s0, s1, s2, s3 = (sums(qt) for qt in range(4))
        b1 = [apv(dt, 1) for dt in range(5, -1, -1)]
        b1[1] = s0[0] + "\n" + b1[1]; b1[3] = s0[1] + "\n" + b1[3]
        weave(b1, exps(2, 1) + cvts(2, 0) + cvts(2, 1))
        e(f"v_add_u32 v{vVA}, s{sDK}, v{vVA}")
        b2 = [apv(dt, 2) for dt in range(6)] + [apv(6, 0), apv(7, 0), apv(7, 1), apv(6, 1)]
        b2[0] = s1[0] + "\n" + b2[0]; b2[2] = s1[1] + "\n" + b2[2]; b2[4] = s2[0] + "\n" + b2[4]
        b2[6] = "s_waitcnt lgkmcnt(0)\n" + b2[6]
        weave(b2, exps(3, 0) + exps(3, 1) + cvts(3, 0) + cvts(3, 1))
        e(s2[1])
        e("s_barrier")
        for k, dt in enumerate((4, 5, 0, 1)):
            e(apv(dt, 3)); e(akr(k))
        e(s3[0]); e(apv(2, 3))
        e(f"s_cmp_eq_u32 s{sI}, 16")
        e(apv(3, 3)); e(s3[1])
        e(apv(6, 3)); e(apv(7, 3)); e(apv(7, 2)); e(apv(6, 2))
    e("L_Aattn:")
    e(f"s_mov_b32 s{sTMP2}, {CHUNK}")
    e("s_barrier")
    stamp("L0")
    if stamps and "L0" in stamps: e("s_waitcnt lgkmcnt(0)")
    for f in range(4): e(akr(f))
    atile(True)
    e("L_Aloop:")
    atile(False)
    e("s_cbranch_scc0 L_Aloop")
    e("s_waitcnt lgkmcnt(0)")
    e(f"v_mbcnt_lo_u32_b32 v{vLN}, -1, 0"); e(f"v_mbcnt_hi_u32_b32 v{vLN}, -1, v{vLN}")
    e(f"v_lshlrev_b32 v{vDV}, 4, v{vLN}")
    wx_setup(); w_setup("o")

    e("L_Oepi:")
    if tl and not fastlast:
        e(f"s_cmp_eq_u32 s{sROLE}, 0"); e("s_cbranch_scc0 L_tl0"); e("v_mov_b32 v252, v254   ; v_writelane_b32 v247"); e("L_tl0:")
    stamp("attn_done")
    lsum()
    range_check()
    e("L_slow_back:")
    recip()
    for s in range(4):
        for qt in range(4):
            emit(scale(acc(2*s, qt), qt)); emit(pack(s, qt)); e(owr(s, qt))
    e("L_Owr:")
    e("s_waitcnt lgkmcnt(0)")
    e("s_barrier")
    stamp("Owritten")
    proj("o", range(29))
    e(f"s_cmp_eq_u32 s{sROLE}, 0"); e("s_cbranch_scc0 L_OA")
    ex = {30: [], 31: []}
    if early:
        seq = []
        for qt in range(4): seq += pack(0, qt) + pack(1, qt) + pstore(0, qt)
        slots = [(30, g) for g in range(4, 8)] + [(n, g) for n in (30, 31) for g in range(16) for _ in range(2) if (n, g) >= (30, 8)]
        assert len(slots) >= len(seq)
        for (n, g), x in zip(slots, seq): ex[n].append((g, x))
    proj("o", (29, 30, 31), ex, role=0)
    stamp("Odone")
    e("s_branch L_store1" if early else "s_branch L_store0")
    e("L_OA:")
    proj("o", (29, 30, 31), role=1, chain=chainO)
    stamp("Odone")
    e(f"s_setprio {prioP}")
    if not chainO:
        for n in range(3): emit(w_issue(n, "o", sPF))
    pm = sum(1 << d for d in pubd)
    if pm: e(f"s_bitcmp1_b32 {pm:#x}, s{sD}"); e("s_cbranch_scc1 L_store0")
    e("s_barrier")
    pl = sum(1 << d for d in publ)
    if pl: e(f"s_bitcmp1_b32 {pl:#x}, s{sD}"); e("s_cbranch_scc0 L_store0"); e("s_waitcnt vmcnt(0)"); e("s_barrier")
    e("L_store0:")
    for qt in range(4): emit(pack(0, qt) + pack(1, qt) + pstore(0, qt))
    e("L_store1:")
    for qt in range(4): emit(pack(2, qt) + pack(3, qt) + pstore(1, qt))
    stamp("issued")
    if pm:
        e(f"s_lshr_b32 s{sTMP}, {pm:#x}, s{sD}"); e(f"s_and_b32 s{sTMP}, s{sTMP}, s{sROLE}"); e("s_cbranch_scc0 L_nolate"); e("s_barrier"); e("L_nolate:")
    if prioP: e("s_setprio 0")
    e("s_waitcnt vmcnt(14)")
    if pl: e(f"s_lshr_b32 s{sTMP}, {pl:#x}, s{sD}"); e(f"s_and_b32 s{sTMP}, s{sTMP}, s{sROLE}"); e("s_cbranch_scc1 L_passed")
    e("s_barrier")
    e("L_passed:")
    keep = []
    for p in range(8):
        lk = lab("kp"); keep.append(lk)
        if p < 7: e(f"s_cmp_eq_u32 s{sG}, {p}"); e(f"s_cbranch_scc1 {lk}")
    for p in range(7, -1, -1):
        e(f"{keep[p]}:")
        for f in range(2): unpack(RK + 8*f, acc(2*(2*(p & 1) + f), p >> 1))
        if p: e("s_branch L_kept")
    e("L_kept:")
    e(f"s_xor_b32 s{sTMP2}, s{sROLE}, 1")
    e(f"s_lshl_b32 s{sTMP}, s{sTMP2}, 5"); e(f"s_add_u32 s{sTMP}, s{sTMP}, s{sB}"); e(f"s_lshl_b32 s{sTMP}, s{sTMP}, 19")
    if cmaj:
        e(f"s_lshl_b32 s{sRO}, s{sG}, 16"); e(f"s_add_u32 s{sTMP}, s{sTMP}, s{sRO}")
        mk_srd(sP, 28, 0x10000)
        e(f"s_lshl_b32 s{sRO}, s{sG}, 2"); e(f"s_add_u32 s{sRO}, s{sRO}, s{sW}"); e(f"s_lshl_b32 s{sRO}, s{sRO}, 11")
    else:
        mk_srd(sP, 28, 0x80000)
        e(f"s_mul_i32 s{sRO}, s{sG}, {65536 + 2048}"); e(f"s_lshl_b32 s{sTMP}, s{sW}, 14"); e(f"s_add_u32 s{sRO}, s{sRO}, s{sTMP}")
    e(f"s_lshl_b32 s{sTMP}, s{sB}, 17"); mk_srd(sIT, 24, 0x20000)
    e(f"s_lshl_b32 s{sOO}, s{sTMP2}, 10")
    e(f"s_lshr_b32 s{sTMP}, s{sG}, 1"); e(f"s_lshl_b32 s{sTMP}, s{sTMP}, 15"); e(f"s_add_u32 s{sOO}, s{sOO}, s{sTMP}")
    e(f"s_lshl_b32 s{sTMP}, s{sW}, 8"); e(f"s_add_u32 s{sOO}, s{sOO}, s{sTMP}")
    e(f"s_and_b32 s{sTMP}, s{sG}, 1"); e(f"s_lshl_b32 s{sTMP}, s{sTMP}, 7"); e(f"s_add_u32 s{sOO}, s{sOO}, s{sTMP}")
    e(f"v_and_b32 v{vT0}, {7 if fullrow else 15}, v{vLN}"); e(f"v_lshlrev_b32 v{vKA}, 11, v{vT0}")
    if fullrow:
        e(f"v_bfe_u32 v{vT0}, v{vLN}, 3, 1"); e(f"v_lshl_add_u32 v{vKA}, v{vT0}, 6, v{vKA}"); e(f"s_add_u32 s{sI}, s{sOO}, 16384")
    e(f"v_bfe_u32 v{vT0}, v{vLN}, 4, 1"); e(f"v_lshl_add_u32 v{vKA}, v{vT0}, 5, v{vKA}")
    e(f"v_lshrrev_b32 v{vT0}, 5, v{vLN}"); e(f"v_lshl_add_u32 v{vKA}, v{vT0}, 4, v{vKA}")
    e(f"s_cmp_eq_u32 s{sROLE}, 0"); e("s_cbranch_scc0 L_Apub")
    flag_srd(1)
    lds_arrive(1, "L_Bwait")
    def first_add(done):
        e(f"buffer_atomic_add v{vT1}, off, {srd(sPF)}, s{sOFF} sc0")
        e("s_waitcnt vmcnt(0)")
        e(f"v_readfirstlane_b32 s{sTMP}, v{vT1}")
        e(f"s_cmp_ge_u32 s{sTMP}, 7"); e(f"s_cbranch_scc1 {done}")
    poll(first_add)
    e(f"v_mov_b32 v{vT0}, {CNT + 8}"); e(f"v_mov_b32 v{vT1}, 1")
    e(f"ds_write_b32 v{vT0}, v{vT1}")
    e("s_branch L_final")
    e("L_Bwait:")
    e(f"v_mov_b32 v{vT0}, {CNT + 8}")
    e("L_Bspin:")
    e(f"ds_read_b32 v{vT1}, v{vT0}")
    e("s_waitcnt lgkmcnt(0)")
    e(f"v_readfirstlane_b32 s{sTMP}, v{vT1}")
    e(f"s_cmp_eq_u32 s{sTMP}, 0"); e("s_cbranch_scc1 L_Bspin")
    e("s_branch L_final")
    e("L_Apub:")
    flag_srd(0)
    lds_arrive(0, "L_nosig")
    e(f"buffer_atomic_add v{vT1}, off, {srd(sPF)}, s{sOFF}")
    e("L_nosig:")
    e("s_mov_b64 exec, -1")
    stamp("pubA")
    e("s_barrier")
    e(f"s_cmp_eq_u32 s{sW}, 0"); e("s_cbranch_scc0 L_nopoll")
    poll()
    e("L_nopoll:")
    e("s_barrier")
    rl = []
    for k in range(7):
        rl += [f"s_add_u32 s{sRO}, s{sRO}, {0x2000 if cmaj else 0x10000:#x}", f"s_and_b32 s{sRO}, s{sRO}, {0xffff if cmaj else 0x7ffff:#x}"]
        rl += [f"buffer_load_dwordx4 {vr(RL + 8*k + 4*f, 4)}, v{vDV}, {srd(sP)}, s{sRO} offen offset:{f*1024} sc1" for f in range(2)]
    if capA: emit(capped(rl, capA)); e("s_branch L_sum")
    e("L_final:")
    e("s_mov_b64 exec, -1")
    stamp("flag")
    emit(rl)
    e("L_sum:")
    for k in range(7):
        for f in range(2):
            e(f"s_waitcnt vmcnt({(6 - k)*2 + 1 - f})")
            dst, tmp = RK + 8*f, RK + 16 + 8*f
            unpack(tmp, RL + 8*k + 4*f)
            for i in range(8): e(f"v_add_f32 v{dst+i}, v{dst+i}, v{tmp+i}")
            if k == 6:
                for i in range(4): e(f"v_cvt_pk_bf16_f32 v{dst+i}, v{dst+2*i}, v{dst+2*i+1}")
    stamp("summed")
    for f in range(2):
        dst = RK + 8*f
        e(f"v_permlane16_swap_b32 v{dst}, v{dst+2}"); e(f"v_permlane16_swap_b32 v{dst+1}, v{dst+3}")
        if not fullrow: e(f"buffer_store_dwordx4 {vr(dst, 4)}, v{vKA}, {srd(sIT)}, s{sOO} offen offset:{f*64} sc1")
    if fullrow:
        for i in range(4): e(f"v_mov_b32 v{RK+4+i}, v{RK+i}")
        for i in range(4): e(f"v_mov_b32_dpp v{RK+i}, v{RK+8+i} row_ror:8 row_mask:0xf bank_mask:0xc")
        e(f"buffer_store_dwordx4 {vr(RK, 4)}, v{vKA}, {srd(sIT)}, s{sOO} offen sc1")
        for i in range(4): e(f"v_mov_b32_dpp v{RK+8+i}, v{RK+4+i} row_ror:8 row_mask:0xf bank_mask:0x3")
        e(f"buffer_store_dwordx4 {vr(RK+8, 4)}, v{vKA}, {srd(sIT)}, s{sI} offen sc1")
    if stamps:
        e("s_waitcnt vmcnt(0)")
        stamp("end")
        e("s_memtime s[4:5]")
        e("s_waitcnt lgkmcnt(0)")
        e("s_sub_u32 s4, s4, s100")
        e(f"s_lshl_b32 s{sTMP}, s2, 1"); e(f"s_add_u32 s{sTMP}, s{sTMP}, s{sROLE}"); e(f"s_lshl_b32 s{sTMP}, s{sTMP}, 2"); e(f"s_add_u32 s{sTMP}, s{sTMP}, s{sW}")
        e(f"s_lshl_b32 s{sTMP}, s{sTMP}, 7")
        e(f"s_add_u32 s{sPF}, s28, 0x4000000"); e(f"s_addc_u32 s{sPF+1}, s29, 0"); e(f"s_mov_b32 s{sPF+2}, 0x100000"); e(f"s_mov_b32 s{sPF+3}, 0x20000")
        for i in range(16): e(f"v_mov_b32 v{i}, s{sST+i}")
        e(f"v_mov_b32 v16, s4"); e("v_mov_b32 v17, 0"); e("v_mov_b32 v18, 0"); e("v_mov_b32 v19, 0")
        e(f"v_mov_b32 v20, s{sTMP}")
        if tl:
            e(f"v_lshl_add_u32 v21, v{vLN}, 2, v20"); e("s_mov_b32 exec_hi, 0"); e(f"s_mov_b32 s{sOFF}, 0x80000")
            e(f"buffer_store_dword v252, v21, {srd(sPF)}, s{sOFF} offen")
        e("s_mov_b64 exec, 1")
        for i in range(5): e(f"buffer_store_dwordx4 {vr(4*i, 4)}, v20, {srd(sPF)}, 0 offen offset:{16*i}")
    e("L_end:")
    e("s_endpgm")

    e("L_slow:")
    e(f"s_cmp_eq_u32 s{sROLE}, 0"); e("s_cbranch_scc1 L_slowB")
    dk_setup()
    if asym: e(f"s_mul_i32 s{sKB}, s{sW}, {CHUNK}")
    e(f"v_add_u32 v{vKA}, s{sKB}, v{vKA}"); e(f"v_add_u32 v{vVA}, s{sKB}, v{vVA}"); e(f"v_add_u32 v{vVA}, {VOFF - SLOT}, v{vVA}")
    e(f"s_add_u32 s{sKB}, s{sKB}, {XB}")
    e("L_slowB:")
    e(f"v_add_u32 v{vVA}, {(-VOFF) & 0xffffffff:#x}, v{vVA}")
    for i in range(0, 128, 2): e(f"v_mov_b64 {vr(i, 2)}, 0")
    for i in range(4): e(f"v_mov_b32 v{L+i}, 0"); e(f"v_mov_b32 v{M+i}, {f2u(-3.0e38):#x}")
    e(f"s_mov_b32 s{sROT}, 0")
    e("L_slowloop:")
    emit(k_issue())
    e("s_waitcnt vmcnt(0)")
    qk(None)
    emit(kv_issue(sV, vDV, 0, VBLK))
    for qt in range(4):
        b = S + qt*8; t = F + 2*qt
        e(f"v_max3_f32 v{t}, v{b}, v{b+1}, v{b+2}"); e(f"v_max3_f32 v{t}, v{t}, v{b+3}, v{b+4}")
        e(f"v_max3_f32 v{t}, v{t}, v{b+5}, v{b+6}"); e(f"v_max3_f32 v{t}, v{t}, v{b+7}, v{M+qt}")
        xlane("v_max_f32", [t], [vT0])
        e(f"v_sub_f32 v{t+1}, v{M+qt}, v{t}"); e(f"v_mov_b32 v{M+qt}, v{t}")
        e(f"v_exp_f32 v{t+1}, v{t+1}")
        for i in range(8): e(f"v_sub_f32 v{b+i}, v{b+i}, v{M+qt}")
        e(f"v_mul_f32 v{L+qt}, v{L+qt}, v{t+1}")
        for dt in range(8):
            for i in range(0, 4, 2): e(f"v_pk_mul_f32 {vr(acc(dt, qt)+i, 2)}, {vr(acc(dt, qt)+i, 2)}, {vr(t, 2)} op_sel:[0,1]")
        emit(exps(qt, 0)); emit(cvts(qt, 0))
    e("s_waitcnt vmcnt(0)")
    pv_phase()
    e(f"s_add_u32 s{sROT}, s{sROT}, 8192"); e(f"s_cmp_lt_u32 s{sROT}, 0x20000"); e("s_cbranch_scc1 L_slowloop")
    lsum()
    w_setup("o")
    e("s_branch L_slow_back")
    e("L_last:")

    e('.section .rodata,"a"')
    e(".p2align 6"); e(f".amdhsa_kernel {NAME}_kernel")
    for l in [".amdhsa_next_free_vgpr 256", ".amdhsa_next_free_sgpr 102", ".amdhsa_accum_offset 256", ".amdhsa_group_segment_fixed_size 0",
              ".amdhsa_kernarg_size 104", ".amdhsa_user_sgpr_count 2", ".amdhsa_user_sgpr_kernarg_segment_ptr 1", ".amdhsa_system_sgpr_workgroup_id_x 1",
              ".amdhsa_float_denorm_mode_32 3"]:
        e("  " + l)
    e(".end_amdhsa_kernel")
    n = a.pad()
    return a.text(), n

if __name__ == "__main__":
    kw = eval("dict(" + (sys.argv[2] if len(sys.argv) > 2 else "") + ")")
    txt, n = gen(**kw)
    out = sys.argv[1] if len(sys.argv) > 1 else f"cdna_kernels/{NAME}.s"
    open(out, "w").write(txt)
    print("pad states:", n, "lines:", txt.count("\n"), "LDS", LDS)
```

```python
import sys, math, struct
from asmlib import Asm

NAME = "concat_heads__gqa_block_cached__mha_block_cached__near_ridge"
KBLK = 1088; VBLK = 1056; HALF = 4352; SLOT = 8704; CHUNK = 2*SLOT
XB = 4*SLOT
VOFF = XB + 2*CHUNK
WR0 = XB + 4*CHUNK
WRING = 3*HALF
CNT = WR0 + 4*WRING
LDS = CNT + 64
WBIAS = 128

sK, sV, sWQ, sWO, sX, sP, sIT, sPF = 32, 36, 40, 44, 48, 52, 56, 60
(sROLE, sW, sG, sB, sD, sI, sROT, sOFF, sWRB, sKB, sTMP, sTMP2, sWOFF, sROTA, sIST, sDK, sHI, sOO, sRO, sRQ) = range(64, 84)
sST = 84
def srd(n): return f"s[{n}:{n+3}]"
ACC = 0; Q = 128; S = 192; F = 224; L = 236; ONES = 240
vKA, vVA, vDK, vDV = 242, 243, 244, 245
vWO = 246
vWA, vXA, vIT, vLN, vT0, vT1 = 250, 251, 252, 253, 254, 255
M = 246
AF = 128; BF = 160
RK = 192; RL = 128
def vr(b, n): return f"v[{b}:{b+n-1}]"
def acc(dt, qt): return ACC + ((dt >> 1)*4 + qt)*8 + (dt & 1)*4
def f2u(x): return struct.unpack("<I", struct.pack("<f", x))[0]
MF = "v_mfma_f32_16x16x32_bf16"
GROUPS = (0,0,0,0,0,1,1,1,2,2,3,3,4,5,6,8,9,11,11,12,12,13,13,14,14,14,15,15,15,15,15,15)

def gen(groups=GROUPS, capN=8, capX=8, depth=2, slp=3, prioA=1, lo_exp=-30, hi_exp=30, rel=29, relAq=30, relAo=31, early=True, loose=(), capL=None, asym=True, fastlast=True, duty=None, capA=5, nopf=False, pubd=(), prioP=0, publ=(), chainQ=False, chainO=True, relBo=29, xbf='', first='x w', wpre=3, rotq='g', cmaj=True, tight=(11, 12, 13), tight2=(), capT=7, ibr=False, fullrow=False, shift={14: (12, 0, 6), 22: (10, 0, 6)},
        hs={0: "x1", 6: "x2 x3", 14: "q t", 22: "a b"},
        stamps=False, cyc=False, tl=False, force_slow=False):
    a = Asm(); e = a
    qbars = (6, 14, 22)
    VOFF = SLOT if asym else XB + 2*CHUNK
    def stamp(nm):
        if stamps and nm in stamps:
            i = stamps.index(nm); e(f"{'s_memtime' if cyc else 's_memrealtime'} s[{sST+2*i}:{sST+2*i+1}]")
    def emit(lst):
        for x in lst:
            if x: e(x)
    uid = [0]
    def lab(p):
        uid[0] += 1; return f"L_{p}{uid[0]}"
    def mk_srd(r, lo, size):
        e(f"s_add_u32 s{r}, s{lo}, s{sTMP}"); e(f"s_addc_u32 s{r+1}, s{lo+1}, 0"); e(f"s_mov_b32 s{r+2}, {size:#x}"); e(f"s_mov_b32 s{r+3}, 0x20000")

    order = [(n >> 1, n & 1) for n in range(28)] + [(14, 0), (15, 0), (14, 1), (15, 1)]
    def w_setup(kind):
        sh = 13 if kind == "q" else 10
        if kind == "q":
            e(f"v_bfe_u32 v{vT0}, v{vLN}, 3, 2"); e(f"v_lshlrev_b32 v{vWO}, {sh+3}, v{vT0}")
            e(f"v_lshrrev_b32 v{vT0}, 5, v{vLN}"); e(f"v_lshl_add_u32 v{vWO}, v{vT0}, {sh+2}, v{vWO}")
        else:
            e(f"v_lshrrev_b32 v{vT0}, 3, v{vLN}"); e(f"v_lshlrev_b32 v{vWO}, {sh+2}, v{vT0}")
        e(f"v_and_b32 v{vT0}, 7, v{vLN}"); e(f"v_lshl_add_u32 v{vWO}, v{vT0}, 4, v{vWO}")
        for r in (3, 2, 1, 0):
            e(f"v_add_u32 v{vWO+r}, {r*((1 << sh) - VBLK) + WBIAS}, v{vWO}")
    def w_issue(n, kind, sr=None):
        sr, sh = (sr or sWQ, 13) if kind == "q" else (sr or sWO, 10)
        ks, ch = order[n]
        out = [f"s_add_u32 m0, s{sWRB}, {(n % 3)*HALF}", f"s_mov_b32 s{sWOFF}, {ks*(32 << sh) + ch*128}"]
        if rotq and kind == "q": out[1] = f"s_xor_b32 s{sWOFF}, s{sRQ}, {ks*(32 << sh) + ch*128}"
        for r in range(4):
            out.append(f"buffer_load_dwordx4 v{vWO+r}, {srd(sr)}, s{sWOFF} offen offset:{r*VBLK} lds")
        return out
    def w_srd(r, lo):
        e(f"s_add_u32 s{r}, s{lo}, s{sTMP}"); e(f"s_addc_u32 s{r+1}, s{lo+1}, 0")
        e(f"s_sub_u32 s{r}, s{r}, {WBIAS}"); e(f"s_subb_u32 s{r+1}, s{r+1}, 0")
        e(f"s_sub_u32 s{r+2}, {0x400000 + WBIAS}, s{sTMP}"); e(f"s_mov_b32 s{r+3}, 0x20000")
    def wo_srd(lo, r=sWO):
        e(f"s_lshl_b32 s{sTMP}, s{sG}, 19"); e(f"s_lshl_b32 s{sTMP2}, s{sW}, 8"); e(f"s_add_u32 s{sTMP}, s{sTMP}, s{sTMP2}")
        w_srd(r, lo)
    def kv_issue(sr, voff, imm, blk):
        out = [f"s_add_u32 s{sOFF}, s{sROT}, 4096"]
        for j in (0, 4, 2, 6, 1, 5, 3, 7):
            out.append(f"s_add_u32 m0, s{sKB}, {imm + j*blk - (j % 4)*1024}")
            out.append(f"buffer_load_dwordx4 v{voff}, {srd(sr)}, s{sOFF if j >= 4 else sROT} offen offset:{(j % 4)*1024} nt lds")
        return out
    def capped(lst, n):
        if not n: return lst
        out = []
        for x in lst:
            if x.startswith("buffer_load"): out.append(f"s_waitcnt vmcnt({n-1})")
            out.append(x)
        return out
    def k_issue(): return kv_issue(sK, vDK, 0, KBLK)
    def v_issue(): return kv_issue(sV, vDV, VOFF, VBLK)
    def xrot():
        return [f"s_lshr_b32 s{sTMP}, s{sRQ}, 12", f"s_xor_b32 s{sOFF}, s{sOFF}, s{sTMP}"] if rotq else []
    def x_issue(c, flag=""):
        e(f"s_lshl_b32 s{sOFF}, s{sW}, 14"); e(f"s_add_u32 s{sOFF}, s{sOFF}, {c*256}")
        emit(xrot())
        e(f"s_mul_i32 s{sTMP}, s{sW}, {HALF}")
        for j in range(4):
            e(f"s_add_u32 m0, s{sTMP}, {XB + c*CHUNK + j*64}")
            e(f"buffer_load_dwordx4 v{vT1}, {srd(sX)}, s{sOFF} offen offset:{j*1024} {flag} lds")
    def x_half(h):
        out = [f"s_lshl_b32 s{sOFF}, s{sW}, 8", f"s_add_u32 s{sOFF}, s{sOFF}, {h*32768}"] + xrot()
        for j in range(8):
            if j == 4: out.append(f"s_add_u32 s{sOFF}, s{sOFF}, 16384")
            out.append(f"s_add_u32 m0, s{sKB}, {h*SLOT + (j >> 2)*HALF + (j & 3)*64}")
            out.append(f"buffer_load_dwordx4 v{vT1}, {srd(sX)}, s{sOFF} offen offset:{(j & 3)*1024} nt lds")
        return out
    def x_own():
        out = [f"s_and_b32 s{sOFF}, s{sW}, 1", f"s_lshl_b32 s{sOFF}, s{sOFF}, 7", f"s_add_u32 s{sOFF}, s{sOFF}, s{sHI}",
               f"s_lshl_b32 s{sOFF}, s{sOFF}, 8", f"s_add_u32 s{sOFF}, s{sOFF}, 512"]
        for j in range(8):
            if j == 4: out.append(f"s_add_u32 s{sOFF}, s{sOFF}, 16384")
            out.append(f"s_add_u32 m0, s{sKB}, {VOFF + (j >> 2)*HALF + (j & 3)*64}")
            out.append(f"buffer_load_dwordx4 v{vT1}, {srd(sX)}, s{sOFF} offen offset:{(j & 3)*1024} nt lds")
        return out
    def x_voff():
        e(f"v_lshrrev_b32 v{vT0}, 4, v{vLN}"); e(f"v_sub_u32 v{vT1}, 0, v{vT0}"); e(f"v_and_b32 v{vT1}, 3, v{vT1}")
        e(f"v_xor_b32 v{vT1}, v{vT1}, v{vLN}"); e(f"v_and_b32 v{vT1}, 15, v{vT1}"); e(f"v_lshlrev_b32 v{vT1}, 4, v{vT1}")
        e(f"v_lshl_add_u32 v{vT1}, v{vT0}, 12, v{vT1}")
    def x_srd(lo):
        e(f"s_lshl_b32 s{sTMP}, s{sB}, 16"); mk_srd(sX, lo, 0x10000)
    dm = 1 if duty else 0
    def xa_touch(sb=sB, lo=4):
        e(f"s_lshl_b32 s{sTMP}, s{sb}, 3"); e(f"s_add_u32 s{sTMP}, s{sTMP}, s{sG}")
        e(f"s_lshl_b32 s{sTMP}, s{sTMP}, 2"); e(f"s_add_u32 s{sTMP}, s{sTMP}, s{sW}"); e(f"s_lshl_b32 s{sTMP}, s{sTMP}, {11 + dm}")
        mk_srd(sPF, lo, 0x800 << dm)
        for r in range(2 << dm): e(f"buffer_load_dwordx4 {vr(S + 16 + 4*r, 4)}, v{vDV}, {srd(sPF)}, 0 offen offset:{r*1024}")
    def coop_prefetch(lo, sh, goff_sh, sb=sB):
        e(f"s_lshl_b32 s{sTMP}, s{sG}, {goff_sh}")
        e(f"s_add_u32 s{sPF}, s{lo}, s{sTMP}"); e(f"s_addc_u32 s{sPF+1}, s{lo+1}, 0")
        e(f"s_sub_u32 s{sPF+2}, 0x400000, s{sTMP}"); e(f"s_mov_b32 s{sPF+3}, 0x20000")
        e(f"s_lshl_b32 s{sTMP}, s{sb}, 2"); e(f"s_add_u32 s{sTMP}, s{sTMP}, s{sW}"); e(f"s_lshl_b32 s{sTMP}, s{sTMP}, {sh+2+dm}")
        for r in range(4 << dm):
            e(f"buffer_load_dwordx4 {vr(S + 4*(r % 4), 4)}, v{vDV}, {srd(sPF)}, s{sTMP} offen")
            if r < (4 << dm) - 1: e(f"s_add_u32 s{sTMP}, s{sTMP}, {1 << sh}")

    def xoff(kind, c, qt):
        return c*CHUNK + qt*HALF if (kind == "q" or asym) else (qt >> 1)*2*CHUNK + c*SLOT + (qt & 1)*HALF
    def pack(sx, qt):
        b = acc(2*sx, qt)
        return [f"v_cvt_pk_bf16_f32 v{b+i}, v{b+2*i}, v{b+2*i+1}" for i in range(4)]
    def pstore(sp, qt):
        st = [f"buffer_store_dwordx4 {vr(acc(2*sx, qt), 4)}, v{vDV}, {srd(sP)}, s{sOFF} offen offset:{(sx & 1 if cmaj else sx)*1024} sc1" for sx in (2*sp, 2*sp + 1)]
        l = lab("ps")
        return [f"s_mov_b32 s{sOFF}, {(qt*2 + sp)*65536 if cmaj else qt*4096}", f"s_cmp_eq_u32 s{sG}, {qt*2 + sp}", f"s_cbranch_scc1 {l}\n{st[0]}\n{st[1]}\n{l}:", ""]
    def proj(kind, steps=range(32), extra={}, role=None, chain=False):
        def ra(n):
            return [f"ds_read_b64_tr_b16 {vr(AF + (n % 2)*16 + d*4 + ee*2, 2)}, v{vWA} offset:{(n % 3)*HALF + ee*512 + d*32}" for d in range(4) for ee in range(2)]
        def rb(ks, qts):
            return [f"ds_read_b128 {vr(BF + (ks % 2)*16 + qt*4, 4)}, v{vXA} offset:{xoff(kind, ks >> 2, qt) + (ks & 3)*64}" for qt in qts]
        for n in steps:
            if n == 0:
                e("s_waitcnt vmcnt(8)")
                emit(rb(0, range(4))); emit(ra(0))
                e("s_waitcnt lgkmcnt(0)")
            stamp(f"{kind}{n}")
            ks, ch = order[n]
            rd = ra(n + 1) if n < 31 else []
            if n < 28: rd = rd + rb(ks + 1, (2*ch, 2*ch + 1))
            if n == 28: rd = rd + rb(15, range(4))
            dm = w_issue(n + 3, kind) if n + 3 < 32 else []
            if chain and n >= 29: dm = w_issue(n % 3, kind, sPF)
            if n < 31: e("s_waitcnt vmcnt(4)" if (n <= 29 or chain) else "s_waitcnt vmcnt(0)")
            relA = (relAq if kind == "q" else relAo) or rel
            if role is not None:
                if n == (relA if role else (rel if kind == "q" else relBo)): e("s_barrier")
            elif (kind == "q" and n in qbars) or n == rel == relA: e("s_barrier")
            elif n in (rel, relA):
                l1 = lab("nb"); e(f"s_cmp_eq_u32 s{sROLE}, {int(n == relA)}"); e(f"s_cbranch_scc0 {l1}"); e("s_barrier"); e(f"{l1}:")
            gaps = [[] for _ in range(16)]
            for i, x in enumerate(rd): gaps[i].append(x)
            if dm:
                gaps[2].append(dm[0]); gaps[3].append(dm[1])
                for i in range(4): gaps[(4, 6, 8, 12)[i]].append(dm[2 + i])
            for g, x in extra.get(n, []): gaps[g].append(x)
            k = 0
            for d in range(4):
                for qt in (range(3, -1, -1) if d % 2 else range(4)):
                    r = vr(acc(4*ch + d, qt), 4)
                    e(f"{MF} {r}, {vr(AF + (n % 2)*16 + d*4, 4)}, {vr(BF + (ks % 2)*16 + qt*4, 4)}, {r if ks else '0'}")
                    emit(gaps[k]); k += 1
            if n < 31: e("s_waitcnt lgkmcnt(0)")

    def Sr(qt, u): return S + qt*8 + u*4
    def exps(qt, u): return [f"v_exp_f32 v{Sr(qt, u)+i}, v{Sr(qt, u)+i}" for i in range(4)]
    def cvts(qt, u): return [f"v_cvt_pk_bf16_f32 v{S+qt*8+2*u+i}, v{Sr(qt, u)+2*i}, v{Sr(qt, u)+2*i+1}" for i in range(2)]
    def kr(f): return f"ds_read_b128 {vr(F + (f % 3)*4, 4)}, v{vKA} offset:{(f >> 2)*512 + (f & 3)*64}"
    vbuf = [F, F + 4, F + 8, S + 4, S + 12, S + 20, S + 28, F]
    def vrd(dt): return [f"ds_read_b64_tr_b16 {vr(vbuf[dt] + 2*u, 2)}, v{vVA} offset:{u*512 + dt*32}" for u in range(2)]
    def sums(qt): return [f"v_mfma_f32_4x4x4_16b_bf16 {vr(L, 4)}, {vr(ONES, 2)}, {vr(S + qt*8 + 2*h, 2)}, {vr(L, 4)} cbsz:2 abid:{qt}" for h in range(2)]
    def pv(dt, qt): return f"{MF} {vr(acc(dt, qt), 4)}, {vr(vbuf[dt], 4)}, {vr(S + qt*8, 4)}, {vr(acc(dt, qt), 4)}"
    def qk(fill):
        for f in range(3): e(kr(f))
        m = 0
        for f in range(8):
            u, s = f >> 2, f & 3
            e(f"s_waitcnt lgkmcnt({min(2, 7 - f)})")
            for qt in range(4):
                r = vr(Sr(qt, u), 4)
                e(f"{MF} {r}, {vr(F + (f % 3)*4, 4)}, {vr(Q + (qt*4 + s)*4, 4)}, {r if s else '0'}")
                if u == 1:
                    if m >= 3 and fill: e(fill.pop(0))
                    m += 1
            if f + 3 < 8: e(kr(f + 3))
    def pv_phase():
        pre = [exps(qt, 1) + cvts(qt, 1) for qt in range(4)]
        for dt in range(3): emit(vrd(dt))
        emit(pre[0]); emit(vrd(3))
        for qt in range(4):
            nxt = (pre[qt + 1] + vrd(4 + qt)) if qt < 3 else []
            per = math.ceil(len(nxt) / 4)
            sm = sums(qt)
            for dt in range(3):
                if qt == 0: e(f"s_waitcnt lgkmcnt({6 - 2*dt})")
                e(pv(dt, qt)); emit(nxt[dt*per:(dt+1)*per])
                if dt == 0: e(sm[0])
            e(sm[1]); emit(nxt[3*per:])
        emit(vrd(7))
        for dt in range(3, 8):
            e(f"s_waitcnt lgkmcnt({2*(7 - dt)})")
            for qt in (range(3, -1, -1) if dt % 2 else range(4)): e(pv(dt, qt))
    def xlane(op, regs, tmps):
        for sw in ("32", "16"):
            for r, t in zip(regs, tmps): e(f"v_mov_b32 v{t}, v{r}")
            for r, t in zip(regs, tmps): e(f"v_permlane{sw}_swap_b32 v{r}, v{t}")
            for r, t in zip(regs, tmps): e(f"{op} v{r}, v{r}, v{t}")
    def lsum(): xlane("v_add_f32", range(L, L + 4), range(F, F + 4))

    def flag_srd(branch):
        e(f"s_add_u32 s{sPF}, s28, 0x2000000"); e(f"s_addc_u32 s{sPF+1}, s29, 0"); e(f"s_mov_b32 s{sPF+2}, 0x8000"); e(f"s_mov_b32 s{sPF+3}, 0x20000")
        e(f"s_mul_i32 s{sOFF}, s{sB}, 768"); e(f"s_add_u32 s{sOFF}, s{sOFF}, {branch*256}")
    def dbg_srd():
        e(f"s_mov_b32 s{sPF}, s26"); e(f"s_mov_b32 s{sPF+1}, s27"); e(f"s_mov_b32 s{sPF+2}, 256"); e(f"s_mov_b32 s{sPF+3}, 0x20000")
        e(f"s_lshl_b32 s{sOFF}, s{sB}, 3")
    def poll(first=None, tmp=vT0):
        l0, l1 = lab("pl"), lab("pl")
        e("s_mov_b64 exec, 1")
        if first: first(l1)
        e(f"s_mov_b32 s{sTMP2}, 0x40000")
        e(f"{l0}:")
        e(f"buffer_load_dword v{tmp}, off, {srd(sPF)}, s{sOFF} sc1")
        e("s_waitcnt vmcnt(0)")
        e(f"v_readfirstlane_b32 s{sTMP}, v{tmp}")
        e(f"s_cmp_eq_u32 s{sTMP}, 8"); e(f"s_cbranch_scc1 {l1}")
        e(f"s_sleep {slp}")
        e(f"s_sub_u32 s{sTMP2}, s{sTMP2}, 1"); e(f"s_cmp_lg_u32 s{sTMP2}, 0"); e(f"s_cbranch_scc1 {l0}")
        e(f"{l1}:")
        e("s_mov_b64 exec, -1")
    def lds_arrive(word, notlast):
        e(f"v_mov_b32 v{vT0}, {CNT + 4*word}"); e(f"v_mov_b32 v{vT1}, 1")
        e("s_mov_b64 exec, 1")
        e("s_waitcnt vmcnt(0)")
        stamp("drained")
        e(f"ds_add_rtn_u32 v{vT0}, v{vT0}, v{vT1}")
        e("s_waitcnt lgkmcnt(0)")
        e(f"v_readfirstlane_b32 s{sTMP}, v{vT0}")
        e(f"s_cmp_eq_u32 s{sTMP}, 3"); e(f"s_cbranch_scc0 {notlast}")
    def unpack(dst, src):
        for i in range(4):
            e(f"v_lshlrev_b32 v{dst+2*i}, 16, v{src+i}"); e(f"v_and_b32 v{dst+2*i+1}, 0xffff0000, v{src+i}")

    if stamps: e(f"; stamps: {stamps}")
    for l in """out = concat(GQA(A), MHA(B)), each branch = softmax(x Wq K^T / sqrt(128)) V Wo, fused in one kernel.
Kernarg: A_x A_k A_v A_wq A_wo B_x B_k B_v B_wq B_wo out debug ws (8 bytes each).
Workgroup = (batch b = id>>3, head group g = id&7): waves 0-3 own B's heads 4g..4g+3, waves 4-7 A's.
Phases per workgroup: Q_B | attention B ... [Q_A | attention A | O_A at a batch-dependent tile] ... | O_B | reduce.
The wave set that is not computing issues the LDS loads for the other one.
Softmax: exp2 of the unshifted scores; every row sum is range-checked and the head is redone with the
true running max (L_slow) when a sum leaves [2^-30, 2^30].
The eight workgroups of a batch exchange bf16 partial sums of the output projection through ws
(write-through stores, counters zeroed in this launch, announced through debug).""".split("\n"): e("; " + l)
    e(f"; @launch grid=(256,1,1) block=(512,1,1) lds={LDS}")
    e('.amdgcn_target "amdgcn-amd-amdhsa--gfx950"')
    e(".text"); e(f".globl {NAME}_kernel"); e(".p2align 8"); e(f".type {NAME}_kernel,@function")
    e(f"{NAME}_kernel:")
    e("s_cmp_ge_u32 s2, 256"); e("s_cbranch_scc1 L_end")
    e("s_load_dwordx16 s[4:19], s[0:1], 0"); e("s_load_dwordx8 s[20:27], s[0:1], 64"); e("s_load_dwordx2 s[28:29], s[0:1], 96")
    if stamps:
        for i in range(16): e(f"s_mov_b32 s{sST+i}, 0")
        e("s_memtime s[100:101]")
    stamp("start")
    e("s_getpc_b64 s[30:31]"); e("L_pc:")
    e("v_lshlrev_b32 v2, 3, v0"); e("v_mov_b32 v3, s31")
    e("v_add_co_u32 v4, vcc, s30, v2"); e("s_lshr_b32 s3, s2, 4"); e("s_add_u32 s3, s3, 1"); e("v_addc_co_u32 v5, vcc, 0, v3, vcc")
    e("s_mov_b32 exec_lo, 0x10001"); e("s_mov_b32 exec_hi, exec_lo")
    e("global_load_dword v8, v[4:5], off")
    e("s_mov_b64 exec, -1")
    e("v_lshl_add_u32 v2, s3, 12, v2"); e("v_min_u32 v2, L_last-L_pc-4, v2")
    e("v_add_co_u32 v6, vcc, s30, v2"); e("s_bitcmp1_b32 s2, 3"); e("s_mov_b32 s3, 0x10001"); e("v_addc_co_u32 v7, vcc, 0, v3, vcc")
    e("s_cselect_b32 exec_lo, 0, s3"); e("s_cselect_b32 exec_hi, s3, 0")
    if not nopf: e("global_load_dword v9, v[6:7], off")
    e("s_mov_b64 exec, -1")
    e(f"v_lshrrev_b32 v1, 6, v0"); e(f"v_and_b32 v{vLN}, 63, v0"); e(f"v_readfirstlane_b32 s{sTMP}, v1")
    e(f"s_and_b32 s{sG}, s2, 7"); e(f"s_lshr_b32 s{sB}, s2, 3")
    e(f"s_and_b32 s{sW}, s{sTMP}, 3"); e(f"s_lshr_b32 s{sROLE}, s{sTMP}, 2"); e(f"s_lshr_b32 s{sHI}, s{sW}, 1")
    e(f"s_mul_i32 s{sWRB}, s{sW}, {WRING}"); e(f"s_add_u32 s{sWRB}, s{sWRB}, {WR0}")
    if rotq:
        assert asym
        if rotq == "g": e(f"s_and_b32 s{sRQ}, s{sG}, 3")
        elif rotq == "b": e(f"s_and_b32 s{sRQ}, s{sB}, 3")
        else: e(f"s_add_u32 s{sRQ}, s{sG}, s{sB}"); e(f"s_and_b32 s{sRQ}, s{sRQ}, 3")
        e(f"s_lshl_b32 s{sRQ}, s{sRQ}, 20")
    e(f"v_lshlrev_b32 v{vDV}, 4, v{vLN}")
    w_setup("q")
    x_voff()
    e("s_waitcnt lgkmcnt(0)")
    e(f"s_cmp_eq_u32 s{sROLE}, 0")
    e(f"s_cselect_b32 s{sWQ}, s20, s10"); e(f"s_cselect_b32 s{sWQ+1}, s21, s11")
    e(f"s_lshl_b32 s{sTMP}, s{sG}, 2"); e(f"s_add_u32 s{sTMP}, s{sTMP}, s{sW}"); e(f"s_lshl_b32 s{sTMP}, s{sTMP}, 8")
    w_srd(sWQ, sWQ)
    e(f"s_cmp_eq_u32 s{sROLE}, 0"); e("s_cbranch_scc1 L_first_B")
    if prioA: e(f"s_setprio {prioA}")
    x_srd(14)
    if duty:
        e(f"s_cmp_lt_u32 s{sB}, 16"); e("s_cbranch_scc0 L_nod0")
        coop_prefetch(20, 13, 10)
        e("L_nod0:")
        x_issue(0)
    else:
        q0 = []
        for act in first.split():
            if act == "x": x_issue(0); q0 += ["x0"]*4
            elif act == "w": coop_prefetch(20, 13, 10); q0 += ["w"]*4
            elif act == "u": xa_touch(lo=14); q0 += ["u"]*2
    e("s_branch L_common")
    e("L_first_B:")
    for n in range(wpre): emit(w_issue(n, "q"))
    x_srd(4)
    e("L_common:")
    tab = [groups[b * len(groups) // 32] for b in range(32)]
    assert all(0 <= d <= 15 for d in tab)
    wd = [sum(tab[8*i + j] << (4*j) for j in range(8)) for i in range(4)]
    e(f"s_bitcmp0_b32 s{sB}, 3")
    e(f"s_mov_b32 s{sTMP}, {wd[1]:#x}"); e(f"s_cselect_b32 s{sTMP}, {wd[0]:#x}, s{sTMP}")
    e(f"s_mov_b32 s{sTMP2}, {wd[3]:#x}"); e(f"s_cselect_b32 s{sTMP2}, {wd[2]:#x}, s{sTMP2}")
    e(f"s_bitcmp0_b32 s{sB}, 4"); e(f"s_cselect_b32 s{sTMP}, s{sTMP}, s{sTMP2}")
    e(f"s_and_b32 s{sTMP2}, s{sB}, 7"); e(f"s_lshl_b32 s{sTMP2}, s{sTMP2}, 2")
    e(f"s_lshr_b32 s{sTMP}, s{sTMP}, s{sTMP2}"); e(f"s_and_b32 s{sD}, s{sTMP}, 15")
    if asym:
        e(f"s_lshl_b32 s{sTMP}, s{sHI}, 1"); e(f"s_add_u32 s{sTMP}, s{sTMP}, s{sW}"); e(f"s_mul_i32 s{sKB}, s{sTMP}, {CHUNK}")
        e(f"s_cmp_eq_u32 s{sHI}, 0"); e(f"s_cselect_b32 s{sOO}, 17, s{sD}")
    else: e(f"s_mul_i32 s{sKB}, s{sW}, {SLOT}")
    def dk_setup():
        e(f"v_bfe_u32 v{vT0}, v{vLN}, 4, 1"); e(f"v_lshlrev_b32 v{vT0}, 4, v{vT0}"); e(f"v_xor_b32 v{vDK}, v{vDV}, v{vT0}")
    dk_setup()
    t0, t1 = F, F + 1
    e(f"v_and_b32 v{t0}, 7, v{vLN}"); e(f"v_mul_u32_u24 v{vKA}, {KBLK}, v{t0}")
    e(f"v_bfe_u32 v{t0}, v{vLN}, 3, 1"); e(f"v_lshl_add_u32 v{vKA}, v{t0}, 8, v{vKA}")
    e(f"v_lshrrev_b32 v{t1}, 5, v{vLN}"); e(f"v_xor_b32 v{t0}, v{t0}, v{t1}"); e(f"v_lshl_add_u32 v{vKA}, v{t0}, 4, v{vKA}")
    e(f"v_bfe_u32 v{t0}, v{vLN}, 4, 1"); e(f"v_lshl_add_u32 v{vKA}, v{t0}, 5, v{vKA}")
    e(f"v_bfe_u32 v{t0}, v{vLN}, 2, 3"); e(f"v_mul_u32_u24 v{vVA}, {VBLK}, v{t0}")
    e(f"v_lshl_add_u32 v{vVA}, v{t1}, 8, v{vVA}")
    e(f"v_and_b32 v{t0}, 3, v{vLN}"); e(f"v_lshl_add_u32 v{vVA}, v{t0}, 3, v{vVA}")
    def wx_setup():
        e(f"v_and_b32 v{t0}, 3, v{vLN}")
        e(f"v_bfe_u32 v{t1}, v{vLN}, 2, 2"); e(f"v_mul_u32_u24 v{vWA}, {VBLK}, v{t1}")
        e(f"v_lshl_add_u32 v{vWA}, v{t0}, 3, v{vWA}")
        e(f"v_lshrrev_b32 v{t0+2}, 4, v{vLN}"); e(f"v_lshl_add_u32 v{vWA}, v{t0+2}, 7, v{vWA}"); e(f"v_add_u32 v{vWA}, s{sWRB}, v{vWA}")
        e(f"v_mul_u32_u24 v{vXA}, {KBLK}, v{t0}"); e(f"v_lshl_add_u32 v{vXA}, v{t1}, 8, v{vXA}")
        e(f"v_sub_u32 v{t0+3}, 0, v{t1}"); e(f"v_and_b32 v{t0+3}, 3, v{t0+3}"); e(f"v_xor_b32 v{t0+3}, v{t0+3}, v{t0+2}")
        e(f"v_lshl_add_u32 v{vXA}, v{t0+3}, 4, v{vXA}"); e(f"v_add_u32 v{vXA}, {XB}, v{vXA}")
    wx_setup()
    e(f"v_cmp_eq_u32 vcc, v{t0}, v{t1}"); e(f"v_mov_b32 v{t0+2}, 0x3f803f80")
    for i in range(4): e(f"v_mov_b32 v{L+i}, 0")
    e(f"v_cndmask_b32 v{ONES}, 0, v{t0+2}, vcc"); e(f"v_mov_b32 v{ONES+1}, v{ONES}")
    e(f"s_lshl_b32 s{sTMP}, s2, 2"); e(f"s_add_u32 s{sTMP2}, s{sTMP}, s{sW}")
    e(f"s_and_b32 s{sROT}, s{sTMP2}, 15"); e(f"s_lshl_b32 s{sROT}, s{sROT}, 13")
    e(f"s_lshl_b32 s{sTMP}, s{sTMP2}, 17")
    mk_srd(sK, 16, 0x20000); mk_srd(sV, 18, 0x20000)
    if cmaj:
        e(f"s_xor_b32 s{sTMP}, s{sROLE}, 1"); e(f"s_lshl_b32 s{sTMP}, s{sTMP}, 5"); e(f"s_add_u32 s{sTMP}, s{sTMP}, s{sB}"); e(f"s_lshl_b32 s{sTMP}, s{sTMP}, 8")
        e(f"s_and_b32 s{sTMP2}, s{sTMP2}, 31"); e(f"s_add_u32 s{sTMP}, s{sTMP}, s{sTMP2}"); e(f"s_lshl_b32 s{sTMP}, s{sTMP}, 11")
        mk_srd(sP, 28, 0x70800)
    else:
        e(f"s_xor_b32 s{sTMP}, s{sROLE}, 1"); e(f"s_lshl_b32 s{sTMP}, s{sTMP}, 10"); e(f"s_add_u32 s{sTMP}, s{sTMP}, s{sTMP2}"); e(f"s_lshl_b32 s{sTMP}, s{sTMP}, 14")
        mk_srd(sP, 28, 0x4000)
    wo_srd(12)
    e(f"s_bitcmp0_b32 s{sW}, 0")
    e(f"s_cselect_b32 s{sIT}, s6, s8"); e(f"s_cselect_b32 s{sIT+1}, s7, s9"); e(f"s_cselect_b32 s{sIST}, {KBLK-1024}, {VBLK-1024}")
    e(f"s_cselect_b64 vcc, -1, 0"); e(f"s_cselect_b32 s{sDK}, 0, {SLOT}")
    e(f"v_cndmask_b32 v{vIT}, v{vDV}, v{vDK}, vcc")
    e(f"s_lshl_b32 s{sTMP}, s2, 17"); mk_srd(sIT, sIT, 0x20000)
    e(f"s_and_b32 s{sROTA}, s2, 15"); e(f"s_lshl_b32 s{sROTA}, s{sROTA}, 1"); e(f"s_add_u32 s{sROTA}, s{sROTA}, s{sHI}"); e(f"s_lshl_b32 s{sROTA}, s{sROTA}, 12")
    e(f"s_add_u32 s{sTMP}, s{sIST}, 1024"); e(f"s_mul_i32 s{sTMP}, s{sTMP}, s{sHI}"); e(f"s_lshl_b32 s{sTMP}, s{sTMP}, 2"); e(f"s_add_u32 s{sDK}, s{sDK}, s{sTMP}")
    e(f"s_cmp_eq_u32 s{sROLE}, 0"); e("s_cbranch_scc1 L_Binit")

    e(f"v_add_u32 v{vKA}, {XB}, v{vKA}"); e(f"v_add_u32 v{vVA}, {XB + SLOT}, v{vVA}")
    e(f"v_mov_b32 v{t0}, {CNT}"); e(f"ds_write_b128 v{t0}, {vr(L, 4)}")
    e("s_waitcnt lgkmcnt(0)")
    def counter_init(slot):
        ln = lab("ni")
        e(f"s_or_b32 s{sTMP}, s{sG}, s{sW}"); e(f"s_cmp_eq_u32 s{sTMP}, 0"); e(f"s_cbranch_scc0 {ln}")
        e("s_mov_b64 exec, 1")
        if slot == 0:
            flag_srd(0)
            e(f"buffer_store_dword v{L}, off, {srd(sPF)}, s{sOFF} sc1"); e(f"buffer_store_dword v{L}, off, {srd(sPF)}, s{sOFF} offset:256 sc1")
        else:
            e("s_waitcnt vmcnt(0)")
            dbg_srd()
            e(f"v_mov_b32 v{vT0}, 8"); e(f"buffer_store_dword v{vT0}, off, {srd(sPF)}, s{sOFF} sc1")
        e("s_mov_b64 exec, -1")
        e(f"{ln}:")
    def helper(sch):
        q = ["x0"]*4 if duty else list(q0)
        due = {0: sch.get("p0", "x0"), 6: "x1", 14: "x3" if shift else "x2", 22: "x3"}
        for slot, nxt in zip((-1, 0) + qbars, (0,) + qbars + (rel,)):
            if slot in (0, 6): counter_init(slot)
            if shift and slot >= 14:
                sp = shift[slot] if isinstance(shift, dict) else shift
                if len(sp) == 3:
                    lo, n0, n1 = sp; giv = list(range(lo, lo + n0 + n1)); tak = list(range(n0)) + list(range(32 - n1, 32))
                else: giv, tak = map(list, sp)
                assert len(giv) == len(tak) <= 12 and not set(giv) & set(tak) and tak == sorted(tak)
                def shares(sb):
                    for act in sch.get(slot, "").split():
                        if act == "t": xa_touch(sb)
                        else: coop_prefetch(*{"q": (10, 13, 10), "a": (12, 10, 19), "b": (22, 10, 19)}[act], sb)
                ls = lab("sh")
                gm, tm = sum(1 << x for x in giv), sum(1 << x for x in tak)
                tabv = sum(x << (5*k) for k, x in enumerate(giv))
                e(f"s_bitcmp1_b32 {gm:#x}, s{sB}"); e(f"s_cbranch_scc1 {ls}")
                shares(sB)
                e(f"s_bitcmp1_b32 {tm:#x}, s{sB}"); e(f"s_cbranch_scc0 {ls}")
                e(f"s_bfm_b32 s{sRO}, s{sB}, 0"); e(f"s_and_b32 s{sRO}, s{sRO}, {tm:#x}"); e(f"s_bcnt1_i32_b32 s{sRO}, s{sRO}"); e(f"s_mul_i32 s{sRO}, s{sRO}, 5")
                e(f"s_mov_b32 s{sTMP}, {tabv & 0xffffffff:#x}"); e(f"s_mov_b32 s{sTMP2}, {tabv >> 32:#x}")
                e(f"s_lshr_b64 s[{sTMP}:{sTMP2}], s[{sTMP}:{sTMP2}], s{sRO}"); e(f"s_and_b32 s{sRO}, s{sTMP}, 31")
                shares(sRO)
                e(f"{ls}:")
                e("s_barrier"); continue
            for act in sch.get(slot, "").split():
                if act[0] == "x": x_issue(int(act[1]), xbf); q += [act]*4
                elif act == "u": xa_touch(lo=14); q += [act]*2
                elif act == "v":
                    e(f"s_lshl_b32 s{sTMP}, s{sG}, 2"); e(f"s_add_u32 s{sTMP}, s{sTMP}, s{sW}"); e(f"s_lshl_b32 s{sTMP}, s{sTMP}, 11")
                    e(f"v_and_b32 v2, 512, v{vDV}"); e(f"v_add_u32 v2, v2, v{vDV}")
                    e(f"buffer_load_dwordx4 {vr(S + 16, 4)}, v2, {srd(sX)}, s{sTMP} offen offset:512"); q += [act]
                elif act == "q": coop_prefetch(10, 13, 10); q += [act]*(4 << dm)
                elif act == "a": coop_prefetch(12, 10, 19); q += [act]*(4 << dm)
                elif act == "b": coop_prefetch(22, 10, 19); q += [act]*(4 << dm)
                elif act == "t": xa_touch(); q += [act]*(2 << dm)
                elif act == "k": emit(k_issue()); q += [act]*8
                elif act == "c":
                    e(f"s_lshl_b32 s{sTMP}, s{sB}, 2"); e(f"s_add_u32 s{sTMP}, s{sTMP}, s{sW}"); e(f"s_lshl_b32 s{sTMP}, s{sTMP}, 7")
                    e(f"v_lshl_add_u32 v2, v{vLN}, 14, s{sTMP}"); e("v_min_u32 v2, L_last-L_pc-4, v2")
                    e("v_add_co_u32 v2, vcc, s30, v2"); e("v_mov_b32 v3, s31"); e("s_nop 0"); e("v_addc_co_u32 v3, vcc, 0, v3, vcc")
                    e("s_mov_b64 exec, 7"); e("global_load_dword v4, v[2:3], off"); e("s_mov_b64 exec, -1"); q += [act]
            if nxt in due:
                last = max(i for i, x in enumerate(q) if x == due[nxt])
                e(f"s_waitcnt vmcnt({len(q) - 1 - last})")
            e("s_barrier")
        return q
    if duty:
        e(f"s_cmp_lt_u32 s{sB}, 16"); e("s_cbranch_scc0 L_nod1")
        helper(duty[0]); e("s_branch L_nod2")
        e("L_nod1:"); q = helper(duty[1]); e("L_nod2:")
    else: q = helper(hs)
    x_srd(4)
    if asym:
        assert "k" not in q
        e(f"s_cmp_eq_u32 s{sOO}, 0"); e("s_cbranch_scc0 L_hv")
        emit(x_half(0)); emit(x_half(1)); e("s_branch L_hx")
        e("L_hv:")
        emit(k_issue())
    else:
        if "k" not in q: emit(k_issue())
        e(f"s_cmp_eq_u32 s{sD}, 0"); e("s_cbranch_scc0 L_hv")
        emit(x_own()); e("s_branch L_hx")
        e("L_hv:")
    emit(v_issue())
    e("L_hx:")
    x_issue(0, "nt")
    e("s_waitcnt vmcnt(4)"); e("s_barrier")
    x_issue(1, "nt")
    e(f"s_lshl_b32 s{sTMP}, s2, 17")
    mk_srd(sK, 6, 0x20000); mk_srd(sV, 8, 0x20000)
    if chainQ: e("s_waitcnt vmcnt(0)")
    else:
        for n in range(3): emit(w_issue(n, "q"))
        e("s_waitcnt vmcnt(12)")
    wo_srd(22, sPF)
    e("s_branch L_Qstart")
    e("L_Binit:")
    for n in range(wpre, 3): emit(w_issue(n, "q"))
    e(f"s_lshl_b32 s{sTMP}, s{sG}, 2"); e(f"s_add_u32 s{sTMP}, s{sTMP}, s{sW}"); e(f"s_lshl_b32 s{sTMP}, s{sTMP}, 8")
    w_srd(sPF, 10)
    e(f"v_add_u32 v{vKA}, s{sKB}, v{vKA}"); e(f"v_add_u32 v{vVA}, s{sKB}, v{vVA}"); e(f"v_add_u32 v{vVA}, {VOFF}, v{vVA}")

    e("L_Qstart:")
    e("s_barrier")
    stamp("P0")
    proj("q", range(29))
    e(f"s_cmp_eq_u32 s{sROLE}, 0"); e("s_cbranch_scc0 L_QA")
    proj("q", (29, 30, 31), role=0, chain=chainQ)
    e("s_branch L_Qepi")
    e("L_QA:")
    proj("q", (29, 30, 31), role=1)
    e("L_Qepi:")
    c = f2u(math.log2(math.e) / math.sqrt(128.0))
    e(f"v_mov_b32 v{vT0}, {c:#x}"); e(f"v_mov_b32 v{vT1}, {c:#x}")
    pend = []
    def swaps():
        for pq in pend[-1:]: e(f"v_permlane16_swap_b32 v{pq}, v{pq+2}"); e(f"v_permlane16_swap_b32 v{pq+1}, v{pq+3}")
    for s in range(4):
        for qt in range(4):
            b = acc(2*s, qt); qq = Q + (qt*4 + s)*4
            for i in range(4): e(f"v_pk_mul_f32 {vr(b+2*i, 2)}, {vr(b+2*i, 2)}, {vr(vT0, 2)}")
            swaps()
            for i in range(4): e(f"v_cvt_pk_bf16_f32 v{qq+i}, v{b+2*i}, v{b+2*i+1}")
            pend.append(qq)
    e(f"s_mov_b32 s{sI}, 0"); e(f"s_cmp_eq_u32 s{sROLE}, 0")
    swaps()
    stamp("Qdone")
    e("s_cbranch_scc0 L_Aattn")

    for i in range(0, 128, 2): e(f"v_mov_b64 {vr(i, 2)}, 0")
    w_setup("o")
    x_voff()
    tm_ = len(tight) + len(tight2)
    if tm_:
        e(f"s_bfm_b32 s{sTMP}, s{sD}, 0"); e(f"s_and_b32 s3, s{sTMP}, {sum(1 << t for t in tight):#x}")
        e(f"s_andn2_b32 s{sTMP}, {sum(1 << t for t in tight2):#x}, s{sTMP}"); e(f"s_or_b32 s3, s3, s{sTMP}")
    e("s_waitcnt vmcnt(0)")
    e("s_barrier")
    e(f"s_cmp_eq_u32 s{sD}, 0"); e("s_cbranch_scc1 L_Bpause")
    e("L_Bgo:")
    e(f"s_cmp_eq_u32 s{sI}, 15"); e("s_cbranch_scc0 L_noE0"); e("s_barrier"); e("L_noE0:")
    e("s_waitcnt vmcnt(8)")
    if tl:
        e("s_memrealtime s[98:99]"); e("s_memtime s[96:97]"); e("s_waitcnt lgkmcnt(0)"); e(f"s_mov_b32 m0, s{sI}"); e("s_nop 0"); e(f"v_writelane_b32 v254, s98, m0")
        e(f"s_add_u32 m0, s{sI}, 16"); e("s_nop 0"); e(f"v_writelane_b32 v254, s96, m0")
    fill = []
    for qt in range(4): fill += exps(qt, 0)
    for qt in range(4): fill += cvts(qt, 0)
    qk(fill)
    if fastlast: e(f"s_cmp_eq_u32 s{sI}, 15"); e("s_cbranch_scc1 L_Blast")
    left = [x for x in fill if x.startswith("v_exp")]
    emit(fill)
    e(f"s_add_u32 s{sROT}, s{sROT}, 8192"); e(f"s_and_b32 s{sROT}, s{sROT}, 0x1ffff")
    e(f"s_add_u32 s{sI}, s{sI}, 1")
    if not fastlast: e(f"s_cmp_eq_u32 s{sI}, 16"); e("s_cbranch_scc1 L_Blast")
    lm = sum(1 << d for d in loose)
    if asym: e(f"s_cmp_eq_u32 s{sI}, s{sOO}"); e("s_cbranch_scc1 L_Bx0")
    if lm: e(f"s_bitcmp1_b32 {lm:#x}, s{sD}"); e("s_cbranch_scc1 L_lk")
    if tm_: e(f"s_bitcmp1_b32 s3, s{sI}"); e("s_cbranch_scc1 L_tk")
    emit(capped(k_issue(), capN))
    e("L_lkb:")
    e("s_waitcnt vmcnt(8)")
    e("L_Bpv:")
    pv_phase()
    if not fastlast: e(f"s_cmp_eq_u32 s{sI}, 16"); e("s_cbranch_scc1 L_Oepi")
    e(f"s_cmp_eq_u32 s{sI}, s{sD}"); e("s_cbranch_scc1 L_Bx")
    if lm: e(f"s_bitcmp1_b32 {lm:#x}, s{sD}"); e("s_cbranch_scc1 L_lv")
    emit(capped(v_issue(), capN))
    e("s_branch L_Bgo")
    if tm_: e("L_tk:"); emit(capped(k_issue(), capT)); e("s_branch L_lkb")
    if lm:
        e("L_lk:"); emit(capped(k_issue(), capL)); e("s_branch L_lkb")
        e("L_lv:"); emit(capped(v_issue(), capL)); e("s_branch L_Bgo")
    e("L_Blast:")
    def range_check():
        e(f"v_min3_f32 v{vT0}, v{L}, v{L+1}, v{L+2}"); e(f"v_add_f32 v{vT1}, v{L}, v{L+1}")
        e(f"v_min_f32 v{vT0}, v{vT0}, v{L+3}"); e(f"v_add_f32 v{vT1}, v{vT1}, v{L+2}"); e(f"v_add_f32 v{vT1}, v{vT1}, v{L+3}")
        e(f"v_cmp_nle_f32 vcc, {f2u(2.0**lo_exp):#x}, v{vT0}"); e("s_cbranch_vccnz L_slow")
        e(f"v_cmp_nge_f32 vcc, {f2u(2.0**hi_exp):#x}, v{vT1}"); e("s_cbranch_vccnz L_slow")
        if force_slow: e("s_branch L_slow")
    def recip():
        for qt in range(4): e(f"v_rcp_f32 v{L+qt}, v{L+qt}")
        e(f"s_mul_i32 s{sTMP}, s{sW}, {CHUNK if asym else SLOT}"); e(f"v_add_u32 v{vT0}, s{sTMP}, v{vXA}")
    def scale(b, qt):
        sel = "op_sel_hi:[1,0]" if qt % 2 == 0 else "op_sel:[0,1]"
        return [f"v_pk_mul_f32 {vr(b+2*i, 2)}, {vr(b+2*i, 2)}, {vr(L + (qt & 2), 2)} {sel}" for i in range(4)]
    def owr(s, qt): return f"ds_write_b128 v{vT0}, {vr(acc(2*s, qt), 4)} offset:{xoff('o', 0, qt) + s*64}"
    if fastlast:
        if tl: e("v_mov_b32 v252, v254   ; v_writelane_b32 v247")
        emit(left)
        for qt in range(4): emit(exps(qt, 1))
        for i in range(8):
            for qt in range(4): e(f"v_add_f32 v{L+qt}, v{L+qt}, v{S+qt*8+i}")
        lsum(); range_check(); recip()
        for qt in range(4): emit(scale(S + qt*8, qt))
        for qt in range(4): emit(cvts(qt, 0) + cvts(qt, 1))
        for s in range(3):
            for qt in range(4): emit(scale(acc(2*s, qt), qt))
        e("s_waitcnt vmcnt(0)")
        rd = [f"ds_read_b64_tr_b16 {vr(Q + 4*dt + 2*u, 2)}, v{vVA} offset:{u*512 + dt*32}" for dt in range(8) for u in range(2)]
        emit(rd[:8])
        for qt in range(4): emit(scale(acc(6, qt), qt)); emit(rd[8 + 2*qt:10 + 2*qt])
        e("s_waitcnt lgkmcnt(0)")
        stamp("attn_done")
        pendo = []
        for s in range(4):
            mf = [f"{MF} {vr(acc(dt, qt), 4)}, {vr(Q + 4*dt, 4)}, {vr(S + qt*8, 4)}, {vr(acc(dt, qt), 4)}" for qt in range(4) for dt in ((2*s, 2*s + 1) if qt % 2 == 0 else (2*s + 1, 2*s))]
            for i, m in enumerate(mf):
                e(m); emit(pendo[len(pendo)*i//8:len(pendo)*(i + 1)//8])
            pendo = []
            for qt in range(4): pendo += pack(s, qt) + [owr(s, qt)]
        emit(pendo)
        e("s_branch L_Owr")
    else:
        e("s_waitcnt vmcnt(0)"); e("s_branch L_Bpv")
    if asym:
        e("L_Bx0:"); emit(capped(x_half(0), capX)); e("s_branch L_lkb")
        e("L_Bv:"); emit(capped(v_issue(), capN)); e("s_branch L_Bpause")
    e("L_Bx:")
    if asym:
        e(f"s_cmp_eq_u32 s{sHI}, 0"); e("s_cbranch_scc1 L_Bv")
        emit(capped(x_half(1), capX))
    else: emit(capped(x_own(), capX))
    e("L_Bpause:")
    e("s_barrier")
    e(f"s_cmp_eq_u32 s{sW}, 0"); e("s_cbranch_scc0 L_nochk")
    dbg_srd(); poll(tmp=F)
    e("L_nochk:")
    for n in qbars:
        if n == 14: e("s_waitcnt vmcnt(0)")
        e("s_barrier")
    e("s_barrier")
    def half_item(t):
        e(f"s_add_u32 m0, s{sDK}, {XB + (t % 4)*CHUNK}")
        prev = 0
        for j in ((0, 2, 1, 3) if ibr else range(4)):
            for _ in range(abs(j - prev)): e(f"s_{'add' if j > prev else 'sub'}_u32 m0, m0, s{sIST}")
            prev = j
            e(f"buffer_load_dwordx4 v{vIT}, {srd(sIT)}, s{sROTA} offen offset:{j*1024} nt lds")
        e(f"s_add_u32 s{sROTA}, s{sROTA}, 8192"); e(f"s_and_b32 s{sROTA}, s{sROTA}, 0x1ffff")
    half_item(0); half_item(1); issued = 2
    for t in range(16):
        e(f"s_waitcnt vmcnt({4*(issued - t - 1)})"); e("s_barrier")
        while issued < min(16, t + depth + 1):
            half_item(issued); issued += 1
    for n in range(3): emit(w_issue(n, "o"))
    wo_srd(22)
    e("s_barrier"); e("s_waitcnt vmcnt(0)"); e("s_barrier"); e("s_barrier")
    if asym:
        e(f"s_cmp_eq_u32 s{sHI}, 0"); e("s_cbranch_scc1 L_Bgo")
        emit(k_issue())
    emit(v_issue())
    e("s_branch L_Bgo")

    FB = [F, F + 4, F + 8, 244, 248, 252]
    kb = [0, 1, 2, 3, 4, 5, 0, 1]
    vb = [FB[2], FB[3], FB[4], FB[5], FB[0], FB[1], S + 4, S + 12]
    def akr(f): return f"ds_read_b128 {vr(FB[kb[f]], 4)}, v{vKA} offset:{(f >> 2)*512 + (f & 3)*64}"
    def avr(dt): return [f"ds_read_b64_tr_b16 {vr(vb[dt] + 2*u, 2)}, v{vVA} offset:{u*512 + dt*32}" for u in range(2)]
    def weave(mf, fill):
        cost = [2 if x.startswith("v_exp") else 1 for x in fill]
        tot = sum(cost); cum = 0; k = 0
        for i, m in enumerate(mf):
            e(m)
            while k < len(fill) and (cum + cost[k]) * len(mf) <= (i + 1) * tot + len(mf) // 2:
                e(fill[k]); cum += cost[k]; k += 1
        emit(fill[k:])
    def atile(first):
        def apv(dt, qt): return f"{MF} {vr(acc(dt, qt), 4)}, {vr(vb[dt], 4)}, {vr(S + qt*8, 4)}, {'0' if first else vr(acc(dt, qt), 4)}"
        ex = exps(0, 0) + exps(1, 0) + exps(2, 0)
        for f in range(8):
            u, sx = f >> 2, f & 3
            if f == 0: e("s_waitcnt lgkmcnt(2)")
            if f in (2, 4): e("s_waitcnt lgkmcnt(4)")
            for qt in range(4):
                r = vr(Sr(qt, u), 4)
                e(f"{MF} {r}, {vr(FB[kb[f]], 4)}, {vr(Q + (qt*4 + sx)*4, 4)}, {r if sx else '0'}")
                if f == 0 and qt < 2: e(akr(4 + qt))
                if f == 1 and qt == 0: e(f"s_add_u32 s{sI}, s{sI}, 1"); e(f"s_and_b32 s{sTMP}, s{sI}, 3")
                if f == 1 and qt == 1: e(f"s_cselect_b32 s{sDK}, s{sTMP2}, {(-3*CHUNK) & 0xffffffff:#x}")
                if f == 2 and qt == 0: e(f"v_add_u32 v{vKA}, s{sDK}, v{vKA}")
                if u == 1 and (f, qt) != (4, 0) and (qt < 3 or f == 7): e(ex.pop(0))
            if f < 2: e(akr(6 + f))
            else: emit(avr(f - 2))
        emit(exps(0, 1)); emit(cvts(0, 0)); emit(cvts(0, 1)); emit(avr(6))
        e("s_waitcnt lgkmcnt(6)")
        b0 = [apv(dt, 0) for dt in range(6)]
        b0[3] += "\ns_waitcnt lgkmcnt(2)"
        weave(b0, exps(1, 1) + cvts(1, 0) + cvts(1, 1))
        emit(avr(7))
        s0, s1, s2, s3 = (sums(qt) for qt in range(4))
        b1 = [apv(dt, 1) for dt in range(5, -1, -1)]
        b1[1] = s0[0] + "\n" + b1[1]; b1[3] = s0[1] + "\n" + b1[3]
        weave(b1, exps(2, 1) + cvts(2, 0) + cvts(2, 1))
        e(f"v_add_u32 v{vVA}, s{sDK}, v{vVA}")
        b2 = [apv(dt, 2) for dt in range(6)] + [apv(6, 0), apv(7, 0), apv(7, 1), apv(6, 1)]
        b2[0] = s1[0] + "\n" + b2[0]; b2[2] = s1[1] + "\n" + b2[2]; b2[4] = s2[0] + "\n" + b2[4]
        b2[6] = "s_waitcnt lgkmcnt(0)\n" + b2[6]
        weave(b2, exps(3, 0) + exps(3, 1) + cvts(3, 0) + cvts(3, 1))
        e(s2[1])
        e("s_barrier")
        for k, dt in enumerate((4, 5, 0, 1)):
            e(apv(dt, 3)); e(akr(k))
        e(s3[0]); e(apv(2, 3))
        e(f"s_cmp_eq_u32 s{sI}, 16")
        e(apv(3, 3)); e(s3[1])
        e(apv(6, 3)); e(apv(7, 3)); e(apv(7, 2)); e(apv(6, 2))
    e("L_Aattn:")
    e(f"s_mov_b32 s{sTMP2}, {CHUNK}")
    e("s_barrier")
    stamp("L0")
    if stamps and "L0" in stamps: e("s_waitcnt lgkmcnt(0)")
    for f in range(4): e(akr(f))
    atile(True)
    e("L_Aloop:")
    atile(False)
    e("s_cbranch_scc0 L_Aloop")
    e("s_waitcnt lgkmcnt(0)")
    e(f"v_mbcnt_lo_u32_b32 v{vLN}, -1, 0"); e(f"v_mbcnt_hi_u32_b32 v{vLN}, -1, v{vLN}")
    e(f"v_lshlrev_b32 v{vDV}, 4, v{vLN}")
    wx_setup(); w_setup("o")

    e("L_Oepi:")
    if tl and not fastlast:
        e(f"s_cmp_eq_u32 s{sROLE}, 0"); e("s_cbranch_scc0 L_tl0"); e("v_mov_b32 v252, v254   ; v_writelane_b32 v247"); e("L_tl0:")
    stamp("attn_done")
    lsum()
    range_check()
    e("L_slow_back:")
    recip()
    for s in range(4):
        for qt in range(4):
            emit(scale(acc(2*s, qt), qt)); emit(pack(s, qt)); e(owr(s, qt))
    e("L_Owr:")
    e("s_waitcnt lgkmcnt(0)")
    e("s_barrier")
    stamp("Owritten")
    proj("o", range(29))
    e(f"s_cmp_eq_u32 s{sROLE}, 0"); e("s_cbranch_scc0 L_OA")
    ex = {30: [], 31: []}
    if early:
        seq = []
        for qt in range(4): seq += pack(0, qt) + pack(1, qt) + pstore(0, qt)
        slots = [(30, g) for g in range(4, 8)] + [(n, g) for n in (30, 31) for g in range(16) for _ in range(2) if (n, g) >= (30, 8)]
        assert len(slots) >= len(seq)
        for (n, g), x in zip(slots, seq): ex[n].append((g, x))
    proj("o", (29, 30, 31), ex, role=0)
    stamp("Odone")
    e("s_branch L_store1" if early else "s_branch L_store0")
    e("L_OA:")
    proj("o", (29, 30, 31), role=1, chain=chainO)
    stamp("Odone")
    e(f"s_setprio {prioP}")
    if not chainO:
        for n in range(3): emit(w_issue(n, "o", sPF))
    pm = sum(1 << d for d in pubd)
    if pm: e(f"s_bitcmp1_b32 {pm:#x}, s{sD}"); e("s_cbranch_scc1 L_store0")
    e("s_barrier")
    pl = sum(1 << d for d in publ)
    if pl: e(f"s_bitcmp1_b32 {pl:#x}, s{sD}"); e("s_cbranch_scc0 L_store0"); e("s_waitcnt vmcnt(0)"); e("s_barrier")
    e("L_store0:")
    for qt in range(4): emit(pack(0, qt) + pack(1, qt) + pstore(0, qt))
    e("L_store1:")
    for qt in range(4): emit(pack(2, qt) + pack(3, qt) + pstore(1, qt))
    stamp("issued")
    if pm:
        e(f"s_lshr_b32 s{sTMP}, {pm:#x}, s{sD}"); e(f"s_and_b32 s{sTMP}, s{sTMP}, s{sROLE}"); e("s_cbranch_scc0 L_nolate"); e("s_barrier"); e("L_nolate:")
    if prioP: e("s_setprio 0")
    e("s_waitcnt vmcnt(14)")
    if pl: e(f"s_lshr_b32 s{sTMP}, {pl:#x}, s{sD}"); e(f"s_and_b32 s{sTMP}, s{sTMP}, s{sROLE}"); e("s_cbranch_scc1 L_passed")
    e("s_barrier")
    e("L_passed:")
    keep = []
    for p in range(8):
        lk = lab("kp"); keep.append(lk)
        if p < 7: e(f"s_cmp_eq_u32 s{sG}, {p}"); e(f"s_cbranch_scc1 {lk}")
    for p in range(7, -1, -1):
        e(f"{keep[p]}:")
        for f in range(2): unpack(RK + 8*f, acc(2*(2*(p & 1) + f), p >> 1))
        if p: e("s_branch L_kept")
    e("L_kept:")
    e(f"s_xor_b32 s{sTMP2}, s{sROLE}, 1")
    e(f"s_lshl_b32 s{sTMP}, s{sTMP2}, 5"); e(f"s_add_u32 s{sTMP}, s{sTMP}, s{sB}"); e(f"s_lshl_b32 s{sTMP}, s{sTMP}, 19")
    if cmaj:
        e(f"s_lshl_b32 s{sRO}, s{sG}, 16"); e(f"s_add_u32 s{sTMP}, s{sTMP}, s{sRO}")
        mk_srd(sP, 28, 0x10000)
        e(f"s_lshl_b32 s{sRO}, s{sG}, 2"); e(f"s_add_u32 s{sRO}, s{sRO}, s{sW}"); e(f"s_lshl_b32 s{sRO}, s{sRO}, 11")
    else:
        mk_srd(sP, 28, 0x80000)
        e(f"s_mul_i32 s{sRO}, s{sG}, {65536 + 2048}"); e(f"s_lshl_b32 s{sTMP}, s{sW}, 14"); e(f"s_add_u32 s{sRO}, s{sRO}, s{sTMP}")
    e(f"s_lshl_b32 s{sTMP}, s{sB}, 17"); mk_srd(sIT, 24, 0x20000)
    e(f"s_lshl_b32 s{sOO}, s{sTMP2}, 10")
    e(f"s_lshr_b32 s{sTMP}, s{sG}, 1"); e(f"s_lshl_b32 s{sTMP}, s{sTMP}, 15"); e(f"s_add_u32 s{sOO}, s{sOO}, s{sTMP}")
    e(f"s_lshl_b32 s{sTMP}, s{sW}, 8"); e(f"s_add_u32 s{sOO}, s{sOO}, s{sTMP}")
    e(f"s_and_b32 s{sTMP}, s{sG}, 1"); e(f"s_lshl_b32 s{sTMP}, s{sTMP}, 7"); e(f"s_add_u32 s{sOO}, s{sOO}, s{sTMP}")
    e(f"v_and_b32 v{vT0}, {7 if fullrow else 15}, v{vLN}"); e(f"v_lshlrev_b32 v{vKA}, 11, v{vT0}")
    if fullrow:
        e(f"v_bfe_u32 v{vT0}, v{vLN}, 3, 1"); e(f"v_lshl_add_u32 v{vKA}, v{vT0}, 6, v{vKA}"); e(f"s_add_u32 s{sI}, s{sOO}, 16384")
    e(f"v_bfe_u32 v{vT0}, v{vLN}, 4, 1"); e(f"v_lshl_add_u32 v{vKA}, v{vT0}, 5, v{vKA}")
    e(f"v_lshrrev_b32 v{vT0}, 5, v{vLN}"); e(f"v_lshl_add_u32 v{vKA}, v{vT0}, 4, v{vKA}")
    e(f"s_cmp_eq_u32 s{sROLE}, 0"); e("s_cbranch_scc0 L_Apub")
    flag_srd(1)
    lds_arrive(1, "L_Bwait")
    def first_add(done):
        e(f"buffer_atomic_add v{vT1}, off, {srd(sPF)}, s{sOFF} sc0")
        e("s_waitcnt vmcnt(0)")
        e(f"v_readfirstlane_b32 s{sTMP}, v{vT1}")
        e(f"s_cmp_ge_u32 s{sTMP}, 7"); e(f"s_cbranch_scc1 {done}")
    poll(first_add)
    e(f"v_mov_b32 v{vT0}, {CNT + 8}"); e(f"v_mov_b32 v{vT1}, 1")
    e(f"ds_write_b32 v{vT0}, v{vT1}")
    e("s_branch L_final")
    e("L_Bwait:")
    e(f"v_mov_b32 v{vT0}, {CNT + 8}")
    e("L_Bspin:")
    e(f"ds_read_b32 v{vT1}, v{vT0}")
    e("s_waitcnt lgkmcnt(0)")
    e(f"v_readfirstlane_b32 s{sTMP}, v{vT1}")
    e(f"s_cmp_eq_u32 s{sTMP}, 0"); e("s_cbranch_scc1 L_Bspin")
    e("s_branch L_final")
    e("L_Apub:")
    flag_srd(0)
    lds_arrive(0, "L_nosig")
    e(f"buffer_atomic_add v{vT1}, off, {srd(sPF)}, s{sOFF}")
    e("L_nosig:")
    e("s_mov_b64 exec, -1")
    stamp("pubA")
    e("s_barrier")
    e(f"s_cmp_eq_u32 s{sW}, 0"); e("s_cbranch_scc0 L_nopoll")
    poll()
    e("L_nopoll:")
    e("s_barrier")
    rl = []
    for k in range(7):
        rl += [f"s_add_u32 s{sRO}, s{sRO}, {0x2000 if cmaj else 0x10000:#x}", f"s_and_b32 s{sRO}, s{sRO}, {0xffff if cmaj else 0x7ffff:#x}"]
        rl += [f"buffer_load_dwordx4 {vr(RL + 8*k + 4*f, 4)}, v{vDV}, {srd(sP)}, s{sRO} offen offset:{f*1024} sc1" for f in range(2)]
    if capA: emit(capped(rl, capA)); e("s_branch L_sum")
    e("L_final:")
    e("s_mov_b64 exec, -1")
    stamp("flag")
    emit(rl)
    e("L_sum:")
    for k in range(7):
        for f in range(2):
            e(f"s_waitcnt vmcnt({(6 - k)*2 + 1 - f})")
            dst, tmp = RK + 8*f, RK + 16 + 8*f
            unpack(tmp, RL + 8*k + 4*f)
            for i in range(8): e(f"v_add_f32 v{dst+i}, v{dst+i}, v{tmp+i}")
            if k == 6:
                for i in range(4): e(f"v_cvt_pk_bf16_f32 v{dst+i}, v{dst+2*i}, v{dst+2*i+1}")
    stamp("summed")
    for f in range(2):
        dst = RK + 8*f
        e(f"v_permlane16_swap_b32 v{dst}, v{dst+2}"); e(f"v_permlane16_swap_b32 v{dst+1}, v{dst+3}")
        if not fullrow: e(f"buffer_store_dwordx4 {vr(dst, 4)}, v{vKA}, {srd(sIT)}, s{sOO} offen offset:{f*64} sc1")
    if fullrow:
        for i in range(4): e(f"v_mov_b32 v{RK+4+i}, v{RK+i}")
        for i in range(4): e(f"v_mov_b32_dpp v{RK+i}, v{RK+8+i} row_ror:8 row_mask:0xf bank_mask:0xc")
        e(f"buffer_store_dwordx4 {vr(RK, 4)}, v{vKA}, {srd(sIT)}, s{sOO} offen sc1")
        for i in range(4): e(f"v_mov_b32_dpp v{RK+8+i}, v{RK+4+i} row_ror:8 row_mask:0xf bank_mask:0x3")
        e(f"buffer_store_dwordx4 {vr(RK+8, 4)}, v{vKA}, {srd(sIT)}, s{sI} offen sc1")
    if stamps:
        e("s_waitcnt vmcnt(0)")
        stamp("end")
        e("s_memtime s[4:5]")
        e("s_waitcnt lgkmcnt(0)")
        e("s_sub_u32 s4, s4, s100")
        e(f"s_lshl_b32 s{sTMP}, s2, 1"); e(f"s_add_u32 s{sTMP}, s{sTMP}, s{sROLE}"); e(f"s_lshl_b32 s{sTMP}, s{sTMP}, 2"); e(f"s_add_u32 s{sTMP}, s{sTMP}, s{sW}")
        e(f"s_lshl_b32 s{sTMP}, s{sTMP}, 7")
        e(f"s_add_u32 s{sPF}, s28, 0x4000000"); e(f"s_addc_u32 s{sPF+1}, s29, 0"); e(f"s_mov_b32 s{sPF+2}, 0x100000"); e(f"s_mov_b32 s{sPF+3}, 0x20000")
        for i in range(16): e(f"v_mov_b32 v{i}, s{sST+i}")
        e(f"v_mov_b32 v16, s4"); e("v_mov_b32 v17, 0"); e("v_mov_b32 v18, 0"); e("v_mov_b32 v19, 0")
        e(f"v_mov_b32 v20, s{sTMP}")
        if tl:
            e(f"v_lshl_add_u32 v21, v{vLN}, 2, v20"); e("s_mov_b32 exec_hi, 0"); e(f"s_mov_b32 s{sOFF}, 0x80000")
            e(f"buffer_store_dword v252, v21, {srd(sPF)}, s{sOFF} offen")
        e("s_mov_b64 exec, 1")
        for i in range(5): e(f"buffer_store_dwordx4 {vr(4*i, 4)}, v20, {srd(sPF)}, 0 offen offset:{16*i}")
    e("L_end:")
    e("s_endpgm")

    e("L_slow:")
    e(f"s_cmp_eq_u32 s{sROLE}, 0"); e("s_cbranch_scc1 L_slowB")
    dk_setup()
    if asym: e(f"s_mul_i32 s{sKB}, s{sW}, {CHUNK}")
    e(f"v_add_u32 v{vKA}, s{sKB}, v{vKA}"); e(f"v_add_u32 v{vVA}, s{sKB}, v{vVA}"); e(f"v_add_u32 v{vVA}, {VOFF - SLOT}, v{vVA}")
    e(f"s_add_u32 s{sKB}, s{sKB}, {XB}")
    e("L_slowB:")
    e(f"v_add_u32 v{vVA}, {(-VOFF) & 0xffffffff:#x}, v{vVA}")
    for i in range(0, 128, 2): e(f"v_mov_b64 {vr(i, 2)}, 0")
    for i in range(4): e(f"v_mov_b32 v{L+i}, 0"); e(f"v_mov_b32 v{M+i}, {f2u(-3.0e38):#x}")
    e(f"s_mov_b32 s{sROT}, 0")
    e("L_slowloop:")
    emit(k_issue())
    e("s_waitcnt vmcnt(0)")
    qk(None)
    emit(kv_issue(sV, vDV, 0, VBLK))
    for qt in range(4):
        b = S + qt*8; t = F + 2*qt
        e(f"v_max3_f32 v{t}, v{b}, v{b+1}, v{b+2}"); e(f"v_max3_f32 v{t}, v{t}, v{b+3}, v{b+4}")
        e(f"v_max3_f32 v{t}, v{t}, v{b+5}, v{b+6}"); e(f"v_max3_f32 v{t}, v{t}, v{b+7}, v{M+qt}")
        xlane("v_max_f32", [t], [vT0])
        e(f"v_sub_f32 v{t+1}, v{M+qt}, v{t}"); e(f"v_mov_b32 v{M+qt}, v{t}")
        e(f"v_exp_f32 v{t+1}, v{t+1}")
        for i in range(8): e(f"v_sub_f32 v{b+i}, v{b+i}, v{M+qt}")
        e(f"v_mul_f32 v{L+qt}, v{L+qt}, v{t+1}")
        for dt in range(8):
            for i in range(0, 4, 2): e(f"v_pk_mul_f32 {vr(acc(dt, qt)+i, 2)}, {vr(acc(dt, qt)+i, 2)}, {vr(t, 2)} op_sel:[0,1]")
        emit(exps(qt, 0)); emit(cvts(qt, 0))
    e("s_waitcnt vmcnt(0)")
    pv_phase()
    e(f"s_add_u32 s{sROT}, s{sROT}, 8192"); e(f"s_cmp_lt_u32 s{sROT}, 0x20000"); e("s_cbranch_scc1 L_slowloop")
    lsum()
    w_setup("o")
    e("s_branch L_slow_back")
    e("L_last:")

    e('.section .rodata,"a"')
    e(".p2align 6"); e(f".amdhsa_kernel {NAME}_kernel")
    for l in [".amdhsa_next_free_vgpr 256", ".amdhsa_next_free_sgpr 102", ".amdhsa_accum_offset 256", ".amdhsa_group_segment_fixed_size 0",
              ".amdhsa_kernarg_size 104", ".amdhsa_user_sgpr_count 2", ".amdhsa_user_sgpr_kernarg_segment_ptr 1", ".amdhsa_system_sgpr_workgroup_id_x 1",
              ".amdhsa_float_denorm_mode_32 3"]:
        e("  " + l)
    e(".end_amdhsa_kernel")
    n = a.pad()
    return a.text(), n

if __name__ == "__main__":
    kw = eval("dict(" + (sys.argv[2] if len(sys.argv) > 2 else "") + ")")
    txt, n = gen(**kw)
    out = sys.argv[1] if len(sys.argv) > 1 else f"cdna_kernels/{NAME}.s"
    open(out, "w").write(txt)
    print("pad states:", n, "lines:", txt.count("\n"), "LDS", LDS)
```

```python
import sys, math, struct
from asmlib import Asm

NAME = "concat_heads__gqa_block_cached__mha_block_cached__near_ridge"
KBLK = 1088; VBLK = 1056; HALF = 4352; SLOT = 8704; CHUNK = 2*SLOT
XB = 4*SLOT
VOFF = XB + 2*CHUNK
WR0 = XB + 4*CHUNK
WRING = 3*HALF
CNT = WR0 + 4*WRING
LDS = CNT + 64
WBIAS = 128

sK, sV, sWQ, sWO, sX, sP, sIT, sPF = 32, 36, 40, 44, 48, 52, 56, 60
(sROLE, sW, sG, sB, sD, sI, sROT, sOFF, sWRB, sKB, sTMP, sTMP2, sWOFF, sROTA, sIST, sDK, sHI, sOO, sRO, sRQ) = range(64, 84)
sST = 84
def srd(n): return f"s[{n}:{n+3}]"
ACC = 0; Q = 128; S = 192; F = 224; L = 236; ONES = 240
vKA, vVA, vDK, vDV = 242, 243, 244, 245
vWO = 246
vWA, vXA, vIT, vLN, vT0, vT1 = 250, 251, 252, 253, 254, 255
M = 246
AF = 128; BF = 160
RK = 192; RL = 128
def vr(b, n): return f"v[{b}:{b+n-1}]"
def acc(dt, qt): return ACC + ((dt >> 1)*4 + qt)*8 + (dt & 1)*4
def f2u(x): return struct.unpack("<I", struct.pack("<f", x))[0]
MF = "v_mfma_f32_16x16x32_bf16"
GROUPS = (0,0,0,0,0,1,1,1,2,2,3,3,4,5,6,8,9,11,11,12,12,13,13,14,14,14,15,15,15,15,15,15)

def gen(groups=GROUPS, capN=8, capX=8, depth=2, slp=3, prioA=1, lo_exp=-30, hi_exp=30, rel=29, relAq=30, relAo=31, early=True, loose=(), capL=None, asym=True, fastlast=True, duty=None, capA=5, nopf=False, pubd=(), prioP=0, publ=(), chainQ=False, chainO=True, relBo=29, xbf='', first='x w', wpre=3, rotq='g', cmaj=True, pa=True, alast=True, mergew=True, rdg=(5,5,7,7,9,9,10,10,1,1,3,3,11,11,12,12), dmg=(0,0,2,4,6,8), latew=True, tight=(12, 13), tight2=(), capT=7, ibr=False, fullrow=False, shift={14: (12, 0, 6), 22: (10, 0, 6)},
        hs={0: "x1", 6: "x2 x3", 14: "q t", 22: "a b"},
        stamps=False, cyc=False, tl=False, force_slow=False):
    a = Asm(); e = a
    qbars = (6, 14, 22)
    OROW = 136; RF = Q + 32
    assert asym or not pa
    def pvm(d, vf, p, c): return f"{MF} {d}, {p}, {vf}, {c}" if pa else f"{MF} {d}, {vf}, {p}, {c}"
    VOFF = SLOT if asym else XB + 2*CHUNK
    def stamp(nm):
        if stamps and nm in stamps:
            i = stamps.index(nm); e(f"{'s_memtime' if cyc else 's_memrealtime'} s[{sST+2*i}:{sST+2*i+1}]")
    def emit(lst):
        for x in lst:
            if x: e(x)
    uid = [0]
    def lab(p):
        uid[0] += 1; return f"L_{p}{uid[0]}"
    def mk_srd(r, lo, size):
        e(f"s_add_u32 s{r}, s{lo}, s{sTMP}"); e(f"s_addc_u32 s{r+1}, s{lo+1}, 0"); e(f"s_mov_b32 s{r+2}, {size:#x}"); e(f"s_mov_b32 s{r+3}, 0x20000")

    order = [(n >> 1, n & 1) for n in range(28)] + [(14, 0), (15, 0), (14, 1), (15, 1)]
    def w_setup(kind):
        sh = 13 if kind == "q" else 10
        if kind == "q":
            e(f"v_bfe_u32 v{vT0}, v{vLN}, 3, 2"); e(f"v_lshlrev_b32 v{vWO}, {sh+3}, v{vT0}")
            e(f"v_lshrrev_b32 v{vT0}, 5, v{vLN}"); e(f"v_lshl_add_u32 v{vWO}, v{vT0}, {sh+2}, v{vWO}")
        elif pa:
            e(f"v_bfe_u32 v{vT0}, v{vLN}, 3, 1"); e(f"v_lshlrev_b32 v{vWO}, {sh+4}, v{vT0}")
            e(f"v_bfe_u32 v{vT0}, v{vLN}, 4, 1"); e(f"v_lshl_add_u32 v{vWO}, v{vT0}, {sh+1}, v{vWO}")
            e(f"v_lshrrev_b32 v{vT0}, 5, v{vLN}"); e(f"v_lshl_add_u32 v{vWO}, v{vT0}, {sh}, v{vWO}")
        else:
            e(f"v_lshrrev_b32 v{vT0}, 3, v{vLN}"); e(f"v_lshlrev_b32 v{vWO}, {sh+2}, v{vT0}")
        e(f"v_and_b32 v{vT0}, 7, v{vLN}"); e(f"v_lshl_add_u32 v{vWO}, v{vT0}, 4, v{vWO}")
        for r in (3, 2, 1, 0):
            e(f"v_add_u32 v{vWO+r}, {r*(((4 if (pa and kind == 'o') else 1) << sh) - VBLK) + WBIAS}, v{vWO}")
    def w_issue(n, kind, sr=None):
        sr, sh = (sr or sWQ, 13) if kind == "q" else (sr or sWO, 10)
        ks, ch = order[n]
        out = [f"s_add_u32 m0, s{sWRB}, {(n % 3)*HALF}", f"s_mov_b32 s{sWOFF}, {ks*(32 << sh) + ch*128}"]
        if rotq and kind == "q": out[1] = f"s_xor_b32 s{sWOFF}, s{sRQ}, {ks*(32 << sh) + ch*128}"
        for r in range(4):
            out.append(f"buffer_load_dwordx4 v{vWO+r}, {srd(sr)}, s{sWOFF} offen offset:{r*VBLK} lds")
        return out
    def w_srd(r, lo):
        e(f"s_add_u32 s{r}, s{lo}, s{sTMP}"); e(f"s_addc_u32 s{r+1}, s{lo+1}, 0")
        e(f"s_sub_u32 s{r}, s{r}, {WBIAS}"); e(f"s_subb_u32 s{r+1}, s{r+1}, 0")
        e(f"s_sub_u32 s{r+2}, {0x400000 + WBIAS}, s{sTMP}"); e(f"s_mov_b32 s{r+3}, 0x20000")
    def wo_srd(lo, r=sWO):
        e(f"s_lshl_b32 s{sTMP}, s{sG}, 19"); e(f"s_lshl_b32 s{sTMP2}, s{sW}, 8"); e(f"s_add_u32 s{sTMP}, s{sTMP}, s{sTMP2}")
        w_srd(r, lo)
    def kv_issue(sr, voff, imm, blk):
        out = [f"s_add_u32 s{sOFF}, s{sROT}, 4096"]
        for j in (0, 4, 2, 6, 1, 5, 3, 7):
            out.append(f"s_add_u32 m0, s{sKB}, {imm + j*blk - (j % 4)*1024}")
            out.append(f"buffer_load_dwordx4 v{voff}, {srd(sr)}, s{sOFF if j >= 4 else sROT} offen offset:{(j % 4)*1024} nt lds")
        return out
    def capped(lst, n):
        if not n: return lst
        out = []
        for x in lst:
            if x.startswith("buffer_load"): out.append(f"s_waitcnt vmcnt({n-1})")
            out.append(x)
        return out
    def k_issue(): return kv_issue(sK, vDK, 0, KBLK)
    def v_issue(): return kv_issue(sV, vDV, VOFF, VBLK)
    def xrot():
        return [f"s_lshr_b32 s{sTMP}, s{sRQ}, 12", f"s_xor_b32 s{sOFF}, s{sOFF}, s{sTMP}"] if rotq else []
    def x_issue(c, flag=""):
        e(f"s_lshl_b32 s{sOFF}, s{sW}, 14"); e(f"s_add_u32 s{sOFF}, s{sOFF}, {c*256}")
        emit(xrot())
        e(f"s_mul_i32 s{sTMP}, s{sW}, {HALF}")
        for j in range(4):
            e(f"s_add_u32 m0, s{sTMP}, {XB + c*CHUNK + j*64}")
            e(f"buffer_load_dwordx4 v{vT1}, {srd(sX)}, s{sOFF} offen offset:{j*1024} {flag} lds")
    def x_half(h):
        out = [f"s_lshl_b32 s{sOFF}, s{sW}, 8", f"s_add_u32 s{sOFF}, s{sOFF}, {h*32768}"] + xrot()
        for j in range(8):
            if j == 4: out.append(f"s_add_u32 s{sOFF}, s{sOFF}, 16384")
            out.append(f"s_add_u32 m0, s{sKB}, {h*SLOT + (j >> 2)*HALF + (j & 3)*64}")
            out.append(f"buffer_load_dwordx4 v{vT1}, {srd(sX)}, s{sOFF} offen offset:{(j & 3)*1024} nt lds")
        return out
    def x_own():
        out = [f"s_and_b32 s{sOFF}, s{sW}, 1", f"s_lshl_b32 s{sOFF}, s{sOFF}, 7", f"s_add_u32 s{sOFF}, s{sOFF}, s{sHI}",
               f"s_lshl_b32 s{sOFF}, s{sOFF}, 8", f"s_add_u32 s{sOFF}, s{sOFF}, 512"]
        for j in range(8):
            if j == 4: out.append(f"s_add_u32 s{sOFF}, s{sOFF}, 16384")
            out.append(f"s_add_u32 m0, s{sKB}, {VOFF + (j >> 2)*HALF + (j & 3)*64}")
            out.append(f"buffer_load_dwordx4 v{vT1}, {srd(sX)}, s{sOFF} offen offset:{(j & 3)*1024} nt lds")
        return out
    def x_voff():
        e(f"v_lshrrev_b32 v{vT0}, 4, v{vLN}"); e(f"v_sub_u32 v{vT1}, 0, v{vT0}"); e(f"v_and_b32 v{vT1}, 3, v{vT1}")
        e(f"v_xor_b32 v{vT1}, v{vT1}, v{vLN}"); e(f"v_and_b32 v{vT1}, 15, v{vT1}"); e(f"v_lshlrev_b32 v{vT1}, 4, v{vT1}")
        e(f"v_lshl_add_u32 v{vT1}, v{vT0}, 12, v{vT1}")
    def x_srd(lo):
        e(f"s_lshl_b32 s{sTMP}, s{sB}, 16"); mk_srd(sX, lo, 0x10000)
    dm = 1 if duty else 0
    def xa_touch(sb=sB, lo=4):
        e(f"s_lshl_b32 s{sTMP}, s{sb}, 3"); e(f"s_add_u32 s{sTMP}, s{sTMP}, s{sG}")
        e(f"s_lshl_b32 s{sTMP}, s{sTMP}, 2"); e(f"s_add_u32 s{sTMP}, s{sTMP}, s{sW}"); e(f"s_lshl_b32 s{sTMP}, s{sTMP}, {11 + dm}")
        mk_srd(sPF, lo, 0x800 << dm)
        for r in range(2 << dm): e(f"buffer_load_dwordx4 {vr(S + 16 + 4*r, 4)}, v{vDV}, {srd(sPF)}, 0 offen offset:{r*1024}")
    def coop_prefetch(lo, sh, goff_sh, sb=sB):
        e(f"s_lshl_b32 s{sTMP}, s{sG}, {goff_sh}")
        e(f"s_add_u32 s{sPF}, s{lo}, s{sTMP}"); e(f"s_addc_u32 s{sPF+1}, s{lo+1}, 0")
        e(f"s_sub_u32 s{sPF+2}, 0x400000, s{sTMP}"); e(f"s_mov_b32 s{sPF+3}, 0x20000")
        e(f"s_lshl_b32 s{sTMP}, s{sb}, 2"); e(f"s_add_u32 s{sTMP}, s{sTMP}, s{sW}"); e(f"s_lshl_b32 s{sTMP}, s{sTMP}, {sh+2+dm}")
        for r in range(4 << dm):
            e(f"buffer_load_dwordx4 {vr(S + 4*(r % 4), 4)}, v{vDV}, {srd(sPF)}, s{sTMP} offen")
            if r < (4 << dm) - 1: e(f"s_add_u32 s{sTMP}, s{sTMP}, {1 << sh}")

    def xoff(kind, c, qt):
        return c*CHUNK + qt*HALF if (kind == "q" or asym) else (qt >> 1)*2*CHUNK + c*SLOT + (qt & 1)*HALF
    def pack(sx, qt):
        b = acc(2*sx, qt)
        return [f"v_cvt_pk_bf16_f32 v{b+i}, v{b+2*i}, v{b+2*i+1}" for i in range(4)]
    def pstore(sp, qt):
        st = [f"buffer_store_dwordx4 {vr(acc(2*sx, qt), 4)}, v{vDV}, {srd(sP)}, s{sOFF} offen offset:{(sx & 1 if cmaj else sx)*1024} sc1" for sx in (2*sp, 2*sp + 1)]
        l = lab("ps")
        return [f"s_mov_b32 s{sOFF}, {(qt*2 + sp)*65536 if cmaj else qt*4096}", f"s_cmp_eq_u32 s{sG}, {qt*2 + sp}", f"s_cbranch_scc1 {l}\n{st[0]}\n{st[1]}\n{l}:", ""]
    def proj(kind, steps=range(32), extra={}, role=None, chain=False):
        def ra(n):
            return [f"ds_read_b64_tr_b16 {vr(AF + (n % 2)*16 + d*4 + ee*2, 2)}, v{vWA} offset:{(n % 3)*HALF + ee*512 + d*32}" for d in range(4) for ee in range(2)]
        def rb(ks, qts):
            if pa and kind == "o":
                return [f"ds_read_b64_tr_b16 {vr(BF + (ks % 2)*16 + qt*4 + 2*ee, 2)}, v{vXA} offset:{(ks >> 2)*CHUNK + ((ks & 3)*32 + ee)*OROW + qt*32}" for qt in qts for ee in range(2)]
            return [f"ds_read_b128 {vr(BF + (ks % 2)*16 + qt*4, 4)}, v{vXA} offset:{xoff(kind, ks >> 2, qt) + (ks & 3)*64}" for qt in qts]
        for n in steps:
            if n == 0:
                e("s_waitcnt vmcnt(8)")
                emit(rb(0, range(4))); emit(ra(0))
                e("s_waitcnt lgkmcnt(0)")
            stamp(f"{kind}{n}")
            ks, ch = order[n]
            rd = ra(n + 1) if n < 31 else []
            if n < 28: rd = rd + rb(ks + 1, (2*ch, 2*ch + 1))
            if n == 28: rd = rd + rb(15, range(4))
            dm = w_issue(n + 3, kind) if n + 3 < 32 else []
            if chain and n >= 29: dm = w_issue(n % 3, kind, sPF)
            base = 4 if (n <= 29 or chain) else 0
            late = latew and n < 29
            if n < 31 and not late: e(f"s_waitcnt vmcnt({base})")
            relA = (relAq if kind == "q" else relAo) or rel
            if role is not None:
                if n == (relA if role else (rel if kind == "q" else relBo)): e("s_barrier")
            elif (kind == "q" and n in qbars) or n == rel == relA: e("s_barrier")
            elif n in (rel, relA):
                l1 = lab("nb"); e(f"s_cmp_eq_u32 s{sROLE}, {int(n == relA)}"); e(f"s_cbranch_scc0 {l1}"); e("s_barrier"); e(f"{l1}:")
            gaps = [[] for _ in range(16)]
            for i, x in enumerate(rd): gaps[rdg[i] if rdg else i].append(x)
            for g, x in zip(dmg, dm): gaps[g].append(x)
            if late:
                g0 = min(rdg[:8]); pos = min(g0 - 1, g0)
                cnt = sum(1 for g in dmg[2:] if g <= pos)
                gaps[pos].append(f"s_waitcnt vmcnt({base + cnt})")
            for g, x in extra.get(n, []): gaps[g].append(x)
            k = 0
            for d in range(4):
                for qt in (range(3, -1, -1) if d % 2 else range(4)):
                    r = vr(acc(4*ch + d, qt), 4)
                    e(f"{MF} {r}, {vr(AF + (n % 2)*16 + d*4, 4)}, {vr(BF + (ks % 2)*16 + qt*4, 4)}, {r if ks else '0'}")
                    emit(gaps[k]); k += 1
            if n < 31: e("s_waitcnt lgkmcnt(0)")

    def Sr(qt, u): return S + qt*8 + u*4
    def exps(qt, u): return [f"v_exp_f32 v{Sr(qt, u)+i}, v{Sr(qt, u)+i}" for i in range(4)]
    def cvts(qt, u): return [f"v_cvt_pk_bf16_f32 v{S+qt*8+2*u+i}, v{Sr(qt, u)+2*i}, v{Sr(qt, u)+2*i+1}" for i in range(2)]
    def kr(f): return f"ds_read_b128 {vr(F + (f % 3)*4, 4)}, v{vKA} offset:{(f >> 2)*512 + (f & 3)*64}"
    vbuf = [F, F + 4, F + 8, S + 4, S + 12, S + 20, S + 28, F]
    def vrd(dt): return [f"ds_read_b64_tr_b16 {vr(vbuf[dt] + 2*u, 2)}, v{vVA} offset:{u*512 + dt*32}" for u in range(2)]
    def sums(qt): return [f"v_mfma_f32_4x4x4_16b_bf16 {vr(L, 4)}, {vr(ONES, 2)}, {vr(S + qt*8 + 2*h, 2)}, {vr(L, 4)} cbsz:2 abid:{qt}" for h in range(2)]
    def pv(dt, qt): return pvm(vr(acc(dt, qt), 4), vr(vbuf[dt], 4), vr(S + qt*8, 4), vr(acc(dt, qt), 4))
    def qk(fill):
        for f in range(3): e(kr(f))
        m = 0
        for f in range(8):
            u, s = f >> 2, f & 3
            e(f"s_waitcnt lgkmcnt({min(2, 7 - f)})")
            for qt in range(4):
                r = vr(Sr(qt, u), 4)
                e(f"{MF} {r}, {vr(F + (f % 3)*4, 4)}, {vr(Q + (qt*4 + s)*4, 4)}, {r if s else '0'}")
                if u == 1:
                    if m >= 3 and fill: e(fill.pop(0))
                    m += 1
            if f + 3 < 8: e(kr(f + 3))
    def pv_phase():
        pre = [exps(qt, 1) + cvts(qt, 1) for qt in range(4)]
        for dt in range(3): emit(vrd(dt))
        emit(pre[0]); emit(vrd(3))
        for qt in range(4):
            nxt = (pre[qt + 1] + vrd(4 + qt)) if qt < 3 else []
            per = math.ceil(len(nxt) / 4)
            sm = sums(qt)
            for dt in range(3):
                if qt == 0: e(f"s_waitcnt lgkmcnt({6 - 2*dt})")
                e(pv(dt, qt)); emit(nxt[dt*per:(dt+1)*per])
                if dt == 0: e(sm[0])
            e(sm[1]); emit(nxt[3*per:])
        emit(vrd(7))
        for dt in range(3, 8):
            e(f"s_waitcnt lgkmcnt({2*(7 - dt)})")
            for qt in (range(3, -1, -1) if dt % 2 else range(4)): e(pv(dt, qt))
    def xlane(op, regs, tmps):
        for sw in ("32", "16"):
            for r, t in zip(regs, tmps): e(f"v_mov_b32 v{t}, v{r}")
            for r, t in zip(regs, tmps): e(f"v_permlane{sw}_swap_b32 v{r}, v{t}")
            for r, t in zip(regs, tmps): e(f"{op} v{r}, v{r}, v{t}")
    def lsum(): xlane("v_add_f32", range(L, L + 4), range(F, F + 4))

    def flag_srd(branch):
        e(f"s_add_u32 s{sPF}, s28, 0x2000000"); e(f"s_addc_u32 s{sPF+1}, s29, 0"); e(f"s_mov_b32 s{sPF+2}, 0x8000"); e(f"s_mov_b32 s{sPF+3}, 0x20000")
        e(f"s_mul_i32 s{sOFF}, s{sB}, 768"); e(f"s_add_u32 s{sOFF}, s{sOFF}, {branch*256}")
    def dbg_srd():
        e(f"s_mov_b32 s{sPF}, s26"); e(f"s_mov_b32 s{sPF+1}, s27"); e(f"s_mov_b32 s{sPF+2}, 256"); e(f"s_mov_b32 s{sPF+3}, 0x20000")
        e(f"s_lshl_b32 s{sOFF}, s{sB}, 3")
    def poll(first=None, tmp=vT0):
        l0, l1 = lab("pl"), lab("pl")
        e("s_mov_b64 exec, 1")
        if first: first(l1)
        e(f"s_mov_b32 s{sTMP2}, 0x40000")
        e(f"{l0}:")
        e(f"buffer_load_dword v{tmp}, off, {srd(sPF)}, s{sOFF} sc1")
        e("s_waitcnt vmcnt(0)")
        e(f"v_readfirstlane_b32 s{sTMP}, v{tmp}")
        e(f"s_cmp_eq_u32 s{sTMP}, 8"); e(f"s_cbranch_scc1 {l1}")
        e(f"s_sleep {slp}")
        e(f"s_sub_u32 s{sTMP2}, s{sTMP2}, 1"); e(f"s_cmp_lg_u32 s{sTMP2}, 0"); e(f"s_cbranch_scc1 {l0}")
        e(f"{l1}:")
        e("s_mov_b64 exec, -1")
    def lds_arrive(word, notlast):
        e(f"v_mov_b32 v{vT0}, {CNT + 4*word}"); e(f"v_mov_b32 v{vT1}, 1")
        e("s_mov_b64 exec, 1")
        e("s_waitcnt vmcnt(0)")
        stamp("drained")
        e(f"ds_add_rtn_u32 v{vT0}, v{vT0}, v{vT1}")
        e("s_waitcnt lgkmcnt(0)")
        e(f"v_readfirstlane_b32 s{sTMP}, v{vT0}")
        e(f"s_cmp_eq_u32 s{sTMP}, 3"); e(f"s_cbranch_scc0 {notlast}")
    def unpack(dst, src):
        for i in range(4):
            e(f"v_lshlrev_b32 v{dst+2*i}, 16, v{src+i}"); e(f"v_and_b32 v{dst+2*i+1}, 0xffff0000, v{src+i}")

    if stamps: e(f"; stamps: {stamps}")
    for l in """out = concat(GQA(A), MHA(B)), each branch = softmax(x Wq K^T / sqrt(128)) V Wo, fused in one kernel.
Kernarg: A_x A_k A_v A_wq A_wo B_x B_k B_v B_wq B_wo out debug ws (8 bytes each).
Workgroup = (batch b = id>>3, head group g = id&7): waves 0-3 own B's heads 4g..4g+3, waves 4-7 A's.
Phases per workgroup: Q_B | attention B ... [Q_A | attention A | O_A at a batch-dependent tile] ... | O_B | reduce.
The wave set that is not computing issues the LDS loads for the other one.
Softmax: exp2 of the unshifted scores; every row sum is range-checked and the head is redone with the
true running max (L_slow) when a sum leaves [2^-30, 2^30].
The eight workgroups of a batch exchange bf16 partial sums of the output projection through ws
(write-through stores, counters zeroed in this launch, announced through debug).""".split("\n"): e("; " + l)
    e(f"; @launch grid=(256,1,1) block=(512,1,1) lds={LDS}")
    e('.amdgcn_target "amdgcn-amd-amdhsa--gfx950"')
    e(".text"); e(f".globl {NAME}_kernel"); e(".p2align 8"); e(f".type {NAME}_kernel,@function")
    e(f"{NAME}_kernel:")
    e("s_cmp_ge_u32 s2, 256"); e("s_cbranch_scc1 L_end")
    e("s_load_dwordx16 s[4:19], s[0:1], 0"); e("s_load_dwordx8 s[20:27], s[0:1], 64"); e("s_load_dwordx2 s[28:29], s[0:1], 96")
    if stamps:
        for i in range(16): e(f"s_mov_b32 s{sST+i}, 0")
        e("s_memtime s[100:101]")
    stamp("start")
    e("s_getpc_b64 s[30:31]"); e("L_pc:")
    e("v_lshlrev_b32 v2, 3, v0"); e("v_mov_b32 v3, s31")
    e("v_add_co_u32 v4, vcc, s30, v2"); e("s_lshr_b32 s3, s2, 4"); e("s_add_u32 s3, s3, 1"); e("v_addc_co_u32 v5, vcc, 0, v3, vcc")
    e("s_mov_b32 exec_lo, 0x10001"); e("s_mov_b32 exec_hi, exec_lo")
    e("global_load_dword v8, v[4:5], off")
    e("s_mov_b64 exec, -1")
    e("v_lshl_add_u32 v2, s3, 12, v2"); e("v_min_u32 v2, L_last-L_pc-4, v2")
    e("v_add_co_u32 v6, vcc, s30, v2"); e("s_bitcmp1_b32 s2, 3"); e("s_mov_b32 s3, 0x10001"); e("v_addc_co_u32 v7, vcc, 0, v3, vcc")
    e("s_cselect_b32 exec_lo, 0, s3"); e("s_cselect_b32 exec_hi, s3, 0")
    if not nopf: e("global_load_dword v9, v[6:7], off")
    e("s_mov_b64 exec, -1")
    e(f"v_lshrrev_b32 v1, 6, v0"); e(f"v_and_b32 v{vLN}, 63, v0"); e(f"v_readfirstlane_b32 s{sTMP}, v1")
    e(f"s_and_b32 s{sG}, s2, 7"); e(f"s_lshr_b32 s{sB}, s2, 3")
    e(f"s_and_b32 s{sW}, s{sTMP}, 3"); e(f"s_lshr_b32 s{sROLE}, s{sTMP}, 2"); e(f"s_lshr_b32 s{sHI}, s{sW}, 1")
    e(f"s_mul_i32 s{sWRB}, s{sW}, {WRING}"); e(f"s_add_u32 s{sWRB}, s{sWRB}, {WR0}")
    if rotq:
        assert asym
        if rotq == "g": e(f"s_and_b32 s{sRQ}, s{sG}, 3")
        elif rotq == "b": e(f"s_and_b32 s{sRQ}, s{sB}, 3")
        else: e(f"s_add_u32 s{sRQ}, s{sG}, s{sB}"); e(f"s_and_b32 s{sRQ}, s{sRQ}, 3")
        e(f"s_lshl_b32 s{sRQ}, s{sRQ}, 20")
    e(f"v_lshlrev_b32 v{vDV}, 4, v{vLN}")
    w_setup("q")
    x_voff()
    e("s_waitcnt lgkmcnt(0)")
    e(f"s_cmp_eq_u32 s{sROLE}, 0")
    e(f"s_cselect_b32 s{sWQ}, s20, s10"); e(f"s_cselect_b32 s{sWQ+1}, s21, s11")
    e(f"s_lshl_b32 s{sTMP}, s{sG}, 2"); e(f"s_add_u32 s{sTMP}, s{sTMP}, s{sW}"); e(f"s_lshl_b32 s{sTMP}, s{sTMP}, 8")
    w_srd(sWQ, sWQ)
    e(f"s_cmp_eq_u32 s{sROLE}, 0"); e("s_cbranch_scc1 L_first_B")
    if prioA: e(f"s_setprio {prioA}")
    x_srd(14)
    if duty:
        e(f"s_cmp_lt_u32 s{sB}, 16"); e("s_cbranch_scc0 L_nod0")
        coop_prefetch(20, 13, 10)
        e("L_nod0:")
        x_issue(0)
    else:
        q0 = []
        for act in first.split():
            if act == "x": x_issue(0); q0 += ["x0"]*4
            elif act == "w": coop_prefetch(20, 13, 10); q0 += ["w"]*4
            elif act == "u": xa_touch(lo=14); q0 += ["u"]*2
    e("s_branch L_common")
    e("L_first_B:")
    for n in range(wpre): emit(w_issue(n, "q"))
    x_srd(4)
    e("L_common:")
    tab = [groups[b * len(groups) // 32] for b in range(32)]
    assert all(0 <= d <= 15 for d in tab)
    wd = [sum(tab[8*i + j] << (4*j) for j in range(8)) for i in range(4)]
    e(f"s_bitcmp0_b32 s{sB}, 3")
    e(f"s_mov_b32 s{sTMP}, {wd[1]:#x}"); e(f"s_cselect_b32 s{sTMP}, {wd[0]:#x}, s{sTMP}")
    e(f"s_mov_b32 s{sTMP2}, {wd[3]:#x}"); e(f"s_cselect_b32 s{sTMP2}, {wd[2]:#x}, s{sTMP2}")
    e(f"s_bitcmp0_b32 s{sB}, 4"); e(f"s_cselect_b32 s{sTMP}, s{sTMP}, s{sTMP2}")
    e(f"s_and_b32 s{sTMP2}, s{sB}, 7"); e(f"s_lshl_b32 s{sTMP2}, s{sTMP2}, 2")
    e(f"s_lshr_b32 s{sTMP}, s{sTMP}, s{sTMP2}"); e(f"s_and_b32 s{sD}, s{sTMP}, 15")
    if asym:
        e(f"s_lshl_b32 s{sTMP}, s{sHI}, 1"); e(f"s_add_u32 s{sTMP}, s{sTMP}, s{sW}"); e(f"s_mul_i32 s{sKB}, s{sTMP}, {CHUNK}")
        e(f"s_cmp_eq_u32 s{sHI}, 0"); e(f"s_cselect_b32 s{sOO}, 17, s{sD}")
    else: e(f"s_mul_i32 s{sKB}, s{sW}, {SLOT}")
    def dk_setup():
        e(f"v_bfe_u32 v{vT0}, v{vLN}, 4, 1"); e(f"v_lshlrev_b32 v{vT0}, 4, v{vT0}"); e(f"v_xor_b32 v{vDK}, v{vDV}, v{vT0}")
    dk_setup()
    t0, t1 = F, F + 1
    e(f"v_and_b32 v{t0}, 7, v{vLN}"); e(f"v_mul_u32_u24 v{vKA}, {KBLK}, v{t0}")
    e(f"v_bfe_u32 v{t0}, v{vLN}, 3, 1"); e(f"v_lshl_add_u32 v{vKA}, v{t0}, 8, v{vKA}")
    e(f"v_lshrrev_b32 v{t1}, 5, v{vLN}"); e(f"v_xor_b32 v{t0}, v{t0}, v{t1}"); e(f"v_lshl_add_u32 v{vKA}, v{t0}, 4, v{vKA}")
    e(f"v_bfe_u32 v{t0}, v{vLN}, 4, 1"); e(f"v_lshl_add_u32 v{vKA}, v{t0}, 5, v{vKA}")
    e(f"v_bfe_u32 v{t0}, v{vLN}, 2, 3"); e(f"v_mul_u32_u24 v{vVA}, {VBLK}, v{t0}")
    e(f"v_lshl_add_u32 v{vVA}, v{t1}, 8, v{vVA}")
    e(f"v_and_b32 v{t0}, 3, v{vLN}"); e(f"v_lshl_add_u32 v{vVA}, v{t0}, 3, v{vVA}")
    def xo_setup():
        e(f"v_bfe_u32 v{t0}, v{vLN}, 2, 3"); e(f"v_lshrrev_b32 v{t1}, 5, v{vLN}"); e(f"v_lshl_add_u32 v{t0}, v{t0}, 1, v{t1}")
        e(f"v_mul_u32_u24 v{vXA}, {2*OROW}, v{t0}")
        e(f"v_and_b32 v{t0}, 3, v{vLN}"); e(f"v_lshl_add_u32 v{vXA}, v{t0}, 3, v{vXA}"); e(f"v_add_u32 v{vXA}, {XB}, v{vXA}")
    def wx_setup(x=True):
        e(f"v_and_b32 v{t0}, 3, v{vLN}")
        e(f"v_bfe_u32 v{t1}, v{vLN}, 2, 2"); e(f"v_mul_u32_u24 v{vWA}, {VBLK}, v{t1}")
        e(f"v_lshl_add_u32 v{vWA}, v{t0}, 3, v{vWA}")
        e(f"v_lshrrev_b32 v{t0+2}, 4, v{vLN}"); e(f"v_lshl_add_u32 v{vWA}, v{t0+2}, 7, v{vWA}"); e(f"v_add_u32 v{vWA}, s{sWRB}, v{vWA}")
        if not x: return
        e(f"v_mul_u32_u24 v{vXA}, {KBLK}, v{t0}"); e(f"v_lshl_add_u32 v{vXA}, v{t1}, 8, v{vXA}")
        e(f"v_sub_u32 v{t0+3}, 0, v{t1}"); e(f"v_and_b32 v{t0+3}, 3, v{t0+3}"); e(f"v_xor_b32 v{t0+3}, v{t0+3}, v{t0+2}")
        e(f"v_lshl_add_u32 v{vXA}, v{t0+3}, 4, v{vXA}"); e(f"v_add_u32 v{vXA}, {XB}, v{vXA}")
    wx_setup()
    e(f"v_cmp_eq_u32 vcc, v{t0}, v{t1}"); e(f"v_mov_b32 v{t0+2}, 0x3f803f80")
    for i in range(4): e(f"v_mov_b32 v{L+i}, 0")
    e(f"v_cndmask_b32 v{ONES}, 0, v{t0+2}, vcc"); e(f"v_mov_b32 v{ONES+1}, v{ONES}")
    e(f"s_lshl_b32 s{sTMP}, s2, 2"); e(f"s_add_u32 s{sTMP2}, s{sTMP}, s{sW}")
    e(f"s_and_b32 s{sROT}, s{sTMP2}, 15"); e(f"s_lshl_b32 s{sROT}, s{sROT}, 13")
    e(f"s_lshl_b32 s{sTMP}, s{sTMP2}, 17")
    mk_srd(sK, 16, 0x20000); mk_srd(sV, 18, 0x20000)
    if cmaj:
        e(f"s_xor_b32 s{sTMP}, s{sROLE}, 1"); e(f"s_lshl_b32 s{sTMP}, s{sTMP}, 5"); e(f"s_add_u32 s{sTMP}, s{sTMP}, s{sB}"); e(f"s_lshl_b32 s{sTMP}, s{sTMP}, 8")
        e(f"s_and_b32 s{sTMP2}, s{sTMP2}, 31"); e(f"s_add_u32 s{sTMP}, s{sTMP}, s{sTMP2}"); e(f"s_lshl_b32 s{sTMP}, s{sTMP}, 11")
        mk_srd(sP, 28, 0x70800)
    else:
        e(f"s_xor_b32 s{sTMP}, s{sROLE}, 1"); e(f"s_lshl_b32 s{sTMP}, s{sTMP}, 10"); e(f"s_add_u32 s{sTMP}, s{sTMP}, s{sTMP2}"); e(f"s_lshl_b32 s{sTMP}, s{sTMP}, 14")
        mk_srd(sP, 28, 0x4000)
    wo_srd(12)
    e(f"s_bitcmp0_b32 s{sW}, 0")
    e(f"s_cselect_b32 s{sIT}, s6, s8"); e(f"s_cselect_b32 s{sIT+1}, s7, s9"); e(f"s_cselect_b32 s{sIST}, {KBLK-1024}, {VBLK-1024}")
    e(f"s_cselect_b64 vcc, -1, 0"); e(f"s_cselect_b32 s{sDK}, 0, {SLOT}")
    e(f"v_cndmask_b32 v{vIT}, v{vDV}, v{vDK}, vcc")
    e(f"s_lshl_b32 s{sTMP}, s2, 17"); mk_srd(sIT, sIT, 0x20000)
    e(f"s_and_b32 s{sROTA}, s2, 15"); e(f"s_lshl_b32 s{sROTA}, s{sROTA}, 1"); e(f"s_add_u32 s{sROTA}, s{sROTA}, s{sHI}"); e(f"s_lshl_b32 s{sROTA}, s{sROTA}, 12")
    e(f"s_add_u32 s{sTMP}, s{sIST}, 1024"); e(f"s_mul_i32 s{sTMP}, s{sTMP}, s{sHI}"); e(f"s_lshl_b32 s{sTMP}, s{sTMP}, 2"); e(f"s_add_u32 s{sDK}, s{sDK}, s{sTMP}")
    e(f"s_cmp_eq_u32 s{sROLE}, 0"); e("s_cbranch_scc1 L_Binit")

    e(f"v_add_u32 v{vKA}, {XB}, v{vKA}"); e(f"v_add_u32 v{vVA}, {XB + SLOT}, v{vVA}")
    e(f"v_mov_b32 v{t0}, {CNT}"); e(f"ds_write_b128 v{t0}, {vr(L, 4)}")
    e("s_waitcnt lgkmcnt(0)")
    def counter_init(slot):
        ln = lab("ni")
        e(f"s_or_b32 s{sTMP}, s{sG}, s{sW}"); e(f"s_cmp_eq_u32 s{sTMP}, 0"); e(f"s_cbranch_scc0 {ln}")
        e("s_mov_b64 exec, 1")
        if slot == 0:
            flag_srd(0)
            e(f"buffer_store_dword v{L}, off, {srd(sPF)}, s{sOFF} sc1"); e(f"buffer_store_dword v{L}, off, {srd(sPF)}, s{sOFF} offset:256 sc1")
        else:
            e("s_waitcnt vmcnt(0)")
            dbg_srd()
            e(f"v_mov_b32 v{vT0}, 8"); e(f"buffer_store_dword v{vT0}, off, {srd(sPF)}, s{sOFF} sc1")
        e("s_mov_b64 exec, -1")
        e(f"{ln}:")
    def helper(sch):
        q = ["x0"]*4 if duty else list(q0)
        due = {0: sch.get("p0", "x0"), 6: "x1", 14: "x3" if shift else "x2", 22: "x3"}
        for slot, nxt in zip((-1, 0) + qbars, (0,) + qbars + (rel,)):
            if slot in (0, 6): counter_init(slot)
            if shift and slot >= 14:
                sp = shift[slot] if isinstance(shift, dict) else shift
                if len(sp) == 3:
                    lo, n0, n1 = sp; giv = list(range(lo, lo + n0 + n1)); tak = list(range(n0)) + list(range(32 - n1, 32))
                else: giv, tak = map(list, sp)
                assert len(giv) == len(tak) <= 12 and not set(giv) & set(tak) and tak == sorted(tak)
                def shares(sb):
                    for act in sch.get(slot, "").split():
                        if act == "t": xa_touch(sb)
                        else: coop_prefetch(*{"q": (10, 13, 10), "a": (12, 10, 19), "b": (22, 10, 19)}[act], sb)
                ls = lab("sh")
                gm, tm = sum(1 << x for x in giv), sum(1 << x for x in tak)
                tabv = sum(x << (5*k) for k, x in enumerate(giv))
                e(f"s_bitcmp1_b32 {gm:#x}, s{sB}"); e(f"s_cbranch_scc1 {ls}")
                shares(sB)
                e(f"s_bitcmp1_b32 {tm:#x}, s{sB}"); e(f"s_cbranch_scc0 {ls}")
                e(f"s_bfm_b32 s{sRO}, s{sB}, 0"); e(f"s_and_b32 s{sRO}, s{sRO}, {tm:#x}"); e(f"s_bcnt1_i32_b32 s{sRO}, s{sRO}"); e(f"s_mul_i32 s{sRO}, s{sRO}, 5")
                e(f"s_mov_b32 s{sTMP}, {tabv & 0xffffffff:#x}"); e(f"s_mov_b32 s{sTMP2}, {tabv >> 32:#x}")
                e(f"s_lshr_b64 s[{sTMP}:{sTMP2}], s[{sTMP}:{sTMP2}], s{sRO}"); e(f"s_and_b32 s{sRO}, s{sTMP}, 31")
                shares(sRO)
                e(f"{ls}:")
                e("s_barrier"); continue
            for act in sch.get(slot, "").split():
                if act[0] == "x": x_issue(int(act[1]), xbf); q += [act]*4
                elif act == "u": xa_touch(lo=14); q += [act]*2
                elif act == "v":
                    e(f"s_lshl_b32 s{sTMP}, s{sG}, 2"); e(f"s_add_u32 s{sTMP}, s{sTMP}, s{sW}"); e(f"s_lshl_b32 s{sTMP}, s{sTMP}, 11")
                    e(f"v_and_b32 v2, 512, v{vDV}"); e(f"v_add_u32 v2, v2, v{vDV}")
                    e(f"buffer_load_dwordx4 {vr(S + 16, 4)}, v2, {srd(sX)}, s{sTMP} offen offset:512"); q += [act]
                elif act == "q": coop_prefetch(10, 13, 10); q += [act]*(4 << dm)
                elif act == "a": coop_prefetch(12, 10, 19); q += [act]*(4 << dm)
                elif act == "b": coop_prefetch(22, 10, 19); q += [act]*(4 << dm)
                elif act == "t": xa_touch(); q += [act]*(2 << dm)
                elif act == "k": emit(k_issue()); q += [act]*8
                elif act == "c":
                    e(f"s_lshl_b32 s{sTMP}, s{sB}, 2"); e(f"s_add_u32 s{sTMP}, s{sTMP}, s{sW}"); e(f"s_lshl_b32 s{sTMP}, s{sTMP}, 7")
                    e(f"v_lshl_add_u32 v2, v{vLN}, 14, s{sTMP}"); e("v_min_u32 v2, L_last-L_pc-4, v2")
                    e("v_add_co_u32 v2, vcc, s30, v2"); e("v_mov_b32 v3, s31"); e("s_nop 0"); e("v_addc_co_u32 v3, vcc, 0, v3, vcc")
                    e("s_mov_b64 exec, 7"); e("global_load_dword v4, v[2:3], off"); e("s_mov_b64 exec, -1"); q += [act]
            if nxt in due:
                last = max(i for i, x in enumerate(q) if x == due[nxt])
                e(f"s_waitcnt vmcnt({len(q) - 1 - last})")
            e("s_barrier")
        return q
    if duty:
        e(f"s_cmp_lt_u32 s{sB}, 16"); e("s_cbranch_scc0 L_nod1")
        helper(duty[0]); e("s_branch L_nod2")
        e("L_nod1:"); q = helper(duty[1]); e("L_nod2:")
    else: q = helper(hs)
    x_srd(4)
    if asym:
        assert "k" not in q
        e(f"s_cmp_eq_u32 s{sOO}, 0"); e("s_cbranch_scc0 L_hv")
        emit(x_half(0)); emit(x_half(1)); e("s_branch L_hx")
        e("L_hv:")
        emit(k_issue())
    else:
        if "k" not in q: emit(k_issue())
        e(f"s_cmp_eq_u32 s{sD}, 0"); e("s_cbranch_scc0 L_hv")
        emit(x_own()); e("s_branch L_hx")
        e("L_hv:")
    emit(v_issue())
    e("L_hx:")
    x_issue(0, "nt")
    e("s_waitcnt vmcnt(4)"); e("s_barrier")
    x_issue(1, "nt")
    e(f"s_lshl_b32 s{sTMP}, s2, 17")
    mk_srd(sK, 6, 0x20000); mk_srd(sV, 8, 0x20000)
    if chainQ: e("s_waitcnt vmcnt(0)")
    else:
        for n in range(3): emit(w_issue(n, "q"))
        e("s_waitcnt vmcnt(12)")
    wo_srd(22, sPF)
    e("s_branch L_Qstart")
    e("L_Binit:")
    for n in range(wpre, 3): emit(w_issue(n, "q"))
    e(f"s_lshl_b32 s{sTMP}, s{sG}, 2"); e(f"s_add_u32 s{sTMP}, s{sTMP}, s{sW}"); e(f"s_lshl_b32 s{sTMP}, s{sTMP}, 8")
    w_srd(sPF, 10)
    e(f"v_add_u32 v{vKA}, s{sKB}, v{vKA}"); e(f"v_add_u32 v{vVA}, s{sKB}, v{vVA}"); e(f"v_add_u32 v{vVA}, {VOFF}, v{vVA}")

    e("L_Qstart:")
    e("s_barrier")
    stamp("P0")
    proj("q", range(29))
    e(f"s_cmp_eq_u32 s{sROLE}, 0"); e("s_cbranch_scc0 L_QA")
    proj("q", (29, 30, 31), role=0, chain=chainQ)
    e("s_branch L_Qepi")
    e("L_QA:")
    proj("q", (29, 30, 31), role=1)
    e("L_Qepi:")
    c = f2u(math.log2(math.e) / math.sqrt(128.0))
    e(f"v_mov_b32 v{vT0}, {c:#x}"); e(f"v_mov_b32 v{vT1}, {c:#x}")
    pend = []
    def swaps():
        for pq in pend[-1:]: e(f"v_permlane16_swap_b32 v{pq}, v{pq+2}"); e(f"v_permlane16_swap_b32 v{pq+1}, v{pq+3}")
    for s in range(4):
        for qt in range(4):
            b = acc(2*s, qt); qq = Q + (qt*4 + s)*4
            for i in range(4): e(f"v_pk_mul_f32 {vr(b+2*i, 2)}, {vr(b+2*i, 2)}, {vr(vT0, 2)}")
            swaps()
            for i in range(4): e(f"v_cvt_pk_bf16_f32 v{qq+i}, v{b+2*i}, v{b+2*i+1}")
            pend.append(qq)
    e(f"s_mov_b32 s{sI}, 0"); e(f"s_cmp_eq_u32 s{sROLE}, 0")
    swaps()
    stamp("Qdone")
    e("s_cbranch_scc0 L_Aattn")

    for i in range(0, 128, 2): e(f"v_mov_b64 {vr(i, 2)}, 0")
    w_setup("o")
    if pa: xo_setup()
    x_voff()
    tm_ = len(tight) + len(tight2)
    if tm_:
        e(f"s_bfm_b32 s{sTMP}, s{sD}, 0"); e(f"s_and_b32 s3, s{sTMP}, {sum(1 << t for t in tight):#x}")
        e(f"s_andn2_b32 s{sTMP}, {sum(1 << t for t in tight2):#x}, s{sTMP}"); e(f"s_or_b32 s3, s3, s{sTMP}")
    e("s_waitcnt vmcnt(0)")
    e("s_barrier")
    e(f"s_cmp_eq_u32 s{sD}, 0"); e("s_cbranch_scc1 L_Bpause")
    e("L_Bgo:")
    e(f"s_cmp_eq_u32 s{sI}, 15"); e("s_cbranch_scc0 L_noE0"); e("s_barrier"); e("L_noE0:")
    e("s_waitcnt vmcnt(8)")
    if tl:
        e("s_memrealtime s[98:99]"); e("s_memtime s[96:97]"); e("s_waitcnt lgkmcnt(0)"); e(f"s_mov_b32 m0, s{sI}"); e("s_nop 0"); e(f"v_writelane_b32 v254, s98, m0")
        e(f"s_add_u32 m0, s{sI}, 16"); e("s_nop 0"); e(f"v_writelane_b32 v254, s96, m0")
    fill = []
    for qt in range(4): fill += exps(qt, 0)
    for qt in range(4): fill += cvts(qt, 0)
    qk(fill)
    if fastlast: e(f"s_cmp_eq_u32 s{sI}, 15"); e("s_cbranch_scc1 L_Blast")
    left = [x for x in fill if x.startswith("v_exp")]
    emit(fill)
    e(f"s_add_u32 s{sROT}, s{sROT}, 8192"); e(f"s_and_b32 s{sROT}, s{sROT}, 0x1ffff")
    e(f"s_add_u32 s{sI}, s{sI}, 1")
    if not fastlast: e(f"s_cmp_eq_u32 s{sI}, 16"); e("s_cbranch_scc1 L_Blast")
    lm = sum(1 << d for d in loose)
    if asym: e(f"s_cmp_eq_u32 s{sI}, s{sOO}"); e("s_cbranch_scc1 L_Bx0")
    if lm: e(f"s_bitcmp1_b32 {lm:#x}, s{sD}"); e("s_cbranch_scc1 L_lk")
    if tm_: e(f"s_bitcmp1_b32 s3, s{sI}"); e("s_cbranch_scc1 L_tk")
    emit(capped(k_issue(), capN))
    e("L_lkb:")
    e("s_waitcnt vmcnt(8)")
    e("L_Bpv:")
    pv_phase()
    if not fastlast: e(f"s_cmp_eq_u32 s{sI}, 16"); e("s_cbranch_scc1 L_Oepi")
    e(f"s_cmp_eq_u32 s{sI}, s{sD}"); e("s_cbranch_scc1 L_Bx")
    if lm: e(f"s_bitcmp1_b32 {lm:#x}, s{sD}"); e("s_cbranch_scc1 L_lv")
    emit(capped(v_issue(), capN))
    e("s_branch L_Bgo")
    if tm_: e("L_tk:"); emit(capped(k_issue(), capT)); e("s_branch L_lkb")
    if lm:
        e("L_lk:"); emit(capped(k_issue(), capL)); e("s_branch L_lkb")
        e("L_lv:"); emit(capped(v_issue(), capL)); e("s_branch L_Bgo")
    e("L_Blast:")
    def range_check():
        e(f"v_min3_f32 v{vT0}, v{L}, v{L+1}, v{L+2}"); e(f"v_add_f32 v{vT1}, v{L}, v{L+1}")
        e(f"v_min_f32 v{vT0}, v{vT0}, v{L+3}"); e(f"v_add_f32 v{vT1}, v{vT1}, v{L+2}"); e(f"v_add_f32 v{vT1}, v{vT1}, v{L+3}")
        e(f"v_cmp_nle_f32 vcc, {f2u(2.0**lo_exp):#x}, v{vT0}"); e("s_cbranch_vccnz L_slow")
        e(f"v_cmp_nge_f32 vcc, {f2u(2.0**hi_exp):#x}, v{vT1}"); e("s_cbranch_vccnz L_slow")
        if force_slow: e("s_branch L_slow")
    def recip():
        for qt in range(4): e(f"v_rcp_f32 v{L+qt}, v{L+qt}")
        if pa:
            e(f"v_and_b32 v{vT1}, 48, v{vLN}")
            for qt in range(4):
                for j in range(4): e(f"ds_bpermute_b32 v{RF + 4*qt + j}, v{vT1}, v{L+qt} offset:{4*j}")
            e(f"v_and_b32 v{vT0}, 15, v{vLN}"); e(f"v_mul_u32_u24 v{vT0}, {OROW}, v{vT0}")
            e(f"s_mul_i32 s{sTMP}, s{sW}, {CHUNK}"); e(f"s_add_u32 s{sTMP}, s{sTMP}, {XB}")
            e(f"v_lshrrev_b32 v{F}, 1, v{vT1}"); e(f"v_add3_u32 v{vT0}, v{vT0}, v{F}, s{sTMP}")
            return
        e(f"s_mul_i32 s{sTMP}, s{sW}, {CHUNK if asym else SLOT}"); e(f"v_add_u32 v{vT0}, s{sTMP}, v{vXA}")
    def scale(b, qt):
        sel = "op_sel_hi:[1,0]" if qt % 2 == 0 else "op_sel:[0,1]"
        return [f"v_pk_mul_f32 {vr(b+2*i, 2)}, {vr(b+2*i, 2)}, {vr(L + (qt & 2), 2)} {sel}" for i in range(4)]
    def ascale(s, qt):
        if not pa: return scale(acc(2*s, qt), qt)
        b = acc(2*s, qt)
        return [f"v_pk_mul_f32 {vr(b+2*i, 2)}, {vr(b+2*i, 2)}, {vr(RF + 4*qt + (2*i & 3), 2)}" for i in range(4)]
    def oput(s, qt):
        if not pa: return pack(s, qt) + [owr(s, qt)]
        out = []
        for dt in (2*s, 2*s + 1):
            b = acc(dt, qt)
            out += [f"v_cvt_pk_bf16_f32 v{b}, v{b}, v{b+1}", f"v_cvt_pk_bf16_f32 v{b+1}, v{b+2}, v{b+3}", f"ds_write_b64 v{vT0}, {vr(b, 2)} offset:{dt*16*OROW + qt*32}"]
        return out
    def owr(s, qt): return f"ds_write_b128 v{vT0}, {vr(acc(2*s, qt), 4)} offset:{xoff('o', 0, qt) + s*64}"
    if fastlast:
        if tl: e("v_mov_b32 v252, v254   ; v_writelane_b32 v247")
        e("L_lastA:")
        emit(left)
        for qt in range(4): emit(exps(qt, 1))
        for i in range(8):
            for qt in range(4): e(f"v_add_f32 v{L+qt}, v{L+qt}, v{S+qt*8+i}")
        lsum(); range_check(); recip()
        for qt in range(4): emit(scale(S + qt*8, qt))
        for qt in range(4): emit(cvts(qt, 0) + cvts(qt, 1))
        if pa: e("s_waitcnt lgkmcnt(0)")
        for s in range(3):
            for qt in range(4): emit(ascale(s, qt))
        e("s_waitcnt vmcnt(0)")
        rd = [f"ds_read_b64_tr_b16 {vr(Q + 4*dt + 2*u, 2)}, v{vVA} offset:{u*512 + dt*32}" for dt in range(8) for u in range(2)]
        emit(rd[:8])
        for qt in range(4): emit(ascale(3, qt)); emit(rd[8 + 2*qt:10 + 2*qt])
        e("s_waitcnt lgkmcnt(0)")
        if alast: e(f"s_cmp_eq_u32 s{sROLE}, 0"); e("s_cbranch_scc1 L_nb16"); e("s_barrier"); e("L_nb16:")
        stamp("attn_done")
        pendo = []
        for s in range(4):
            mf = [pvm(vr(acc(dt, qt), 4), vr(Q + 4*dt, 4), vr(S + qt*8, 4), vr(acc(dt, qt), 4)) for qt in range(4) for dt in ((2*s, 2*s + 1) if qt % 2 == 0 else (2*s + 1, 2*s))]
            for i, m in enumerate(mf):
                e(m); emit(pendo[len(pendo)*i//8:len(pendo)*(i + 1)//8])
            pendo = []
            for qt in range(4): pendo += oput(s, qt)
        emit(pendo)
        e("s_branch L_Owr")
    else:
        e("s_waitcnt vmcnt(0)"); e("s_branch L_Bpv")
    if asym:
        e("L_Bx0:"); emit(capped(x_half(0), capX)); e("s_branch L_lkb")
        e("L_Bv:"); emit(capped(v_issue(), capN)); e("s_branch L_Bpause")
    e("L_Bx:")
    if asym:
        e(f"s_cmp_eq_u32 s{sHI}, 0"); e("s_cbranch_scc1 L_Bv")
        emit(capped(x_half(1), capX))
    else: emit(capped(x_own(), capX))
    e("L_Bpause:")
    e("s_barrier")
    e(f"s_cmp_eq_u32 s{sW}, 0"); e("s_cbranch_scc0 L_nochk")
    dbg_srd(); poll(tmp=F)
    e("L_nochk:")
    for n in qbars:
        if n == 14: e("s_waitcnt vmcnt(0)")
        e("s_barrier")
    e("s_barrier")
    def half_item(t):
        e(f"s_add_u32 m0, s{sDK}, {XB + (t % 4)*CHUNK}")
        prev = 0
        for j in ((0, 2, 1, 3) if ibr else range(4)):
            for _ in range(abs(j - prev)): e(f"s_{'add' if j > prev else 'sub'}_u32 m0, m0, s{sIST}")
            prev = j
            e(f"buffer_load_dwordx4 v{vIT}, {srd(sIT)}, s{sROTA} offen offset:{j*1024} nt lds")
        e(f"s_add_u32 s{sROTA}, s{sROTA}, 8192"); e(f"s_and_b32 s{sROTA}, s{sROTA}, 0x1ffff")
    half_item(0); half_item(1); issued = 2
    for t in range(16):
        e(f"s_waitcnt vmcnt({4*(issued - t - 1)})"); e("s_barrier")
        while issued < min(16, t + depth + 1):
            half_item(issued); issued += 1
    for n in range(3): emit(w_issue(n, "o"))
    wo_srd(22)
    e("s_barrier"); e("s_waitcnt vmcnt(0)"); e("s_barrier"); e("s_barrier")
    if asym:
        e(f"s_cmp_eq_u32 s{sHI}, 0"); e("s_cbranch_scc1 L_Bgo")
        emit(k_issue())
    emit(v_issue())
    e("s_branch L_Bgo")

    FB = [F, F + 4, F + 8, 244, 248, 252]
    kb = [0, 1, 2, 3, 4, 5, 0, 1]
    vb = [FB[2], FB[3], FB[4], FB[5], FB[0], FB[1], S + 4, S + 12]
    def akr(f): return f"ds_read_b128 {vr(FB[kb[f]], 4)}, v{vKA} offset:{(f >> 2)*512 + (f & 3)*64}"
    def avr(dt): return [f"ds_read_b64_tr_b16 {vr(vb[dt] + 2*u, 2)}, v{vVA} offset:{u*512 + dt*32}" for u in range(2)]
    def weave(mf, fill):
        cost = [2 if x.startswith("v_exp") else 1 for x in fill]
        tot = sum(cost); cum = 0; k = 0
        for i, m in enumerate(mf):
            e(m)
            while k < len(fill) and (cum + cost[k]) * len(mf) <= (i + 1) * tot + len(mf) // 2:
                e(fill[k]); cum += cost[k]; k += 1
        emit(fill[k:])
    def atile(first, last=False):
        def apv(dt, qt): return pvm(vr(acc(dt, qt), 4), vr(vb[dt], 4), vr(S + qt*8, 4), '0' if first else vr(acc(dt, qt), 4))
        ex = exps(0, 0) + exps(1, 0) + exps(2, 0)
        if last: ex += [x for x in exps(3, 0) if x not in left]
        for f in range(8):
            u, sx = f >> 2, f & 3
            if f == 0: e("s_waitcnt lgkmcnt(2)")
            if f in (2, 4): e(f"s_waitcnt lgkmcnt({0 if (last and f == 4) else 4})")
            for qt in range(4):
                r = vr(Sr(qt, u), 4)
                e(f"{MF} {r}, {vr(FB[kb[f]], 4)}, {vr(Q + (qt*4 + sx)*4, 4)}, {r if sx else '0'}")
                if f == 0 and qt < 2: e(akr(4 + qt))
                if last:
                    if u == 1 and (f, qt) != (4, 0) and ex: e(ex.pop(0))
                    continue
                if f == 1 and qt == 0: e(f"s_add_u32 s{sI}, s{sI}, 1"); e(f"s_and_b32 s{sTMP}, s{sI}, 3")
                if f == 1 and qt == 1: e(f"s_cselect_b32 s{sDK}, s{sTMP2}, {(-3*CHUNK) & 0xffffffff:#x}")
                if f == 2 and qt == 0: e(f"v_add_u32 v{vKA}, s{sDK}, v{vKA}")
                if u == 1 and (f, qt) != (4, 0) and (qt < 3 or f == 7): e(ex.pop(0))
            if f < 2: e(akr(6 + f))
            elif not last: emit(avr(f - 2))
        assert not ex
        if last: return
        emit(exps(0, 1)); emit(cvts(0, 0)); emit(cvts(0, 1)); emit(avr(6))
        e("s_waitcnt lgkmcnt(6)")
        b0 = [apv(dt, 0) for dt in range(6)]
        b0[3] += "\ns_waitcnt lgkmcnt(2)"
        weave(b0, exps(1, 1) + cvts(1, 0) + cvts(1, 1))
        emit(avr(7))
        s0, s1, s2, s3 = (sums(qt) for qt in range(4))
        b1 = [apv(dt, 1) for dt in range(5, -1, -1)]
        b1[1] = s0[0] + "\n" + b1[1]; b1[3] = s0[1] + "\n" + b1[3]
        weave(b1, exps(2, 1) + cvts(2, 0) + cvts(2, 1))
        e(f"v_add_u32 v{vVA}, s{sDK}, v{vVA}")
        b2 = [apv(dt, 2) for dt in range(6)] + [apv(6, 0), apv(7, 0), apv(7, 1), apv(6, 1)]
        b2[0] = s1[0] + "\n" + b2[0]; b2[2] = s1[1] + "\n" + b2[2]; b2[4] = s2[0] + "\n" + b2[4]
        b2[6] = "s_waitcnt lgkmcnt(0)\n" + b2[6]
        weave(b2, exps(3, 0) + exps(3, 1) + cvts(3, 0) + cvts(3, 1))
        e(s2[1])
        e("s_barrier")
        for k, dt in enumerate((4, 5, 0, 1)):
            e(apv(dt, 3)); e(akr(k))
        e(s3[0]); e(apv(2, 3))
        e(f"s_cmp_eq_u32 s{sI}, {15 if alast else 16}")
        e(apv(3, 3)); e(s3[1])
        e(apv(6, 3)); e(apv(7, 3)); e(apv(7, 2)); e(apv(6, 2))
    e("L_Aattn:")
    e(f"s_mov_b32 s{sTMP2}, {CHUNK}")
    e("s_barrier")
    stamp("L0")
    if stamps and "L0" in stamps: e("s_waitcnt lgkmcnt(0)")
    for f in range(4): e(akr(f))
    atile(True)
    e("L_Aloop:")
    atile(False)
    e("s_cbranch_scc0 L_Aloop")
    if alast:
        assert fastlast
        atile(False, True)
    else: e("s_waitcnt lgkmcnt(0)")
    e(f"v_mbcnt_lo_u32_b32 v{vLN}, -1, 0"); e(f"v_mbcnt_hi_u32_b32 v{vLN}, -1, v{vLN}")
    e(f"v_lshlrev_b32 v{vDV}, 4, v{vLN}")
    wx_setup(not pa); w_setup("o")
    if pa: xo_setup()
    if alast: e("s_branch L_lastA")

    e("L_Oepi:")
    if tl and not fastlast:
        e(f"s_cmp_eq_u32 s{sROLE}, 0"); e("s_cbranch_scc0 L_tl0"); e("v_mov_b32 v252, v254   ; v_writelane_b32 v247"); e("L_tl0:")
    if not alast:
        stamp("attn_done")
        lsum()
        range_check()
    e("L_slow_back:")
    recip()
    if pa: e("s_waitcnt lgkmcnt(0)")
    for s in range(4):
        for qt in range(4):
            emit(ascale(s, qt)); emit(oput(s, qt))
    e("L_Owr:")
    e("s_waitcnt lgkmcnt(0)")
    e("s_barrier")
    stamp("Owritten")
    proj("o", range(29))
    e(f"s_cmp_eq_u32 s{sROLE}, 0"); e("s_cbranch_scc0 L_OA")
    ex = {30: [], 31: []}
    if early:
        seq = []
        for qt in range(4): seq += pack(0, qt) + pack(1, qt) + pstore(0, qt)
        slots = [(30, g) for g in range(4, 8)] + [(n, g) for n in (30, 31) for g in range(16) for _ in range(2) if (n, g) >= (30, 8)]
        assert len(slots) >= len(seq)
        for (n, g), x in zip(slots, seq): ex[n].append((g, x))
    proj("o", (29, 30, 31), ex, role=0)
    stamp("Odone")
    e("s_branch L_store1" if early else "s_branch L_store0")
    e("L_OA:")
    proj("o", (29, 30, 31), role=1, chain=chainO)
    stamp("Odone")
    e(f"s_setprio {prioP}")
    if not chainO:
        for n in range(3): emit(w_issue(n, "o", sPF))
    pm = sum(1 << d for d in pubd)
    if pm: e(f"s_bitcmp1_b32 {pm:#x}, s{sD}"); e("s_cbranch_scc1 L_store0")
    e("s_barrier")
    pl = sum(1 << d for d in publ)
    if pl: e(f"s_bitcmp1_b32 {pl:#x}, s{sD}"); e("s_cbranch_scc0 L_store0"); e("s_waitcnt vmcnt(0)"); e("s_barrier")
    e("L_store0:")
    for qt in range(4): emit(pack(0, qt) + pack(1, qt) + pstore(0, qt))
    e("L_store1:")
    for qt in range(4): emit(pack(2, qt) + pack(3, qt) + pstore(1, qt))
    stamp("issued")
    if pm:
        e(f"s_lshr_b32 s{sTMP}, {pm:#x}, s{sD}"); e(f"s_and_b32 s{sTMP}, s{sTMP}, s{sROLE}"); e("s_cbranch_scc0 L_nolate"); e("s_barrier"); e("L_nolate:")
    if prioP: e("s_setprio 0")
    e("s_waitcnt vmcnt(14)")
    if pl: e(f"s_lshr_b32 s{sTMP}, {pl:#x}, s{sD}"); e(f"s_and_b32 s{sTMP}, s{sTMP}, s{sROLE}"); e("s_cbranch_scc1 L_passed")
    e("s_barrier")
    e("L_passed:")
    keep = []
    for p in range(8):
        lk = lab("kp"); keep.append(lk)
        if p < 7: e(f"s_cmp_eq_u32 s{sG}, {p}"); e(f"s_cbranch_scc1 {lk}")
    for p in range(7, -1, -1):
        e(f"{keep[p]}:")
        for f in range(2): unpack(RK + 8*f, acc(2*(2*(p & 1) + f), p >> 1))
        if p: e("s_branch L_kept")
    e("L_kept:")
    e(f"s_xor_b32 s{sTMP2}, s{sROLE}, 1")
    e(f"s_lshl_b32 s{sTMP}, s{sTMP2}, 5"); e(f"s_add_u32 s{sTMP}, s{sTMP}, s{sB}"); e(f"s_lshl_b32 s{sTMP}, s{sTMP}, 19")
    if cmaj:
        e(f"s_lshl_b32 s{sRO}, s{sG}, 16"); e(f"s_add_u32 s{sTMP}, s{sTMP}, s{sRO}")
        mk_srd(sP, 28, 0x10000)
        e(f"s_lshl_b32 s{sRO}, s{sG}, 2"); e(f"s_add_u32 s{sRO}, s{sRO}, s{sW}"); e(f"s_lshl_b32 s{sRO}, s{sRO}, 11")
    else:
        mk_srd(sP, 28, 0x80000)
        e(f"s_mul_i32 s{sRO}, s{sG}, {65536 + 2048}"); e(f"s_lshl_b32 s{sTMP}, s{sW}, 14"); e(f"s_add_u32 s{sRO}, s{sRO}, s{sTMP}")
    e(f"s_lshl_b32 s{sTMP}, s{sB}, 17"); mk_srd(sIT, 24, 0x20000)
    e(f"s_lshl_b32 s{sOO}, s{sTMP2}, 10")
    e(f"s_lshr_b32 s{sTMP}, s{sG}, 1"); e(f"s_lshl_b32 s{sTMP}, s{sTMP}, 15"); e(f"s_add_u32 s{sOO}, s{sOO}, s{sTMP}")
    e(f"s_lshl_b32 s{sTMP}, s{sW}, 8"); e(f"s_add_u32 s{sOO}, s{sOO}, s{sTMP}")
    e(f"s_and_b32 s{sTMP}, s{sG}, 1"); e(f"s_lshl_b32 s{sTMP}, s{sTMP}, 7"); e(f"s_add_u32 s{sOO}, s{sOO}, s{sTMP}")
    e(f"v_and_b32 v{vT0}, {7 if fullrow else 15}, v{vLN}"); e(f"v_lshlrev_b32 v{vKA}, 11, v{vT0}")
    if fullrow:
        e(f"v_bfe_u32 v{vT0}, v{vLN}, 3, 1"); e(f"v_lshl_add_u32 v{vKA}, v{vT0}, 6, v{vKA}"); e(f"s_add_u32 s{sI}, s{sOO}, 16384")
    e(f"v_bfe_u32 v{vT0}, v{vLN}, 4, 1"); e(f"v_lshl_add_u32 v{vKA}, v{vT0}, 5, v{vKA}")
    e(f"v_lshrrev_b32 v{vT0}, 5, v{vLN}"); e(f"v_lshl_add_u32 v{vKA}, v{vT0}, 4, v{vKA}")
    e(f"s_cmp_eq_u32 s{sROLE}, 0"); e("s_cbranch_scc0 L_Apub")
    flag_srd(1)
    lds_arrive(1, "L_Bwait")
    def first_add(done):
        e(f"buffer_atomic_add v{vT1}, off, {srd(sPF)}, s{sOFF} sc0")
        e("s_waitcnt vmcnt(0)")
        e(f"v_readfirstlane_b32 s{sTMP}, v{vT1}")
        e(f"s_cmp_ge_u32 s{sTMP}, 7"); e(f"s_cbranch_scc1 {done}")
    poll(first_add)
    e(f"v_mov_b32 v{vT0}, {CNT + 8}"); e(f"v_mov_b32 v{vT1}, 1")
    e(f"ds_write_b32 v{vT0}, v{vT1}")
    e("s_branch L_final")
    e("L_Bwait:")
    e(f"v_mov_b32 v{vT0}, {CNT + 8}")
    e("L_Bspin:")
    e(f"ds_read_b32 v{vT1}, v{vT0}")
    e("s_waitcnt lgkmcnt(0)")
    e(f"v_readfirstlane_b32 s{sTMP}, v{vT1}")
    e(f"s_cmp_eq_u32 s{sTMP}, 0"); e("s_cbranch_scc1 L_Bspin")
    e("s_branch L_final")
    e("L_Apub:")
    flag_srd(0)
    lds_arrive(0, "L_nosig")
    e(f"buffer_atomic_add v{vT1}, off, {srd(sPF)}, s{sOFF}")
    e("L_nosig:")
    e("s_mov_b64 exec, -1")
    stamp("pubA")
    e("s_barrier")
    e(f"s_cmp_eq_u32 s{sW}, 0"); e("s_cbranch_scc0 L_nopoll")
    poll()
    e("L_nopoll:")
    e("s_barrier")
    rl = []
    for k in range(7):
        rl += [f"s_add_u32 s{sRO}, s{sRO}, {0x2000 if cmaj else 0x10000:#x}", f"s_and_b32 s{sRO}, s{sRO}, {0xffff if cmaj else 0x7ffff:#x}"]
        rl += [f"buffer_load_dwordx4 {vr(RL + 8*k + 4*f, 4)}, v{vDV}, {srd(sP)}, s{sRO} offen offset:{f*1024} sc1" for f in range(2)]
    if capA: emit(capped(rl, capA)); e("s_branch L_sum")
    e("L_final:")
    e("s_mov_b64 exec, -1")
    stamp("flag")
    emit(rl)
    e("L_sum:")
    for k in range(7):
        for f in range(2):
            e(f"s_waitcnt vmcnt({(6 - k)*2 + 1 - f})")
            dst, tmp = RK + 8*f, RK + 16 + 8*f
            unpack(tmp, RL + 8*k + 4*f)
            for i in range(8): e(f"v_add_f32 v{dst+i}, v{dst+i}, v{tmp+i}")
            if k == 6:
                for i in range(4): e(f"v_cvt_pk_bf16_f32 v{dst+i}, v{dst+2*i}, v{dst+2*i+1}")
    stamp("summed")
    for f in range(2):
        dst = RK + 8*f
        e(f"v_permlane16_swap_b32 v{dst}, v{dst+2}"); e(f"v_permlane16_swap_b32 v{dst+1}, v{dst+3}")
        if not fullrow: e(f"buffer_store_dwordx4 {vr(dst, 4)}, v{vKA}, {srd(sIT)}, s{sOO} offen offset:{f*64} sc1")
    if fullrow:
        for i in range(4): e(f"v_mov_b32 v{RK+4+i}, v{RK+i}")
        for i in range(4): e(f"v_mov_b32_dpp v{RK+i}, v{RK+8+i} row_ror:8 row_mask:0xf bank_mask:0xc")
        e(f"buffer_store_dwordx4 {vr(RK, 4)}, v{vKA}, {srd(sIT)}, s{sOO} offen sc1")
        for i in range(4): e(f"v_mov_b32_dpp v{RK+8+i}, v{RK+4+i} row_ror:8 row_mask:0xf bank_mask:0x3")
        e(f"buffer_store_dwordx4 {vr(RK+8, 4)}, v{vKA}, {srd(sIT)}, s{sI} offen sc1")
    if stamps:
        e("s_waitcnt vmcnt(0)")
        stamp("end")
        e("s_memtime s[4:5]")
        e("s_waitcnt lgkmcnt(0)")
        e("s_sub_u32 s4, s4, s100")
        e(f"s_lshl_b32 s{sTMP}, s2, 1"); e(f"s_add_u32 s{sTMP}, s{sTMP}, s{sROLE}"); e(f"s_lshl_b32 s{sTMP}, s{sTMP}, 2"); e(f"s_add_u32 s{sTMP}, s{sTMP}, s{sW}")
        e(f"s_lshl_b32 s{sTMP}, s{sTMP}, 7")
        e(f"s_add_u32 s{sPF}, s28, 0x4000000"); e(f"s_addc_u32 s{sPF+1}, s29, 0"); e(f"s_mov_b32 s{sPF+2}, 0x100000"); e(f"s_mov_b32 s{sPF+3}, 0x20000")
        for i in range(16): e(f"v_mov_b32 v{i}, s{sST+i}")
        e(f"v_mov_b32 v16, s4"); e("v_mov_b32 v17, 0"); e("v_mov_b32 v18, 0"); e("v_mov_b32 v19, 0")
        e(f"v_mov_b32 v20, s{sTMP}")
        if tl:
            e(f"v_lshl_add_u32 v21, v{vLN}, 2, v20"); e("s_mov_b32 exec_hi, 0"); e(f"s_mov_b32 s{sOFF}, 0x80000")
            e(f"buffer_store_dword v252, v21, {srd(sPF)}, s{sOFF} offen")
        e("s_mov_b64 exec, 1")
        for i in range(5): e(f"buffer_store_dwordx4 {vr(4*i, 4)}, v20, {srd(sPF)}, 0 offen offset:{16*i}")
    e("L_end:")
    e("s_endpgm")

    e("L_slow:")
    e(f"s_cmp_eq_u32 s{sROLE}, 0"); e("s_cbranch_scc1 L_slowB")
    dk_setup()
    if alast:
        e("s_barrier")
        e(f"v_add_u32 v{vKA}, {(-3*CHUNK) & 0xffffffff:#x}, v{vKA}"); e(f"v_add_u32 v{vVA}, {(-3*CHUNK) & 0xffffffff:#x}, v{vVA}")
    if asym: e(f"s_mul_i32 s{sKB}, s{sW}, {CHUNK}")
    e(f"v_add_u32 v{vKA}, s{sKB}, v{vKA}"); e(f"v_add_u32 v{vVA}, s{sKB}, v{vVA}"); e(f"v_add_u32 v{vVA}, {VOFF - SLOT}, v{vVA}")
    e(f"s_add_u32 s{sKB}, s{sKB}, {XB}")
    e("L_slowB:")
    e(f"v_add_u32 v{vVA}, {(-VOFF) & 0xffffffff:#x}, v{vVA}")
    for i in range(0, 128, 2): e(f"v_mov_b64 {vr(i, 2)}, 0")
    for i in range(4): e(f"v_mov_b32 v{L+i}, 0"); e(f"v_mov_b32 v{M+i}, {f2u(-3.0e38):#x}")
    e(f"s_mov_b32 s{sROT}, 0")
    e("L_slowloop:")
    emit(k_issue())
    e("s_waitcnt vmcnt(0)")
    qk(None)
    emit(kv_issue(sV, vDV, 0, VBLK))
    for qt in range(4):
        b = S + qt*8; t = F + 2*qt
        e(f"v_max3_f32 v{t}, v{b}, v{b+1}, v{b+2}"); e(f"v_max3_f32 v{t}, v{t}, v{b+3}, v{b+4}")
        e(f"v_max3_f32 v{t}, v{t}, v{b+5}, v{b+6}"); e(f"v_max3_f32 v{t}, v{t}, v{b+7}, v{M+qt}")
        xlane("v_max_f32", [t], [vT0])
        e(f"v_sub_f32 v{t+1}, v{M+qt}, v{t}"); e(f"v_mov_b32 v{M+qt}, v{t}")
        e(f"v_exp_f32 v{t+1}, v{t+1}")
        for i in range(8): e(f"v_sub_f32 v{b+i}, v{b+i}, v{M+qt}")
        e(f"v_mul_f32 v{L+qt}, v{L+qt}, v{t+1}")
        if pa:
            e(f"v_and_b32 v{vT1}, 48, v{vLN}")
            for j in range(4): e(f"ds_bpermute_b32 v{F + 8 + j}, v{vT1}, v{t+1} offset:{4*j}")
            e("s_waitcnt lgkmcnt(0)")
        for dt in range(8):
            for i in range(0, 4, 2):
                e(f"v_pk_mul_f32 {vr(acc(dt, qt)+i, 2)}, {vr(acc(dt, qt)+i, 2)}, " + (vr(F + 8 + i, 2) if pa else f"{vr(t, 2)} op_sel:[0,1]"))
        emit(exps(qt, 0)); emit(cvts(qt, 0))
    e("s_waitcnt vmcnt(0)")
    pv_phase()
    e(f"s_add_u32 s{sROT}, s{sROT}, 8192"); e(f"s_cmp_lt_u32 s{sROT}, 0x20000"); e("s_cbranch_scc1 L_slowloop")
    lsum()
    w_setup("o")
    e("s_branch L_slow_back")
    e("L_last:")

    e('.section .rodata,"a"')
    e(".p2align 6"); e(f".amdhsa_kernel {NAME}_kernel")
    for l in [".amdhsa_next_free_vgpr 256", ".amdhsa_next_free_sgpr 102", ".amdhsa_accum_offset 256", ".amdhsa_group_segment_fixed_size 0",
              ".amdhsa_kernarg_size 104", ".amdhsa_user_sgpr_count 2", ".amdhsa_user_sgpr_kernarg_segment_ptr 1", ".amdhsa_system_sgpr_workgroup_id_x 1",
              ".amdhsa_float_denorm_mode_32 3"]:
        e("  " + l)
    e(".end_amdhsa_kernel")
    if mergew:
        out = []
        for x in a.ins:
            if out and x.text.startswith("s_waitcnt vmcnt(") and "lgkm" not in x.text and out[-1].text == "s_waitcnt lgkmcnt(0)":
                out[-1] = type(x)(x.text + " lgkmcnt(0)")
            else: out.append(x)
        a.ins = out
    n = a.pad()
    return a.text(), n

if __name__ == "__main__":
    kw = eval("dict(" + (sys.argv[2] if len(sys.argv) > 2 else "") + ")")
    txt, n = gen(**kw)
    out = sys.argv[1] if len(sys.argv) > 1 else f"cdna_kernels/{NAME}.s"
    open(out, "w").write(txt)
    print("pad states:", n, "lines:", txt.count("\n"), "LDS", LDS)
```
